```python
import torch

def _softmax(x, axis=-1):
    return torch.softmax(x, dim=axis)
def _gelu(x):
    return torch.nn.functional.gelu(x, approximate="tanh")
def _silu(x):
    return torch.nn.functional.silu(x)
def _sigmoid(x):
    return torch.sigmoid(x)
def _layernorm(x, axis=-1, eps=1e-5):
    m = x.mean(dim=axis, keepdim=True)
    v = x.var(dim=axis, keepdim=True, unbiased=False)
    return (x - m) / torch.sqrt(v + eps)
def _scatter_add(tgt, idx, src, axis=0):
    return tgt.clone().index_add_(axis, idx, src)
def _segment_sum(src, seg, n):
    out = torch.zeros((n,) + src.shape[1:], dtype=src.dtype)
    return out.index_add_(0, seg, src)
def _pad(x, pw):
    flat = tuple(v for pair in reversed(pw) for v in pair)
    return torch.nn.functional.pad(x, flat)

kernel_name = 'concat_heads__mha_block__mha_block__prompt'

def setup_inputs():

    _w = (lambda a: (lambda t: t.to(torch.bfloat16) if t.is_floating_point() else t)(torch.as_tensor(a)))
    def _A_setup():
        B, S, D, H = 1, 2048, 576, 32
        return {
            "x": _w((lambda *s: torch.randn(*s, dtype=torch.bfloat16) * 0.2)(B, S, D)),
            "wqkv": _w((lambda *s: torch.randn(*s, dtype=torch.bfloat16) * 0.2)(D, 3 * D)),
            "wo": _w((lambda *s: torch.randn(*s, dtype=torch.bfloat16) * 0.05)(D, D)),
        }
    _A_in = _A_setup()

    def _B_setup():
        B, S, D, H = 1, 2048, 576, 32
        return {
            "x": _w((lambda *s: torch.randn(*s, dtype=torch.bfloat16) * 0.2)(B, S, D)),
            "wqkv": _w((lambda *s: torch.randn(*s, dtype=torch.bfloat16) * 0.2)(D, 3 * D)),
            "wo": _w((lambda *s: torch.randn(*s, dtype=torch.bfloat16) * 0.05)(D, D)),
        }
    _B_in = _B_setup()

    return {
        "A_x": _A_in["x"],
        "A_wqkv": _A_in["wqkv"],
        "A_wo": _A_in["wo"],
        "B_x": _B_in["x"],
        "B_wqkv": _B_in["wqkv"],
        "B_wo": _B_in["wo"],
    }

def reference(A_x, A_wqkv, A_wo, B_x, B_wqkv, B_wo):
    def _A_ref(x, wqkv, wo):
        B, S, D = x.shape
        H = 32
        Dh = D // H
        qkv = (lambda x, *d: x.permute(*d))((x @ wqkv).reshape(B, S, 3, H, Dh), 2, 0, 3, 1, 4)
        q, k, v = qkv[0], qkv[1], qkv[2]
        scores = torch.einsum("bhqd,bhkd->bhqk", q, k) * (Dh ** -0.5)
        p = _softmax(scores, axis=-1)
        o = torch.einsum("bhqk,bhkd->bhqd", p, v)
        return (lambda x, *d: x.permute(*d))(o, 0, 2, 1, 3).reshape(B, S, D) @ wo

    def _B_ref(x, wqkv, wo):
        B, S, D = x.shape
        H = 32
        Dh = D // H
        qkv = (lambda x, *d: x.permute(*d))((x @ wqkv).reshape(B, S, 3, H, Dh), 2, 0, 3, 1, 4)
        q, k, v = qkv[0], qkv[1], qkv[2]
        scores = torch.einsum("bhqd,bhkd->bhqk", q, k) * (Dh ** -0.5)
        p = _softmax(scores, axis=-1)
        o = torch.einsum("bhqk,bhkd->bhqd", p, v)
        return (lambda x, *d: x.permute(*d))(o, 0, 2, 1, 3).reshape(B, S, D) @ wo

    a = _A_ref(A_x, A_wqkv, A_wo)
    b = _B_ref(B_x, B_wqkv, B_wo)
    return torch.concatenate([a, b], axis=-1)
```

```python
class A:
    def __init__(self):
        self.lines = []
    def __call__(self, s=""):
        for l in s.split("\n"):
            t = l.strip()
            if not t: continue
            self.lines.append(t if (t.endswith(":") or t.startswith(".")) else "    " + t)
    def label(self, n): self.lines.append(n + ":")
    def text(self): return "\n".join(self.lines) + "\n"
def kdesc(name, vgpr, sgpr=102, accum=None):
    accum = accum if accum is not None else (vgpr + 3) // 4 * 4
    return f""".section .rodata,"a"
.p2align 6
.amdhsa_kernel {name}
  .amdhsa_next_free_vgpr {vgpr}
  .amdhsa_next_free_sgpr {sgpr}
  .amdhsa_accum_offset {accum}
  .amdhsa_group_segment_fixed_size 0
  .amdhsa_kernarg_size 72
  .amdhsa_user_sgpr_count 2
  .amdhsa_user_sgpr_kernarg_segment_ptr 1
  .amdhsa_system_sgpr_workgroup_id_x 1
.end_amdhsa_kernel
.text
"""
QM_OFF = 0
KM_OFF = 4 << 20
VT_OFF = 8 << 20
VT_STRIDE = 73728
QR_OFF = 13 << 20
KR_OFF = 13 * (1 << 20) + (1 << 19)
OM_OFF = 14 << 20
OR_OFF = 18 << 20
FLAG_OFF = 19 << 20
WS_USED = 20 << 20
X_BYTES = 2048 * 576 * 2
W_BYTES = 576 * 1728 * 2
WO_BYTES = 576 * 576 * 2
OUT_BYTES = 2048 * 1152 * 2
import math
QSCALE = (18 ** -0.5) * math.log2(math.e)
import struct
def f32bits(x): return struct.unpack("<I", struct.pack("<f", x))[0]
```

```python
from asmlib import *
K1_STAGE = 49664
K1_LDS = 3 * K1_STAGE
K1_THREADS = 256
WREG = 32768
def T0(s): return (27 * s) >> 2

def gen_k1(name="k1_qkv_kernel", opts=None):
    o = dict(stamp=False)
    if opts: o.update(opts)
    a = A()
    vXD = lambda i: 16 + i
    vWD = lambda i: 24 + i
    vX = lambda st, ks: 28 + 2*st + ks
    vW = lambda st: 34 + st
    XF = lambda p, i: 40 + 16*p + 4*i
    WF = lambda p, c: 72 + 28*p + 4*c
    ACC = lambda i, c: 128 + 4*(4*c + i)
    a(f".globl {name}\n.p2align 8\n.type {name},@function")
    a.label(name)
    a(f"""s_cmp_ge_u32 s2, 256
s_cbranch_scc1 L_{name}_end
s_load_dwordx4 s[4:7], s[0:1], 0
s_load_dwordx4 s[24:27], s[0:1], 24
s_load_dwordx2 s[28:29], s[0:1], 64
v_lshrrev_b32 v1, 6, v0
v_and_b32 v0, 63, v0
s_and_b32 s30, s2, 7
s_lshr_b32 s31, s2, 3
v_readfirstlane_b32 s32, v1
s_lshr_b32 s33, s30, 2
s_and_b32 s34, s30, 1
s_lshl_b32 s34, s34, 2
s_and_b32 s35, s31, 3
s_add_u32 s34, s34, s35
s_lshr_b32 s35, s30, 1
s_and_b32 s35, s35, 1
s_lshl_b32 s35, s35, 3
s_lshr_b32 s36, s31, 2
s_add_u32 s35, s35, s36
s_mul_i32 s36, s35, 27
s_lshr_b32 s36, s36, 2""")
    if o["stamp"]:
        a("s_memtime s[60:61]")
        a("s_memrealtime s[62:63]")
    a(f"""v_lshrrev_b32 v2, 3, v0
v_and_b32 v3, 7, v0
v_lshrrev_b32 v4, 4, v0
v_xor_b32 v5, v3, v4
v_mul_u32_u24 v6, 1152, v2
v_lshl_add_u32 v7, v5, 4, v6
v_xor_b32 v8, 64, v7""")
    for i in range(8):
        a(f"v_add_u32 v{vXD(i)}, {9216*i}, v{7 if i % 2 == 0 else 8}")
    a(f"""v_and_b32 v2, 1, v4
v_lshrrev_b32 v3, 1, v4
v_lshlrev_b32 v2, 2, v2
v_lshl_add_u32 v2, v3, 4, v2
v_mul_u32_u24 v2, 3456, v2
v_and_b32 v3, 15, v0
v_lshl_add_u32 v2, v3, 4, v2
v_mov_b32 v5, 0x40000000
v_cmp_gt_u32 vcc, 14, v3
s_nop 1
v_cndmask_b32 v2, v5, v2, vcc""")
    for i in range(4):
        a(f"v_add_u32 v{vWD(i)}, {3456*i}, v2")
    a(f"""v_and_b32 v3, 15, v0
v_lshrrev_b32 v5, 1, v3
v_xor_b32 v5, v5, v4
v_lshlrev_b32 v5, 4, v5
v_lshl_add_u32 v5, v3, 7, v5
s_lshl_b32 s37, s32, 13
v_add_u32 v5, s37, v5
v_xor_b32 v6, 64, v5""")
    for st in range(3):
        a(f"v_add_u32 v{vX(st,0)}, {st*K1_STAGE}, v5")
        a(f"v_add_u32 v{vX(st,1)}, {st*K1_STAGE}, v6")
    a(f"""v_lshrrev_b32 v5, 2, v3
v_and_b32 v6, 1, v4
v_lshl_add_u32 v5, v6, 2, v5
v_mul_u32_u24 v5, 1056, v5
v_lshrrev_b32 v6, 1, v4
v_lshl_add_u32 v5, v6, 9, v5
v_and_b32 v6, 3, v3
v_lshl_add_u32 v5, v6, 3, v5""")
    for st in range(3):
        a(f"v_add_u32 v{vW(st)}, {st*K1_STAGE + WREG}, v5")
    a(f"""s_waitcnt lgkmcnt(0)
s_cmp_eq_u32 s33, 0
s_cselect_b32 s8, s4, s24
s_cselect_b32 s9, s5, s25
s_cselect_b32 s12, s6, s26
s_cselect_b32 s13, s7, s27
s_mov_b32 s10, {X_BYTES}
s_mov_b32 s11, 0x00020000
s_mov_b32 s14, {W_BYTES}
s_mov_b32 s15, 0x00020000
s_mov_b32 s16, s28
s_mov_b32 s17, s29
s_mov_b32 s18, {WS_USED}
s_mov_b32 s19, 0x00020000
s_lshl_b32 s20, s34, 8
s_lshl_b32 s21, s32, 6
s_add_u32 s38, s20, s21
s_mul_i32 s20, s38, 1152
s_lshr_b32 s21, s32, 1
s_lshl_b32 s21, s21, 5
s_and_b32 s22, s32, 1
s_lshl_b32 s23, s22, 3
s_add_u32 s21, s21, s23
s_mul_i32 s21, s21, 3456
s_lshl_b32 s23, s36, 5
s_add_u32 s21, s21, s23
s_lshr_b32 s23, s32, 1
s_mul_i32 s23, s23, 8448
s_mul_i32 s22, s22, {4*1056}
s_add_u32 s23, s23, s22
s_add_u32 s23, s23, {WREG}
s_mov_b32 s22, s37""")
    def dma_units(cc):
        st = cc % 3
        U = [[f"s_add_u32 m0, s22, {st*K1_STAGE}"]]
        for i in range(8):
            U.append([f"buffer_load_dwordx4 v{vXD(i)}, s[8:11], s20 offen lds",
                      "s_add_u32 m0, m0, 1024" if i < 7 else f"s_add_u32 m0, s23, {st*K1_STAGE}"])
        for i in range(4):
            u = [f"buffer_load_dwordx4 v{vWD(i)}, s[12:15], s21 offen lds"]
            if i < 3: u.append("s_add_u32 m0, m0, 1056")
            else: u += ["s_add_u32 s20, s20, 128", f"s_add_u32 s21, s21, {64*3456}"]
            U.append(u)
        return U
    def dma_list(cc):
        U = dma_units(cc)
        return U[0] + ["s_nop 0"] + [x for u in U[1:] for x in u]
    for cc in range(2):
        for x in dma_list(cc): a(x)
    a(f"""s_add_u32 s39, s35, 1
s_mul_i32 s39, s39, 27
s_lshr_b32 s39, s39, 2
s_sub_u32 s39, s39, s36
s_cmp_ge_u32 s36, 72
s_cbranch_scc1 L_{name}_vsel
s_cmp_eq_u32 s36, 67
s_cbranch_scc1 L_{name}_v75
s_cmp_eq_u32 s39, 6
s_cbranch_scc1 L_{name}_v66
s_branch L_{name}_v77""")
    a.label(f"L_{name}_vsel")
    a(f"""s_cmp_eq_u32 s39, 6
s_cbranch_scc1 L_{name}_v60
s_branch L_{name}_v70""")

    def variant(n, nT):
        tag = f"v{n}{nT}"
        a.label(f"L_{name}_{tag}")
        def reads(g):
            cc, ks = g // 2, g % 2
            st, p = cc % 3, g & 1
            L = []
            for c in range(n):
                if c < 4: L.append(f"ds_read_b128 v[{XF(p,c)}:{XF(p,c)+3}], v{vX(st,ks)} offset:{2048*c}")
                for tr in range(2):
                    L.append(f"ds_read_b64_tr_b16 v[{WF(p,c)+2*tr}:{WF(p,c)+2*tr+1}], v{vW(st)} offset:{ks*8448 + tr*256 + 32*c}")
            return L
        def mfmas(g):
            p = g & 1
            L = []
            for c in range(n):
                for i in range(4):
                    acc = f"v[{ACC(i,c)}:{ACC(i,c)+3}]"
                    cin = acc if g > 0 else "0"
                    w = f"v[{WF(p,c)}:{WF(p,c)+3}]"; x = f"v[{XF(p,i)}:{XF(p,i)+3}]"
                    if c < nT: L.append(f"v_mfma_f32_16x16x32_bf16 {acc}, {w}, {x}, {cin}")
                    else:      L.append(f"v_mfma_f32_16x16x32_bf16 {acc}, {x}, {w}, {cin}")
            return L
        a("s_waitcnt vmcnt(12)")
        a("s_barrier")
        if o["stamp"]: a("s_memtime s[64:65]")
        for x in reads(0): a(x)
        NG = 18
        for g in range(NG):
            cc, ks = g // 2, g % 2
            fill = []
            if ks == 1 and cc < 8:
                rem = min(8, cc + 2) - (cc + 1)
                a(f"s_waitcnt vmcnt({12*rem}) lgkmcnt(0)")
                a("s_barrier")
            else:
                a("s_waitcnt lgkmcnt(0)")
            rd = reads(g + 1) if g + 1 < NG else []
            units = []
            if g == 0: units = dma_units(2)
            elif ks == 1 and cc + 3 <= 8: units = dma_units(cc + 3)[:7]
            elif ks == 0 and cc + 2 <= 8 and cc >= 1: units = dma_units(cc + 2)[7:]
            M = mfmas(g)
            nM = len(M)
            slots = [[] for _ in range(nM)]
            for idx, x in enumerate(rd): slots[min(idx, nM-1)].append(x)
            for idx, u in enumerate(units):
                pos = min(nM-1, (idx * nM) // len(units))
                slots[pos] += u
            for m, sl in zip(M, slots):
                a(m)
                for x in sl: a(x)
        if o["stamp"]: a("s_memtime s[66:67]")
        a(f"s_branch L_{name}_epi{n}{nT}")
    variants = [(7,7),(6,6),(7,5),(7,0),(6,0)]
    for n, nT in variants: variant(n, nT)

    def epilogue(n, nT):
        a.label(f"L_{name}_epi{n}{nT}")
        a("s_nop 7")
        a("v_and_b32 v3, 15, v0")
        a("v_lshrrev_b32 v4, 4, v0")
        if nT:
            a(f"""s_lshr_b32 s40, s38, 5
s_lshl_b32 s40, s40, 10
v_lshl_add_u32 v5, v3, 4, s40
s_lshl_b32 s41, s38, 3
v_lshl_add_u32 v6, v3, 3, s41
s_lshl_b32 s42, s33, 21
s_lshl_b32 s43, s33, 18
s_mov_b32 s44, {f32bits(QSCALE)}
s_mov_b32 s45, 7282""")
            for c in range(nT):
                A0, SB, SC = 8, 9, 10
                a(f"""s_add_u32 s46, s36, {c}
s_cmp_ge_u32 s46, 36
s_cselect_b32 s47, 36, 0
s_cselect_b32 s48, {KM_OFF}, {QM_OFF}
s_mov_b32 s49, {QR_OFF}
s_cselect_b32 s49, {KR_OFF}, s49
s_cselect_b32 s50, 1.0, s44
s_sub_u32 s46, s46, s47
s_lshl_b32 s46, s46, 2
s_add_u32 s48, s48, s42
s_add_u32 s49, s49, s43
v_add_u32 v11, s46, v4
v_mul_u32_u24 v12, s45, v11
v_lshrrev_b32 v12, 16, v12
v_mul_u32_u24 v13, 9, v12
v_sub_u32 v13, v11, v13
v_cmp_lt_u32 vcc, 4, v13
v_subrev_u32 v14, 5, v13
v_lshlrev_b32 v15, 1, v12
v_cndmask_b32 v14, v13, v14, vcc
s_nop 0
v_addc_co_u32 v15, vcc, 0, v15, vcc
v_lshlrev_b32 v15, 16, v15
v_lshrrev_b32 v11, 1, v14
v_lshl_add_u32 v15, v11, 9, v15
v_and_b32 v11, 1, v14
v_lshl_add_u32 v15, v11, 3, v15
v_add3_u32 v15, v15, v5, s48
v_lshlrev_b32 v11, 14, v12
v_add3_u32 v11, v11, v6, s49
v_cmp_eq_u32 vcc, 4, v13
v_mov_b32 v{SB}, 256
v_mov_b32 v{SC}, 1024
v_cndmask_b32 v{A0}, v15, v11, vcc
v_mov_b32 v11, 128
v_cndmask_b32 v{SB}, v{SB}, v11, vcc
v_mov_b32 v11, 256
v_cndmask_b32 v{SC}, v{SC}, v11, vcc""")
                for i in range(4):
                    r = ACC(i, c); P = 240 + 2*i
                    a(f"v_pk_mul_f32 v[{r}:{r+1}], v[{r}:{r+1}], s[50:51] op_sel_hi:[1,0]")
                    a(f"v_pk_mul_f32 v[{r+2}:{r+3}], v[{r+2}:{r+3}], s[50:51] op_sel_hi:[1,0]")
                    a(f"v_cvt_pk_bf16_f32 v{P}, v{r}, v{r+1}")
                    a(f"v_cvt_pk_bf16_f32 v{P+1}, v{r+2}, v{r+3}")
                    if i == 0: ad = A0
                    elif i == 1: a(f"v_add_u32 v248, v{A0}, v{SB}"); ad = 248
                    elif i == 2: a(f"v_add_u32 v249, v{A0}, v{SC}"); ad = 249
                    else: a(f"v_add_u32 v250, v249, v{SB}"); ad = 250
                    a(f"buffer_store_dwordx2 v[{P}:{P+1}], v{ad}, s[16:19], 0 offen")
        if nT < n:
            a(f"""s_lshr_b32 s40, s38, 4
s_mul_i32 s40, s40, 576
s_mul_i32 s42, s33, {32*VT_STRIDE}
s_add_u32 s40, s40, s42
s_add_u32 s40, s40, {VT_OFF}
s_mov_b32 s45, 3641
s_mov_b32 s46, {VT_STRIDE}
v_lshrrev_b32 v5, 1, v4
v_mul_u32_u24 v5, 288, v5
v_and_b32 v6, 1, v4
v_lshl_add_u32 v5, v6, 3, v5""")
            for c in range(nT, n):
                a(f"""s_add_u32 s47, s36, {c}
s_sub_u32 s47, s47, 72
s_lshl_b32 s47, s47, 4
v_add_u32 v11, s47, v3
v_mul_u32_u24 v12, s45, v11
v_lshrrev_b32 v12, 16, v12
v_mul_u32_u24 v13, 18, v12
v_sub_u32 v13, v11, v13
v_mul_lo_u32 v12, v12, s46
v_lshl_add_u32 v12, v13, 4, v12
v_add_u32 v8, v12, v5""")
                for i in range(4):
                    r = ACC(i, c); P = 240 + 2*i
                    a(f"v_cvt_pk_bf16_f32 v{P}, v{r}, v{r+1}")
                    a(f"v_cvt_pk_bf16_f32 v{P+1}, v{r+2}, v{r+3}")
                    a(f"buffer_store_dwordx2 v[{P}:{P+1}], v8, s[16:19], s40 offen offset:{576*i}")
        if o["stamp"]:
            a(f"""s_memtime s[68:69]
s_memrealtime s[70:71]
s_load_dwordx2 s[72:73], s[0:1], 56
s_waitcnt lgkmcnt(0)
s_sub_u32 s64, s64, s60
s_sub_u32 s66, s66, s60
s_sub_u32 s68, s68, s60
s_sub_u32 s70, s70, s62
v_mov_b32 v20, s64
v_mov_b32 v21, s66
v_mov_b32 v22, s68
v_mov_b32 v23, s70
s_lshl_b32 s74, s2, 2
s_add_u32 s74, s74, s32
s_lshl_b32 s74, s74, 4
v_mov_b32 v24, s74
s_cmp_ge_u32 s2, 4
s_cbranch_scc1 L_{name}_end
s_mov_b64 exec, 1
global_store_dwordx4 v24, v[20:23], s[72:73]""")
        a("s_endpgm")
    for n, nT in variants: epilogue(n, nT)
    a.label(f"L_{name}_end")
    a("s_endpgm")
    return a.text(), kdesc(name, 252, 102)
```

```python
from asmlib import *
LDS_KM = 0
LDS_VT = 65536
LDS_KR = 139264
K2_LDS = 155648
K2_THREADS = 512

def gen_k2(name="k2_attn_kernel", opts=None):
    o = dict(stamp=False, nkt=64, vzero=True, krzero=False, prio=0, bar1=5, bar2=26, nolds=False, noexec=False, nocheck=False, nowait=False, nores=False, lgkpos=0, trace=False, toggle=0, pad=0)
    if opts: o.update(opts)
    NKT = o["nkt"]
    NQ = 2
    a = A()
    QM = lambda j: 16 + 4*j
    QR = lambda j: 24 + 2*j
    KMn = lambda s: 28 + 6*s
    KRs = lambda s: 32 + 6*s
    V0 = lambda s: 40 + 8*s
    V1 = lambda s: 44 + 8*s
    S = lambda i: 56 + 16*(i & 3)
    O = lambda j: 120 + 16*j
    vLane, vL16, vKR, vVa, vVb, vIdx = 1, 2, 3, 4, 5, 6
    T = 152
    a(f".globl {name}\n.p2align 8\n.type {name},@function")
    a.label(name)
    a(f"""s_cmp_ge_u32 s2, 256
s_cbranch_scc1 L_{name}_end
s_load_dwordx2 s[4:5], s[0:1], 64
v_lshrrev_b32 v7, 6, v0
v_and_b32 v{vLane}, 63, v0
s_and_b32 s18, s2, 7
s_lshr_b32 s19, s2, 3
v_readfirstlane_b32 s14, v7
s_lshr_b32 s12, s19, 2
s_lshl_b32 s18, s18, 3
s_add_u32 s12, s12, s18
s_and_b32 s13, s19, 3
v_lshlrev_b32 v{vL16}, 4, v{vLane}
v_and_b32 v8, 31, v{vLane}
v_lshlrev_b32 v9, 3, v8
s_mov_b32 s15, 0
s_mov_b32 s16, 0x0003ffff
s_mov_b32 s17, 0x0003ffff
s_mov_b32 s10, {WS_USED}
s_mov_b32 s11, 0x00020000
s_lshl_b32 s30, s14, 10
s_lshl_b32 s25, s12, 16
s_add_u32 s25, s25, s30
s_add_u32 s25, s25, {KM_OFF}
s_mul_i32 s28, s12, {VT_STRIDE}
s_add_u32 s28, s28, s30
s_add_u32 s28, s28, {VT_OFF}
s_lshr_b32 s38, s12, 1
s_lshl_b32 s38, s38, 14
s_and_b32 s39, s12, 1
s_lshl_b32 s39, s39, 2
s_add_u32 s33, s38, s30
s_add_u32 s33, s33, {KR_OFF}
s_add_u32 s29, s30, {LDS_VT}
s_add_u32 s34, s30, {LDS_KR}
s_mov_b32 s26, s30
s_lshl_b32 s18, s13, 4
s_lshl_b32 s19, s14, 1
s_add_u32 s24, s18, s19
s_waitcnt lgkmcnt(0)
s_mov_b32 s8, s4
s_mov_b32 s9, s5""")
    if o["stamp"]:
        a("s_memtime s[40:41]")
        a("s_memrealtime s[50:51]")
    def dmaK():
        a("s_mov_b32 m0, s26")
        a("s_add_u32 s26, s26, 8192")
        a(f"buffer_load_dwordx4 v{vL16}, s[8:11], s25 offen lds")
        a("s_add_u32 s25, s25, 8192")
    def dmaV():
        a("s_mov_b32 m0, s29")
        a("s_add_u32 s29, s29, 8192")
        a(f"buffer_load_dwordx4 v{vL16}, s[8:11], s28 offen lds")
        a("s_add_u32 s28, s28, 8192")
    a("s_mov_b32 m0, s34")
    a("s_lshl_b32 s18, s12, 16")
    a(f"buffer_load_dwordx4 v{vL16}, s[8:11], s33 offen lds")
    dmaK(); dmaV(); dmaV()
    a(f"""s_lshl_b32 s19, s24, 10
s_add_u32 s18, s18, s19""")
    if QM_OFF: a(f"s_add_u32 s18, s18, {QM_OFF}")
    for j in range(NQ):
        a(f"buffer_load_dwordx4 v[{QM(j)}:{QM(j)+3}], v{vL16}, s[8:11], s18 offen offset:{1024*j}")
    a(f"""s_lshl_b32 s20, s24, 8
s_add_u32 s19, s38, s20
s_add_u32 s19, s19, s39
s_add_u32 s19, s19, {QR_OFF}""")
    for j in range(NQ):
        a(f"buffer_load_dword v{QR(j)}, v9, s[8:11], s19 offen offset:{256*j}")
    a("s_add_u32 m0, s34, 8192")
    a("s_add_u32 s33, s33, 8192")
    a(f"buffer_load_dwordx4 v{vL16}, s[8:11], s33 offen lds")
    for i in range(3): dmaK(); dmaV()
    for i in range(4): dmaK(); dmaV()
    a(f"""v_lshrrev_b32 v10, 5, v{vLane}
v_add_u32 v{vKR}, {LDS_KR}, v9
v_add_u32 v{vKR}, s39, v{vKR}
v_mul_u32_u24 v11, 288, v10
v_lshlrev_b32 v12, 4, v8
v_add_u32 v11, v11, v12
v_add_u32 v{vVa}, {LDS_VT}, v11
v_add_u32 v{vVb}, {LDS_VT + 32*1152}, v11
v_mov_b32 v{vIdx}, 0xdddd""")
    if o["vzero"]:
        a("v_and_b32 v13, 27, v8")
        a("v_cmp_eq_u32 vcc, 18, v13")
        a("v_mov_b32 v14, 0x3f803f80")
        a("v_cndmask_b32 v13, 0, v14, vcc")
    else:
        a("v_mov_b32 v13, 0x3f803f80")
    for s in range(2):
        a(f"v_mov_b32 v{KRs(s)+1}, 0x3f803f80")
        for i in range(4):
            a(f"v_mov_b32 v{V0(s)+i}, v13")
            a(f"v_mov_b32 v{V1(s)+i}, v13")
    for j in range(NQ): a(f"v_mov_b32 v{QR(j)+1}, 0")
    a("s_waitcnt vmcnt(15)")
    a(f"v_cmp_gt_u32 vcc, 32, v{vLane}")
    a("s_nop 1")
    for j in range(NQ): a(f"v_cndmask_b32 v{QR(j)}, 0, v{QR(j)}, vcc")
    if o["prio"]:
        a(f"""s_cmp_ge_u32 s14, 4
s_cbranch_scc0 L_{name}_np
s_setprio 1""")
        a.label(f"L_{name}_np")
    a("s_barrier")
    if o["stamp"]:
        a("s_memtime s[42:43]")
    def rdK(kt):
        s = kt & 1
        a(f"ds_read_b128 v[{KMn(s)}:{KMn(s)+3}], v{vL16} offset:{kt*1024}")
        a(f"ds_read_b32 v{KRs(s)}, v{vKR} offset:{kt*256}")
    def rdV(kt):
        s = kt & 1
        base, off = (vVa, kt*1152) if kt < 32 else (vVb, (kt-32)*1152)
        if not o["noexec"]: a("s_mov_b64 exec, s[16:17]")
        a(f"ds_read_b128 v[{V0(s)}:{V0(s)+3}], v{base} offset:{off}")
        a(f"ds_read_b128 v[{V1(s)}:{V1(s)+3}], v{base} offset:{off+576}")
        if not o["noexec"]: a("s_mov_b64 exec, -1")
    def qk_main(t, sb=None):
        j = t % NQ; s = (t // NQ) & 1; sb = S(t) if sb is None else sb
        a(f"v_mfma_f32_32x32x16_bf16 v[{sb}:{sb+15}], v[{KMn(s)}:{KMn(s)+3}], v[{QM(j)}:{QM(j)+3}], 0")
    def qk_res(t, sb=None):
        if o["nores"]: return
        j = t % NQ; s = (t // NQ) & 1; sb = S(t) if sb is None else sb
        a(f"v_mfma_f32_32x32x8_bf16 v[{sb}:{sb+15}], v[{KRs(s)}:{KRs(s)+1}], v[{QR(j)}:{QR(j)+1}], v[{sb}:{sb+15}]")
    def pv(t, half):
        j = t % NQ; s = (t // NQ) & 1
        v = V0(s) if half == 0 else V1(s)
        a(f"v_smfmac_f32_32x32x32_bf16 v[{O(j)}:{O(j)+15}], v[{v}:{v+3}], v[{S(t)+8*half}:{S(t)+8*half+7}], v{vIdx}")
    def ex(t, i):
        r = S(t) + i
        a(f"v_exp_f32 v{r}, v{r}")
    a.label(f"L_{name}_main")
    rdK(0); rdV(0)
    for j in range(NQ):
        for i in range(16): a(f"v_mov_b32 v{O(j)+i}, 0")
    a("s_waitcnt lgkmcnt(0)")
    qk_main(0); qk_res(0); qk_main(1); qk_res(1)
    rdK(1)
    a("s_nop 7")
    a("s_nop 3")
    NT = NQ*NKT
    for t in range(NT):
        kt, j = t // NQ, t % NQ
        if t > 0: pv(t-1, 1)
        if j == 0 and o["trace"] and kt % 8 == 0:
            i = kt // 8
            a(f"s_memtime s[{56+4*i}:{57+4*i}]")
            a(f"s_memrealtime s[{58+4*i}:{59+4*i}]")
        if j == 0:
            if kt == o["bar1"] or kt == o["bar2"]:
                lab = f"L_{name}_nb{kt}"
                a(f"""s_cmp_lg_u32 s15, 0
s_cbranch_scc1 {lab}
s_waitcnt vmcnt({8 if kt == o["bar1"] else 0})
s_barrier""")
                a.label(lab)
            if o["toggle"] == 1: a(f"s_setprio {(kt & 1) ^ 1}")
            if o["toggle"] == 2: a(f"s_setprio {1 if kt % 3 != 2 else 0}")
            if o["toggle"] == 3: a(f"s_setprio {1 if (kt>>1) & 1 == 0 else 0}")
            if not o["nowait"]: a("s_waitcnt lgkmcnt(0)")
            if not o["nolds"]:
                if kt + 2 < NKT: rdK(kt+2)
                if kt + 1 < NKT: rdV(kt+1)
        for i in range(0, 4): ex(t, i)
        for i in range(o["pad"]): a("v_nop")
        if t + 2 < NT: qk_main(t+2)
        for i in range(4, 8): ex(t, i)
        if t + 2 < NT: qk_res(t+2)
        for i in range(8, 12): ex(t, i)
        pv(t, 0)
        for i in range(12, 16): ex(t, i)
    a("s_nop 1")
    pv(NT-1, 1)
    if o["stamp"]:
        a("s_memtime s[44:45]")
    a("s_nop 7")
    a("s_nop 7")
    a("s_mov_b64 s[20:21], 0")
    a("s_mov_b32 s36, 0x53800000")
    a("s_mov_b32 s37, 0x2b800000")
    for j in range(NQ):
        a(f"v_mul_f32 v{T}, 0, v{O(j)}")
        for i in range(1, 10): a(f"v_fma_f32 v{T}, v{O(j)+i}, 0, v{T}")
        a(f"v_add_f32 v{T}, v{T}, v{O(j)+10}")
        a(f"v_cmp_ngt_f32 vcc, s36, v{T}")
        a("s_or_b64 s[20:21], s[20:21], vcc")
        a(f"v_cmp_nlt_f32 vcc, s37, v{T}")
        a("s_or_b64 s[20:21], s[20:21], vcc")
    if o["nocheck"]: a("s_mov_b64 s[20:21], 0")
    a(f"""s_cmp_eq_u64 s[20:21], 0
s_cbranch_scc1 L_{name}_store
s_cmp_eq_u32 s15, 0
s_cbranch_scc1 L_{name}_fallback""")
    a.label(f"L_{name}_store")
    a(f"""s_lshr_b32 s18, s12, 5
s_and_b32 s19, s12, 31
s_lshl_b32 s20, s18, 21
s_lshl_b32 s21, s24, 15
s_add_u32 s20, s20, s21
s_lshl_b32 s21, s19, 10
s_add_u32 s20, s20, s21
s_add_u32 s20, s20, {OM_OFF}
s_lshl_b32 s22, s18, 18
s_lshl_b32 s21, s24, 12
s_add_u32 s22, s22, s21
s_lshr_b32 s21, s19, 2
s_lshl_b32 s21, s21, 9
s_add_u32 s22, s22, s21
s_and_b32 s21, s19, 3
s_lshl_b32 s21, s21, 2
s_add_u32 s22, s22, s21
s_add_u32 s22, s22, {OR_OFF}
v_lshlrev_b32 v9, 4, v8""")
    for j in range(NQ):
        a(f"v_rcp_f32 v{T}, v{O(j)+10}")
        a("s_nop 0")
        for i in range(10): a(f"v_mul_f32 v{O(j)+i}, v{O(j)+i}, v{T}")
        P = T + 2 + 6*j
        for i in range(4): a(f"v_cvt_pk_bf16_f32 v{P+i}, v{O(j)+2*i}, v{O(j)+2*i+1}")
        a(f"v_cvt_pk_bf16_f32 v{P+4}, v{O(j)+8}, v{O(j)+9}")
        a(f"s_add_u32 s21, s20, {32768*j}")
        a(f"buffer_store_dwordx4 v[{P}:{P+3}], v{vL16}, s[8:11], s21 offen")
        a(f"s_add_u32 s23, s22, {4096*j}")
        a("s_mov_b32 exec_hi, 0")
        a(f"buffer_store_dword v{P+4}, v9, s[8:11], s23 offen")
        a("s_mov_b32 exec_hi, -1")
    if o["stamp"]:
        a("""s_memtime s[46:47]
s_memrealtime s[52:53]
s_waitcnt lgkmcnt(0)
s_sub_u32 s52, s52, s50
s_load_dwordx2 s[48:49], s[0:1], 56
s_sub_u32 s42, s42, s40
s_sub_u32 s44, s44, s40
s_sub_u32 s46, s46, s40
s_waitcnt lgkmcnt(0)
v_mov_b32 v20, s42
v_mov_b32 v21, s44
v_mov_b32 v22, s46
v_mov_b32 v23, s52
s_lshl_b32 s18, s14, 4
v_mov_b32 v24, s18
s_cmp_lg_u32 s2, 0
s_cbranch_scc1 L_%s_end
s_mov_b64 exec, 1
global_store_dwordx4 v24, v[20:23], s[48:49]""" % (name,))
        if o["trace"]:
            a("s_cmp_lg_u32 s14, 4")
            a(f"s_cbranch_scc1 L_{name}_end")
            for i in range(8):
                a(f"s_sub_u32 s{56+4*i}, s{56+4*i}, s40")
                a(f"s_sub_u32 s{58+4*i}, s{58+4*i}, s50")
                a(f"v_mov_b32 v20, s{56+4*i}")
                a(f"v_mov_b32 v21, s{58+4*i}")
                a(f"v_mov_b32 v24, {128+8*i}")
                a("global_store_dwordx2 v24, v[20:21], s[48:49]")
    a("s_endpgm")
    a.label(f"L_{name}_fallback")
    a("s_mov_b32 s15, 1")
    MX = T
    for j in range(NQ): a(f"v_mov_b32 v{MX+j}, 0xff800000")
    a(f"v_mov_b32 v{MX+4}, v{vL16}")
    a(f"v_mov_b32 v{MX+5}, v{vKR}")
    a(f"s_mov_b32 s18, {NKT}")
    a.label(f"L_{name}_fbloop")
    a(f"ds_read_b128 v[{KMn(0)}:{KMn(0)+3}], v{MX+4}")
    a(f"ds_read_b32 v{KRs(0)}, v{MX+5}")
    a(f"v_add_u32 v{MX+4}, 1024, v{MX+4}")
    a(f"v_add_u32 v{MX+5}, 256, v{MX+5}")
    a("s_waitcnt lgkmcnt(0)")
    for j in range(NQ): qk_main(j); qk_res(j)
    a("s_nop 15")
    for j in range(NQ):
        for i in range(8): a(f"v_max3_f32 v{MX+j}, v{MX+j}, v{S(j)+2*i}, v{S(j)+2*i+1}")
    a(f"""s_sub_u32 s18, s18, 1
s_cmp_lg_u32 s18, 0
s_cbranch_scc1 L_{name}_fbloop""")
    for j in range(NQ):
        x, y, hi, mid = MX+6, MX+7, MX+8, MX+9
        a(f"""v_mov_b32 v{x}, v{MX+j}
v_mov_b32 v{y}, v{MX+j}
s_nop 1
v_permlane32_swap_b32 v{x}, v{y}
s_nop 1
v_max_f32 v{x}, v{x}, v{y}
v_and_b32 v{hi}, 0xffff0000, v{x}
v_sub_f32 v{x}, v{x}, v{hi}
v_and_b32 v{mid}, 0xffff0000, v{x}
v_sub_f32 v{x}, v{x}, v{mid}
v_xor_b32 v{hi}, 0x80000000, v{hi}
v_xor_b32 v{mid}, 0x80000000, v{mid}
v_xor_b32 v{x}, 0x80000000, v{x}
v_lshrrev_b32 v{hi}, 16, v{hi}
v_and_b32 v{mid}, 0xffff0000, v{mid}
v_or_b32 v{hi}, v{hi}, v{mid}
v_lshrrev_b32 v{x}, 16, v{x}
v_cmp_gt_u32 vcc, 32, v{vLane}
s_nop 1
v_cndmask_b32 v{QR(j)+1}, v{x}, v{hi}, vcc""")
    a(f"s_branch L_{name}_main")
    a.label(f"L_{name}_end")
    a("s_endpgm")
    return a.text(), kdesc(name, 168, 102)
```

```python
from asmlib import *
WO_IMG = 576 * 192
K3_STG = 32 * 208
K3_LDS = WO_IMG + 4 * K3_STG
K3_THREADS = 256
K3_WGS = 192

def gen_k3(name="k3_out_kernel", opts=None):
    o = dict(stamp=False)
    if opts: o.update(opts)
    a = A()
    OF = lambda ks, i: 64 + 8*ks + 4*i
    WF = lambda p, c: 208 + 24*p + 4*c
    ACC = lambda i, c: 16 + 4*(2*c + i)
    vL, vWa, vWb, vWr, vWD = 1, 2, 3, 4, 5
    a(f".globl {name}\n.p2align 8\n.type {name},@function")
    a.label(name)
    a(f"""s_cmp_ge_u32 s2, {K3_WGS}
s_cbranch_scc1 L_{name}_end
s_load_dwordx2 s[4:5], s[0:1], 16
s_load_dwordx2 s[6:7], s[0:1], 40
s_load_dwordx2 s[24:25], s[0:1], 48
s_load_dwordx2 s[28:29], s[0:1], 64
v_lshrrev_b32 v6, 6, v0
v_and_b32 v0, 63, v0
s_and_b32 s30, s2, 7
s_lshr_b32 s31, s2, 3
v_readfirstlane_b32 s32, v6
s_lshr_b32 s33, s30, 2
s_and_b32 s34, s30, 3
s_lshl_b32 s34, s34, 2
s_and_b32 s35, s31, 3
s_add_u32 s34, s34, s35
s_lshr_b32 s35, s31, 2
s_lshl_b32 s36, s34, 2
s_add_u32 s36, s36, s32""")
    if o["stamp"]:
        a("s_memtime s[60:61]")
        a("s_memrealtime s[62:63]")
    a(f"""v_and_b32 v7, 15, v0
v_lshrrev_b32 v8, 4, v0
v_lshlrev_b32 v9, 9, v8
v_lshl_add_u32 v{vL}, v7, 4, v9
v_mul_u32_u24 v9, 43, v0
v_lshrrev_b32 v9, 9, v9
v_mul_u32_u24 v10, 12, v9
v_sub_u32 v10, v0, v10
v_mul_u32_u24 v9, 1152, v9
v_lshl_add_u32 v{vWD}, v10, 4, v9
v_lshrrev_b32 v9, 1, v8
v_mul_u32_u24 v9, 18, v9
v_and_b32 v10, 1, v8
v_lshl_add_u32 v9, v10, 2, v9
v_lshrrev_b32 v10, 2, v7
v_add_u32 v9, v9, v10
v_mul_u32_u24 v9, 192, v9
v_and_b32 v11, 3, v7
v_lshl_add_u32 v{vWa}, v11, 3, v9
v_add_u32 v{vWb}, {8*36*192}, v{vWa}
v_lshlrev_b32 v9, 2, v8
v_lshrrev_b32 v12, 1, v10
v_add_u32 v9, v9, v12
v_mul_u32_u24 v9, 18, v9
v_and_b32 v12, 1, v10
v_add3_u32 v9, v9, v12, 16
v_mul_u32_u24 v9, 192, v9
v_lshl_add_u32 v{vWr}, v11, 3, v9
s_waitcnt lgkmcnt(0)
s_cmp_eq_u32 s33, 0
s_cselect_b32 s8, s4, s6
s_cselect_b32 s9, s5, s7
s_mov_b32 s10, {WO_BYTES}
s_mov_b32 s11, 0x00020000
s_mov_b32 s12, s24
s_mov_b32 s13, s25
s_mov_b32 s14, {OUT_BYTES}
s_mov_b32 s15, 0x00020000
s_mov_b32 s16, s28
s_mov_b32 s17, s29
s_mov_b32 s18, {WS_USED}
s_mov_b32 s19, 0x00020000
s_lshl_b32 s20, s33, 21
s_lshl_b32 s21, s36, 15
s_add_u32 s20, s20, s21
s_add_u32 s20, s20, {OM_OFF}
s_lshl_b32 s21, s33, 18
s_lshl_b32 s22, s36, 12
s_add_u32 s21, s21, s22
s_add_u32 s21, s21, {OR_OFF}
s_mul_i32 s22, s32, {4*1152}
s_mul_i32 s23, s35, 192
s_add_u32 s22, s22, s23
s_mul_i32 s23, s32, 768""")
    def wo_dma(n):
        for r in range(n):
            a("s_mov_b32 m0, s23")
            a("s_add_u32 s23, s23, 3072")
            a(f"buffer_load_dwordx4 v{vWD}, s[8:11], s22 offen lds")
            a(f"s_add_u32 s22, s22, {16*1152}")
    def o_load(ks):
        if ks < 16:
            for i in range(2):
                a(f"buffer_load_dwordx4 v[{OF(ks,i)}:{OF(ks,i)+3}], v{vL}, s[16:19], s20 offen offset:{(ks%2)*2048 + 256*i}")
            if ks % 2 == 1: a("s_add_u32 s20, s20, 4096")
        else:
            for i in range(2):
                a(f"buffer_load_dwordx4 v[{OF(ks,i)}:{OF(ks,i)+3}], v{vL}, s[16:19], s21 offen offset:{(ks-16)*2048 + 256*i}")
    def with48(f):
        a("s_mov_b32 exec_hi, 0xffff")
        f()
        a("s_mov_b32 exec_hi, -1")
    with48(lambda: wo_dma(12))
    for ks in range(0, 5): o_load(ks)
    with48(lambda: wo_dma(12))
    for ks in range(5, 10): o_load(ks)
    def reads(ks, p):
        L = []
        for c in range(6):
            for t in range(2):
                if ks < 16:
                    base = vWa if ks < 8 else vWb
                    off = (36*(ks % 8) + 8*t)*192 + 32*c
                else:
                    base = vWr; off = (288*(ks-16) + 36*t)*192 + 32*c
                L.append(f"ds_read_b64_tr_b16 v[{WF(p,c)+2*t}:{WF(p,c)+2*t+1}], v{base} offset:{off}")
        return L
    def mfmas(ks):
        p = ks & 1
        return [f"v_mfma_f32_16x16x32_bf16 v[{ACC(i,c)}:{ACC(i,c)+3}], v[{WF(p,c)}:{WF(p,c)+3}], v[{OF(ks,i)}:{OF(ks,i)+3}], " + (f"v[{ACC(i,c)}:{ACC(i,c)+3}]" if ks else "0")
                for c in range(6) for i in range(2)]
    a("s_waitcnt vmcnt(22)")
    a("s_barrier")
    if o["stamp"]: a("s_memtime s[64:65]")
    for x in reads(0, 0): a(x)
    with48(lambda: wo_dma(12))
    for ks in range(10, 18): o_load(ks)
    for ks in range(18):
        if ks == 4:
            a("s_waitcnt vmcnt(28) lgkmcnt(0)")
            a("s_barrier")
        elif ks == 9:
            a("s_waitcnt vmcnt(0) lgkmcnt(0)")
            a("s_barrier")
        else:
            a("s_waitcnt lgkmcnt(0)")
        rd = reads(ks+1, (ks+1) & 1) if ks + 1 < 18 else []
        M = mfmas(ks)
        for idx, m in enumerate(M):
            a(m)
            if idx < len(rd): a(rd[idx])
    if o["stamp"]: a("s_memtime s[66:67]")
    a(f"""s_mul_i32 s23, s32, {K3_STG}
s_add_u32 s23, s23, {WO_IMG}
v_mul_u32_u24 v9, 208, v7
v_lshl_add_u32 v9, v8, 3, v9
v_add_u32 v9, s23, v9
s_nop 3""")
    for c in range(6):
        for i in range(2):
            r = ACC(i, c); P = 64 + 4*c + 2*i
            a(f"v_cvt_pk_bf16_f32 v{P}, v{r}, v{r+1}")
            a(f"v_cvt_pk_bf16_f32 v{P+1}, v{r+2}, v{r+3}")
            a(f"ds_write_b64 v9, v[{P}:{P+1}] offset:{i*16*208 + 32*c}")
    a(f"""s_lshl_b32 s20, s36, 5
s_mul_i32 s20, s20, 2304
s_mul_i32 s21, s33, 1152
s_add_u32 s20, s20, s21
s_mul_i32 s21, s35, 192
s_add_u32 s20, s20, s21
s_mov_b32 s22, 5462""")
    for k in range(6):
        a(f"""v_add_u32 v10, {64*k}, v0
v_mul_u32_u24 v11, s22, v10
v_lshrrev_b32 v11, 16, v11
v_mul_u32_u24 v12, 12, v11
v_sub_u32 v12, v10, v12
v_mul_u32_u24 v13, 208, v11
v_lshl_add_u32 v13, v12, 4, v13
v_add_u32 v{100+k}, s23, v13
v_mul_u32_u24 v13, 2304, v11
v_lshl_add_u32 v{110+k}, v12, 4, v13""")
    a("s_waitcnt lgkmcnt(0)")
    for k in range(6): a(f"ds_read_b128 v[{120+4*k}:{123+4*k}], v{100+k}")
    for k in range(6):
        a(f"s_waitcnt lgkmcnt({5-k})")
        a(f"buffer_store_dwordx4 v[{120+4*k}:{123+4*k}], v{110+k}, s[12:15], s20 offen")
    if o["stamp"]:
        a(f"""s_memtime s[68:69]
s_memrealtime s[70:71]
s_load_dwordx2 s[72:73], s[0:1], 56
s_waitcnt lgkmcnt(0)
s_sub_u32 s64, s64, s60
s_sub_u32 s66, s66, s60
s_sub_u32 s68, s68, s60
s_sub_u32 s70, s70, s62
v_mov_b32 v20, s64
v_mov_b32 v21, s66
v_mov_b32 v22, s68
v_mov_b32 v23, s70
s_lshl_b32 s74, s2, 2
s_add_u32 s74, s74, s32
s_lshl_b32 s74, s74, 4
v_mov_b32 v24, s74
s_cmp_ge_u32 s2, 4
s_cbranch_scc1 L_{name}_end
s_mov_b64 exec, 1
global_store_dwordx4 v24, v[20:23], s[72:73]""")
    a("s_endpgm")
    a.label(f"L_{name}_end")
    a("s_endpgm")
    return a.text(), kdesc(name, 256, 102)
```

```python
import sys, json
sys.path.insert(0,'.')
from asmlib import *
import k1, k2, k3
HEADER = """; Kernarg layout for this problem (72 bytes, ptrs only, base s[0:1]):
;
"""
def build(opts1=None, opts2=None, opts3=None):
    b1, d1 = k1.gen_k1("k1_qkv_kernel", opts1)
    b2, d2 = k2.gen_k2("k2_attn_kernel", opts2)
    b3, d3 = k3.gen_k3("k3_out_kernel", opts3)
    s = HEADER
    s += f"; @launch kernel=k1_qkv_kernel grid=(256,1,1) block=({k1.K1_THREADS},1,1) lds={k1.K1_LDS}\n"
    s += f"; @launch kernel=k2_attn_kernel grid=(256,1,1) block=({k2.K2_THREADS},1,1) lds={k2.K2_LDS}\n"
    s += f"; @launch kernel=k3_out_kernel grid=({k3.K3_WGS},1,1) block=({k3.K3_THREADS},1,1) lds={k3.K3_LDS}\n"
    s += '.amdgcn_target "amdgcn-amd-amdhsa--gfx950"\n.text\n'
    s += b1 + d1 + b2 + d2 + b3 + d3
    return s
if __name__ == "__main__":
    out = sys.argv[1] if len(sys.argv) > 1 else "concat_heads__mha_block__mha_block__prompt.s"
    o = json.loads(sys.argv[2]) if len(sys.argv) > 2 else {}
    open(out, "w").write(build(o.get("k1"), o.get("k2"), o.get("k3")))
    print("wrote", out)
```

```python
from asmlib import *
NAME = "concat_heads__mha_block__mha_block__prompt_kernel"
THREADS = 512
ST1 = 49664
WREG = 32768
RS = 232
LDS_KM, LDS_VT, LDS_KR = 0, 65536, 139264
WO_IMG = 576 * 192
K3_STG = 32 * 208
LDS_BYTES = 155648
SPIN_MAX = 400000
sWAVE = 3
sP = 64
pAX, pAW, pAWO, pBX, pBW, pBWO, pOUT, pDBG, pWS = [sP + 2*i for i in range(9)]
CNT1 = 0
CNT2 = 128

def srd(a, d, p, nbytes):
    a(f"s_mov_b32 s{d}, s{p}\ns_mov_b32 s{d+1}, s{p+1}\ns_mov_b32 s{d+2}, {nbytes}\ns_mov_b32 s{d+3}, 0x00020000")

def stamp(a, o, idx):
    if o["stamp"]:
        a(f"s_memrealtime s[{82+2*idx}:{83+2*idx}]")

sNONCE = 63
def nonce_publish(a):
    a(f"""s_cmp_lg_u32 s2, 0
s_cbranch_scc1 L_nonce_done
s_cmp_lg_u32 s{sWAVE}, 0
s_cbranch_scc1 L_nonce_done
s_memrealtime s[40:41]
s_waitcnt lgkmcnt(0)
s_or_b32 s40, s40, 1
v_mov_b32 v2, 0
v_mov_b32 v3, s40
s_mov_b64 exec, 1
global_store_dword v2, v3, s[{pDBG}:{pDBG+1}] sc1
s_mov_b64 exec, -1""")
    a.label("L_nonce_done")

def nonce_fetch(a):
    a(f"""s_cmp_lg_u32 s{sWAVE}, 0
s_cbranch_scc1 L_nf_done
s_mov_b32 s40, 0""")
    a.label("L_nf_loop")
    a(f"""s_waitcnt vmcnt(0)
v_readfirstlane_b32 s{sNONCE}, v255
s_add_u32 s40, s40, 1
s_cmp_lg_u32 s{sNONCE}, 0
s_cbranch_scc1 L_nf_done
s_sleep 4
global_load_dword v255, v254, s[{pDBG}:{pDBG+1}] sc1
s_cmp_lt_u32 s40, {SPIN_MAX}
s_cbranch_scc1 L_nf_loop""")
    a.label("L_nf_done")

def signal(a, line_sgpr, tag):
    a("s_waitcnt vmcnt(0)")
    a("s_barrier")
    a(f"""s_cmp_lg_u32 s{sWAVE}, 0
s_cbranch_scc1 L_sig_{tag}
s_lshl_b32 s{line_sgpr}, s{line_sgpr}, 7
s_add_u32 s{line_sgpr}, s{line_sgpr}, {FLAG_OFF}
v_mov_b32 v254, s{line_sgpr}
v_mov_b32 v255, s{sNONCE}
s_mov_b64 exec, 1
global_store_dword v254, v255, s[{pWS}:{pWS+1}] sc1
s_mov_b64 exec, -1""")
    a.label(f"L_sig_{tag}")

def poll(a, addr_vgpr, nlanes_mask_lo, tag):
    a(f"""s_cmp_lg_u32 s{sWAVE}, 0
s_cbranch_scc1 L_polled_{tag}
s_mov_b32 s40, 0
s_mov_b32 exec_hi, 0
s_mov_b32 exec_lo, {nlanes_mask_lo}""")
    a.label(f"L_poll_{tag}")
    a(f"""global_load_dword v255, v{addr_vgpr}, s[{pWS}:{pWS+1}] sc1
s_add_u32 s40, s40, 1
s_waitcnt vmcnt(0)
v_cmp_ne_u32 vcc, s{sNONCE}, v255
s_cmp_eq_u64 vcc, 0
s_cbranch_scc1 L_pollok_{tag}
s_sleep 2
s_cmp_lt_u32 s40, {SPIN_MAX}
s_cbranch_scc1 L_poll_{tag}""")
    a.label(f"L_pollok_{tag}")
    a("s_mov_b64 exec, -1")
    a.label(f"L_polled_{tag}")
    a("s_barrier")

def phase1(a, o):
    vXD = lambda i: 16 + i
    vWD = lambda i: 24 + i
    vX = lambda st, ks: 28 + 2*st + ks
    vW = lambda st: 34 + st
    XF = lambda p, i: 40 + 16*p + 4*i
    WF = lambda p, c: 72 + 28*p + 4*c
    ACC = lambda i, c: 128 + 4*(4*c + i)
    n = 7
    a(f"""s_and_b32 s30, s2, 7
s_lshr_b32 s31, s2, 3
s_and_b32 s32, s{sWAVE}, 3
s_lshr_b32 s33, s30, 2
s_and_b32 s34, s30, 1
s_lshl_b32 s34, s34, 2
s_and_b32 s35, s31, 3
s_add_u32 s34, s34, s35
s_lshr_b32 s35, s30, 1
s_and_b32 s35, s35, 1
s_lshl_b32 s35, s35, 3
s_lshr_b32 s36, s31, 2
s_add_u32 s35, s35, s36
s_lshl_b32 s20, s34, 8
s_lshl_b32 s21, s32, 6
s_add_u32 s38, s20, s21
s_lshl_b32 s37, s32, 13
v_lshrrev_b32 v4, 4, v0
v_and_b32 v3, 15, v0
s_cmp_ge_u32 s{sWAVE}, 4
s_cbranch_scc0 L_p1_compute""")
    a(f"""v_lshrrev_b32 v2, 3, v0
v_and_b32 v5, 7, v0
v_xor_b32 v5, v5, v4
v_mul_u32_u24 v6, 1152, v2
v_lshl_add_u32 v7, v5, 4, v6
v_xor_b32 v8, 64, v7""")
    for i in range(8):
        a(f"v_add_u32 v{vXD(i)}, {9216*i}, v{7 if i % 2 == 0 else 8}")
    a(f"""v_and_b32 v2, 1, v4
v_lshrrev_b32 v5, 1, v4
v_lshlrev_b32 v2, 2, v2
v_lshl_add_u32 v2, v5, 4, v2
v_mul_u32_u24 v2, 3456, v2
v_lshl_add_u32 v2, v3, 4, v2
v_mov_b32 v5, 0x40000000
v_cmp_gt_u32 vcc, 14, v3
s_mul_i32 s20, s38, 1152
s_lshr_b32 s21, s32, 1
v_cndmask_b32 v2, v5, v2, vcc""")
    for i in range(4):
        a(f"v_add_u32 v{vWD(i)}, {3456*i}, v2")
    a(f"""s_lshl_b32 s21, s21, 5
s_and_b32 s22, s32, 1
s_lshl_b32 s23, s22, 3
s_add_u32 s21, s21, s23
s_mul_i32 s21, s21, 3456
s_mul_i32 s23, s35, 216
s_add_u32 s21, s21, s23
s_lshr_b32 s23, s32, 1
s_mul_i32 s23, s23, 8448
s_mul_i32 s22, s22, {4*1056}
s_add_u32 s23, s23, s22
s_add_u32 s23, s23, {WREG}
s_mov_b32 s22, s37
s_waitcnt lgkmcnt(0)
s_cmp_eq_u32 s33, 0
s_cselect_b32 s8, s{pAX}, s{pBX}
s_cselect_b32 s9, s{pAX+1}, s{pBX+1}
s_cselect_b32 s12, s{pAW}, s{pBW}
s_cselect_b32 s13, s{pAW+1}, s{pBW+1}
s_mov_b32 s10, {X_BYTES}
s_mov_b32 s11, 0x00020000
s_mov_b32 s14, {W_BYTES}
s_mov_b32 s15, 0x00020000""")
    def dma(cc):
        st = cc % 3
        a(f"s_add_u32 m0, s22, {st*ST1}")
        for i in range(8):
            a("s_nop 0")
            a(f"buffer_load_dwordx4 v{vXD(i)}, s[8:11], s20 offen lds")
            a("s_add_u32 m0, m0, 1024" if i < 7 else f"s_add_u32 m0, s23, {st*ST1}")
        a("s_add_u32 s20, s20, 128")
        for i in range(4):
            a(f"buffer_load_dwordx4 v{vWD(i)}, s[12:15], s21 offen lds")
            if i < 3: a("s_add_u32 m0, m0, 1056\ns_nop 0")
        a(f"s_add_u32 s21, s21, {64*3456}")
    dma(0); dma(1)
    a("s_waitcnt vmcnt(12)")
    a("s_barrier")
    dma(2)
    for cc in range(8):
        rem = min(8, cc + 2) - (cc + 1)
        a(f"s_waitcnt vmcnt({12*rem})")
        a("s_barrier")
        if cc + 3 <= 8: dma(cc + 3)
    a("s_branch L_p1_done")
    a.label("L_p1_compute")
    a(f"""v_lshrrev_b32 v5, 1, v3
v_xor_b32 v5, v5, v4
v_lshlrev_b32 v5, 4, v5
v_lshl_add_u32 v5, v3, 7, v5
v_add_u32 v5, s37, v5
v_xor_b32 v6, 64, v5""")
    for st in range(3):
        a(f"v_add_u32 v{vX(st,0)}, {st*ST1}, v5")
        a(f"v_add_u32 v{vX(st,1)}, {st*ST1}, v6")
    a(f"""v_lshrrev_b32 v5, 2, v3
v_and_b32 v6, 1, v4
v_lshl_add_u32 v5, v6, 2, v5
v_mul_u32_u24 v5, 1056, v5
v_lshrrev_b32 v6, 1, v4
v_lshl_add_u32 v5, v6, 9, v5
v_and_b32 v6, 3, v3
v_lshl_add_u32 v5, v6, 3, v5""")
    for st in range(3):
        a(f"v_add_u32 v{vW(st)}, {st*ST1 + WREG}, v5")
    def reads(g):
        cc, ks = g // 2, g % 2
        st, p = cc % 3, g & 1
        L = []
        for c in range(n):
            if c < 4: L.append(f"ds_read_b128 v[{XF(p,c)}:{XF(p,c)+3}], v{vX(st,ks)} offset:{2048*c}")
            for tr in range(2):
                L.append(f"ds_read_b64_tr_b16 v[{WF(p,c)+2*tr}:{WF(p,c)+2*tr+1}], v{vW(st)} offset:{ks*8448 + tr*256 + 32*c}")
        return L
    def mfmas(g):
        p = g & 1
        L = []
        for c in range(n):
            for i in range(4):
                acc = f"v[{ACC(i,c)}:{ACC(i,c)+3}]"
                L.append(f"v_mfma_f32_16x16x32_bf16 {acc}, v[{WF(p,c)}:{WF(p,c)+3}], v[{XF(p,i)}:{XF(p,i)+3}], {acc if g else 0}")
        return L
    a("s_barrier")
    stamp(a, o, 1)
    for x in reads(0): a(x)
    for g in range(18):
        cc, ks = g // 2, g % 2
        a("s_waitcnt lgkmcnt(0)")
        if ks == 1 and cc < 8: a("s_barrier")
        rd = reads(g + 1) if g + 1 < 18 else []
        M = mfmas(g)
        if g == 12:
            a("v_mov_b32 v254, 0")
            a(f"global_load_dword v255, v254, s[{pDBG}:{pDBG+1}] sc1")
        for idx, m in enumerate(M):
            a(m)
            if idx < len(rd): a(rd[idx])
    stamp(a, o, 2)
    nonce_fetch(a)
    a(f"""s_waitcnt lgkmcnt(0)
s_mul_i32 s39, s32, {64*RS}
v_mul_u32_u24 v5, {RS}, v3
v_lshl_add_u32 v5, v4, 3, v5
v_add_u32 v5, s39, v5
s_mul_i32 s40, s35, 6
s_sub_u32 s41, 32, s40
s_cmp_lt_u32 s40, 32
s_cselect_b32 s41, s41, 0
s_lshr_b32 s41, s41, 1
s_mul_i32 s41, s41, 9
s_mov_b32 s44, {f32bits(QSCALE)}
s_cmp_eq_u32 s41, 0
s_cbranch_scc1 L_p1_noscale""")
    for c in range(n):
        a(f"""v_add_u32 v6, {4*c}, v4
v_cmp_gt_u32 vcc, s41, v6
v_mov_b32 v7, 1.0
v_mov_b32 v8, s44
v_cndmask_b32 v6, v7, v8, vcc""")
        for i in range(4):
            r = ACC(i, c)
            a(f"v_pk_mul_f32 v[{r}:{r+1}], v[{r}:{r+1}], v[6:7] op_sel_hi:[1,0]")
            a(f"v_pk_mul_f32 v[{r+2}:{r+3}], v[{r+2}:{r+3}], v[6:7] op_sel_hi:[1,0]")
    a.label("L_p1_noscale")
    for c in range(n):
        for i in range(4):
            r = ACC(i, c); P = 40 + 2*((4*c + i) % 16)
            a(f"v_cvt_pk_bf16_f32 v{P}, v{r}, v{r+1}")
            a(f"v_cvt_pk_bf16_f32 v{P+1}, v{r+2}, v{r+3}")
            a(f"ds_write_b64 v5, v[{P}:{P+1}] offset:{i*16*RS + 32*c}")
    srd(a, 16, pWS, WS_USED)
    a(f"""v_and_b32 v6, 31, v0
v_lshrrev_b32 v7, 5, v0
v_mul_u32_u24 v8, {RS}, v6
v_lshl_add_u32 v8, v7, 4, v8
v_add_u32 v8, s39, v8
v_lshlrev_b32 v9, 4, v0
v_mul_u32_u24 v10, {RS}, v0
v_add_u32 v10, s39, v10
v_lshlrev_b32 v11, 3, v0
v_lshrrev_b32 v12, 1, v4
v_lshrrev_b32 v13, 2, v3
v_lshl_add_u32 v13, v12, 3, v13
v_mul_u32_u24 v13, {RS}, v13
v_add_u32 v13, s39, v13
v_and_b32 v14, 1, v4
v_and_b32 v15, 3, v3
v_lshlrev_b32 v15, 3, v15
v_mul_u32_u24 v12, 288, v12
s_lshr_b32 s42, s38, 5
s_lshl_b32 s42, s42, 10
s_lshl_b32 s43, s38, 3
s_lshr_b32 s45, s38, 4
s_mul_i32 s45, s45, 576
s_waitcnt lgkmcnt(0)""")
    for hl in range(6):
        pl, par = hl // 2, hl % 2
        lab = f"L_p1_h{hl}"
        a(f"""s_add_u32 s46, s40, {hl}
s_lshr_b32 s47, s46, 5
s_and_b32 s46, s46, 31
s_lshl_b32 s48, s33, 5
s_add_u32 s48, s48, s46
s_cmp_eq_u32 s47, 2
s_cbranch_scc1 {lab}_v
s_lshl_b32 s49, s48, 16
s_lshl_b32 s50, s47, 22
s_add_u32 s49, s49, s50
s_add_u32 s49, s49, s42""")
        assert QM_OFF == 0 and KM_OFF == (1 << 22)
        off = 72*pl + 40*par
        a(f"ds_read2_b64 v[40:43], v8 offset0:{off//8} offset1:{off//8+1}")
        a(f"v_add_u32 v48, {32*RS + off}, v8")
        a(f"ds_read2_b64 v[44:47], v48 offset0:0 offset1:1")
        if par == 0:
            a(f"ds_read_b64 v[50:51], v10 offset:{72*pl + 32}")
        a("s_waitcnt lgkmcnt(%d)" % (2 if par == 0 else 1))
        a("buffer_store_dwordx4 v[40:43], v9, s[16:19], s49 offen sc1")
        a("s_waitcnt lgkmcnt(%d)" % (1 if par == 0 else 0))
        a("buffer_store_dwordx4 v[44:47], v9, s[16:19], s49 offen offset:1024 sc1")
        if par == 0:
            a(f"""s_lshr_b32 s50, s48, 1
s_lshl_b32 s50, s50, 14
s_add_u32 s50, s50, s43
s_lshl_b32 s51, s47, 19
s_add_u32 s50, s50, s51
s_add_u32 s50, s50, {QR_OFF}
s_waitcnt lgkmcnt(0)
buffer_store_dwordx2 v[50:51], v11, s[16:19], s50 offen sc1""")
        a(f"s_branch {lab}_e")
        a.label(f"{lab}_v")
        assert KR_OFF - QR_OFF == (1 << 19)
        a(f"""v_add_u32 v16, {72*pl + 40*par}, v15
v_mov_b32 v17, {72*pl + 32}
v_cmp_eq_u32 vcc, 0, v14
s_mul_i32 s49, s48, {VT_STRIDE}
s_add_u32 s49, s49, s45
v_cndmask_b32 v16, v17, v16, vcc
v_add_u32 v16, v16, v13
s_add_u32 s49, s49, {VT_OFF}
v_add_u32 v17, {16 - 2*par}, v3
v_cndmask_b32 v17, v17, v3, vcc
v_lshl_add_u32 v17, v17, 4, v12""")
        m16 = 0xffff | ((0x3 << (2*par)) << 16)
        for grp in range(4):
            R = 40 + 4*grp
            for tr in range(2):
                a(f"ds_read_b64_tr_b16 v[{R+2*tr}:{R+2*tr+1}], v16 offset:{(16*grp + 4*tr)*RS}")
        a(f"s_mov_b32 exec_lo, {m16}\ns_mov_b32 exec_hi, {m16}")
        for grp in range(4):
            R = 40 + 4*grp
            a(f"s_waitcnt lgkmcnt({6 - 2*grp})")
            a(f"buffer_store_dwordx4 v[{R}:{R+3}], v17, s[16:19], s49 offen offset:{576*grp} sc1")
        a("s_mov_b64 exec, -1")
        a.label(f"{lab}_e")
    a.label("L_p1_done")
    a("s_lshl_b32 s39, s33, 4\ns_add_u32 s39, s39, s35\ns_lshl_b32 s39, s39, 3\ns_add_u32 s39, s39, s34")
    signal(a, 39, "p1")

def phase2(a, o):
    NKT, NQ = 64, 2
    QM = lambda j: 16 + 4*j
    QR = lambda j: 24 + 2*j
    KMn = lambda s: 28 + 6*s
    KRs = lambda s: 32 + 6*s
    V0 = lambda s: 40 + 8*s
    V1 = lambda s: 44 + 8*s
    S = lambda i: 56 + 16*(i & 3)
    O = lambda j: 120 + 16*j
    vL16, vKR, vVa, vVb, vIdx = 2, 3, 4, 5, 6
    T = 152
    name = "p2"
    a(f"""s_and_b32 s18, s2, 7
s_lshr_b32 s19, s2, 3
s_lshr_b32 s12, s19, 2
s_lshl_b32 s18, s18, 3
s_add_u32 s12, s12, s18
s_and_b32 s13, s19, 3
s_mov_b32 s14, s{sWAVE}""")
    a(f"""s_and_b32 s18, s12, 31
s_lshr_b32 s19, s12, 5
s_lshl_b32 s19, s19, 4
v_lshrrev_b32 v7, 3, v0
v_lshlrev_b32 v7, 5, v7
v_add_u32 v7, s18, v7
v_mul_u32_u24 v7, 171, v7
v_lshrrev_b32 v7, 10, v7
v_add_u32 v7, s19, v7
v_and_b32 v8, 7, v0
v_lshl_add_u32 v7, v7, 3, v8
v_lshlrev_b32 v7, 7, v7
v_add_u32 v7, {FLAG_OFF}, v7""")
    poll(a, 7, 0xffffff, "p1")
    stamp(a, o, 4)
    srd(a, 8, pWS, WS_USED)
    a(f"""v_lshlrev_b32 v{vL16}, 4, v0
v_and_b32 v8, 31, v0
v_lshlrev_b32 v9, 3, v8
s_mov_b32 s15, 0
s_mov_b32 s16, 0x0003ffff
s_mov_b32 s17, 0x0003ffff
s_lshl_b32 s30, s14, 10
s_lshl_b32 s25, s12, 16
s_add_u32 s25, s25, s30
s_add_u32 s25, s25, {KM_OFF}
s_mul_i32 s28, s12, {VT_STRIDE}
s_add_u32 s28, s28, s30
s_add_u32 s28, s28, {VT_OFF}
s_lshr_b32 s38, s12, 1
s_lshl_b32 s38, s38, 14
s_and_b32 s39, s12, 1
s_lshl_b32 s39, s39, 2
s_add_u32 s33, s38, s30
s_add_u32 s33, s33, {KR_OFF}
s_add_u32 s29, s30, {LDS_VT}
s_add_u32 s34, s30, {LDS_KR}
s_mov_b32 s26, s30
s_lshl_b32 s18, s13, 4
s_lshl_b32 s19, s14, 1
s_add_u32 s24, s18, s19""")
    def dmaK():
        a("s_mov_b32 m0, s26")
        a("s_add_u32 s26, s26, 8192")
        a(f"buffer_load_dwordx4 v{vL16}, s[8:11], s25 offen sc1 lds")
        a("s_add_u32 s25, s25, 8192")
    def dmaV():
        a("s_mov_b32 m0, s29")
        a("s_add_u32 s29, s29, 8192")
        a(f"buffer_load_dwordx4 v{vL16}, s[8:11], s28 offen sc1 lds")
        a("s_add_u32 s28, s28, 8192")
    a("s_mov_b32 m0, s34")
    a("s_lshl_b32 s18, s12, 16")
    a(f"buffer_load_dwordx4 v{vL16}, s[8:11], s33 offen sc1 lds")
    dmaK(); dmaV(); dmaV()
    a(f"""s_lshl_b32 s19, s24, 10
s_add_u32 s18, s18, s19""")
    for j in range(NQ):
        a(f"buffer_load_dwordx4 v[{QM(j)}:{QM(j)+3}], v{vL16}, s[8:11], s18 offen offset:{1024*j} sc1")
    a(f"""s_lshl_b32 s20, s24, 8
s_add_u32 s19, s38, s20
s_add_u32 s19, s19, s39
s_add_u32 s19, s19, {QR_OFF}""")
    for j in range(NQ):
        a(f"buffer_load_dword v{QR(j)}, v9, s[8:11], s19 offen offset:{256*j} sc1")
    a("s_add_u32 m0, s34, 8192")
    a("s_add_u32 s33, s33, 8192")
    a(f"buffer_load_dwordx4 v{vL16}, s[8:11], s33 offen sc1 lds")
    for i in range(3): dmaK(); dmaV()
    for i in range(4): dmaK(); dmaV()
    a(f"""v_lshrrev_b32 v10, 5, v0
v_add_u32 v{vKR}, {LDS_KR}, v9
v_add_u32 v{vKR}, s39, v{vKR}
v_mul_u32_u24 v11, 288, v10
v_lshlrev_b32 v12, 4, v8
v_add_u32 v11, v11, v12
v_add_u32 v{vVa}, {LDS_VT}, v11
v_add_u32 v{vVb}, {LDS_VT + 32*1152}, v11
v_mov_b32 v{vIdx}, 0xdddd
v_and_b32 v13, 27, v8
v_cmp_eq_u32 vcc, 18, v13
v_mov_b32 v14, 0x3f803f80
v_mov_b32 v15, 0
v_cndmask_b32 v13, v15, v14, vcc""")
    for s in range(2):
        a(f"v_mov_b32 v{KRs(s)+1}, 0x3f803f80")
        for i in range(4):
            a(f"v_mov_b32 v{V0(s)+i}, v13")
            a(f"v_mov_b32 v{V1(s)+i}, v13")
    for j in range(NQ): a(f"v_mov_b32 v{QR(j)+1}, 0")
    a("s_waitcnt vmcnt(15)")
    a("v_cmp_gt_u32 vcc, 32, v0")
    a("s_nop 1")
    for j in range(NQ): a(f"v_cndmask_b32 v{QR(j)}, 0, v{QR(j)}, vcc")
    a("s_barrier")
    stamp(a, o, 5)
    def rdK(kt):
        s = kt & 1
        a(f"ds_read_b128 v[{KMn(s)}:{KMn(s)+3}], v{vL16} offset:{kt*1024}")
        a(f"ds_read_b32 v{KRs(s)}, v{vKR} offset:{kt*256}")
    def rdV(kt):
        s = kt & 1
        base, off = (vVa, kt*1152) if kt < 32 else (vVb, (kt-32)*1152)
        a("s_mov_b64 exec, s[16:17]")
        a(f"ds_read_b128 v[{V0(s)}:{V0(s)+3}], v{base} offset:{off}")
        a(f"ds_read_b128 v[{V1(s)}:{V1(s)+3}], v{base} offset:{off+576}")
        a("s_mov_b64 exec, -1")
    def qk_main(t):
        j = t % NQ; s = (t // NQ) & 1; sb = S(t)
        a(f"v_mfma_f32_32x32x16_bf16 v[{sb}:{sb+15}], v[{KMn(s)}:{KMn(s)+3}], v[{QM(j)}:{QM(j)+3}], 0")
    def qk_res(t):
        j = t % NQ; s = (t // NQ) & 1; sb = S(t)
        a(f"v_mfma_f32_32x32x8_bf16 v[{sb}:{sb+15}], v[{KRs(s)}:{KRs(s)+1}], v[{QR(j)}:{QR(j)+1}], v[{sb}:{sb+15}]")
    def pv(t, half):
        j = t % NQ; s = (t // NQ) & 1
        v = V0(s) if half == 0 else V1(s)
        a(f"v_smfmac_f32_32x32x32_bf16 v[{O(j)}:{O(j)+15}], v[{v}:{v+3}], v[{S(t)+8*half}:{S(t)+8*half+7}], v{vIdx}")
    def ex(t, i):
        r = S(t) + i
        a(f"v_exp_f32 v{r}, v{r}")
    a.label(f"L_{name}_main")
    rdK(0); rdV(0)
    for j in range(NQ):
        for i in range(16): a(f"v_mov_b32 v{O(j)+i}, 0")
    a("s_waitcnt lgkmcnt(0)")
    qk_main(0); qk_res(0); qk_main(1); qk_res(1)
    rdK(1)
    a("s_nop 7")
    a("s_nop 3")
    NT = NQ*NKT
    for t in range(NT):
        kt, j = t // NQ, t % NQ
        if t > 0: pv(t-1, 1)
        if j == 0:
            if kt == o["bar1"] or kt == o["bar2"]:
                lab = f"L_{name}_nb{kt}"
                a(f"""s_cmp_lg_u32 s15, 0
s_cbranch_scc1 {lab}
s_waitcnt vmcnt({8 if kt == o["bar1"] else 0})
s_barrier""")
                a.label(lab)
            if o["toggle"] == 2: a(f"s_setprio {1 if kt % 3 != 2 else 0}")
            a("s_waitcnt lgkmcnt(0)")
            if kt + 2 < NKT: rdK(kt+2)
            if kt + 1 < NKT: rdV(kt+1)
        for i in range(0, 4): ex(t, i)
        if t + 2 < NT: qk_main(t+2)
        for i in range(4, 8): ex(t, i)
        if t + 2 < NT: qk_res(t+2)
        for i in range(8, 12): ex(t, i)
        pv(t, 0)
        for i in range(12, 16): ex(t, i)
    a("s_nop 1")
    pv(NT-1, 1)
    a("s_setprio 0")
    stamp(a, o, 6)
    a("s_nop 7")
    a("s_nop 7")
    a("s_mov_b64 s[20:21], 0")
    a("s_mov_b32 s36, 0x53800000")
    a("s_mov_b32 s37, 0x2b800000")
    for j in range(NQ):
        a(f"v_mul_f32 v{T}, 0, v{O(j)}")
        for i in range(1, 10): a(f"v_fma_f32 v{T}, v{O(j)+i}, 0, v{T}")
        a(f"v_add_f32 v{T}, v{T}, v{O(j)+10}")
        a(f"v_cmp_ngt_f32 vcc, s36, v{T}")
        a("s_or_b64 s[20:21], s[20:21], vcc")
        a(f"v_cmp_nlt_f32 vcc, s37, v{T}")
        a("s_or_b64 s[20:21], s[20:21], vcc")
    a(f"""s_cmp_eq_u64 s[20:21], 0
s_cbranch_scc1 L_{name}_store
s_cmp_eq_u32 s15, 0
s_cbranch_scc1 L_{name}_fallback""")
    a.label(f"L_{name}_store")
    a(f"""s_lshr_b32 s18, s12, 5
s_and_b32 s19, s12, 31
s_lshl_b32 s20, s18, 21
s_lshl_b32 s21, s24, 15
s_add_u32 s20, s20, s21
s_lshl_b32 s21, s19, 10
s_add_u32 s20, s20, s21
s_add_u32 s20, s20, {OM_OFF}
s_lshl_b32 s22, s18, 18
s_lshl_b32 s21, s24, 12
s_add_u32 s22, s22, s21
s_lshr_b32 s21, s19, 2
s_lshl_b32 s21, s21, 9
s_add_u32 s22, s22, s21
s_and_b32 s21, s19, 3
s_lshl_b32 s21, s21, 2
s_add_u32 s22, s22, s21
s_add_u32 s22, s22, {OR_OFF}
v_lshlrev_b32 v9, 4, v8""")
    for j in range(NQ):
        a(f"v_rcp_f32 v{T}, v{O(j)+10}")
        a("s_nop 0")
        for i in range(10): a(f"v_mul_f32 v{O(j)+i}, v{O(j)+i}, v{T}")
        P = T + 2 + 6*j
        for i in range(4): a(f"v_cvt_pk_bf16_f32 v{P+i}, v{O(j)+2*i}, v{O(j)+2*i+1}")
        a(f"v_cvt_pk_bf16_f32 v{P+4}, v{O(j)+8}, v{O(j)+9}")
        a(f"s_add_u32 s21, s20, {32768*j}")
        a(f"buffer_store_dwordx4 v[{P}:{P+3}], v{vL16}, s[8:11], s21 offen sc1")
        a(f"s_add_u32 s23, s22, {4096*j}")
        a("s_mov_b32 exec_hi, 0")
        a(f"buffer_store_dword v{P+4}, v9, s[8:11], s23 offen sc1")
        a("s_mov_b32 exec_hi, -1")
    a("s_lshl_b32 s39, s18, 2\ns_add_u32 s39, s39, s13\ns_lshl_b32 s39, s39, 5\ns_add_u32 s39, s39, s19\ns_add_u32 s39, s39, 256")
    signal(a, 39, "p2")
    a("s_branch L_p2_end")
    a.label(f"L_{name}_fallback")
    a("s_mov_b32 s15, 1")
    MX = T
    for j in range(NQ): a(f"v_mov_b32 v{MX+j}, 0xff800000")
    a(f"v_mov_b32 v{MX+4}, v{vL16}")
    a(f"v_mov_b32 v{MX+5}, v{vKR}")
    a(f"s_mov_b32 s18, {NKT}")
    a.label(f"L_{name}_fbloop")
    a(f"ds_read_b128 v[{KMn(0)}:{KMn(0)+3}], v{MX+4}")
    a(f"ds_read_b32 v{KRs(0)}, v{MX+5}")
    a(f"v_add_u32 v{MX+4}, 1024, v{MX+4}")
    a(f"v_add_u32 v{MX+5}, 256, v{MX+5}")
    a("s_waitcnt lgkmcnt(0)")
    for j in range(NQ): qk_main(j); qk_res(j)
    a("s_nop 15")
    for j in range(NQ):
        for i in range(8): a(f"v_max3_f32 v{MX+j}, v{MX+j}, v{S(j)+2*i}, v{S(j)+2*i+1}")
    a(f"""s_sub_u32 s18, s18, 1
s_cmp_lg_u32 s18, 0
s_cbranch_scc1 L_{name}_fbloop""")
    for j in range(NQ):
        x, y, hi, mid = MX+6, MX+7, MX+8, MX+9
        a(f"""v_mov_b32 v{x}, v{MX+j}
v_mov_b32 v{y}, v{MX+j}
s_nop 1
v_permlane32_swap_b32 v{x}, v{y}
s_nop 1
v_max_f32 v{x}, v{x}, v{y}
v_and_b32 v{hi}, 0xffff0000, v{x}
v_sub_f32 v{x}, v{x}, v{hi}
v_and_b32 v{mid}, 0xffff0000, v{x}
v_sub_f32 v{x}, v{x}, v{mid}
v_xor_b32 v{hi}, 0x80000000, v{hi}
v_xor_b32 v{mid}, 0x80000000, v{mid}
v_xor_b32 v{x}, 0x80000000, v{x}
v_lshrrev_b32 v{hi}, 16, v{hi}
v_and_b32 v{mid}, 0xffff0000, v{mid}
v_or_b32 v{hi}, v{hi}, v{mid}
v_lshrrev_b32 v{x}, 16, v{x}
v_cmp_gt_u32 vcc, 32, v0
s_nop 1
v_cndmask_b32 v{QR(j)+1}, v{x}, v{hi}, vcc""")
    a(f"s_branch L_{name}_main")
    a.label("L_p2_end")

def phase3(a, o):
    OF = lambda ks, i: 64 + 8*ks + 4*i
    WF = lambda p, c: 208 + 24*p + 4*c
    ACC = lambda i, c: 16 + 4*(2*c + i)
    vL, vWa, vWb, vWr, vWD = 1, 2, 3, 4, 5
    a(f"""s_cmp_ge_u32 s2, 192
s_cbranch_scc1 L_end
s_and_b32 s30, s2, 7
s_lshr_b32 s31, s2, 3
s_and_b32 s32, s{sWAVE}, 3
s_lshr_b32 s33, s30, 2
s_and_b32 s34, s30, 3
s_lshl_b32 s34, s34, 2
s_and_b32 s35, s31, 3
s_add_u32 s34, s34, s35
s_lshr_b32 s35, s31, 2
s_lshl_b32 s36, s34, 2
s_add_u32 s36, s36, s32
s_cmp_ge_u32 s{sWAVE}, 4
s_cbranch_scc0 L_p3_compute""")
    a(f"""v_mul_u32_u24 v9, 43, v0
v_lshrrev_b32 v9, 9, v9
v_mul_u32_u24 v10, 12, v9
v_sub_u32 v10, v0, v10
v_mul_u32_u24 v9, 1152, v9
v_lshl_add_u32 v{vWD}, v10, 4, v9
s_cmp_eq_u32 s33, 0
s_cselect_b32 s8, s{pAWO}, s{pBWO}
s_cselect_b32 s9, s{pAWO+1}, s{pBWO+1}
s_mov_b32 s10, {WO_BYTES}
s_mov_b32 s11, 0x00020000
s_mul_i32 s22, s32, {4*1152}
s_mul_i32 s23, s35, 192
s_add_u32 s22, s22, s23
s_mul_i32 s23, s32, 768
s_mov_b32 exec_hi, 0xffff""")
    for r in range(36):
        a("s_mov_b32 m0, s23")
        a("s_add_u32 s23, s23, 3072")
        a(f"buffer_load_dwordx4 v{vWD}, s[8:11], s22 offen lds")
        a(f"s_add_u32 s22, s22, {16*1152}")
    a("s_mov_b32 exec_hi, -1")
    a("s_barrier")
    a("s_waitcnt vmcnt(0)")
    a("s_barrier")
    a("s_branch L_end")
    a.label("L_p3_compute")
    a(f"""v_and_b32 v7, 15, v0
v_lshrrev_b32 v8, 4, v0
v_lshlrev_b32 v9, 9, v8
v_lshl_add_u32 v{vL}, v7, 4, v9
v_lshrrev_b32 v9, 1, v8
v_mul_u32_u24 v9, 20, v9
v_and_b32 v10, 1, v8
v_lshl_add_u32 v9, v10, 2, v9
v_lshrrev_b32 v10, 2, v7
v_add_u32 v9, v9, v10
v_mul_u32_u24 v9, 192, v9
v_and_b32 v11, 3, v7
v_lshl_add_u32 v{vWa}, v11, 3, v9
v_add_u32 v{vWb}, {8*36*192}, v{vWa}
v_lshlrev_b32 v9, 2, v8
v_lshrrev_b32 v12, 1, v10
v_add_u32 v9, v9, v12
v_mul_u32_u24 v9, 18, v9
v_and_b32 v13, 1, v10
v_add_u32 v9, v9, v13
v_xor_b32 v12, 1, v12
v_lshl_add_u32 v9, v12, 4, v9
v_mul_u32_u24 v9, 192, v9
v_lshl_add_u32 v{vWr}, v11, 3, v9
s_lshr_b32 s37, s34, 2
s_lshl_b32 s38, s33, 2
s_add_u32 s37, s37, s38
s_lshl_b32 s37, s37, 5
s_add_u32 s37, s37, 256
v_add_u32 v6, s37, v0
v_lshlrev_b32 v6, 7, v6
v_add_u32 v6, {FLAG_OFF}, v6""")
    poll(a, 6, -1, "p2")
    stamp(a, o, 8)
    srd(a, 16, pWS, WS_USED)
    srd(a, 12, pOUT, OUT_BYTES)
    a(f"""s_lshl_b32 s20, s33, 21
s_lshl_b32 s21, s36, 15
s_add_u32 s20, s20, s21
s_add_u32 s20, s20, {OM_OFF}
s_lshl_b32 s21, s33, 18
s_lshl_b32 s22, s36, 12
s_add_u32 s21, s21, s22
s_add_u32 s21, s21, {OR_OFF}""")
    for ks in range(18):
        if ks < 16:
            for i in range(2):
                a(f"buffer_load_dwordx4 v[{OF(ks,i)}:{OF(ks,i)+3}], v{vL}, s[16:19], s20 offen offset:{(ks%2)*2048 + 256*i} sc1")
            if ks % 2 == 1: a("s_add_u32 s20, s20, 4096")
        else:
            for i in range(2):
                a(f"buffer_load_dwordx4 v[{OF(ks,i)}:{OF(ks,i)+3}], v{vL}, s[16:19], s21 offen offset:{(ks-16)*2048 + 256*i} sc1")
    def reads(ks, p):
        L = []
        for c in range(6):
            for t in range(2):
                if ks < 16:
                    base = vWa if ks < 8 else vWb
                    off = (36*(ks % 8) + 8*t)*192 + 32*c
                else:
                    base = vWr; off = (288*(ks-16) + 36*t)*192 + 32*c
                L.append(f"ds_read_b64_tr_b16 v[{WF(p,c)+2*t}:{WF(p,c)+2*t+1}], v{base} offset:{off}")
        return L
    def mfmas(ks):
        p = ks & 1
        return [f"v_mfma_f32_16x16x32_bf16 v[{ACC(i,c)}:{ACC(i,c)+3}], v[{WF(p,c)}:{WF(p,c)+3}], v[{OF(ks,i)}:{OF(ks,i)+3}], " + (f"v[{ACC(i,c)}:{ACC(i,c)+3}]" if ks else "0")
                for c in range(6) for i in range(2)]
    a("s_barrier")
    for x in reads(0, 0): a(x)
    for ks in range(18):
        a(f"s_waitcnt vmcnt({2*(17-ks)}) lgkmcnt(0)")
        rd = reads(ks+1, (ks+1) & 1) if ks + 1 < 18 else []
        M = mfmas(ks)
        for idx, m in enumerate(M):
            a(m)
            if idx < len(rd): a(rd[idx])
    stamp(a, o, 9)
    a(f"""s_mul_i32 s23, s32, {K3_STG}
s_add_u32 s23, s23, {WO_IMG}
v_mul_u32_u24 v9, 208, v7
v_lshl_add_u32 v9, v8, 3, v9
v_add_u32 v9, s23, v9
s_nop 3""")
    for c in range(6):
        for i in range(2):
            r = ACC(i, c); P = 64 + 4*c + 2*i
            a(f"v_cvt_pk_bf16_f32 v{P}, v{r}, v{r+1}")
            a(f"v_cvt_pk_bf16_f32 v{P+1}, v{r+2}, v{r+3}")
            a(f"ds_write_b64 v9, v[{P}:{P+1}] offset:{i*16*208 + 32*c}")
    a(f"""s_lshl_b32 s20, s36, 5
s_mul_i32 s20, s20, 2304
s_mul_i32 s21, s33, 1152
s_add_u32 s20, s20, s21
s_mul_i32 s21, s35, 192
s_add_u32 s20, s20, s21
s_mov_b32 s22, 5462""")
    for k in range(6):
        a(f"""v_add_u32 v10, {64*k}, v0
v_mul_u32_u24 v11, s22, v10
v_lshrrev_b32 v11, 16, v11
v_mul_u32_u24 v12, 12, v11
v_sub_u32 v12, v10, v12
v_mul_u32_u24 v13, 208, v11
v_lshl_add_u32 v13, v12, 4, v13
v_add_u32 v{100+k}, s23, v13
v_mul_u32_u24 v13, 2304, v11
v_lshl_add_u32 v{110+k}, v12, 4, v13""")
    a("s_waitcnt lgkmcnt(0)")
    for k in range(6): a(f"ds_read_b128 v[{120+4*k}:{123+4*k}], v{100+k}")
    for k in range(6):
        a(f"s_waitcnt lgkmcnt({5-k})")
        a(f"buffer_store_dwordx4 v[{120+4*k}:{123+4*k}], v{110+k}, s[12:15], s20 offen")

def gen(opts=None):
    o = dict(stamp=False, bar1=5, bar2=26, toggle=2)
    if opts: o.update(opts)
    a = A()
    a(f".globl {NAME}\n.p2align 8\n.type {NAME},@function")
    a.label(NAME)
    a(f"""s_cmp_ge_u32 s2, 256
s_cbranch_scc1 L_exit
s_load_dwordx16 s[{sP}:{sP+15}], s[0:1], 0
s_load_dwordx2 s[{pWS}:{pWS+1}], s[0:1], 64
v_lshrrev_b32 v1, 6, v0
v_and_b32 v0, 63, v0
s_nop 0
v_readfirstlane_b32 s{sWAVE}, v1""")
    stamp(a, o, 0)
    a("s_nop 3")
    nonce_publish(a)
    phase1(a, o)
    stamp(a, o, 3)
    phase2(a, o)
    stamp(a, o, 7)
    phase3(a, o)
    a.label("L_end")
    if o["stamp"]:
        a(f"""s_cmp_lg_u32 s{sWAVE}, 0
s_cbranch_scc1 L_exit
s_memrealtime s[42:43]
s_waitcnt lgkmcnt(0)
s_lshl_b32 s40, s2, 6
s_add_u32 s40, s40, {WS_USED}
v_mov_b32 v2, s40
s_mov_b64 exec, 1""")
        for i in range(11):
            a(f"v_mov_b32 v3, s{82+2*i if i < 10 else 42}")
            a(f"global_store_dword v2, v3, s[{pWS}:{pWS+1}] offset:{4*i}")
    a.label("L_exit")
    a("s_endpgm")
    return a.text(), kdesc(NAME, 256, 102)
```

```python
import sys, json
sys.path.insert(0,'.')
from asmlib import *
import fz
HEADER = """; Kernarg layout for this problem (72 bytes, ptrs only, base s[0:1]):
;
"""
def build(opts=None):
    b, d = fz.gen(opts)
    s = HEADER
    s += f"; @launch grid=(256,1,1) block=({fz.THREADS},1,1) lds={fz.LDS_BYTES}\n"
    s += '.amdgcn_target "amdgcn-amd-amdhsa--gfx950"\n.text\n'
    s += b + d
    return s
if __name__ == "__main__":
    out = sys.argv[1] if len(sys.argv) > 1 else "concat_heads__mha_block__mha_block__prompt.s"
    o = json.loads(sys.argv[2]) if len(sys.argv) > 2 else {}
    open(out, "w").write(build(o))
    print("wrote", out)
```

```python
from asmlib import *
NAME = "concat_heads__mha_block__mha_block__prompt_kernel"
THREADS = 512
ST1 = 49664
WREG = 32768
RS = 232
LDS_KM, LDS_VT, LDS_KR = 0, 65536, 139264
WO_IMG = 576 * 192
K3_STG = 32 * 208
LDS_BYTES = 155648
SPIN_MAX = 400000
sWAVE = 3
sP = 64
pAX, pAW, pAWO, pBX, pBW, pBWO, pOUT, pDBG, pWS = [sP + 2*i for i in range(9)]
CNT1 = 0
CNT2 = 128

def srd(a, d, p, nbytes):
    a(f"s_mov_b32 s{d}, s{p}\ns_mov_b32 s{d+1}, s{p+1}\ns_mov_b32 s{d+2}, {nbytes}\ns_mov_b32 s{d+3}, 0x00020000")

def stamp(a, o, idx):
    if o["stamp"]:
        a(f"s_memrealtime s[{82+2*idx}:{83+2*idx}]")

sNONCE = 63
def nonce_publish(a):
    a(f"""s_cmp_lg_u32 s2, 0
s_cbranch_scc1 L_nonce_done
s_cmp_lg_u32 s{sWAVE}, 0
s_cbranch_scc1 L_nonce_done
s_memrealtime s[40:41]
s_waitcnt lgkmcnt(0)
s_or_b32 s40, s40, 1
v_mov_b32 v2, 0
v_mov_b32 v3, s40
s_mov_b64 exec, 1
global_store_dword v2, v3, s[{pDBG}:{pDBG+1}] sc1
s_mov_b64 exec, -1""")
    a.label("L_nonce_done")

def nonce_fetch(a):
    a(f"""s_cmp_lg_u32 s{sWAVE}, 0
s_cbranch_scc1 L_nf_done
s_mov_b32 s40, 0""")
    a.label("L_nf_loop")
    a(f"""s_waitcnt vmcnt(0)
v_readfirstlane_b32 s{sNONCE}, v255
s_add_u32 s40, s40, 1
s_cmp_lg_u32 s{sNONCE}, 0
s_cbranch_scc1 L_nf_done
s_sleep 4
global_load_dword v255, v254, s[{pDBG}:{pDBG+1}] sc1
s_cmp_lt_u32 s40, {SPIN_MAX}
s_cbranch_scc1 L_nf_loop""")
    a.label("L_nf_done")

def signal(a, line_sgpr, tag):
    a("s_waitcnt vmcnt(0)")
    a("s_barrier")
    a(f"""s_cmp_lg_u32 s{sWAVE}, 0
s_cbranch_scc1 L_sig_{tag}
s_lshl_b32 s{line_sgpr}, s{line_sgpr}, 7
s_add_u32 s{line_sgpr}, s{line_sgpr}, {FLAG_OFF}
v_mov_b32 v254, s{line_sgpr}
v_mov_b32 v255, s{sNONCE}
s_mov_b64 exec, 1
global_store_dword v254, v255, s[{pWS}:{pWS+1}] sc1
s_mov_b64 exec, -1""")
    a.label(f"L_sig_{tag}")

def poll(a, addr_vgpr, nlanes_mask_lo, tag):
    a(f"""s_cmp_lg_u32 s{sWAVE}, 0
s_cbranch_scc1 L_polled_{tag}
s_mov_b32 s40, 0
s_mov_b32 exec_hi, 0
s_mov_b32 exec_lo, {nlanes_mask_lo}""")
    a.label(f"L_poll_{tag}")
    a(f"""global_load_dword v255, v{addr_vgpr}, s[{pWS}:{pWS+1}] sc1
s_add_u32 s40, s40, 1
s_waitcnt vmcnt(0)
v_cmp_ne_u32 vcc, s{sNONCE}, v255
s_cmp_eq_u64 vcc, 0
s_cbranch_scc1 L_pollok_{tag}
s_sleep 2
s_cmp_lt_u32 s40, {SPIN_MAX}
s_cbranch_scc1 L_poll_{tag}""")
    a.label(f"L_pollok_{tag}")
    a("s_mov_b64 exec, -1")
    a.label(f"L_polled_{tag}")
    a("s_barrier")

def phase1(a, o):
    ROT = o['rot']
    vXD = lambda i: 16 + i
    vWD = lambda i: 24 + i
    vX = lambda st, ks: 28 + 2*st + ks
    vW = lambda st: 34 + st
    XF = lambda p, i: 40 + 16*p + 4*i
    WF = lambda p, c: 72 + 28*p + 4*c
    ACC = lambda i, c: 128 + 4*(4*c + i)
    n = 7
    a(f"""s_and_b32 s30, s2, 7
s_lshr_b32 s31, s2, 3
s_and_b32 s32, s{sWAVE}, 3
s_lshr_b32 s33, s30, 2
s_and_b32 s34, s30, 1
s_lshl_b32 s34, s34, 2
s_and_b32 s35, s31, 3
s_add_u32 s34, s34, s35
s_lshr_b32 s35, s30, 1
s_and_b32 s35, s35, 1
s_lshl_b32 s35, s35, 3
s_lshr_b32 s36, s31, 2
s_add_u32 s35, s35, s36
s_lshl_b32 s20, s34, 8
s_lshl_b32 s21, s32, 6
s_add_u32 s38, s20, s21
s_lshl_b32 s37, s32, 13
v_lshrrev_b32 v4, 4, v0
v_and_b32 v3, 15, v0
s_cmp_ge_u32 s{sWAVE}, 4
s_cbranch_scc0 L_p1_compute""")
    a(f"""v_lshrrev_b32 v2, 3, v0
v_and_b32 v5, 7, v0
v_xor_b32 v5, v5, v4
v_mul_u32_u24 v6, 1152, v2
v_lshl_add_u32 v7, v5, 4, v6
v_xor_b32 v8, 64, v7""")
    for i in range(8):
        a(f"v_add_u32 v{vXD(i)}, {9216*i}, v{7 if i % 2 == 0 else 8}")
    a(f"""v_and_b32 v2, 1, v4
v_lshrrev_b32 v5, 1, v4
v_lshlrev_b32 v2, 2, v2
v_lshl_add_u32 v2, v5, 4, v2
v_mul_u32_u24 v2, 3456, v2
v_lshl_add_u32 v2, v3, 4, v2
v_mov_b32 v5, 0x40000000
v_cmp_gt_u32 vcc, 14, v3
s_mul_i32 s20, s38, 1152
s_lshr_b32 s21, s32, 1
v_cndmask_b32 v2, v5, v2, vcc""")
    for i in range(4):
        a(f"v_add_u32 v{vWD(i)}, {3456*i}, v2")
    a(f"""s_lshl_b32 s21, s21, 5
s_and_b32 s22, s32, 1
s_lshl_b32 s23, s22, 3
s_add_u32 s21, s21, s23
s_mul_i32 s21, s21, 3456
s_mul_i32 s23, s35, 216
s_add_u32 s21, s21, s23
s_lshr_b32 s23, s32, 1
s_mul_i32 s23, s23, 8448
s_mul_i32 s22, s22, {4*1056}
s_add_u32 s23, s23, s22
s_add_u32 s23, s23, {WREG}
s_mov_b32 s22, s37
s_add_u32 s24, s35, s34
s_mul_i32 s25, s24, 43
s_lshr_b32 s25, s25, 7
s_mul_i32 s25, s25, 3
s_sub_u32 s24, s24, s25
s_mul_i32 s24, s24, {ROT}
s_lshl_b32 s25, s24, 7
s_add_u32 s20, s20, s25
s_mul_i32 s25, s24, {64*3456}
s_add_u32 s21, s21, s25
s_waitcnt lgkmcnt(0)
s_cmp_eq_u32 s33, 0
s_cselect_b32 s8, s{pAX}, s{pBX}
s_cselect_b32 s9, s{pAX+1}, s{pBX+1}
s_cselect_b32 s12, s{pAW}, s{pBW}
s_cselect_b32 s13, s{pAW+1}, s{pBW+1}
s_mov_b32 s10, {X_BYTES}
s_mov_b32 s11, 0x00020000
s_mov_b32 s14, {W_BYTES}
s_mov_b32 s15, 0x00020000""")
    def dma(cc):
        st = cc % 3
        a(f"s_add_u32 m0, s22, {st*ST1}")
        for i in range(8):
            a("s_nop 0")
            a(f"buffer_load_dwordx4 v{vXD(i)}, s[8:11], s20 offen lds")
            a("s_add_u32 m0, m0, 1024" if i < 7 else f"s_add_u32 m0, s23, {st*ST1}")
        a("s_add_u32 s20, s20, 128")
        for i in range(4):
            a(f"buffer_load_dwordx4 v{vWD(i)}, s[12:15], s21 offen lds")
            if i < 3: a("s_add_u32 m0, m0, 1056\ns_nop 0")
        a(f"s_add_u32 s21, s21, {64*3456}")
        a(f"""s_add_u32 s24, s24, 1
s_cmp_eq_u32 s24, 9
s_cselect_b32 s25, {9*128}, 0
s_cselect_b32 s26, {9*64*3456}, 0
s_cselect_b32 s24, 0, s24
s_sub_u32 s20, s20, s25
s_sub_u32 s21, s21, s26""")
    dma(0); dma(1)
    a("s_waitcnt vmcnt(12)")
    a("s_barrier")
    dma(2)
    for cc in range(8):
        rem = min(8, cc + 2) - (cc + 1)
        a(f"s_waitcnt vmcnt({12*rem})")
        a("s_barrier")
        if cc + 3 <= 8: dma(cc + 3)
    a("s_branch L_p1_done")
    a.label("L_p1_compute")
    a(f"""v_lshrrev_b32 v5, 1, v3
v_xor_b32 v5, v5, v4
v_lshlrev_b32 v5, 4, v5
v_lshl_add_u32 v5, v3, 7, v5
v_add_u32 v5, s37, v5
v_xor_b32 v6, 64, v5""")
    for st in range(3):
        a(f"v_add_u32 v{vX(st,0)}, {st*ST1}, v5")
        a(f"v_add_u32 v{vX(st,1)}, {st*ST1}, v6")
    a(f"""v_lshrrev_b32 v5, 2, v3
v_and_b32 v6, 1, v4
v_lshl_add_u32 v5, v6, 2, v5
v_mul_u32_u24 v5, 1056, v5
v_lshrrev_b32 v6, 1, v4
v_lshl_add_u32 v5, v6, 9, v5
v_and_b32 v6, 3, v3
v_lshl_add_u32 v5, v6, 3, v5""")
    for st in range(3):
        a(f"v_add_u32 v{vW(st)}, {st*ST1 + WREG}, v5")
    def reads(g):
        cc, ks = g // 2, g % 2
        st, p = cc % 3, g & 1
        L = []
        for c in range(n):
            if c < 4: L.append(f"ds_read_b128 v[{XF(p,c)}:{XF(p,c)+3}], v{vX(st,ks)} offset:{2048*c}")
            for tr in range(2):
                L.append(f"ds_read_b64_tr_b16 v[{WF(p,c)+2*tr}:{WF(p,c)+2*tr+1}], v{vW(st)} offset:{ks*8448 + tr*256 + 32*c}")
        return L
    def mfmas(g):
        p = g & 1
        L = []
        for c in range(n):
            for i in range(4):
                acc = f"v[{ACC(i,c)}:{ACC(i,c)+3}]"
                L.append(f"v_mfma_f32_16x16x32_bf16 {acc}, v[{WF(p,c)}:{WF(p,c)+3}], v[{XF(p,i)}:{XF(p,i)+3}], {acc if g else 0}")
        return L
    a("s_barrier")
    stamp(a, o, 1)
    for x in reads(0): a(x)
    for g in range(18):
        cc, ks = g // 2, g % 2
        a("s_waitcnt lgkmcnt(0)")
        if ks == 1 and cc < 8: a("s_barrier")
        rd = reads(g + 1) if g + 1 < 18 else []
        M = mfmas(g)
        if g == 12:
            a("v_mov_b32 v254, 0")
            a(f"global_load_dword v255, v254, s[{pDBG}:{pDBG+1}] sc1")
        for idx, m in enumerate(M):
            a(m)
            if idx < len(rd): a(rd[idx])
    stamp(a, o, 2)
    nonce_fetch(a)
    a(f"""s_waitcnt lgkmcnt(0)
s_mul_i32 s39, s32, {64*RS}
v_mul_u32_u24 v5, {RS}, v3
v_lshl_add_u32 v5, v4, 3, v5
v_add_u32 v5, s39, v5
s_mul_i32 s40, s35, 6
s_sub_u32 s41, 32, s40
s_cmp_lt_u32 s40, 32
s_cselect_b32 s41, s41, 0
s_lshr_b32 s41, s41, 1
s_mul_i32 s41, s41, 9
s_mov_b32 s44, {f32bits(QSCALE)}
s_cmp_eq_u32 s41, 0
s_cbranch_scc1 L_p1_noscale""")
    for c in range(n):
        a(f"""v_add_u32 v6, {4*c}, v4
v_cmp_gt_u32 vcc, s41, v6
v_mov_b32 v7, 1.0
v_mov_b32 v8, s44
v_cndmask_b32 v6, v7, v8, vcc""")
        for i in range(4):
            r = ACC(i, c)
            a(f"v_pk_mul_f32 v[{r}:{r+1}], v[{r}:{r+1}], v[6:7] op_sel_hi:[1,0]")
            a(f"v_pk_mul_f32 v[{r+2}:{r+3}], v[{r+2}:{r+3}], v[6:7] op_sel_hi:[1,0]")
    a.label("L_p1_noscale")
    for c in range(n):
        for i in range(4):
            r = ACC(i, c); P = 40 + 2*((4*c + i) % 16)
            a(f"v_cvt_pk_bf16_f32 v{P}, v{r}, v{r+1}")
            a(f"v_cvt_pk_bf16_f32 v{P+1}, v{r+2}, v{r+3}")
            a(f"ds_write_b64 v5, v[{P}:{P+1}] offset:{i*16*RS + 32*c}")
    srd(a, 16, pWS, WS_USED)
    a(f"""v_and_b32 v6, 31, v0
v_lshrrev_b32 v7, 5, v0
v_mul_u32_u24 v8, {RS}, v6
v_lshl_add_u32 v8, v7, 4, v8
v_add_u32 v8, s39, v8
v_lshlrev_b32 v9, 4, v0
v_mul_u32_u24 v10, {RS}, v0
v_add_u32 v10, s39, v10
v_lshlrev_b32 v11, 3, v0
v_lshrrev_b32 v12, 1, v4
v_lshrrev_b32 v13, 2, v3
v_lshl_add_u32 v13, v12, 3, v13
v_mul_u32_u24 v13, {RS}, v13
v_add_u32 v13, s39, v13
v_and_b32 v14, 1, v4
v_and_b32 v15, 3, v3
v_lshlrev_b32 v15, 3, v15
v_mul_u32_u24 v12, 288, v12
s_lshr_b32 s42, s38, 5
s_lshl_b32 s42, s42, 10
s_lshl_b32 s43, s38, 3
s_lshr_b32 s45, s38, 4
s_mul_i32 s45, s45, 576
s_waitcnt lgkmcnt(0)""")
    for hl in range(6):
        pl, par = hl // 2, hl % 2
        lab = f"L_p1_h{hl}"
        a(f"""s_add_u32 s46, s40, {hl}
s_lshr_b32 s47, s46, 5
s_and_b32 s46, s46, 31
s_lshl_b32 s48, s33, 5
s_add_u32 s48, s48, s46
s_cmp_eq_u32 s47, 2
s_cbranch_scc1 {lab}_v
s_lshl_b32 s49, s48, 16
s_lshl_b32 s50, s47, 22
s_add_u32 s49, s49, s50
s_add_u32 s49, s49, s42""")
        assert QM_OFF == 0 and KM_OFF == (1 << 22)
        off = 72*pl + 40*par
        a(f"ds_read2_b64 v[40:43], v8 offset0:{off//8} offset1:{off//8+1}")
        a(f"v_add_u32 v48, {32*RS + off}, v8")
        a(f"ds_read2_b64 v[44:47], v48 offset0:0 offset1:1")
        if par == 0:
            a(f"ds_read_b64 v[50:51], v10 offset:{72*pl + 32}")
        a("s_waitcnt lgkmcnt(%d)" % (2 if par == 0 else 1))
        a("buffer_store_dwordx4 v[40:43], v9, s[16:19], s49 offen sc1")
        a("s_waitcnt lgkmcnt(%d)" % (1 if par == 0 else 0))
        a("buffer_store_dwordx4 v[44:47], v9, s[16:19], s49 offen offset:1024 sc1")
        if par == 0:
            a(f"""s_lshr_b32 s50, s48, 1
s_lshl_b32 s50, s50, 14
s_add_u32 s50, s50, s43
s_lshl_b32 s51, s47, 19
s_add_u32 s50, s50, s51
s_add_u32 s50, s50, {QR_OFF}
s_waitcnt lgkmcnt(0)
buffer_store_dwordx2 v[50:51], v11, s[16:19], s50 offen sc1""")
        a(f"s_branch {lab}_e")
        a.label(f"{lab}_v")
        assert KR_OFF - QR_OFF == (1 << 19)
        a(f"""v_add_u32 v16, {72*pl + 40*par}, v15
v_mov_b32 v17, {72*pl + 32}
v_cmp_eq_u32 vcc, 0, v14
s_mul_i32 s49, s48, {VT_STRIDE}
s_add_u32 s49, s49, s45
v_cndmask_b32 v16, v17, v16, vcc
v_add_u32 v16, v16, v13
s_add_u32 s49, s49, {VT_OFF}
v_add_u32 v17, {16 - 2*par}, v3
v_cndmask_b32 v17, v17, v3, vcc
v_lshl_add_u32 v17, v17, 4, v12""")
        m16 = 0xffff | ((0x3 << (2*par)) << 16)
        for grp in range(4):
            R = 40 + 4*grp
            for tr in range(2):
                a(f"ds_read_b64_tr_b16 v[{R+2*tr}:{R+2*tr+1}], v16 offset:{(16*grp + 4*tr)*RS}")
        a(f"s_mov_b32 exec_lo, {m16}\ns_mov_b32 exec_hi, {m16}")
        for grp in range(4):
            R = 40 + 4*grp
            a(f"s_waitcnt lgkmcnt({6 - 2*grp})")
            a(f"buffer_store_dwordx4 v[{R}:{R+3}], v17, s[16:19], s49 offen offset:{576*grp} sc1")
        a("s_mov_b64 exec, -1")
        a.label(f"{lab}_e")
    a.label("L_p1_done")
    a("s_lshl_b32 s39, s33, 4\ns_add_u32 s39, s39, s35\ns_lshl_b32 s39, s39, 3\ns_add_u32 s39, s39, s34")
    signal(a, 39, "p1")

def phase2(a, o):
    NKT, NQ = 64, 2
    QM = lambda j: 16 + 4*j
    QR = lambda j: 24 + 2*j
    KMn = lambda s: 28 + 6*s
    KRs = lambda s: 32 + 6*s
    V0 = lambda s: 40 + 8*s
    V1 = lambda s: 44 + 8*s
    S = lambda i: 56 + 16*(i & 3)
    O = lambda j: 120 + 16*j
    vL16, vKR, vVa, vVb, vIdx = 2, 3, 4, 5, 6
    T = 152
    name = "p2"
    a(f"""s_and_b32 s18, s2, 7
s_lshr_b32 s19, s2, 3
s_lshr_b32 s12, s19, 2
s_lshl_b32 s18, s18, 3
s_add_u32 s12, s12, s18
s_and_b32 s13, s19, 3
s_mov_b32 s14, s{sWAVE}""")
    a(f"""s_and_b32 s18, s12, 31
s_lshr_b32 s19, s12, 5
s_lshl_b32 s19, s19, 4
v_lshrrev_b32 v7, 3, v0
v_lshlrev_b32 v7, 5, v7
v_add_u32 v7, s18, v7
v_mul_u32_u24 v7, 171, v7
v_lshrrev_b32 v7, 10, v7
v_add_u32 v7, s19, v7
v_and_b32 v8, 7, v0
v_lshl_add_u32 v7, v7, 3, v8
v_lshlrev_b32 v7, 7, v7
v_add_u32 v7, {FLAG_OFF}, v7""")
    poll(a, 7, 0xffffff, "p1")
    stamp(a, o, 4)
    srd(a, 8, pWS, WS_USED)
    a(f"""v_lshlrev_b32 v{vL16}, 4, v0
v_and_b32 v8, 31, v0
v_lshlrev_b32 v9, 3, v8
s_mov_b32 s15, 0
s_mov_b32 s16, 0x0003ffff
s_mov_b32 s17, 0x0003ffff
s_lshl_b32 s30, s14, 10
s_lshl_b32 s25, s12, 16
s_add_u32 s25, s25, s30
s_add_u32 s25, s25, {KM_OFF}
s_mul_i32 s28, s12, {VT_STRIDE}
s_add_u32 s28, s28, s30
s_add_u32 s28, s28, {VT_OFF}
s_lshr_b32 s38, s12, 1
s_lshl_b32 s38, s38, 14
s_and_b32 s39, s12, 1
s_lshl_b32 s39, s39, 2
s_add_u32 s33, s38, s30
s_add_u32 s33, s33, {KR_OFF}
s_add_u32 s29, s30, {LDS_VT}
s_add_u32 s34, s30, {LDS_KR}
s_mov_b32 s26, s30
s_lshl_b32 s18, s13, 4
s_lshl_b32 s19, s14, 1
s_add_u32 s24, s18, s19""")
    def dmaK():
        a("s_mov_b32 m0, s26")
        a("s_add_u32 s26, s26, 8192")
        a(f"buffer_load_dwordx4 v{vL16}, s[8:11], s25 offen sc1 lds")
        a("s_add_u32 s25, s25, 8192")
    def dmaV():
        a("s_mov_b32 m0, s29")
        a("s_add_u32 s29, s29, 8192")
        a(f"buffer_load_dwordx4 v{vL16}, s[8:11], s28 offen sc1 lds")
        a("s_add_u32 s28, s28, 8192")
    a("s_mov_b32 m0, s34")
    a("s_lshl_b32 s18, s12, 16")
    a(f"buffer_load_dwordx4 v{vL16}, s[8:11], s33 offen sc1 lds")
    dmaK(); dmaV(); dmaV()
    a(f"""s_lshl_b32 s19, s24, 10
s_add_u32 s18, s18, s19""")
    for j in range(NQ):
        a(f"buffer_load_dwordx4 v[{QM(j)}:{QM(j)+3}], v{vL16}, s[8:11], s18 offen offset:{1024*j} sc1")
    a(f"""s_lshl_b32 s20, s24, 8
s_add_u32 s19, s38, s20
s_add_u32 s19, s19, s39
s_add_u32 s19, s19, {QR_OFF}""")
    for j in range(NQ):
        a(f"buffer_load_dword v{QR(j)}, v9, s[8:11], s19 offen offset:{256*j} sc1")
    def dmaKR1():
        a("s_add_u32 m0, s34, 8192")
        a("s_add_u32 s33, s33, 8192")
        a(f"buffer_load_dwordx4 v{vL16}, s[8:11], s33 offen sc1 lds")
    late = [dmaK, dmaV, dmaKR1, dmaK, dmaV, dmaK, dmaV] + [dmaK, dmaV]*4
    if not o["early"]:
        for f in late: f()
    a(f"""v_lshrrev_b32 v10, 5, v0
v_add_u32 v{vKR}, {LDS_KR}, v9
v_add_u32 v{vKR}, s39, v{vKR}
v_mul_u32_u24 v11, 288, v10
v_lshlrev_b32 v12, 4, v8
v_add_u32 v11, v11, v12
v_add_u32 v{vVa}, {LDS_VT}, v11
v_add_u32 v{vVb}, {LDS_VT + 32*1152}, v11
v_mov_b32 v{vIdx}, 0xdddd
v_and_b32 v13, 27, v8
v_cmp_eq_u32 vcc, 18, v13
v_mov_b32 v14, 0x3f803f80
v_mov_b32 v15, 0
v_cndmask_b32 v13, v15, v14, vcc""")
    for s in range(2):
        a(f"v_mov_b32 v{KRs(s)+1}, 0x3f803f80")
        for i in range(4):
            a(f"v_mov_b32 v{V0(s)+i}, v13")
            a(f"v_mov_b32 v{V1(s)+i}, v13")
    for j in range(NQ): a(f"v_mov_b32 v{QR(j)+1}, 0")
    a("s_waitcnt vmcnt(%d)" % (0 if o["early"] else 15))
    a("v_cmp_gt_u32 vcc, 32, v0")
    a("s_nop 1")
    for j in range(NQ): a(f"v_cndmask_b32 v{QR(j)}, 0, v{QR(j)}, vcc")
    a("s_barrier")
    stamp(a, o, 5)
    def rdK(kt):
        s = kt & 1
        a(f"ds_read_b128 v[{KMn(s)}:{KMn(s)+3}], v{vL16} offset:{kt*1024}")
        a(f"ds_read_b32 v{KRs(s)}, v{vKR} offset:{kt*256}")
    def rdV(kt):
        s = kt & 1
        base, off = (vVa, kt*1152) if kt < 32 else (vVb, (kt-32)*1152)
        a("s_mov_b64 exec, s[16:17]")
        a(f"ds_read_b128 v[{V0(s)}:{V0(s)+3}], v{base} offset:{off}")
        a(f"ds_read_b128 v[{V1(s)}:{V1(s)+3}], v{base} offset:{off+576}")
        a("s_mov_b64 exec, -1")
    def qk_main(t):
        j = t % NQ; s = (t // NQ) & 1; sb = S(t)
        a(f"v_mfma_f32_32x32x16_bf16 v[{sb}:{sb+15}], v[{KMn(s)}:{KMn(s)+3}], v[{QM(j)}:{QM(j)+3}], 0")
    def qk_res(t):
        j = t % NQ; s = (t // NQ) & 1; sb = S(t)
        a(f"v_mfma_f32_32x32x8_bf16 v[{sb}:{sb+15}], v[{KRs(s)}:{KRs(s)+1}], v[{QR(j)}:{QR(j)+1}], v[{sb}:{sb+15}]")
    def pv(t, half):
        j = t % NQ; s = (t // NQ) & 1
        v = V0(s) if half == 0 else V1(s)
        a(f"v_smfmac_f32_32x32x32_bf16 v[{O(j)}:{O(j)+15}], v[{v}:{v+3}], v[{S(t)+8*half}:{S(t)+8*half+7}], v{vIdx}")
    def ex(t, i):
        r = S(t) + i
        a(f"v_exp_f32 v{r}, v{r}")
    sched = {0: late[0:3], 1: late[3:5], 2: late[5:7], 3: late[7:9], 4: late[9:11], 5: late[11:13], 6: late[13:15]}
    a.label(f"L_{name}_main")
    rdK(0); rdV(0)
    for j in range(NQ):
        for i in range(16): a(f"v_mov_b32 v{O(j)+i}, 0")
    a("s_waitcnt lgkmcnt(0)")
    qk_main(0); qk_res(0); qk_main(1); qk_res(1)
    rdK(1)
    a("s_nop 7")
    a("s_nop 3")
    NT = NQ*NKT
    for t in range(NT):
        kt, j = t // NQ, t % NQ
        if t > 0: pv(t-1, 1)
        if j == 0:
            if kt == o["bar1"] or kt == o["bar2"]:
                lab = f"L_{name}_nb{kt}"
                nB = (4 if o["early"] else 8) if kt == o["bar1"] else 0
                a(f"""s_cmp_lg_u32 s15, 0
s_cbranch_scc1 {lab}
s_waitcnt vmcnt({nB})
s_barrier""")
                a.label(lab)
            if o["early"] and kt in sched:
                lab = f"L_{name}_nd{kt}"
                a(f"s_cmp_lg_u32 s15, 0\ns_cbranch_scc1 {lab}")
                for f in sched[kt]: f()
                a.label(lab)
            if o["toggle"] == 2: a(f"s_setprio {1 if kt % 3 != 2 else 0}")
            a("s_waitcnt lgkmcnt(0)")
            if kt + 2 < NKT: rdK(kt+2)
            if kt + 1 < NKT: rdV(kt+1)
        for i in range(0, 4): ex(t, i)
        if t + 2 < NT: qk_main(t+2)
        for i in range(4, 8): ex(t, i)
        if t + 2 < NT: qk_res(t+2)
        for i in range(8, 12): ex(t, i)
        pv(t, 0)
        for i in range(12, 16): ex(t, i)
    a("s_nop 1")
    pv(NT-1, 1)
    a("s_setprio 0")
    stamp(a, o, 6)
    a("s_nop 7")
    a("s_nop 7")
    a("s_mov_b64 s[20:21], 0")
    a("s_mov_b32 s36, 0x53800000")
    a("s_mov_b32 s37, 0x2b800000")
    for j in range(NQ):
        a(f"v_mul_f32 v{T}, 0, v{O(j)}")
        for i in range(1, 10): a(f"v_fma_f32 v{T}, v{O(j)+i}, 0, v{T}")
        a(f"v_add_f32 v{T}, v{T}, v{O(j)+10}")
        a(f"v_cmp_ngt_f32 vcc, s36, v{T}")
        a("s_or_b64 s[20:21], s[20:21], vcc")
        a(f"v_cmp_nlt_f32 vcc, s37, v{T}")
        a("s_or_b64 s[20:21], s[20:21], vcc")
    a(f"""s_cmp_eq_u64 s[20:21], 0
s_cbranch_scc1 L_{name}_store
s_cmp_eq_u32 s15, 0
s_cbranch_scc1 L_{name}_fallback""")
    a.label(f"L_{name}_store")
    a(f"""s_lshr_b32 s18, s12, 5
s_and_b32 s19, s12, 31
s_lshl_b32 s20, s18, 21
s_lshl_b32 s21, s24, 15
s_add_u32 s20, s20, s21
s_lshl_b32 s21, s19, 10
s_add_u32 s20, s20, s21
s_add_u32 s20, s20, {OM_OFF}
s_lshl_b32 s22, s18, 18
s_lshl_b32 s21, s24, 12
s_add_u32 s22, s22, s21
s_lshr_b32 s21, s19, 2
s_lshl_b32 s21, s21, 9
s_add_u32 s22, s22, s21
s_and_b32 s21, s19, 3
s_lshl_b32 s21, s21, 2
s_add_u32 s22, s22, s21
s_add_u32 s22, s22, {OR_OFF}
v_lshlrev_b32 v9, 4, v8""")
    for j in range(NQ):
        a(f"v_rcp_f32 v{T}, v{O(j)+10}")
        a("s_nop 0")
        for i in range(10): a(f"v_mul_f32 v{O(j)+i}, v{O(j)+i}, v{T}")
        P = T + 2 + 6*j
        for i in range(4): a(f"v_cvt_pk_bf16_f32 v{P+i}, v{O(j)+2*i}, v{O(j)+2*i+1}")
        a(f"v_cvt_pk_bf16_f32 v{P+4}, v{O(j)+8}, v{O(j)+9}")
        a(f"s_add_u32 s21, s20, {32768*j}")
        a(f"buffer_store_dwordx4 v[{P}:{P+3}], v{vL16}, s[8:11], s21 offen sc1")
        a(f"s_add_u32 s23, s22, {4096*j}")
        a("s_mov_b32 exec_hi, 0")
        a(f"buffer_store_dword v{P+4}, v9, s[8:11], s23 offen sc1")
        a("s_mov_b32 exec_hi, -1")
    a("s_lshl_b32 s39, s18, 2\ns_add_u32 s39, s39, s13\ns_lshl_b32 s39, s39, 5\ns_add_u32 s39, s39, s19\ns_add_u32 s39, s39, 256")
    signal(a, 39, "p2")
    a("s_branch L_p2_end")
    a.label(f"L_{name}_fallback")
    a("s_mov_b32 s15, 1")
    MX = T
    for j in range(NQ): a(f"v_mov_b32 v{MX+j}, 0xff800000")
    a(f"v_mov_b32 v{MX+4}, v{vL16}")
    a(f"v_mov_b32 v{MX+5}, v{vKR}")
    a(f"s_mov_b32 s18, {NKT}")
    a.label(f"L_{name}_fbloop")
    a(f"ds_read_b128 v[{KMn(0)}:{KMn(0)+3}], v{MX+4}")
    a(f"ds_read_b32 v{KRs(0)}, v{MX+5}")
    a(f"v_add_u32 v{MX+4}, 1024, v{MX+4}")
    a(f"v_add_u32 v{MX+5}, 256, v{MX+5}")
    a("s_waitcnt lgkmcnt(0)")
    for j in range(NQ): qk_main(j); qk_res(j)
    a("s_nop 15")
    for j in range(NQ):
        for i in range(8): a(f"v_max3_f32 v{MX+j}, v{MX+j}, v{S(j)+2*i}, v{S(j)+2*i+1}")
    a(f"""s_sub_u32 s18, s18, 1
s_cmp_lg_u32 s18, 0
s_cbranch_scc1 L_{name}_fbloop""")
    for j in range(NQ):
        x, y, hi, mid = MX+6, MX+7, MX+8, MX+9
        a(f"""v_mov_b32 v{x}, v{MX+j}
v_mov_b32 v{y}, v{MX+j}
s_nop 1
v_permlane32_swap_b32 v{x}, v{y}
s_nop 1
v_max_f32 v{x}, v{x}, v{y}
v_and_b32 v{hi}, 0xffff0000, v{x}
v_sub_f32 v{x}, v{x}, v{hi}
v_and_b32 v{mid}, 0xffff0000, v{x}
v_sub_f32 v{x}, v{x}, v{mid}
v_xor_b32 v{hi}, 0x80000000, v{hi}
v_xor_b32 v{mid}, 0x80000000, v{mid}
v_xor_b32 v{x}, 0x80000000, v{x}
v_lshrrev_b32 v{hi}, 16, v{hi}
v_and_b32 v{mid}, 0xffff0000, v{mid}
v_or_b32 v{hi}, v{hi}, v{mid}
v_lshrrev_b32 v{x}, 16, v{x}
v_cmp_gt_u32 vcc, 32, v0
s_nop 1
v_cndmask_b32 v{QR(j)+1}, v{x}, v{hi}, vcc""")
    a(f"s_branch L_{name}_main")
    a.label("L_p2_end")

def phase3(a, o):
    OF = lambda ks, i: 64 + 8*ks + 4*i
    WF = lambda p, c: 208 + 24*p + 4*c
    ACC = lambda i, c: 16 + 4*(2*c + i)
    vL, vWa, vWb, vWr, vWD = 1, 2, 3, 4, 5
    a(f"""s_cmp_ge_u32 s2, 192
s_cbranch_scc1 L_end
s_and_b32 s30, s2, 7
s_lshr_b32 s31, s2, 3
s_and_b32 s32, s{sWAVE}, 3
s_lshr_b32 s33, s30, 2
s_and_b32 s34, s30, 3
s_lshl_b32 s34, s34, 2
s_and_b32 s35, s31, 3
s_add_u32 s34, s34, s35
s_lshr_b32 s35, s31, 2
s_lshl_b32 s36, s34, 2
s_add_u32 s36, s36, s32
s_cmp_ge_u32 s{sWAVE}, 4
s_cbranch_scc0 L_p3_compute""")
    a(f"""v_mul_u32_u24 v9, 43, v0
v_lshrrev_b32 v9, 9, v9
v_mul_u32_u24 v10, 12, v9
v_sub_u32 v10, v0, v10
v_mul_u32_u24 v9, 1152, v9
v_lshl_add_u32 v{vWD}, v10, 4, v9
s_cmp_eq_u32 s33, 0
s_cselect_b32 s8, s{pAWO}, s{pBWO}
s_cselect_b32 s9, s{pAWO+1}, s{pBWO+1}
s_mov_b32 s10, {WO_BYTES}
s_mov_b32 s11, 0x00020000
s_mul_i32 s22, s32, {4*1152}
s_mul_i32 s23, s35, 192
s_add_u32 s22, s22, s23
s_mul_i32 s23, s32, 768
s_mov_b32 exec_hi, 0xffff""")
    for r in range(36):
        a("s_mov_b32 m0, s23")
        a("s_add_u32 s23, s23, 3072")
        a(f"buffer_load_dwordx4 v{vWD}, s[8:11], s22 offen lds")
        a(f"s_add_u32 s22, s22, {16*1152}")
    a("s_mov_b32 exec_hi, -1")
    a("s_barrier")
    a("s_waitcnt vmcnt(0)")
    a("s_barrier")
    a("s_branch L_end")
    a.label("L_p3_compute")
    a(f"""v_and_b32 v7, 15, v0
v_lshrrev_b32 v8, 4, v0
v_lshlrev_b32 v9, 9, v8
v_lshl_add_u32 v{vL}, v7, 4, v9
v_lshrrev_b32 v9, 1, v8
v_mul_u32_u24 v9, 20, v9
v_and_b32 v10, 1, v8
v_lshl_add_u32 v9, v10, 2, v9
v_lshrrev_b32 v10, 2, v7
v_add_u32 v9, v9, v10
v_mul_u32_u24 v9, 192, v9
v_and_b32 v11, 3, v7
v_lshl_add_u32 v{vWa}, v11, 3, v9
v_add_u32 v{vWb}, {8*36*192}, v{vWa}
v_lshlrev_b32 v9, 2, v8
v_lshrrev_b32 v12, 1, v10
v_add_u32 v9, v9, v12
v_mul_u32_u24 v9, 18, v9
v_and_b32 v13, 1, v10
v_add_u32 v9, v9, v13
v_xor_b32 v12, 1, v12
v_lshl_add_u32 v9, v12, 4, v9
v_mul_u32_u24 v9, 192, v9
v_lshl_add_u32 v{vWr}, v11, 3, v9
s_lshr_b32 s37, s34, 2
s_lshl_b32 s38, s33, 2
s_add_u32 s37, s37, s38
s_lshl_b32 s37, s37, 5
s_add_u32 s37, s37, 256
v_add_u32 v6, s37, v0
v_lshlrev_b32 v6, 7, v6
v_add_u32 v6, {FLAG_OFF}, v6""")
    poll(a, 6, -1, "p2")
    stamp(a, o, 8)
    srd(a, 16, pWS, WS_USED)
    srd(a, 12, pOUT, OUT_BYTES)
    a(f"""s_lshl_b32 s20, s33, 21
s_lshl_b32 s21, s36, 15
s_add_u32 s20, s20, s21
s_add_u32 s20, s20, {OM_OFF}
s_lshl_b32 s21, s33, 18
s_lshl_b32 s22, s36, 12
s_add_u32 s21, s21, s22
s_add_u32 s21, s21, {OR_OFF}""")
    for ks in range(18):
        if ks < 16:
            for i in range(2):
                a(f"buffer_load_dwordx4 v[{OF(ks,i)}:{OF(ks,i)+3}], v{vL}, s[16:19], s20 offen offset:{(ks%2)*2048 + 256*i} sc1")
            if ks % 2 == 1: a("s_add_u32 s20, s20, 4096")
        else:
            for i in range(2):
                a(f"buffer_load_dwordx4 v[{OF(ks,i)}:{OF(ks,i)+3}], v{vL}, s[16:19], s21 offen offset:{(ks-16)*2048 + 256*i} sc1")
    def reads(ks, p):
        L = []
        for c in range(6):
            for t in range(2):
                if ks < 16:
                    base = vWa if ks < 8 else vWb
                    off = (36*(ks % 8) + 8*t)*192 + 32*c
                else:
                    base = vWr; off = (288*(ks-16) + 36*t)*192 + 32*c
                L.append(f"ds_read_b64_tr_b16 v[{WF(p,c)+2*t}:{WF(p,c)+2*t+1}], v{base} offset:{off}")
        return L
    def mfmas(ks):
        p = ks & 1
        return [f"v_mfma_f32_16x16x32_bf16 v[{ACC(i,c)}:{ACC(i,c)+3}], v[{WF(p,c)}:{WF(p,c)+3}], v[{OF(ks,i)}:{OF(ks,i)+3}], " + (f"v[{ACC(i,c)}:{ACC(i,c)+3}]" if ks else "0")
                for c in range(6) for i in range(2)]
    a("s_barrier")
    for x in reads(0, 0): a(x)
    for ks in range(18):
        a(f"s_waitcnt vmcnt({2*(17-ks)}) lgkmcnt(0)")
        rd = reads(ks+1, (ks+1) & 1) if ks + 1 < 18 else []
        M = mfmas(ks)
        for idx, m in enumerate(M):
            a(m)
            if idx < len(rd): a(rd[idx])
    stamp(a, o, 9)
    a(f"""s_mul_i32 s23, s32, {K3_STG}
s_add_u32 s23, s23, {WO_IMG}
v_mul_u32_u24 v9, 208, v7
v_lshl_add_u32 v9, v8, 3, v9
v_add_u32 v9, s23, v9
s_nop 3""")
    for c in range(6):
        for i in range(2):
            r = ACC(i, c); P = 64 + 4*c + 2*i
            a(f"v_cvt_pk_bf16_f32 v{P}, v{r}, v{r+1}")
            a(f"v_cvt_pk_bf16_f32 v{P+1}, v{r+2}, v{r+3}")
            a(f"ds_write_b64 v9, v[{P}:{P+1}] offset:{i*16*208 + 32*c}")
    a(f"""s_lshl_b32 s20, s36, 5
s_mul_i32 s20, s20, 2304
s_mul_i32 s21, s33, 1152
s_add_u32 s20, s20, s21
s_mul_i32 s21, s35, 192
s_add_u32 s20, s20, s21
s_mov_b32 s22, 5462""")
    for k in range(6):
        a(f"""v_add_u32 v10, {64*k}, v0
v_mul_u32_u24 v11, s22, v10
v_lshrrev_b32 v11, 16, v11
v_mul_u32_u24 v12, 12, v11
v_sub_u32 v12, v10, v12
v_mul_u32_u24 v13, 208, v11
v_lshl_add_u32 v13, v12, 4, v13
v_add_u32 v{100+k}, s23, v13
v_mul_u32_u24 v13, 2304, v11
v_lshl_add_u32 v{110+k}, v12, 4, v13""")
    a("s_waitcnt lgkmcnt(0)")
    for k in range(6): a(f"ds_read_b128 v[{120+4*k}:{123+4*k}], v{100+k}")
    for k in range(6):
        a(f"s_waitcnt lgkmcnt({5-k})")
        a(f"buffer_store_dwordx4 v[{120+4*k}:{123+4*k}], v{110+k}, s[12:15], s20 offen")

def gen(opts=None):
    o = dict(stamp=False, bar1=5, bar2=26, toggle=2, rot=3, early=True)
    if opts: o.update(opts)
    a = A()
    a(f".globl {NAME}\n.p2align 8\n.type {NAME},@function")
    a.label(NAME)
    a(f"""s_cmp_ge_u32 s2, 256
s_cbranch_scc1 L_exit
s_load_dwordx16 s[{sP}:{sP+15}], s[0:1], 0
s_load_dwordx2 s[{pWS}:{pWS+1}], s[0:1], 64
v_lshrrev_b32 v1, 6, v0
v_and_b32 v0, 63, v0
s_nop 0
v_readfirstlane_b32 s{sWAVE}, v1""")
    stamp(a, o, 0)
    a("s_nop 3")
    nonce_publish(a)
    phase1(a, o)
    stamp(a, o, 3)
    phase2(a, o)
    stamp(a, o, 7)
    phase3(a, o)
    a.label("L_end")
    if o["stamp"]:
        a(f"""s_cmp_lg_u32 s{sWAVE}, 0
s_cbranch_scc1 L_exit
s_memrealtime s[42:43]
s_waitcnt lgkmcnt(0)
s_lshl_b32 s40, s2, 6
s_add_u32 s40, s40, {WS_USED}
v_mov_b32 v2, s40
s_mov_b64 exec, 1""")
        for i in range(11):
            a(f"v_mov_b32 v3, s{82+2*i if i < 10 else 42}")
            a(f"global_store_dword v2, v3, s[{pWS}:{pWS+1}] offset:{4*i}")
        if o.get("dbgstamp"):
            a(f"s_cmp_lg_u32 s2, {o['dbgstamp']}\ns_cbranch_scc1 L_exit\nv_mov_b32 v2, 0")
            for i in range(11):
                src = 82+2*i if i < 10 else 42
                a(f"s_sub_u32 s44, s{src}, s82" if i else "s_mov_b32 s44, s82")
                a("v_mov_b32 v3, s44")
                a(f"global_store_dword v2, v3, s[{pDBG}:{pDBG+1}] offset:{4*(i+1)}")
    a.label("L_exit")
    a("s_endpgm")
    return a.text(), kdesc(NAME, 256, 102)
```

```python
from asmlib import *
NAME = "concat_heads__mha_block__mha_block__prompt_kernel"
THREADS = 512
ST1 = 49664
WREG = 32768
RS = 232
LDS_KM, LDS_VT, LDS_KR = 0, 65536, 139264
WO_IMG = 576 * 192
K3_STG = 32 * 208
LDS_BYTES = 155648
SPIN_MAX = 400000
sWAVE = 3
sP = 64
pAX, pAW, pAWO, pBX, pBW, pBWO, pOUT, pDBG, pWS = [sP + 2*i for i in range(9)]
CNT1 = 0
CNT2 = 128

def srd(a, d, p, nbytes):
    a(f"s_mov_b32 s{d}, s{p}\ns_mov_b32 s{d+1}, s{p+1}\ns_mov_b32 s{d+2}, {nbytes}\ns_mov_b32 s{d+3}, 0x00020000")

def stamp(a, o, idx):
    if o["stamp"]:
        a(f"s_memrealtime s[{82+2*idx}:{83+2*idx}]")

sNONCE = 63
def nonce_publish(a):
    a(f"""s_cmp_lg_u32 s2, 0
s_cbranch_scc1 L_nonce_done
s_cmp_lg_u32 s{sWAVE}, 0
s_cbranch_scc1 L_nonce_done
s_memrealtime s[40:41]
s_waitcnt lgkmcnt(0)
s_or_b32 s40, s40, 1
v_mov_b32 v2, 0
v_mov_b32 v3, s40
s_mov_b64 exec, 1
global_store_dword v2, v3, s[{pDBG}:{pDBG+1}] sc1
s_mov_b64 exec, -1""")
    a.label("L_nonce_done")

def nonce_fetch(a):
    a(f"""s_cmp_lg_u32 s{sWAVE}, 0
s_cbranch_scc1 L_nf_done
s_mov_b32 s40, 0""")
    a.label("L_nf_loop")
    a(f"""s_waitcnt vmcnt(0)
v_readfirstlane_b32 s{sNONCE}, v255
s_add_u32 s40, s40, 1
s_cmp_lg_u32 s{sNONCE}, 0
s_cbranch_scc1 L_nf_done
s_sleep 4
global_load_dword v255, v254, s[{pDBG}:{pDBG+1}] sc1
s_cmp_lt_u32 s40, {SPIN_MAX}
s_cbranch_scc1 L_nf_loop""")
    a.label("L_nf_done")

def signal(a, line_sgpr, tag):
    a("s_waitcnt vmcnt(0)")
    a("s_barrier")
    a(f"""s_cmp_lg_u32 s{sWAVE}, 0
s_cbranch_scc1 L_sig_{tag}
s_lshl_b32 s{line_sgpr}, s{line_sgpr}, 7
s_add_u32 s{line_sgpr}, s{line_sgpr}, {FLAG_OFF}
v_mov_b32 v254, s{line_sgpr}
v_mov_b32 v255, s{sNONCE}
s_mov_b64 exec, 1
global_store_dword v254, v255, s[{pWS}:{pWS+1}] sc1
s_mov_b64 exec, -1""")
    a.label(f"L_sig_{tag}")

def poll(a, addr_vgpr, nlanes_mask_lo, tag):
    a(f"""s_cmp_lg_u32 s{sWAVE}, 0
s_cbranch_scc1 L_polled_{tag}
s_mov_b32 s40, 0
s_mov_b32 exec_hi, 0
s_mov_b32 exec_lo, {nlanes_mask_lo}""")
    a.label(f"L_poll_{tag}")
    a(f"""global_load_dword v255, v{addr_vgpr}, s[{pWS}:{pWS+1}] sc1
s_add_u32 s40, s40, 1
s_waitcnt vmcnt(0)
v_cmp_ne_u32 vcc, s{sNONCE}, v255
s_cmp_eq_u64 vcc, 0
s_cbranch_scc1 L_pollok_{tag}
s_sleep 2
s_cmp_lt_u32 s40, {SPIN_MAX}
s_cbranch_scc1 L_poll_{tag}""")
    a.label(f"L_pollok_{tag}")
    a("s_mov_b64 exec, -1")
    a.label(f"L_polled_{tag}")
    a("s_barrier")

def phase1(a, o):
    ROT = o['rot']
    vXD = lambda i: 16 + i
    vWD = lambda i: 24 + i
    vX = lambda st, ks: 28 + 2*st + ks
    vW = lambda st: 34 + st
    XF = lambda p, i: 40 + 16*p + 4*i
    WF = lambda p, c: 72 + 28*p + 4*c
    ACC = lambda i, c: 128 + 4*(4*c + i)
    n = 7
    a(f"""s_and_b32 s30, s2, 7
s_lshr_b32 s31, s2, 3
s_and_b32 s32, s{sWAVE}, 3
s_lshr_b32 s33, s30, 2
s_and_b32 s34, s30, 1
s_lshl_b32 s34, s34, 2
s_and_b32 s35, s31, 3
s_add_u32 s34, s34, s35
s_lshr_b32 s35, s30, 1
s_and_b32 s35, s35, 1
s_lshl_b32 s35, s35, 3
s_lshr_b32 s36, s31, 2
s_add_u32 s35, s35, s36
s_lshl_b32 s20, s34, 8
s_lshl_b32 s21, s32, 6
s_add_u32 s38, s20, s21
s_lshl_b32 s37, s32, 13
v_lshrrev_b32 v4, 4, v0
v_and_b32 v3, 15, v0
s_cmp_ge_u32 s{sWAVE}, 4
s_cbranch_scc0 L_p1_compute""")
    a(f"""v_lshrrev_b32 v2, 3, v0
v_and_b32 v5, 7, v0
v_xor_b32 v5, v5, v4
v_mul_u32_u24 v6, 1152, v2
v_lshl_add_u32 v7, v5, 4, v6
v_xor_b32 v8, 64, v7""")
    for i in range(8):
        a(f"v_add_u32 v{vXD(i)}, {9216*i}, v{7 if i % 2 == 0 else 8}")
    a(f"""v_and_b32 v2, 1, v4
v_lshrrev_b32 v5, 1, v4
v_lshlrev_b32 v2, 2, v2
v_lshl_add_u32 v2, v5, 4, v2
v_mul_u32_u24 v2, 3456, v2
v_lshl_add_u32 v2, v3, 4, v2
v_mov_b32 v5, 0x40000000
v_cmp_gt_u32 vcc, 14, v3
s_mul_i32 s20, s38, 1152
s_lshr_b32 s21, s32, 1
v_cndmask_b32 v2, v5, v2, vcc""")
    for i in range(4):
        a(f"v_add_u32 v{vWD(i)}, {3456*i}, v2")
    a(f"""s_lshl_b32 s21, s21, 5
s_and_b32 s22, s32, 1
s_lshl_b32 s23, s22, 3
s_add_u32 s21, s21, s23
s_mul_i32 s21, s21, 3456
s_mul_i32 s23, s35, 216
s_add_u32 s21, s21, s23
s_lshr_b32 s23, s32, 1
s_mul_i32 s23, s23, 8448
s_mul_i32 s22, s22, {4*1056}
s_add_u32 s23, s23, s22
s_add_u32 s23, s23, {WREG}
s_mov_b32 s22, s37
s_add_u32 s24, s35, s34
s_mul_i32 s25, s24, 43
s_lshr_b32 s25, s25, 7
s_mul_i32 s25, s25, 3
s_sub_u32 s24, s24, s25
s_mul_i32 s24, s24, {ROT}
s_lshl_b32 s25, s24, 7
s_add_u32 s20, s20, s25
s_mul_i32 s25, s24, {64*3456}
s_add_u32 s21, s21, s25
s_waitcnt lgkmcnt(0)
s_cmp_eq_u32 s33, 0
s_cselect_b32 s8, s{pAX}, s{pBX}
s_cselect_b32 s9, s{pAX+1}, s{pBX+1}
s_cselect_b32 s12, s{pAW}, s{pBW}
s_cselect_b32 s13, s{pAW+1}, s{pBW+1}
s_mov_b32 s10, {X_BYTES}
s_mov_b32 s11, 0x00020000
s_mov_b32 s14, {W_BYTES}
s_mov_b32 s15, 0x00020000""")
    def dma(cc):
        st = cc % 3
        a(f"s_add_u32 m0, s22, {st*ST1}")
        for i in range(8):
            a("s_nop 0")
            a(f"buffer_load_dwordx4 v{vXD(i)}, s[8:11], s20 offen lds")
            a("s_add_u32 m0, m0, 1024" if i < 7 else f"s_add_u32 m0, s23, {st*ST1}")
        a("s_add_u32 s20, s20, 128")
        for i in range(4):
            a(f"buffer_load_dwordx4 v{vWD(i)}, s[12:15], s21 offen lds")
            if i < 3: a("s_add_u32 m0, m0, 1056\ns_nop 0")
        a(f"s_add_u32 s21, s21, {64*3456}")
        a(f"""s_add_u32 s24, s24, 1
s_cmp_eq_u32 s24, 9
s_cselect_b32 s25, {9*128}, 0
s_cselect_b32 s26, {9*64*3456}, 0
s_cselect_b32 s24, 0, s24
s_sub_u32 s20, s20, s25
s_sub_u32 s21, s21, s26""")
    dma(0); dma(1)
    a("s_waitcnt vmcnt(12)")
    a("s_barrier")
    dma(2)
    for cc in range(8):
        rem = min(8, cc + 2) - (cc + 1)
        a(f"s_waitcnt vmcnt({12*rem})")
        a("s_barrier")
        if cc + 3 <= 8: dma(cc + 3)
    a("s_branch L_p1_done")
    a.label("L_p1_compute")
    a(f"""v_lshrrev_b32 v5, 1, v3
v_xor_b32 v5, v5, v4
v_lshlrev_b32 v5, 4, v5
v_lshl_add_u32 v5, v3, 7, v5
v_add_u32 v5, s37, v5
v_xor_b32 v6, 64, v5""")
    for st in range(3):
        a(f"v_add_u32 v{vX(st,0)}, {st*ST1}, v5")
        a(f"v_add_u32 v{vX(st,1)}, {st*ST1}, v6")
    a(f"""v_lshrrev_b32 v5, 2, v3
v_and_b32 v6, 1, v4
v_lshl_add_u32 v5, v6, 2, v5
v_mul_u32_u24 v5, 1056, v5
v_lshrrev_b32 v6, 1, v4
v_lshl_add_u32 v5, v6, 9, v5
v_and_b32 v6, 3, v3
v_lshl_add_u32 v5, v6, 3, v5""")
    for st in range(3):
        a(f"v_add_u32 v{vW(st)}, {st*ST1 + WREG}, v5")
    def reads(g):
        cc, ks = g // 2, g % 2
        st, p = cc % 3, g & 1
        L = []
        for c in range(n):
            if c < 4: L.append(f"ds_read_b128 v[{XF(p,c)}:{XF(p,c)+3}], v{vX(st,ks)} offset:{2048*c}")
            for tr in range(2):
                L.append(f"ds_read_b64_tr_b16 v[{WF(p,c)+2*tr}:{WF(p,c)+2*tr+1}], v{vW(st)} offset:{ks*8448 + tr*256 + 32*c}")
        return L
    def mfmas(g):
        p = g & 1
        L = []
        for c in range(n):
            for i in range(4):
                acc = f"v[{ACC(i,c)}:{ACC(i,c)+3}]"
                L.append(f"v_mfma_f32_16x16x32_bf16 {acc}, v[{WF(p,c)}:{WF(p,c)+3}], v[{XF(p,i)}:{XF(p,i)+3}], {acc if g else 0}")
        return L
    a("s_barrier")
    stamp(a, o, 1)
    for x in reads(0): a(x)
    for g in range(18):
        cc, ks = g // 2, g % 2
        a("s_waitcnt lgkmcnt(0)")
        if ks == 1 and cc < 8: a("s_barrier")
        rd = reads(g + 1) if g + 1 < 18 else []
        M = mfmas(g)
        if g == 12:
            a("v_mov_b32 v254, 0")
            a(f"global_load_dword v255, v254, s[{pDBG}:{pDBG+1}] sc1")
        for idx, m in enumerate(M):
            a(m)
            if idx < len(rd): a(rd[idx])
    stamp(a, o, 2)
    nonce_fetch(a)
    a(f"""s_waitcnt lgkmcnt(0)
s_mul_i32 s39, s32, {64*RS}
v_mul_u32_u24 v5, {RS}, v3
v_lshl_add_u32 v5, v4, 3, v5
v_add_u32 v5, s39, v5
s_mul_i32 s40, s35, 6
s_sub_u32 s41, 32, s40
s_cmp_lt_u32 s40, 32
s_cselect_b32 s41, s41, 0
s_lshr_b32 s41, s41, 1
s_mul_i32 s41, s41, 9
s_mov_b32 s44, {f32bits(QSCALE)}
s_cmp_eq_u32 s41, 0
s_cbranch_scc1 L_p1_noscale""")
    for c in range(n):
        a(f"""v_add_u32 v6, {4*c}, v4
v_cmp_gt_u32 vcc, s41, v6
v_mov_b32 v7, 1.0
v_mov_b32 v8, s44
v_cndmask_b32 v6, v7, v8, vcc""")
        for i in range(4):
            r = ACC(i, c)
            a(f"v_pk_mul_f32 v[{r}:{r+1}], v[{r}:{r+1}], v[6:7] op_sel_hi:[1,0]")
            a(f"v_pk_mul_f32 v[{r+2}:{r+3}], v[{r+2}:{r+3}], v[6:7] op_sel_hi:[1,0]")
    a.label("L_p1_noscale")
    for c in range(n):
        for i in range(4):
            r = ACC(i, c); P = 40 + 2*((4*c + i) % 16)
            a(f"v_cvt_pk_bf16_f32 v{P}, v{r}, v{r+1}")
            a(f"v_cvt_pk_bf16_f32 v{P+1}, v{r+2}, v{r+3}")
            a(f"ds_write_b64 v5, v[{P}:{P+1}] offset:{i*16*RS + 32*c}")
    srd(a, 16, pWS, WS_USED)
    a(f"""v_and_b32 v6, 31, v0
v_lshrrev_b32 v7, 5, v0
v_mul_u32_u24 v8, {RS}, v6
v_lshl_add_u32 v8, v7, 4, v8
v_add_u32 v8, s39, v8
v_lshlrev_b32 v9, 4, v0
v_mul_u32_u24 v10, {RS}, v0
v_add_u32 v10, s39, v10
v_lshlrev_b32 v11, 3, v0
v_lshrrev_b32 v12, 1, v4
v_lshrrev_b32 v13, 2, v3
v_lshl_add_u32 v13, v12, 3, v13
v_mul_u32_u24 v13, {RS}, v13
v_add_u32 v13, s39, v13
v_and_b32 v14, 1, v4
v_and_b32 v15, 3, v3
v_lshlrev_b32 v15, 3, v15
v_mul_u32_u24 v12, 288, v12
s_lshr_b32 s42, s38, 5
s_lshl_b32 s42, s42, 10
s_lshl_b32 s43, s38, 3
s_lshr_b32 s45, s38, 4
s_mul_i32 s45, s45, 576
s_waitcnt lgkmcnt(0)""")
    for hl in range(6):
        pl, par = hl // 2, hl % 2
        lab = f"L_p1_h{hl}"
        a(f"""s_add_u32 s46, s40, {hl}
s_lshr_b32 s47, s46, 5
s_and_b32 s46, s46, 31
s_lshl_b32 s48, s33, 5
s_add_u32 s48, s48, s46
s_cmp_eq_u32 s47, 2
s_cbranch_scc1 {lab}_v
s_lshl_b32 s49, s48, 16
s_lshl_b32 s50, s47, 22
s_add_u32 s49, s49, s50
s_add_u32 s49, s49, s42""")
        assert QM_OFF == 0 and KM_OFF == (1 << 22)
        off = 72*pl + 40*par
        a(f"ds_read2_b64 v[40:43], v8 offset0:{off//8} offset1:{off//8+1}")
        a(f"v_add_u32 v48, {32*RS + off}, v8")
        a(f"ds_read2_b64 v[44:47], v48 offset0:0 offset1:1")
        if par == 0:
            a(f"ds_read_b64 v[50:51], v10 offset:{72*pl + 32}")
        a("s_waitcnt lgkmcnt(%d)" % (2 if par == 0 else 1))
        a("buffer_store_dwordx4 v[40:43], v9, s[16:19], s49 offen sc1")
        a("s_waitcnt lgkmcnt(%d)" % (1 if par == 0 else 0))
        a("buffer_store_dwordx4 v[44:47], v9, s[16:19], s49 offen offset:1024 sc1")
        if par == 0:
            a(f"""s_lshr_b32 s50, s48, 1
s_lshl_b32 s50, s50, 14
s_add_u32 s50, s50, s43
s_lshl_b32 s51, s47, 19
s_add_u32 s50, s50, s51
s_add_u32 s50, s50, {QR_OFF}
s_waitcnt lgkmcnt(0)
buffer_store_dwordx2 v[50:51], v11, s[16:19], s50 offen sc1""")
        a(f"s_branch {lab}_e")
        a.label(f"{lab}_v")
        assert KR_OFF - QR_OFF == (1 << 19)
        a(f"""v_add_u32 v16, {72*pl + 40*par}, v15
v_mov_b32 v17, {72*pl + 32}
v_cmp_eq_u32 vcc, 0, v14
s_mul_i32 s49, s48, {VT_STRIDE}
s_add_u32 s49, s49, s45
v_cndmask_b32 v16, v17, v16, vcc
v_add_u32 v16, v16, v13
s_add_u32 s49, s49, {VT_OFF}
v_add_u32 v17, {16 - 2*par}, v3
v_cndmask_b32 v17, v17, v3, vcc
v_lshl_add_u32 v17, v17, 4, v12""")
        m16 = 0xffff | ((0x3 << (2*par)) << 16)
        for grp in range(4):
            R = 40 + 4*grp
            for tr in range(2):
                a(f"ds_read_b64_tr_b16 v[{R+2*tr}:{R+2*tr+1}], v16 offset:{(16*grp + 4*tr)*RS}")
        a(f"s_mov_b32 exec_lo, {m16}\ns_mov_b32 exec_hi, {m16}")
        for grp in range(4):
            R = 40 + 4*grp
            a(f"s_waitcnt lgkmcnt({6 - 2*grp})")
            a(f"buffer_store_dwordx4 v[{R}:{R+3}], v17, s[16:19], s49 offen offset:{576*grp} sc1")
        a("s_mov_b64 exec, -1")
        a.label(f"{lab}_e")
    a.label("L_p1_done")
    a("s_lshl_b32 s39, s33, 4\ns_add_u32 s39, s39, s35\ns_lshl_b32 s39, s39, 3\ns_add_u32 s39, s39, s34")
    signal(a, 39, "p1")

def phase2(a, o):
    NKT, NQ = 64, 2
    QM = lambda j: 16 + 4*j
    QR = 24
    KMn = lambda s: 28 + 6*s
    KRs = lambda s: 32 + 6*s
    V0 = lambda s: 40 + 8*s
    V1 = lambda s: 44 + 8*s
    S = lambda kt, j: 56 + 32*(kt & 1) + 16*j
    O = lambda j: 120 + 16*j
    vL16, vKR, vVa, vVb, vIdx = 2, 3, 4, 5, 6
    T = 152
    name = "p2"
    a(f"""s_and_b32 s18, s2, 7
s_lshr_b32 s19, s2, 3
s_lshr_b32 s12, s19, 2
s_lshl_b32 s18, s18, 3
s_add_u32 s12, s12, s18
s_and_b32 s13, s19, 3
s_mov_b32 s14, s{sWAVE}""")
    a(f"""s_and_b32 s18, s12, 31
s_lshr_b32 s19, s12, 5
s_lshl_b32 s19, s19, 4
v_lshrrev_b32 v7, 3, v0
v_lshlrev_b32 v7, 5, v7
v_add_u32 v7, s18, v7
v_mul_u32_u24 v7, 171, v7
v_lshrrev_b32 v7, 10, v7
v_add_u32 v7, s19, v7
v_and_b32 v8, 7, v0
v_lshl_add_u32 v7, v7, 3, v8
v_lshlrev_b32 v7, 7, v7
v_add_u32 v7, {FLAG_OFF}, v7""")
    poll(a, 7, 0xffffff, "p1")
    stamp(a, o, 4)
    srd(a, 8, pWS, WS_USED)
    a(f"""v_lshlrev_b32 v{vL16}, 4, v0
v_and_b32 v8, 31, v0
v_lshlrev_b32 v9, 3, v8
s_mov_b32 s16, 0x0003ffff
s_mov_b32 s17, 0x0003ffff
s_lshl_b32 s30, s14, 10
s_lshl_b32 s25, s12, 16
s_add_u32 s35, s25, {KM_OFF}
s_add_u32 s25, s35, s30
s_mul_i32 s28, s12, {VT_STRIDE}
s_add_u32 s36, s28, {VT_OFF}
s_add_u32 s28, s36, s30
s_lshr_b32 s38, s12, 1
s_lshl_b32 s38, s38, 14
s_and_b32 s39, s12, 1
s_lshl_b32 s39, s39, 2
s_add_u32 s37, s38, {KR_OFF}
s_add_u32 s33, s37, s30
s_add_u32 s29, s30, {LDS_VT}
s_add_u32 s34, s30, {LDS_KR}
s_mov_b32 s26, s30
s_lshl_b32 s18, s13, 4
s_lshl_b32 s19, s14, 1
s_add_u32 s24, s18, s19""")
    def dmaK():
        a("s_mov_b32 m0, s26")
        a("s_add_u32 s26, s26, 8192")
        a(f"buffer_load_dwordx4 v{vL16}, s[8:11], s25 offen sc1 lds")
        a("s_add_u32 s25, s25, 8192")
    def dmaV():
        a("s_mov_b32 m0, s29")
        a("s_add_u32 s29, s29, 8192")
        a(f"buffer_load_dwordx4 v{vL16}, s[8:11], s28 offen sc1 lds")
        a("s_add_u32 s28, s28, 8192")
    def dmaKR1():
        a("s_add_u32 m0, s34, 8192")
        a("s_add_u32 s33, s33, 8192")
        a(f"buffer_load_dwordx4 v{vL16}, s[8:11], s33 offen sc1 lds")
    a("s_mov_b32 m0, s34")
    a("s_lshl_b32 s18, s12, 16")
    a(f"buffer_load_dwordx4 v{vL16}, s[8:11], s33 offen sc1 lds")
    dmaK(); dmaV(); dmaV()
    a(f"""s_lshl_b32 s19, s24, 10
s_add_u32 s18, s18, s19""")
    for j in range(NQ):
        a(f"buffer_load_dwordx4 v[{QM(j)}:{QM(j)+3}], v{vL16}, s[8:11], s18 offen offset:{1024*j} sc1")
    a(f"""s_lshl_b32 s20, s24, 8
s_add_u32 s19, s38, s20
s_add_u32 s19, s19, s39
s_add_u32 s19, s19, {QR_OFF}
v_lshlrev_b32 v10, 3, v0
buffer_load_dword v{QR}, v10, s[8:11], s19 offen sc1""")
    late = [dmaK, dmaV, dmaKR1, dmaK, dmaV, dmaK, dmaV] + [dmaK, dmaV]*4
    sched = {0: late[0:3], 1: late[3:5], 2: late[5:7], 3: late[7:9], 4: late[9:11], 5: late[11:13], 6: late[13:15]}
    a(f"""v_lshrrev_b32 v10, 5, v0
v_add_u32 v{vKR}, {LDS_KR}, v9
v_add_u32 v{vKR}, s39, v{vKR}
v_mul_u32_u24 v11, 288, v10
v_lshlrev_b32 v12, 4, v8
v_add_u32 v27, v11, v12
v_add_u32 v{vVa}, {LDS_VT}, v27
v_add_u32 v{vVb}, {LDS_VT + 32*1152}, v27
v_mov_b32 v{vIdx}, 0xdddd
v_and_b32 v13, 27, v8
v_cmp_eq_u32 vcc, 18, v13
v_mov_b32 v14, 0x3f803f80
v_mov_b32 v15, 0
v_cndmask_b32 v13, v15, v14, vcc""")
    for s in range(2):
        a(f"v_mov_b32 v{KRs(s)+1}, 0x3f803f80")
        for i in range(4):
            a(f"v_mov_b32 v{V0(s)+i}, v13")
            a(f"v_mov_b32 v{V1(s)+i}, v13")
    a(f"v_mov_b32 v{QR+1}, 0")
    for j in range(NQ):
        for i in range(16): a(f"v_mov_b32 v{O(j)+i}, 0")
    a("s_waitcnt vmcnt(0)")
    a("s_barrier")
    stamp(a, o, 5)
    if o["stamp"]: a("s_memtime s[52:53]")
    def rdK(kt):
        s = kt & 1
        a(f"ds_read_b128 v[{KMn(s)}:{KMn(s)+3}], v{vL16} offset:{kt*1024}")
        a(f"ds_read_b32 v{KRs(s)}, v{vKR} offset:{kt*256}")
    def rdV(kt):
        s = kt & 1
        base, off = (vVa, kt*1152) if kt < 32 else (vVb, (kt-32)*1152)
        a("s_mov_b64 exec, s[16:17]")
        a(f"ds_read_b128 v[{V0(s)}:{V0(s)+3}], v{base} offset:{off}")
        a(f"ds_read_b128 v[{V1(s)}:{V1(s)+3}], v{base} offset:{off+576}")
        a("s_mov_b64 exec, -1")
    def qk_res(kt, ks=None):
        s = (kt & 1) if ks is None else ks; sb = S(kt, 0)
        a(f"v_mfma_f32_32x32x4_2b_bf16 v[{sb}:{sb+31}], v[{KRs(s)}:{KRs(s)+1}], v[{QR}:{QR+1}], 0")
    def qk_main(kt, j, ks=None):
        s = (kt & 1) if ks is None else ks; sb = S(kt, j)
        a(f"v_mfma_f32_32x32x16_bf16 v[{sb}:{sb+15}], v[{KMn(s)}:{KMn(s)+3}], v[{QM(j)}:{QM(j)+3}], v[{sb}:{sb+15}]")
    def pv(kt, j, half, vs=None):
        s = (kt & 1) if vs is None else vs
        v = V0(s) if half == 0 else V1(s)
        a(f"v_smfmac_f32_32x32x32_bf16 v[{O(j)}:{O(j)+15}], v[{v}:{v+3}], v[{S(kt,j)+8*half}:{S(kt,j)+8*half+7}], v{vIdx}")
    def ex(kt, j, i):
        r = S(kt, j) + i
        a(f"v_exp_f32 v{r}, v{r}")
    def loop(copy, prio):
        rdK(0); rdV(0)
        a("s_waitcnt lgkmcnt(0)")
        qk_res(0)
        rdK(1)
        a("s_nop 15")
        a("s_nop 1")
        qk_main(0, 0); qk_main(0, 1)
        a("s_nop 7")
        a("s_nop 3")
        for kt in range(NKT):
            if kt > 0: pv(kt-1, 1, 1)
            if kt == o["bar1"] or kt == o["bar2"]:
                a(f"s_waitcnt vmcnt({4 if kt == o['bar1'] else 0})")
                a("s_barrier")
            if kt in sched:
                for f in sched[kt]: f()
            p = prio(kt)
            if p is not None: a(f"s_setprio {p}")
            a("s_waitcnt lgkmcnt(0)")
            if kt + 2 < NKT: rdK(kt+2)
            if kt + 1 < NKT: rdV(kt+1)
            for i in range(0, 4): ex(kt, 0, i)
            if kt + 1 < NKT: qk_res(kt+1)
            for i in range(4, 12): ex(kt, 0, i)
            pv(kt, 0, 0)
            for i in range(12, 16): ex(kt, 0, i)
            pv(kt, 0, 1)
            for i in range(0, 4): ex(kt, 1, i)
            if kt + 1 < NKT: qk_main(kt+1, 0)
            for i in range(4, 8): ex(kt, 1, i)
            if kt + 1 < NKT: qk_main(kt+1, 1)
            for i in range(8, 12): ex(kt, 1, i)
            pv(kt, 1, 0)
            for i in range(12, 16): ex(kt, 1, i)
        a("s_nop 1")
        pv(NKT-1, 1, 1)
        a("s_setprio 0")
    if o["dual"]:
        a(f"s_cmp_ge_u32 s14, 4\ns_cbranch_scc1 L_p2_loopB")
        loop(0, lambda kt: 1 if kt == 0 else None)
        a("s_branch L_p2_loopdone")
        a.label("L_p2_loopB")
        pat = o["pat"]
        def pr(kt):
            cur = pat[kt % len(pat)]
            prev = pat[(kt-1) % len(pat)] if kt else None
            return cur if cur != prev else None
        loop(1, pr)
        a.label("L_p2_loopdone")
    else:
        loop(0, lambda kt: None)
    stamp(a, o, 6)
    if o["stamp"]:
        a(f"""s_memtime s[54:55]
s_waitcnt lgkmcnt(0)
s_cmp_lg_u32 s14, 4
s_cbranch_scc1 L_p2_nw4
s_sub_u32 s56, s54, s52
s_sub_u32 s57, s94, s92
s_lshl_b32 s40, s2, 6
s_add_u32 s40, s40, {WS_USED}
v_mov_b32 v200, s40
v_mov_b32 v202, s56
v_mov_b32 v203, s57
s_mov_b64 exec, 1
global_store_dwordx2 v200, v[202:203], s[{pWS}:{pWS+1}] offset:48
s_mov_b64 exec, -1""")
        a.label("L_p2_nw4")
    a("s_nop 7")
    a("s_nop 7")
    a("s_mov_b64 s[20:21], 0")
    a("s_mov_b32 s22, 0x53800000")
    a("s_mov_b32 s23, 0x2b800000")
    for j in range(NQ):
        a(f"v_mul_f32 v{T}, 0, v{O(j)}")
        for i in range(1, 10): a(f"v_fma_f32 v{T}, v{O(j)+i}, 0, v{T}")
        a(f"v_add_f32 v{T}, v{T}, v{O(j)+10}")
        a(f"v_cmp_ngt_f32 vcc, s22, v{T}")
        a("s_or_b64 s[20:21], s[20:21], vcc")
        a(f"v_cmp_nlt_f32 vcc, s23, v{T}")
        a("s_or_b64 s[20:21], s[20:21], vcc")
    a(f"""s_cmp_eq_u64 s[20:21], 0
s_cbranch_scc0 L_p2_fallback""")
    a.label("L_p2_store")
    a(f"""s_lshr_b32 s18, s12, 5
s_and_b32 s19, s12, 31
s_lshl_b32 s20, s18, 21
s_lshl_b32 s21, s24, 15
s_add_u32 s20, s20, s21
s_lshl_b32 s21, s19, 10
s_add_u32 s20, s20, s21
s_add_u32 s20, s20, {OM_OFF}
s_lshl_b32 s22, s18, 18
s_lshl_b32 s21, s24, 12
s_add_u32 s22, s22, s21
s_lshr_b32 s21, s19, 2
s_lshl_b32 s21, s21, 9
s_add_u32 s22, s22, s21
s_and_b32 s21, s19, 3
s_lshl_b32 s21, s21, 2
s_add_u32 s22, s22, s21
s_add_u32 s22, s22, {OR_OFF}
v_lshlrev_b32 v9, 4, v8""")
    for j in range(NQ):
        a(f"v_rcp_f32 v{T}, v{O(j)+10}")
        a("s_nop 0")
        for i in range(10): a(f"v_mul_f32 v{O(j)+i}, v{O(j)+i}, v{T}")
        P = T + 2 + 6*j
        for i in range(4): a(f"v_cvt_pk_bf16_f32 v{P+i}, v{O(j)+2*i}, v{O(j)+2*i+1}")
        a(f"v_cvt_pk_bf16_f32 v{P+4}, v{O(j)+8}, v{O(j)+9}")
        a(f"s_add_u32 s21, s20, {32768*j}")
        a(f"buffer_store_dwordx4 v[{P}:{P+3}], v{vL16}, s[8:11], s21 offen sc1")
        a(f"s_add_u32 s23, s22, {4096*j}")
        a("s_mov_b32 exec_hi, 0")
        a(f"buffer_store_dword v{P+4}, v9, s[8:11], s23 offen sc1")
        a("s_mov_b32 exec_hi, -1")
    a("s_lshl_b32 s39, s18, 2\ns_add_u32 s39, s39, s13\ns_lshl_b32 s39, s39, 5\ns_add_u32 s39, s39, s19\ns_add_u32 s39, s39, 256")
    signal(a, 39, "p2")
    a("s_branch L_p2_end")
    a.label("L_p2_fallback")
    MX = T
    a(f"""v_mov_b32 v{MX}, 0xff800000
v_mov_b32 v{MX+1}, 0xff800000
v_mov_b32 v{QR+1}, 0
v_mov_b32 v{MX+4}, v{vL16}
v_mov_b32 v{MX+5}, v{vKR}
s_mov_b32 s18, {NKT}""")
    a.label("L_p2_fb1")
    a(f"""ds_read_b128 v[{KMn(0)}:{KMn(0)+3}], v{MX+4}
ds_read_b32 v{KRs(0)}, v{MX+5}
v_add_u32 v{MX+4}, 1024, v{MX+4}
v_add_u32 v{MX+5}, 256, v{MX+5}
s_waitcnt lgkmcnt(0)""")
    qk_res(0, 0)
    a("s_nop 15\ns_nop 3")
    qk_main(0, 0, 0); qk_main(0, 1, 0)
    a("s_nop 15")
    for j in range(NQ):
        for i in range(8): a(f"v_max3_f32 v{MX+j}, v{MX+j}, v{S(0,j)+2*i}, v{S(0,j)+2*i+1}")
    a(f"""s_sub_u32 s18, s18, 1
s_cmp_lg_u32 s18, 0
s_cbranch_scc1 L_p2_fb1""")
    x, y, hi, mid = MX+6, MX+7, MX+8, MX+9
    for j in range(NQ):
        a(f"""v_mov_b32 v{x}, v{MX+j}
v_mov_b32 v{y}, v{MX+j}
s_nop 1
v_permlane32_swap_b32 v{x}, v{y}
s_nop 1
v_max_f32 v{MX+j}, v{x}, v{y}""")
    a(f"""v_cmp_gt_u32 vcc, 32, v0
s_nop 1
v_cndmask_b32 v{x}, v{MX+1}, v{MX}, vcc
v_and_b32 v{hi}, 0xffff0000, v{x}
v_sub_f32 v{x}, v{x}, v{hi}
v_and_b32 v{mid}, 0xffff0000, v{x}
v_xor_b32 v{hi}, 0x80000000, v{hi}
v_xor_b32 v{mid}, 0x80000000, v{mid}
v_lshrrev_b32 v{hi}, 16, v{hi}
v_or_b32 v{QR+1}, v{hi}, v{mid}""")
    for j in range(NQ):
        for i in range(16): a(f"v_mov_b32 v{O(j)+i}, 0")
    a(f"""v_mov_b32 v{MX+4}, v{vL16}
v_mov_b32 v{MX+5}, v{vKR}
v_mov_b32 v{MX+6}, v{vVa}
s_mov_b32 s18, {NKT}""")
    a.label("L_p2_fb2")
    a(f"""ds_read_b128 v[{KMn(0)}:{KMn(0)+3}], v{MX+4}
ds_read_b32 v{KRs(0)}, v{MX+5}
s_mov_b64 exec, s[16:17]
ds_read_b128 v[{V0(0)}:{V0(0)+3}], v{MX+6}
ds_read_b128 v[{V1(0)}:{V1(0)+3}], v{MX+6} offset:576
s_mov_b64 exec, -1
v_add_u32 v{MX+4}, 1024, v{MX+4}
v_add_u32 v{MX+5}, 256, v{MX+5}
v_add_u32 v{MX+6}, 1152, v{MX+6}
s_waitcnt lgkmcnt(0)""")
    qk_res(0, 0)
    a("s_nop 15\ns_nop 3")
    qk_main(0, 0, 0); qk_main(0, 1, 0)
    a("s_nop 15")
    for j in range(NQ):
        for i in range(16): ex(0, j, i)
    a("s_nop 1")
    for j in range(NQ):
        pv(0, j, 0, 0); pv(0, j, 1, 0)
    a(f"""s_sub_u32 s18, s18, 1
s_cmp_lg_u32 s18, 0
s_cbranch_scc1 L_p2_fb2
s_nop 7
s_nop 7
s_branch L_p2_store""")
    a.label("L_p2_end")

def phase3(a, o):
    OF = lambda ks, i: 64 + 8*ks + 4*i
    WF = lambda p, c: 208 + 24*p + 4*c
    ACC = lambda i, c: 16 + 4*(2*c + i)
    vL, vWa, vWb, vWr, vWD = 1, 2, 3, 4, 5
    a(f"""s_cmp_ge_u32 s2, 192
s_cbranch_scc1 L_end
s_and_b32 s30, s2, 7
s_lshr_b32 s31, s2, 3
s_and_b32 s32, s{sWAVE}, 3
s_lshr_b32 s33, s30, 2
s_and_b32 s34, s30, 3
s_lshl_b32 s34, s34, 2
s_and_b32 s35, s31, 3
s_add_u32 s34, s34, s35
s_lshr_b32 s35, s31, 2
s_lshl_b32 s36, s34, 2
s_add_u32 s36, s36, s32
s_cmp_ge_u32 s{sWAVE}, 4
s_cbranch_scc0 L_p3_compute""")
    a(f"""v_mul_u32_u24 v9, 43, v0
v_lshrrev_b32 v9, 9, v9
v_mul_u32_u24 v10, 12, v9
v_sub_u32 v10, v0, v10
v_mul_u32_u24 v9, 1152, v9
v_lshl_add_u32 v{vWD}, v10, 4, v9
s_cmp_eq_u32 s33, 0
s_cselect_b32 s8, s{pAWO}, s{pBWO}
s_cselect_b32 s9, s{pAWO+1}, s{pBWO+1}
s_mov_b32 s10, {WO_BYTES}
s_mov_b32 s11, 0x00020000
s_mul_i32 s22, s32, {4*1152}
s_mul_i32 s23, s35, 192
s_add_u32 s22, s22, s23
s_mul_i32 s23, s32, 768
s_mov_b32 exec_hi, 0xffff""")
    for r in range(36):
        a("s_mov_b32 m0, s23")
        a("s_add_u32 s23, s23, 3072")
        a(f"buffer_load_dwordx4 v{vWD}, s[8:11], s22 offen lds")
        a(f"s_add_u32 s22, s22, {16*1152}")
    a("s_mov_b32 exec_hi, -1")
    a("s_barrier")
    a("s_waitcnt vmcnt(0)")
    a("s_barrier")
    a("s_branch L_end")
    a.label("L_p3_compute")
    a(f"""v_and_b32 v7, 15, v0
v_lshrrev_b32 v8, 4, v0
v_lshlrev_b32 v9, 9, v8
v_lshl_add_u32 v{vL}, v7, 4, v9
v_lshrrev_b32 v9, 1, v8
v_mul_u32_u24 v9, 20, v9
v_and_b32 v10, 1, v8
v_lshl_add_u32 v9, v10, 2, v9
v_lshrrev_b32 v10, 2, v7
v_add_u32 v9, v9, v10
v_mul_u32_u24 v9, 192, v9
v_and_b32 v11, 3, v7
v_lshl_add_u32 v{vWa}, v11, 3, v9
v_add_u32 v{vWb}, {8*36*192}, v{vWa}
v_lshlrev_b32 v9, 2, v8
v_lshrrev_b32 v12, 1, v10
v_add_u32 v9, v9, v12
v_mul_u32_u24 v9, 18, v9
v_and_b32 v13, 1, v10
v_add_u32 v9, v9, v13
v_xor_b32 v12, 1, v12
v_lshl_add_u32 v9, v12, 4, v9
v_mul_u32_u24 v9, 192, v9
v_lshl_add_u32 v{vWr}, v11, 3, v9
s_lshr_b32 s37, s34, 2
s_lshl_b32 s38, s33, 2
s_add_u32 s37, s37, s38
s_lshl_b32 s37, s37, 5
s_add_u32 s37, s37, 256
v_add_u32 v6, s37, v0
v_lshlrev_b32 v6, 7, v6
v_add_u32 v6, {FLAG_OFF}, v6""")
    poll(a, 6, -1, "p2")
    stamp(a, o, 8)
    srd(a, 16, pWS, WS_USED)
    srd(a, 12, pOUT, OUT_BYTES)
    a(f"""s_lshl_b32 s20, s33, 21
s_lshl_b32 s21, s36, 15
s_add_u32 s20, s20, s21
s_add_u32 s20, s20, {OM_OFF}
s_lshl_b32 s21, s33, 18
s_lshl_b32 s22, s36, 12
s_add_u32 s21, s21, s22
s_add_u32 s21, s21, {OR_OFF}""")
    for ks in range(18):
        if ks < 16:
            for i in range(2):
                a(f"buffer_load_dwordx4 v[{OF(ks,i)}:{OF(ks,i)+3}], v{vL}, s[16:19], s20 offen offset:{(ks%2)*2048 + 256*i} sc1")
            if ks % 2 == 1: a("s_add_u32 s20, s20, 4096")
        else:
            for i in range(2):
                a(f"buffer_load_dwordx4 v[{OF(ks,i)}:{OF(ks,i)+3}], v{vL}, s[16:19], s21 offen offset:{(ks-16)*2048 + 256*i} sc1")
    def reads(ks, p):
        L = []
        for c in range(6):
            for t in range(2):
                if ks < 16:
                    base = vWa if ks < 8 else vWb
                    off = (36*(ks % 8) + 8*t)*192 + 32*c
                else:
                    base = vWr; off = (288*(ks-16) + 36*t)*192 + 32*c
                L.append(f"ds_read_b64_tr_b16 v[{WF(p,c)+2*t}:{WF(p,c)+2*t+1}], v{base} offset:{off}")
        return L
    def mfmas(ks):
        p = ks & 1
        return [f"v_mfma_f32_16x16x32_bf16 v[{ACC(i,c)}:{ACC(i,c)+3}], v[{WF(p,c)}:{WF(p,c)+3}], v[{OF(ks,i)}:{OF(ks,i)+3}], " + (f"v[{ACC(i,c)}:{ACC(i,c)+3}]" if ks else "0")
                for c in range(6) for i in range(2)]
    a("s_barrier")
    for x in reads(0, 0): a(x)
    for ks in range(18):
        a(f"s_waitcnt vmcnt({2*(17-ks)}) lgkmcnt(0)")
        rd = reads(ks+1, (ks+1) & 1) if ks + 1 < 18 else []
        M = mfmas(ks)
        for idx, m in enumerate(M):
            a(m)
            if idx < len(rd): a(rd[idx])
    stamp(a, o, 9)
    a(f"""s_mul_i32 s23, s32, {K3_STG}
s_add_u32 s23, s23, {WO_IMG}
v_mul_u32_u24 v9, 208, v7
v_lshl_add_u32 v9, v8, 3, v9
v_add_u32 v9, s23, v9
s_nop 3""")
    for c in range(6):
        for i in range(2):
            r = ACC(i, c); P = 64 + 4*c + 2*i
            a(f"v_cvt_pk_bf16_f32 v{P}, v{r}, v{r+1}")
            a(f"v_cvt_pk_bf16_f32 v{P+1}, v{r+2}, v{r+3}")
            a(f"ds_write_b64 v9, v[{P}:{P+1}] offset:{i*16*208 + 32*c}")
    a(f"""s_lshl_b32 s20, s36, 5
s_mul_i32 s20, s20, 2304
s_mul_i32 s21, s33, 1152
s_add_u32 s20, s20, s21
s_mul_i32 s21, s35, 192
s_add_u32 s20, s20, s21
s_mov_b32 s22, 5462""")
    for k in range(6):
        a(f"""v_add_u32 v10, {64*k}, v0
v_mul_u32_u24 v11, s22, v10
v_lshrrev_b32 v11, 16, v11
v_mul_u32_u24 v12, 12, v11
v_sub_u32 v12, v10, v12
v_mul_u32_u24 v13, 208, v11
v_lshl_add_u32 v13, v12, 4, v13
v_add_u32 v{100+k}, s23, v13
v_mul_u32_u24 v13, 2304, v11
v_lshl_add_u32 v{110+k}, v12, 4, v13""")
    a("s_waitcnt lgkmcnt(0)")
    for k in range(6): a(f"ds_read_b128 v[{120+4*k}:{123+4*k}], v{100+k}")
    for k in range(6):
        a(f"s_waitcnt lgkmcnt({5-k})")
        a(f"buffer_store_dwordx4 v[{120+4*k}:{123+4*k}], v{110+k}, s[12:15], s20 offen")

def gen(opts=None):
    o = dict(stamp=False, bar1=5, bar2=26, rot=3, dual=True, pat=[2,2,0])
    if opts: o.update(opts)
    a = A()
    a(f".globl {NAME}\n.p2align 8\n.type {NAME},@function")
    a.label(NAME)
    a(f"""s_cmp_ge_u32 s2, 256
s_cbranch_scc1 L_exit
s_load_dwordx16 s[{sP}:{sP+15}], s[0:1], 0
s_load_dwordx2 s[{pWS}:{pWS+1}], s[0:1], 64
v_lshrrev_b32 v1, 6, v0
v_and_b32 v0, 63, v0
s_nop 0
v_readfirstlane_b32 s{sWAVE}, v1""")
    stamp(a, o, 0)
    a("s_nop 3")
    nonce_publish(a)
    phase1(a, o)
    stamp(a, o, 3)
    phase2(a, o)
    stamp(a, o, 7)
    phase3(a, o)
    a.label("L_end")
    if o["stamp"]:
        a(f"""s_cmp_lg_u32 s{sWAVE}, 0
s_cbranch_scc1 L_exit
s_memrealtime s[42:43]
s_waitcnt lgkmcnt(0)
s_lshl_b32 s40, s2, 6
s_add_u32 s40, s40, {WS_USED}
v_mov_b32 v2, s40
s_mov_b64 exec, 1""")
        for i in range(11):
            a(f"v_mov_b32 v3, s{82+2*i if i < 10 else 42}")
            a(f"global_store_dword v2, v3, s[{pWS}:{pWS+1}] offset:{4*i}")
        a("s_sub_u32 s54, s54, s52\nv_mov_b32 v3, s54")
        a(f"global_store_dword v2, v3, s[{pWS}:{pWS+1}] offset:44")
        if o.get("dbgstamp"):
            a(f"s_cmp_lg_u32 s2, {o['dbgstamp']}\ns_cbranch_scc1 L_exit\nv_mov_b32 v2, 0")
            for i in range(11):
                src = 82+2*i if i < 10 else 42
                a(f"s_sub_u32 s44, s{src}, s82" if i else "s_mov_b32 s44, s82")
                a("v_mov_b32 v3, s44")
                a(f"global_store_dword v2, v3, s[{pDBG}:{pDBG+1}] offset:{4*(i+1)}")
    a.label("L_exit")
    a("s_endpgm")
    return a.text(), kdesc(NAME, 256, 102)
```

```python
from asmlib import *
NAME = "concat_heads__mha_block__mha_block__prompt_kernel"
THREADS = 512
ST1 = 49664
WREG = 32768
RS = 232
LDS_KM, LDS_VT, LDS_KR = 0, 65536, 139264
WO_RS = 224
WO_IMG = 576 * WO_RS
K3_STG = 32 * 208
LDS_BYTES = 155648
SPIN_MAX = 400000
sWAVE = 3
sP = 64
pAX, pAW, pAWO, pBX, pBW, pBWO, pOUT, pDBG, pWS = [sP + 2*i for i in range(9)]
CNT1 = 0
CNT2 = 128

def srd(a, d, p, nbytes):
    a(f"s_mov_b32 s{d}, s{p}\ns_mov_b32 s{d+1}, s{p+1}\ns_mov_b32 s{d+2}, {nbytes}\ns_mov_b32 s{d+3}, 0x00020000")

def stamp(a, o, idx):
    if o["stamp"]:
        a(f"s_memrealtime s[{82+2*idx}:{83+2*idx}]")

sNONCE = 63
def nonce_publish(a):
    a(f"""s_cmp_lg_u32 s2, 0
s_cbranch_scc1 L_nonce_done
s_cmp_lg_u32 s{sWAVE}, 0
s_cbranch_scc1 L_nonce_done
s_memrealtime s[40:41]
s_waitcnt lgkmcnt(0)
s_or_b32 s40, s40, 1
v_mov_b32 v2, 0
v_mov_b32 v3, s40
s_mov_b64 exec, 1
global_store_dword v2, v3, s[{pDBG}:{pDBG+1}] sc1
s_mov_b64 exec, -1""")
    a.label("L_nonce_done")

def nonce_fetch(a):
    a(f"""s_cmp_lg_u32 s{sWAVE}, 0
s_cbranch_scc1 L_nf_done
s_mov_b32 s40, 0""")
    a.label("L_nf_loop")
    a(f"""s_waitcnt vmcnt(0)
v_readfirstlane_b32 s{sNONCE}, v255
s_add_u32 s40, s40, 1
s_cmp_lg_u32 s{sNONCE}, 0
s_cbranch_scc1 L_nf_done
s_sleep 4
global_load_dword v255, v254, s[{pDBG}:{pDBG+1}] sc1
s_cmp_lt_u32 s40, {SPIN_MAX}
s_cbranch_scc1 L_nf_loop""")
    a.label("L_nf_done")

def signal(a, line_sgpr, tag):
    a("s_waitcnt vmcnt(0)")
    a("s_barrier")
    a(f"""s_cmp_lg_u32 s{sWAVE}, 0
s_cbranch_scc1 L_sig_{tag}
s_lshl_b32 s{line_sgpr}, s{line_sgpr}, 7
s_add_u32 s{line_sgpr}, s{line_sgpr}, {FLAG_OFF}
v_mov_b32 v254, s{line_sgpr}
v_mov_b32 v255, s{sNONCE}
s_mov_b64 exec, 1
global_store_dword v254, v255, s[{pWS}:{pWS+1}] sc1
s_mov_b64 exec, -1""")
    a.label(f"L_sig_{tag}")

def poll(a, addr_vgpr, nlanes_mask_lo, tag):
    a(f"""s_cmp_lg_u32 s{sWAVE}, 0
s_cbranch_scc1 L_polled_{tag}
s_mov_b32 s40, 0
s_mov_b32 exec_hi, 0
s_mov_b32 exec_lo, {nlanes_mask_lo}""")
    a.label(f"L_poll_{tag}")
    a(f"""global_load_dword v255, v{addr_vgpr}, s[{pWS}:{pWS+1}] sc1
s_add_u32 s40, s40, 1
s_waitcnt vmcnt(0)
v_cmp_ne_u32 vcc, s{sNONCE}, v255
s_cmp_eq_u64 vcc, 0
s_cbranch_scc1 L_pollok_{tag}
s_sleep 2
s_cmp_lt_u32 s40, {SPIN_MAX}
s_cbranch_scc1 L_poll_{tag}""")
    a.label(f"L_pollok_{tag}")
    a("s_mov_b64 exec, -1")
    a.label(f"L_polled_{tag}")
    a("s_barrier")

def phase1(a, o):
    ROT = o['rot']
    vXD = lambda i: 16 + i
    vWD = lambda i: 24 + i
    vX = lambda st, ks: 28 + 2*st + ks
    vW = lambda st: 34 + st
    XF = lambda p, i: 40 + 16*p + 4*i
    WF = lambda p, c: 72 + 28*p + 4*c
    ACC = lambda i, c: 128 + 4*(4*c + i)
    n = 7
    a(f"""s_and_b32 s30, s2, 7
s_lshr_b32 s31, s2, 3
s_and_b32 s32, s{sWAVE}, 3
s_lshr_b32 s33, s30, 2
s_and_b32 s34, s30, 1
s_lshl_b32 s34, s34, 2
s_and_b32 s35, s31, 3
s_add_u32 s34, s34, s35
s_lshr_b32 s35, s30, 1
s_and_b32 s35, s35, 1
s_lshl_b32 s35, s35, 3
s_lshr_b32 s36, s31, 2
s_add_u32 s35, s35, s36
s_lshl_b32 s20, s34, 8
s_lshl_b32 s21, s32, 6
s_add_u32 s38, s20, s21
s_lshl_b32 s37, s32, 13
v_lshrrev_b32 v4, 4, v0
v_and_b32 v3, 15, v0""")
    WC = o["wcomp"]
    a(f"""v_and_b32 v2, 1, v4
v_lshrrev_b32 v5, 1, v4
v_lshlrev_b32 v2, 2, v2
v_lshl_add_u32 v2, v5, 4, v2
v_mul_u32_u24 v2, 3456, v2
v_lshl_add_u32 v2, v3, 4, v2
v_mov_b32 v5, 0x40000000
v_cmp_gt_u32 vcc, 14, v3
s_mul_i32 s20, s38, 1152
s_lshr_b32 s21, s32, 1
v_cndmask_b32 v2, v5, v2, vcc""")
    for i in range(4):
        a(f"v_add_u32 v{vWD(i)}, {3456*i}, v2")
    a(f"""s_lshl_b32 s21, s21, 5
s_and_b32 s22, s32, 1
s_lshl_b32 s23, s22, 3
s_add_u32 s21, s21, s23
s_mul_i32 s21, s21, 3456
s_mul_i32 s23, s35, 216
s_add_u32 s21, s21, s23
s_lshr_b32 s23, s32, 1
s_mul_i32 s23, s23, 8448
s_mul_i32 s22, s22, {4*1056}
s_add_u32 s23, s23, s22
s_add_u32 s23, s23, {WREG}
s_mov_b32 s22, s37
s_add_u32 s24, s35, s34
s_mul_i32 s25, s24, 43
s_lshr_b32 s25, s25, 7
s_mul_i32 s25, s25, 3
s_sub_u32 s24, s24, s25
s_mul_i32 s24, s24, {ROT}
s_lshl_b32 s25, s24, 7
s_add_u32 s20, s20, s25
s_mul_i32 s25, s24, {64*3456}
s_add_u32 s21, s21, s25
s_waitcnt lgkmcnt(0)
s_cmp_eq_u32 s33, 0
s_cselect_b32 s8, s{pAX}, s{pBX}
s_cselect_b32 s9, s{pAX+1}, s{pBX+1}
s_cselect_b32 s12, s{pAW}, s{pBW}
s_cselect_b32 s13, s{pAW+1}, s{pBW+1}
s_mov_b32 s10, {X_BYTES}
s_mov_b32 s11, 0x00020000
s_mov_b32 s14, {W_BYTES}
s_mov_b32 s15, 0x00020000
s_cmp_ge_u32 s{sWAVE}, 4
s_cbranch_scc0 L_p1_compute""")
    wrap = [f"s_add_u32 s21, s21, {64*3456}", "s_add_u32 s20, s20, 128", "s_add_u32 s24, s24, 1", "s_cmp_eq_u32 s24, 9",
            f"s_cselect_b32 s25, {9*128}, 0", f"s_cselect_b32 s26, {9*64*3456}, 0", "s_cselect_b32 s24, 0, s24",
            "s_sub_u32 s20, s20, s25", "s_sub_u32 s21, s21, s26"]
    def w_units(cc):
        st = cc % 3
        U = [[f"s_add_u32 m0, s23, {st*ST1}"]]
        for i in range(4):
            u = [f"buffer_load_dwordx4 v{vWD(i)}, s[12:15], s21 offen lds"]
            u += ["s_add_u32 m0, m0, 1056"] if i < 3 else wrap
            U.append(u)
        return U
    def flat(U):
        for u in U:
            for x in u:
                if x.startswith("buffer_load"): a("s_nop 0")
                a(x)
    XC = o["xcomp"]
    def xsetup():
        a(f"""v_lshrrev_b32 v2, 3, v0
v_and_b32 v5, 7, v0
v_xor_b32 v5, v5, v4
v_mul_u32_u24 v6, 1152, v2
v_lshl_add_u32 v7, v5, 4, v6
v_xor_b32 v8, 64, v7""")
        for i in range(8):
            a(f"v_add_u32 v{vXD(i)}, {9216*i}, v{7 if i % 2 == 0 else 8}")
    if XC:
        for _ in range(9): a("s_barrier")
        a("s_branch L_p1_done")
    xsetup()
    NL = 8 if WC else 12
    def dma(cc):
        st = cc % 3
        a(f"s_add_u32 m0, s22, {st*ST1}")
        for i in range(8):
            a("s_nop 0")
            a(f"buffer_load_dwordx4 v{vXD(i)}, s[8:11], s20 offen lds")
            if i < 7: a("s_add_u32 m0, m0, 1024")
        if WC:
            for x in wrap: a(x)
        else:
            flat(w_units(cc))
    dma(0); dma(1)
    a(f"s_waitcnt vmcnt({NL})")
    a("s_barrier")
    dma(2)
    for cc in range(8):
        rem = min(8, cc + 2) - (cc + 1)
        a(f"s_waitcnt vmcnt({NL*rem})")
        a("s_barrier")
        if cc + 3 <= 8: dma(cc + 3)
    a("s_branch L_p1_done")
    a.label("L_p1_compute")
    def xw_units(cc):
        st = cc % 3
        U = [[f"s_add_u32 m0, s22, {st*ST1}"]]
        for i in range(8):
            U.append([f"buffer_load_dwordx4 v{vXD(i)}, s[8:11], s20 offen lds",
                      "s_add_u32 m0, m0, 1024" if i < 7 else f"s_add_u32 m0, s23, {st*ST1}"])
        return U + w_units(cc)[1:]
    if XC:
        xsetup()
        flat(xw_units(0)); flat(xw_units(1))
    elif WC:
        flat(w_units(0)); flat(w_units(1))
    a(f"""v_lshrrev_b32 v5, 1, v3
v_xor_b32 v5, v5, v4
v_lshlrev_b32 v5, 4, v5
v_lshl_add_u32 v5, v3, 7, v5
v_add_u32 v5, s37, v5
v_xor_b32 v6, 64, v5""")
    for st in range(3):
        a(f"v_add_u32 v{vX(st,0)}, {st*ST1}, v5")
        a(f"v_add_u32 v{vX(st,1)}, {st*ST1}, v6")
    a(f"""v_lshrrev_b32 v5, 2, v3
v_and_b32 v6, 1, v4
v_lshl_add_u32 v5, v6, 2, v5
v_mul_u32_u24 v5, 1056, v5
v_lshrrev_b32 v6, 1, v4
v_lshl_add_u32 v5, v6, 9, v5
v_and_b32 v6, 3, v3
v_lshl_add_u32 v5, v6, 3, v5""")
    for st in range(3):
        a(f"v_add_u32 v{vW(st)}, {st*ST1 + WREG}, v5")
    def reads(g):
        cc, ks = g // 2, g % 2
        st, p = cc % 3, g & 1
        L = []
        for c in range(n):
            if c < 4: L.append(f"ds_read_b128 v[{XF(p,c)}:{XF(p,c)+3}], v{vX(st,ks)} offset:{2048*c}")
            for tr in range(2):
                L.append(f"ds_read_b64_tr_b16 v[{WF(p,c)+2*tr}:{WF(p,c)+2*tr+1}], v{vW(st)} offset:{ks*8448 + tr*256 + 32*c}")
        return L
    def mfmas(g):
        p = g & 1
        L = []
        for c in range(n):
            for i in range(4):
                acc = f"v[{ACC(i,c)}:{ACC(i,c)+3}]"
                L.append(f"v_mfma_f32_16x16x32_bf16 {acc}, v[{WF(p,c)}:{WF(p,c)+3}], v[{XF(p,i)}:{XF(p,i)+3}], {acc if g else 0}")
        return L
    if o["pf"]:
        assert not WC and o["rot"] == 0
        a(f"""s_and_b32 s26, s35, 7
s_lshl_b32 s26, s26, 5
s_lshl_b32 s27, s34, 8
s_add_u32 s26, s26, s27
s_mul_i32 s26, s26, 1152
s_add_u32 s26, s26, 384
v_and_b32 v5, 31, v0
v_lshrrev_b32 v6, 5, v0
v_mul_u32_u24 v5, 1152, v5
v_lshl_add_u32 v240, v6, 6, v5
s_and_b32 s27, s34, 3
s_add_u32 s27, s27, 192
s_mul_i32 s27, s27, 3456
s_mul_i32 s28, s35, 216
s_add_u32 s27, s27, s28
v_lshrrev_b32 v5, 2, v0
v_and_b32 v6, 3, v0
v_mul_u32_u24 v5, {4*3456}, v5
v_lshl_add_u32 v241, v6, 6, v5
s_mul_i32 s28, s32, {3*128}
s_add_u32 s26, s26, s28
s_sub_u32 s28, s32, 2
s_mul_i32 s28, s28, {3*64*3456}
s_add_u32 s27, s27, s28
s_cmp_lt_u32 s32, 2
s_cselect_b32 s48, s8, s12
s_cselect_b32 s49, s9, s13
s_cselect_b32 s50, s10, s14
s_mov_b32 s51, 0x00020000
s_cselect_b32 s26, s26, s27
s_mov_b32 s27, {64*3456}
s_cselect_b32 s27, 128, s27
s_cselect_b64 vcc, -1, 0
s_nop 1
v_cndmask_b32 v240, v241, v240, vcc""")
    NC = 12 if XC else 4
    if WC: a(f"s_waitcnt vmcnt({NC})")
    a("s_barrier")
    stamp(a, o, 1)
    if o["stamp"]: a("s_memtime s[44:45]")
    for x in reads(0): a(x)
    for g in range(18):
        cc, ks = g // 2, g % 2
        if ks == 1 and cc < 8:
            rem = min(8, cc + 2) - (cc + 1)
            a((f"s_waitcnt vmcnt({NC*rem}) lgkmcnt(0)") if WC else "s_waitcnt lgkmcnt(0)")
            a("s_barrier")
        else:
            a("s_waitcnt lgkmcnt(0)")
        units = []
        if XC:
            if g == 0: units = xw_units(2)
            elif ks == 1 and cc + 3 <= 8: units = xw_units(cc + 3)[:7]
            elif ks == 0 and cc >= 1 and cc + 2 <= 8: units = xw_units(cc + 2)[7:]
        elif WC:
            if g == 0: units = w_units(2)
            elif ks == 1 and cc + 3 <= 8: units = w_units(cc + 3)[:3]
            elif ks == 0 and cc >= 1 and cc + 2 <= 8: units = w_units(cc + 2)[3:]
        rd = reads(g + 1) if g + 1 < 18 else []
        M = mfmas(g)
        slots = [[] for _ in M]
        for idx, x in enumerate(rd): slots[min(idx, len(M)-1)].append(x)
        for idx, u in enumerate(units): slots[min(len(M)-1, 2 + (idx*len(M))//len(units))] += u
        if o["pf"] and g == o["pfstep"]:
            for q in range(3):
                slots[3 + 8*q] += [f"buffer_load_dword v{242+q}, v240, s[48:51], s26 offen", "s_add_u32 s26, s26, s27"]
        if g == 16:
            a("v_mov_b32 v254, 0")
            a(f"global_load_dword v255, v254, s[{pDBG}:{pDBG+1}] sc1")
        for m, sl in zip(M, slots):
            a(m)
            for x in sl: a(x)
    stamp(a, o, 2)
    if o["stamp"]: a("s_memtime s[46:47]\ns_waitcnt lgkmcnt(0)\ns_sub_u32 s59, s46, s44")
    nonce_fetch(a)
    a(f"""s_waitcnt lgkmcnt(0)
s_mul_i32 s39, s32, {64*RS}
v_mul_u32_u24 v5, {RS}, v3
v_lshl_add_u32 v5, v4, 3, v5
v_add_u32 v5, s39, v5
s_mul_i32 s40, s35, 6
s_sub_u32 s41, 32, s40
s_cmp_lt_u32 s40, 32
s_cselect_b32 s41, s41, 0
s_lshr_b32 s41, s41, 1
s_mul_i32 s41, s41, 9
s_mov_b32 s44, {f32bits(QSCALE)}
s_cmp_eq_u32 s41, 0
s_cbranch_scc1 L_p1_noscale""")
    for c in range(n):
        a(f"""v_add_u32 v6, {4*c}, v4
v_cmp_gt_u32 vcc, s41, v6
v_mov_b32 v7, 1.0
v_mov_b32 v8, s44
v_cndmask_b32 v6, v7, v8, vcc""")
        for i in range(4):
            r = ACC(i, c)
            a(f"v_pk_mul_f32 v[{r}:{r+1}], v[{r}:{r+1}], v[6:7] op_sel_hi:[1,0]")
            a(f"v_pk_mul_f32 v[{r+2}:{r+3}], v[{r+2}:{r+3}], v[6:7] op_sel_hi:[1,0]")
    a.label("L_p1_noscale")
    for c in range(n):
        for i in range(4):
            r = ACC(i, c); P = 40 + 2*((4*c + i) % 16)
            a(f"v_cvt_pk_bf16_f32 v{P}, v{r}, v{r+1}")
            a(f"v_cvt_pk_bf16_f32 v{P+1}, v{r+2}, v{r+3}")
            a(f"ds_write_b64 v5, v[{P}:{P+1}] offset:{i*16*RS + 32*c}")
    srd(a, 16, pWS, WS_USED)
    a(f"""v_and_b32 v6, 31, v0
v_lshrrev_b32 v7, 5, v0
v_mul_u32_u24 v8, {RS}, v6
v_lshl_add_u32 v8, v7, 4, v8
v_add_u32 v8, s39, v8
v_lshlrev_b32 v9, 4, v0
v_mul_u32_u24 v10, {RS}, v0
v_add_u32 v10, s39, v10
v_lshlrev_b32 v11, 3, v0
v_lshrrev_b32 v12, 1, v4
v_lshrrev_b32 v13, 2, v3
v_lshl_add_u32 v13, v12, 3, v13
v_mul_u32_u24 v13, {RS}, v13
v_add_u32 v13, s39, v13
v_and_b32 v14, 1, v4
v_and_b32 v15, 3, v3
v_lshlrev_b32 v15, 3, v15
v_mul_u32_u24 v12, 288, v12
s_lshr_b32 s42, s38, 5
s_lshl_b32 s42, s42, 10
s_lshl_b32 s43, s38, 3
s_lshr_b32 s45, s38, 4
s_mul_i32 s45, s45, 576
s_waitcnt lgkmcnt(0)""")
    for hl in range(6):
        pl, par = hl // 2, hl % 2
        lab = f"L_p1_h{hl}"
        a(f"""s_add_u32 s46, s40, {hl}
s_lshr_b32 s47, s46, 5
s_and_b32 s46, s46, 31
s_lshl_b32 s48, s33, 5
s_add_u32 s48, s48, s46
s_cmp_eq_u32 s47, 2
s_cbranch_scc1 {lab}_v
s_lshl_b32 s49, s48, 16
s_lshl_b32 s50, s47, 22
s_add_u32 s49, s49, s50
s_add_u32 s49, s49, s42""")
        assert QM_OFF == 0 and KM_OFF == (1 << 22)
        off = 72*pl + 40*par
        a(f"ds_read2_b64 v[40:43], v8 offset0:{off//8} offset1:{off//8+1}")
        a(f"v_add_u32 v48, {32*RS + off}, v8")
        a(f"ds_read2_b64 v[44:47], v48 offset0:0 offset1:1")
        if par == 0:
            a(f"ds_read_b64 v[50:51], v10 offset:{72*pl + 32}")
        a("s_waitcnt lgkmcnt(%d)" % (2 if par == 0 else 1))
        a("buffer_store_dwordx4 v[40:43], v9, s[16:19], s49 offen sc1")
        a("s_waitcnt lgkmcnt(%d)" % (1 if par == 0 else 0))
        a("buffer_store_dwordx4 v[44:47], v9, s[16:19], s49 offen offset:1024 sc1")
        if par == 0:
            a(f"""s_lshr_b32 s50, s48, 1
s_lshl_b32 s50, s50, 14
s_add_u32 s50, s50, s43
s_lshl_b32 s51, s47, 19
s_add_u32 s50, s50, s51
s_add_u32 s50, s50, {QR_OFF}
s_waitcnt lgkmcnt(0)
buffer_store_dwordx2 v[50:51], v11, s[16:19], s50 offen sc1""")
        a(f"s_branch {lab}_e")
        a.label(f"{lab}_v")
        assert KR_OFF - QR_OFF == (1 << 19)
        a(f"""v_add_u32 v16, {72*pl + 40*par}, v15
v_mov_b32 v17, {72*pl + 32}
v_cmp_eq_u32 vcc, 0, v14
s_mul_i32 s49, s48, {VT_STRIDE}
s_add_u32 s49, s49, s45
v_cndmask_b32 v16, v17, v16, vcc
v_add_u32 v16, v16, v13
s_add_u32 s49, s49, {VT_OFF}
v_add_u32 v17, {16 - 2*par}, v3
v_cndmask_b32 v17, v17, v3, vcc
v_lshl_add_u32 v17, v17, 4, v12""")
        m16 = 0xffff | ((0x3 << (2*par)) << 16)
        for grp in range(4):
            R = 40 + 4*grp
            for tr in range(2):
                a(f"ds_read_b64_tr_b16 v[{R+2*tr}:{R+2*tr+1}], v16 offset:{(16*grp + 4*tr)*RS}")
        a(f"s_mov_b32 exec_lo, {m16}\ns_mov_b32 exec_hi, {m16}")
        for grp in range(4):
            R = 40 + 4*grp
            a(f"s_waitcnt lgkmcnt({6 - 2*grp})")
            a(f"buffer_store_dwordx4 v[{R}:{R+3}], v17, s[16:19], s49 offen offset:{576*grp} sc1")
        a("s_mov_b64 exec, -1")
        a.label(f"{lab}_e")
    a.label("L_p1_done")
    a("s_lshl_b32 s39, s33, 4\ns_add_u32 s39, s39, s35\ns_lshl_b32 s39, s39, 3\ns_add_u32 s39, s39, s34")
    signal(a, 39, "p1")

def phase2(a, o):
    NKT, NQ = 64, 2
    QM = lambda j: 16 + 4*j
    QR = 24
    KMn = lambda s: 28 + 6*s
    KRs = lambda s: 32 + 6*s
    V0 = lambda s: 40 + 8*s
    V1 = lambda s: 44 + 8*s
    S = lambda kt, j: 56 + 32*(kt & 1) + 16*j
    O = lambda j: 120 + 16*j
    vL16, vKR, vVa, vVb, vIdx = 2, 3, 4, 5, 6
    T = 152
    name = "p2"
    a(f"""s_and_b32 s18, s2, 7
s_lshr_b32 s19, s2, 3
s_lshr_b32 s12, s19, 2
s_lshl_b32 s18, s18, 3
s_add_u32 s12, s12, s18
s_and_b32 s13, s19, 3
s_mov_b32 s14, s{sWAVE}""")
    a(f"""s_and_b32 s18, s12, 31
s_lshr_b32 s19, s12, 5
s_lshl_b32 s19, s19, 4
v_lshrrev_b32 v7, 3, v0
v_lshlrev_b32 v7, 5, v7
v_add_u32 v7, s18, v7
v_mul_u32_u24 v7, 171, v7
v_lshrrev_b32 v7, 10, v7
v_add_u32 v7, s19, v7
v_and_b32 v8, 7, v0
v_lshl_add_u32 v7, v7, 3, v8
v_lshlrev_b32 v7, 7, v7
v_add_u32 v7, {FLAG_OFF}, v7""")
    poll(a, 7, 0xffffff, "p1")
    stamp(a, o, 4)
    srd(a, 8, pWS, WS_USED)
    a(f"""v_lshlrev_b32 v{vL16}, 4, v0
v_and_b32 v8, 31, v0
v_lshlrev_b32 v9, 3, v8
s_mov_b32 s16, 0x0003ffff
s_mov_b32 s17, 0x0003ffff
s_lshl_b32 s30, s14, 10
s_lshl_b32 s25, s12, 16
s_add_u32 s35, s25, {KM_OFF}
s_add_u32 s25, s35, s30
s_mul_i32 s28, s12, {VT_STRIDE}
s_add_u32 s36, s28, {VT_OFF}
s_add_u32 s28, s36, s30
s_lshr_b32 s38, s12, 1
s_lshl_b32 s38, s38, 14
s_and_b32 s39, s12, 1
s_lshl_b32 s39, s39, 2
s_add_u32 s37, s38, {KR_OFF}
s_add_u32 s33, s37, s30
s_add_u32 s29, s30, {LDS_VT}
s_add_u32 s34, s30, {LDS_KR}
s_mov_b32 s26, s30
s_lshl_b32 s18, s13, 4
s_lshl_b32 s19, s14, 1
s_add_u32 s24, s18, s19""")
    def dmaK():
        a("s_mov_b32 m0, s26")
        a("s_add_u32 s26, s26, 8192")
        a(f"buffer_load_dwordx4 v{vL16}, s[8:11], s25 offen sc1 lds")
        a("s_add_u32 s25, s25, 8192")
    def dmaV():
        a("s_mov_b32 m0, s29")
        a("s_add_u32 s29, s29, 8192")
        a(f"buffer_load_dwordx4 v{vL16}, s[8:11], s28 offen sc1 lds")
        a("s_add_u32 s28, s28, 8192")
    def dmaKR1():
        a("s_add_u32 m0, s34, 8192")
        a("s_add_u32 s33, s33, 8192")
        a(f"buffer_load_dwordx4 v{vL16}, s[8:11], s33 offen sc1 lds")
    a("s_mov_b32 m0, s34")
    a("s_lshl_b32 s18, s12, 16")
    a(f"buffer_load_dwordx4 v{vL16}, s[8:11], s33 offen sc1 lds")
    dmaK(); dmaV(); dmaV()
    a(f"""s_lshl_b32 s19, s24, 10
s_add_u32 s18, s18, s19""")
    for j in range(NQ):
        a(f"buffer_load_dwordx4 v[{QM(j)}:{QM(j)+3}], v{vL16}, s[8:11], s18 offen offset:{1024*j} sc1")
    a(f"""s_lshl_b32 s20, s24, 8
s_add_u32 s19, s38, s20
s_add_u32 s19, s19, s39
s_add_u32 s19, s19, {QR_OFF}
v_lshlrev_b32 v10, 3, v0
buffer_load_dword v{QR}, v10, s[8:11], s19 offen sc1""")
    if o["wopf"]:
        a(f"""s_cmp_lt_u32 s12, 32
s_cselect_b32 s20, s{pAWO}, s{pBWO}
s_cselect_b32 s21, s{pAWO+1}, s{pBWO+1}
s_mov_b32 s22, {WO_BYTES}
s_mov_b32 s23, 0x00020000
s_lshr_b32 s18, s2, 3
s_lshl_b32 s18, s18, 3
s_add_u32 s18, s18, s14
s_lshl_b32 s27, s18, 12
v_lshlrev_b32 v198, 6, v0""")
    late = [dmaK, dmaV, dmaKR1, dmaK, dmaV, dmaK, dmaV] + [dmaK, dmaV]*4
    sched = {0: late[0:3], 1: late[3:5], 2: late[5:7], 3: late[7:9], 4: late[9:11], 5: late[11:13], 6: late[13:15]}
    a(f"""v_lshrrev_b32 v10, 5, v0
v_add_u32 v{vKR}, {LDS_KR}, v9
v_add_u32 v{vKR}, s39, v{vKR}
v_mul_u32_u24 v11, 288, v10
v_lshlrev_b32 v12, 4, v8
v_add_u32 v27, v11, v12
v_add_u32 v{vVa}, {LDS_VT}, v27
v_add_u32 v{vVb}, {LDS_VT + 32*1152}, v27
v_mov_b32 v{vIdx}, 0xdddd
v_and_b32 v13, 27, v8
v_cmp_eq_u32 vcc, 18, v13
v_mov_b32 v14, 0x3f803f80
v_mov_b32 v15, 0
v_cndmask_b32 v13, v15, v14, vcc""")
    for s in range(2):
        a(f"v_mov_b32 v{KRs(s)+1}, 0x3f803f80")
        for i in range(4):
            a(f"v_mov_b32 v{V0(s)+i}, v13")
            a(f"v_mov_b32 v{V1(s)+i}, v13")
    a(f"v_mov_b32 v{QR+1}, 0")
    for j in range(NQ):
        for i in range(16): a(f"v_mov_b32 v{O(j)+i}, 0")
    a("s_waitcnt vmcnt(0)")
    a("s_barrier")
    stamp(a, o, 5)
    if o["stamp"]: a("s_memtime s[52:53]")
    def rdK(kt):
        s = kt & 1
        a(f"ds_read_b128 v[{KMn(s)}:{KMn(s)+3}], v{vL16} offset:{kt*1024}")
        a(f"ds_read_b32 v{KRs(s)}, v{vKR} offset:{kt*256}")
    def rdV(kt):
        s = kt & 1
        base, off = (vVa, kt*1152) if kt < 32 else (vVb, (kt-32)*1152)
        a("s_mov_b64 exec, s[16:17]")
        a(f"ds_read_b128 v[{V0(s)}:{V0(s)+3}], v{base} offset:{off}")
        a(f"ds_read_b128 v[{V1(s)}:{V1(s)+3}], v{base} offset:{off+576}")
        a("s_mov_b64 exec, -1")
    def qk_res(kt, ks=None):
        s = (kt & 1) if ks is None else ks; sb = S(kt, 0)
        a(f"v_mfma_f32_32x32x4_2b_bf16 v[{sb}:{sb+31}], v[{KRs(s)}:{KRs(s)+1}], v[{QR}:{QR+1}], 0")
    def qk_main(kt, j, ks=None):
        s = (kt & 1) if ks is None else ks; sb = S(kt, j)
        a(f"v_mfma_f32_32x32x16_bf16 v[{sb}:{sb+15}], v[{KMn(s)}:{KMn(s)+3}], v[{QM(j)}:{QM(j)+3}], v[{sb}:{sb+15}]")
    def pv(kt, j, half, vs=None):
        s = (kt & 1) if vs is None else vs
        v = V0(s) if half == 0 else V1(s)
        a(f"v_smfmac_f32_32x32x32_bf16 v[{O(j)}:{O(j)+15}], v[{v}:{v+3}], v[{S(kt,j)+8*half}:{S(kt,j)+8*half+7}], v{vIdx}")
    def ex(kt, j, i):
        r = S(kt, j) + i
        a(f"v_exp_f32 v{r}, v{r}")
    def loop(copy, prio):
        rdK(0); rdV(0)
        a("s_waitcnt lgkmcnt(0)")
        qk_res(0)
        rdK(1)
        a("s_nop 15")
        a("s_nop 1")
        qk_main(0, 0); qk_main(0, 1)
        a("s_nop 7")
        a("s_nop 3")
        for kt in range(NKT):
            if kt > 0: pv(kt-1, 1, 1)
            if kt == o["bar1"] or kt == o["bar2"]:
                a(f"s_waitcnt vmcnt({4 if kt == o['bar1'] else 0})")
                a("s_barrier")
            if kt in sched:
                for f in sched[kt]: f()
            if kt == 9 and o["wopf"]:
                a("buffer_load_dword v199, v198, s[20:23], s27 offen")
            p = prio(kt)
            if p is not None: a(f"s_setprio {p}")
            a("s_waitcnt lgkmcnt(0)")
            if kt + 2 < NKT: rdK(kt+2)
            if kt + 1 < NKT: rdV(kt+1)
            for i in range(0, 4): ex(kt, 0, i)
            if kt + 1 < NKT: qk_res(kt+1)
            for i in range(4, 12): ex(kt, 0, i)
            pv(kt, 0, 0)
            for i in range(12, 16): ex(kt, 0, i)
            pv(kt, 0, 1)
            for i in range(0, 4): ex(kt, 1, i)
            if kt + 1 < NKT: qk_main(kt+1, 0)
            for i in range(4, 8): ex(kt, 1, i)
            if kt + 1 < NKT: qk_main(kt+1, 1)
            for i in range(8, 12): ex(kt, 1, i)
            pv(kt, 1, 0)
            for i in range(12, 16): ex(kt, 1, i)
        a("s_nop 1")
        pv(NKT-1, 1, 1)
        a("s_setprio 0")
    if o["dual"]:
        a(f"s_cmp_ge_u32 s14, 4\ns_cbranch_scc1 L_p2_loopB")
        loop(0, lambda kt: 1 if kt == 0 else None)
        a("s_branch L_p2_loopdone")
        a.label("L_p2_loopB")
        pat = o["pat"]
        def pr(kt):
            cur = pat[kt % len(pat)]
            prev = pat[(kt-1) % len(pat)] if kt else None
            return cur if cur != prev else None
        loop(1, pr)
        a.label("L_p2_loopdone")
    else:
        loop(0, lambda kt: None)
    stamp(a, o, 6)
    if o["stamp"]:
        a(f"""s_memtime s[54:55]
s_waitcnt lgkmcnt(0)
s_cmp_lg_u32 s14, 4
s_cbranch_scc1 L_p2_nw4
s_sub_u32 s56, s54, s52
s_sub_u32 s57, s94, s92
s_lshl_b32 s40, s2, 6
s_add_u32 s40, s40, {WS_USED}
v_mov_b32 v200, s40
v_mov_b32 v202, s56
v_mov_b32 v203, s57
s_mov_b64 exec, 1
global_store_dwordx2 v200, v[202:203], s[{pWS}:{pWS+1}] offset:48
s_mov_b64 exec, -1""")
        a.label("L_p2_nw4")
    a("s_nop 7")
    a("s_nop 7")
    a("s_mov_b64 s[20:21], 0")
    a("s_mov_b32 s22, 0x53800000")
    a("s_mov_b32 s23, 0x2b800000")
    for j in range(NQ):
        a(f"v_mul_f32 v{T}, 0, v{O(j)}")
        for i in range(1, 10): a(f"v_fma_f32 v{T}, v{O(j)+i}, 0, v{T}")
        a(f"v_add_f32 v{T}, v{T}, v{O(j)+10}")
        a(f"v_cmp_ngt_f32 vcc, s22, v{T}")
        a("s_or_b64 s[20:21], s[20:21], vcc")
        a(f"v_cmp_nlt_f32 vcc, s23, v{T}")
        a("s_or_b64 s[20:21], s[20:21], vcc")
    a(f"""s_cmp_eq_u64 s[20:21], 0
s_cbranch_scc0 L_p2_fallback""")
    a.label("L_p2_store")
    a(f"""s_lshr_b32 s18, s12, 5
s_and_b32 s19, s12, 31
s_lshl_b32 s20, s18, 21
s_lshl_b32 s21, s24, 15
s_add_u32 s20, s20, s21
s_lshl_b32 s21, s19, 10
s_add_u32 s20, s20, s21
s_add_u32 s20, s20, {OM_OFF}
s_lshl_b32 s22, s18, 18
s_lshl_b32 s21, s24, 12
s_add_u32 s22, s22, s21
s_lshr_b32 s21, s19, 2
s_lshl_b32 s21, s21, 9
s_add_u32 s22, s22, s21
s_and_b32 s21, s19, 3
s_lshl_b32 s21, s21, 2
s_add_u32 s22, s22, s21
s_add_u32 s22, s22, {OR_OFF}
v_lshlrev_b32 v9, 4, v8""")
    for j in range(NQ):
        a(f"v_rcp_f32 v{T}, v{O(j)+10}")
        a("s_nop 0")
        for i in range(10): a(f"v_mul_f32 v{O(j)+i}, v{O(j)+i}, v{T}")
        P = T + 2 + 6*j
        for i in range(4): a(f"v_cvt_pk_bf16_f32 v{P+i}, v{O(j)+2*i}, v{O(j)+2*i+1}")
        a(f"v_cvt_pk_bf16_f32 v{P+4}, v{O(j)+8}, v{O(j)+9}")
        a(f"s_add_u32 s21, s20, {32768*j}")
        a(f"buffer_store_dwordx4 v[{P}:{P+3}], v{vL16}, s[8:11], s21 offen sc1")
        a(f"s_add_u32 s23, s22, {4096*j}")
        a("s_mov_b32 exec_hi, 0")
        a(f"buffer_store_dword v{P+4}, v9, s[8:11], s23 offen sc1")
        a("s_mov_b32 exec_hi, -1")
    a("s_lshl_b32 s39, s18, 2\ns_add_u32 s39, s39, s13\ns_lshl_b32 s39, s39, 5\ns_add_u32 s39, s39, s19\ns_add_u32 s39, s39, 256")
    signal(a, 39, "p2")
    a("s_branch L_p2_end")
    a.label("L_p2_fallback")
    MX = T
    a(f"""v_mov_b32 v{MX}, 0xff800000
v_mov_b32 v{MX+1}, 0xff800000
v_mov_b32 v{QR+1}, 0
v_mov_b32 v{MX+4}, v{vL16}
v_mov_b32 v{MX+5}, v{vKR}
s_mov_b32 s18, {NKT}""")
    a.label("L_p2_fb1")
    a(f"""ds_read_b128 v[{KMn(0)}:{KMn(0)+3}], v{MX+4}
ds_read_b32 v{KRs(0)}, v{MX+5}
v_add_u32 v{MX+4}, 1024, v{MX+4}
v_add_u32 v{MX+5}, 256, v{MX+5}
s_waitcnt lgkmcnt(0)""")
    qk_res(0, 0)
    a("s_nop 15\ns_nop 3")
    qk_main(0, 0, 0); qk_main(0, 1, 0)
    a("s_nop 15")
    for j in range(NQ):
        for i in range(8): a(f"v_max3_f32 v{MX+j}, v{MX+j}, v{S(0,j)+2*i}, v{S(0,j)+2*i+1}")
    a(f"""s_sub_u32 s18, s18, 1
s_cmp_lg_u32 s18, 0
s_cbranch_scc1 L_p2_fb1""")
    x, y, hi, mid = MX+6, MX+7, MX+8, MX+9
    for j in range(NQ):
        a(f"""v_mov_b32 v{x}, v{MX+j}
v_mov_b32 v{y}, v{MX+j}
s_nop 1
v_permlane32_swap_b32 v{x}, v{y}
s_nop 1
v_max_f32 v{MX+j}, v{x}, v{y}""")
    a(f"""v_cmp_gt_u32 vcc, 32, v0
s_nop 1
v_cndmask_b32 v{x}, v{MX+1}, v{MX}, vcc
v_and_b32 v{hi}, 0xffff0000, v{x}
v_sub_f32 v{x}, v{x}, v{hi}
v_and_b32 v{mid}, 0xffff0000, v{x}
v_xor_b32 v{hi}, 0x80000000, v{hi}
v_xor_b32 v{mid}, 0x80000000, v{mid}
v_lshrrev_b32 v{hi}, 16, v{hi}
v_or_b32 v{QR+1}, v{hi}, v{mid}""")
    for j in range(NQ):
        for i in range(16): a(f"v_mov_b32 v{O(j)+i}, 0")
    a(f"""v_mov_b32 v{MX+4}, v{vL16}
v_mov_b32 v{MX+5}, v{vKR}
v_mov_b32 v{MX+6}, v{vVa}
s_mov_b32 s18, {NKT}""")
    a.label("L_p2_fb2")
    a(f"""ds_read_b128 v[{KMn(0)}:{KMn(0)+3}], v{MX+4}
ds_read_b32 v{KRs(0)}, v{MX+5}
s_mov_b64 exec, s[16:17]
ds_read_b128 v[{V0(0)}:{V0(0)+3}], v{MX+6}
ds_read_b128 v[{V1(0)}:{V1(0)+3}], v{MX+6} offset:576
s_mov_b64 exec, -1
v_add_u32 v{MX+4}, 1024, v{MX+4}
v_add_u32 v{MX+5}, 256, v{MX+5}
v_add_u32 v{MX+6}, 1152, v{MX+6}
s_waitcnt lgkmcnt(0)""")
    qk_res(0, 0)
    a("s_nop 15\ns_nop 3")
    qk_main(0, 0, 0); qk_main(0, 1, 0)
    a("s_nop 15")
    for j in range(NQ):
        for i in range(16): ex(0, j, i)
    a("s_nop 1")
    for j in range(NQ):
        pv(0, j, 0, 0); pv(0, j, 1, 0)
    a(f"""s_sub_u32 s18, s18, 1
s_cmp_lg_u32 s18, 0
s_cbranch_scc1 L_p2_fb2
s_nop 7
s_nop 7
s_branch L_p2_store""")
    a.label("L_p2_end")

def phase3(a, o):
    OF = lambda ks, i: 64 + 8*ks + 4*i
    WF = lambda p, c: 208 + 24*p + 4*c
    ACC = lambda i, c: 16 + 4*(2*c + i)
    vL, vWa, vWb, vWr, vWD = 1, 2, 3, 4, 5
    a(f"""s_cmp_ge_u32 s2, 192
s_cbranch_scc1 L_end
s_and_b32 s30, s2, 7
s_lshr_b32 s31, s2, 3
s_and_b32 s32, s{sWAVE}, 3
s_lshr_b32 s33, s30, 2
s_and_b32 s34, s30, 3
s_lshl_b32 s34, s34, 2
s_and_b32 s35, s31, 3
s_add_u32 s34, s34, s35
s_lshr_b32 s35, s31, 2
s_lshl_b32 s36, s34, 2
s_add_u32 s36, s36, s32
s_cmp_ge_u32 s{sWAVE}, 4
s_cbranch_scc0 L_p3_compute""")
    a(f"""v_mul_u32_u24 v9, 37, v0
v_lshrrev_b32 v9, 9, v9
v_mul_u32_u24 v10, 14, v9
v_sub_u32 v10, v0, v10
v_mul_u32_u24 v9, 1152, v9
v_lshl_add_u32 v{vWD}, v10, 4, v9
v_mov_b32 v11, 0x40000000
v_cmp_gt_u32 vcc, 12, v10
s_cmp_eq_u32 s33, 0
s_cselect_b32 s8, s{pAWO}, s{pBWO}
v_cndmask_b32 v{vWD}, v11, v{vWD}, vcc
s_cselect_b32 s9, s{pAWO+1}, s{pBWO+1}
s_mov_b32 s10, {WO_BYTES}
s_mov_b32 s11, 0x00020000
s_mul_i32 s22, s32, {4*1152}
s_mul_i32 s23, s35, 192
s_add_u32 s22, s22, s23
s_mul_i32 s23, s32, {4*WO_RS}
s_mov_b32 exec_hi, 0x00ffffff""")
    for r in range(36):
        a("s_mov_b32 m0, s23")
        a(f"s_add_u32 s23, s23, {16*WO_RS}")
        a(f"buffer_load_dwordx4 v{vWD}, s[8:11], s22 offen lds")
        a(f"s_add_u32 s22, s22, {16*1152}")
    a("s_mov_b32 exec_hi, -1")
    a("s_barrier")
    a("s_waitcnt vmcnt(0)")
    a("s_barrier")
    a("s_branch L_end")
    a.label("L_p3_compute")
    a(f"""v_and_b32 v7, 15, v0
v_lshrrev_b32 v8, 4, v0
v_lshlrev_b32 v9, 9, v8
v_lshl_add_u32 v{vL}, v7, 4, v9
v_lshrrev_b32 v9, 1, v8
v_mul_u32_u24 v9, 20, v9
v_and_b32 v10, 1, v8
v_lshl_add_u32 v9, v10, 2, v9
v_lshrrev_b32 v10, 2, v7
v_add_u32 v9, v9, v10
v_mul_u32_u24 v9, {WO_RS}, v9
v_and_b32 v11, 3, v7
v_lshl_add_u32 v{vWa}, v11, 3, v9
v_add_u32 v{vWb}, {7*36*WO_RS}, v{vWa}
v_lshlrev_b32 v9, 2, v8
v_lshrrev_b32 v12, 1, v10
v_add_u32 v9, v9, v12
v_mul_u32_u24 v9, 18, v9
v_and_b32 v13, 1, v10
v_add_u32 v9, v9, v13
v_xor_b32 v12, 1, v12
v_lshl_add_u32 v9, v12, 4, v9
v_mul_u32_u24 v9, {WO_RS}, v9
v_lshl_add_u32 v{vWr}, v11, 3, v9
v_add_u32 v14, {288*WO_RS}, v{vWr}
v_add_u32 v15, {14*36*WO_RS}, v{vWa}
s_lshr_b32 s37, s34, 2
s_lshl_b32 s38, s33, 2
s_add_u32 s37, s37, s38
s_lshl_b32 s37, s37, 5
s_add_u32 s37, s37, 256
v_add_u32 v6, s37, v0
v_lshlrev_b32 v6, 7, v6
v_add_u32 v6, {FLAG_OFF}, v6""")
    poll(a, 6, -1, "p2")
    stamp(a, o, 8)
    srd(a, 16, pWS, WS_USED)
    srd(a, 12, pOUT, OUT_BYTES)
    a(f"""s_lshl_b32 s20, s33, 21
s_lshl_b32 s21, s36, 15
s_add_u32 s20, s20, s21
s_add_u32 s20, s20, {OM_OFF}
s_lshl_b32 s21, s33, 18
s_lshl_b32 s22, s36, 12
s_add_u32 s21, s21, s22
s_add_u32 s21, s21, {OR_OFF}""")
    for ks in range(18):
        if ks < 16:
            for i in range(2):
                a(f"buffer_load_dwordx4 v[{OF(ks,i)}:{OF(ks,i)+3}], v{vL}, s[16:19], s20 offen offset:{(ks%2)*2048 + 256*i} sc1")
            if ks % 2 == 1: a("s_add_u32 s20, s20, 4096")
        else:
            for i in range(2):
                a(f"buffer_load_dwordx4 v[{OF(ks,i)}:{OF(ks,i)+3}], v{vL}, s[16:19], s21 offen offset:{(ks-16)*2048 + 256*i} sc1")
    def reads(ks, p):
        L = []
        for c in range(6):
            for t in range(2):
                if ks < 16:
                    base, k0 = (vWa, ks) if ks < 7 else ((vWb, ks - 7) if ks < 14 else (15, ks - 14))
                    off = (36*k0 + 8*t)*WO_RS + 32*c
                else:
                    base = vWr if ks == 16 else 14
                    off = 36*t*WO_RS + 32*c
                L.append(f"ds_read_b64_tr_b16 v[{WF(p,c)+2*t}:{WF(p,c)+2*t+1}], v{base} offset:{off}")
        return L
    def mfmas(ks):
        p = ks & 1
        return [f"v_mfma_f32_16x16x32_bf16 v[{ACC(i,c)}:{ACC(i,c)+3}], v[{WF(p,c)}:{WF(p,c)+3}], v[{OF(ks,i)}:{OF(ks,i)+3}], " + (f"v[{ACC(i,c)}:{ACC(i,c)+3}]" if ks else "0")
                for c in range(6) for i in range(2)]
    a("s_barrier")
    for x in reads(0, 0): a(x)
    for ks in range(18):
        a(f"s_waitcnt vmcnt({2*(17-ks)}) lgkmcnt(0)")
        rd = reads(ks+1, (ks+1) & 1) if ks + 1 < 18 else []
        M = mfmas(ks)
        for idx, m in enumerate(M):
            a(m)
            if idx < len(rd): a(rd[idx])
    stamp(a, o, 9)
    a(f"""s_mul_i32 s23, s32, {K3_STG}
s_add_u32 s23, s23, {WO_IMG}
v_mul_u32_u24 v9, 208, v7
v_lshl_add_u32 v9, v8, 3, v9
v_add_u32 v9, s23, v9
s_nop 3""")
    for c in range(6):
        for i in range(2):
            r = ACC(i, c); P = 64 + 4*c + 2*i
            a(f"v_cvt_pk_bf16_f32 v{P}, v{r}, v{r+1}")
            a(f"v_cvt_pk_bf16_f32 v{P+1}, v{r+2}, v{r+3}")
            a(f"ds_write_b64 v9, v[{P}:{P+1}] offset:{i*16*208 + 32*c}")
    a(f"""s_lshl_b32 s20, s36, 5
s_mul_i32 s20, s20, 2304
s_mul_i32 s21, s33, 1152
s_add_u32 s20, s20, s21
s_mul_i32 s21, s35, 192
s_add_u32 s20, s20, s21
s_mov_b32 s22, 5462""")
    for k in range(6):
        a(f"""v_add_u32 v10, {64*k}, v0
v_mul_u32_u24 v11, s22, v10
v_lshrrev_b32 v11, 16, v11
v_mul_u32_u24 v12, 12, v11
v_sub_u32 v12, v10, v12
v_mul_u32_u24 v13, 208, v11
v_lshl_add_u32 v13, v12, 4, v13
v_add_u32 v{100+k}, s23, v13
v_mul_u32_u24 v13, 2304, v11
v_lshl_add_u32 v{110+k}, v12, 4, v13""")
    a("s_waitcnt lgkmcnt(0)")
    for k in range(6): a(f"ds_read_b128 v[{120+4*k}:{123+4*k}], v{100+k}")
    for k in range(6):
        a(f"s_waitcnt lgkmcnt({5-k})")
        a(f"buffer_store_dwordx4 v[{120+4*k}:{123+4*k}], v{110+k}, s[12:15], s20 offen")

def gen(opts=None):
    o = dict(stamp=False, bar1=5, bar2=26, rot=3, dual=True, pat=[2,2,2,2,2,2,2,0], wopf=True, wcomp=False, xcomp=False, pf=False, pfstep=0)
    if opts: o.update(opts)
    a = A()
    a(f".globl {NAME}\n.p2align 8\n.type {NAME},@function")
    a.label(NAME)
    a(f"""s_cmp_ge_u32 s2, 256
s_cbranch_scc1 L_exit
s_load_dwordx16 s[{sP}:{sP+15}], s[0:1], 0
s_load_dwordx2 s[{pWS}:{pWS+1}], s[0:1], 64
v_lshrrev_b32 v1, 6, v0
v_and_b32 v0, 63, v0
s_nop 0
v_readfirstlane_b32 s{sWAVE}, v1""")
    stamp(a, o, 0)
    a("s_nop 3")
    nonce_publish(a)
    phase1(a, o)
    stamp(a, o, 3)
    phase2(a, o)
    stamp(a, o, 7)
    phase3(a, o)
    a.label("L_end")
    if o["stamp"]:
        a(f"""s_cmp_lg_u32 s{sWAVE}, 0
s_cbranch_scc1 L_exit
s_memrealtime s[42:43]
s_waitcnt lgkmcnt(0)
s_lshl_b32 s40, s2, 6
s_add_u32 s40, s40, {WS_USED}
v_mov_b32 v2, s40
s_mov_b64 exec, 1""")
        for i in range(11):
            a(f"v_mov_b32 v3, s{82+2*i if i < 10 else 42}")
            a(f"global_store_dword v2, v3, s[{pWS}:{pWS+1}] offset:{4*i}")
        a("s_sub_u32 s54, s54, s52\nv_mov_b32 v3, s54")
        a(f"global_store_dword v2, v3, s[{pWS}:{pWS+1}] offset:44")
        a("v_mov_b32 v3, s59")
        a(f"global_store_dword v2, v3, s[{pWS}:{pWS+1}] offset:56")
        if o.get("dbgstamp"):
            a(f"s_cmp_lg_u32 s2, {o['dbgstamp']}\ns_cbranch_scc1 L_exit\nv_mov_b32 v2, 0")
            for i in range(11):
                src = 82+2*i if i < 10 else 42
                a(f"s_sub_u32 s44, s{src}, s82" if i else "s_mov_b32 s44, s82")
                a("v_mov_b32 v3, s44")
                a(f"global_store_dword v2, v3, s[{pDBG}:{pDBG+1}] offset:{4*(i+1)}")
    a.label("L_exit")
    a("s_endpgm")
    return a.text(), kdesc(NAME, 256, 102)
```

```python
from asmlib import *
NAME = "concat_heads__mha_block__mha_block__prompt_kernel"
THREADS = 512
ST1 = 49664
WREG = 32768
RS = 232
LDS_KM, LDS_VT, LDS_KR = 0, 65536, 139264
WO_RS = 224
WO_IMG = 576 * WO_RS
K3_STG = 32 * 208
LDS_BYTES = 155648
SPIN_MAX = 400000
sWAVE = 3
sP = 64
pAX, pAW, pAWO, pBX, pBW, pBWO, pOUT, pDBG, pWS = [sP + 2*i for i in range(9)]
CNT1 = 0
CNT2 = 128

def srd(a, d, p, nbytes):
    a(f"s_mov_b32 s{d}, s{p}\ns_mov_b32 s{d+1}, s{p+1}\ns_mov_b32 s{d+2}, {nbytes}\ns_mov_b32 s{d+3}, 0x00020000")

def stamp(a, o, idx):
    if o["stamp"]:
        a(f"s_memrealtime s[{82+2*idx}:{83+2*idx}]")

sNONCE = 63
def nonce_publish(a):
    a(f"""s_cmp_lg_u32 s2, 0
s_cbranch_scc1 L_nonce_done
s_cmp_lg_u32 s{sWAVE}, 0
s_cbranch_scc1 L_nonce_done
s_memrealtime s[40:41]
s_waitcnt lgkmcnt(0)
s_or_b32 s40, s40, 1
v_mov_b32 v2, 0
v_mov_b32 v3, s40
s_mov_b64 exec, 1
global_store_dword v2, v3, s[{pDBG}:{pDBG+1}] sc1
s_mov_b64 exec, -1""")
    a.label("L_nonce_done")

def nonce_fetch(a):
    a(f"""s_cmp_lg_u32 s{sWAVE}, 0
s_cbranch_scc1 L_nf_done
s_mov_b32 s40, 0""")
    a.label("L_nf_loop")
    a(f"""s_waitcnt vmcnt(0)
v_readfirstlane_b32 s{sNONCE}, v255
s_add_u32 s40, s40, 1
s_cmp_lg_u32 s{sNONCE}, 0
s_cbranch_scc1 L_nf_done
s_sleep 4
global_load_dword v255, v254, s[{pDBG}:{pDBG+1}] sc1
s_cmp_lt_u32 s40, {SPIN_MAX}
s_cbranch_scc1 L_nf_loop""")
    a.label("L_nf_done")

def signal(a, line_sgpr, tag):
    a("s_waitcnt vmcnt(0)")
    a("s_barrier")
    a(f"""s_cmp_lg_u32 s{sWAVE}, 0
s_cbranch_scc1 L_sig_{tag}
s_lshl_b32 s{line_sgpr}, s{line_sgpr}, 7
s_add_u32 s{line_sgpr}, s{line_sgpr}, {FLAG_OFF}
v_mov_b32 v254, s{line_sgpr}
v_mov_b32 v255, s{sNONCE}
s_mov_b64 exec, 1
global_store_dword v254, v255, s[{pWS}:{pWS+1}] sc1
s_mov_b64 exec, -1""")
    a.label(f"L_sig_{tag}")

def poll(a, addr_vgpr, nlanes_mask_lo, tag):
    a(f"""s_cmp_lg_u32 s{sWAVE}, 0
s_cbranch_scc1 L_polled_{tag}
s_mov_b32 s40, 0
s_mov_b32 exec_hi, 0
s_mov_b32 exec_lo, {nlanes_mask_lo}""")
    a.label(f"L_poll_{tag}")
    a(f"""global_load_dword v255, v{addr_vgpr}, s[{pWS}:{pWS+1}] sc1
s_add_u32 s40, s40, 1
s_waitcnt vmcnt(0)
v_cmp_ne_u32 vcc, s{sNONCE}, v255
s_cmp_eq_u64 vcc, 0
s_cbranch_scc1 L_pollok_{tag}
s_sleep 2
s_cmp_lt_u32 s40, {SPIN_MAX}
s_cbranch_scc1 L_poll_{tag}""")
    a.label(f"L_pollok_{tag}")
    a("s_mov_b64 exec, -1")
    a.label(f"L_polled_{tag}")
    a("s_barrier")

def phase1(a, o):
    ROT = o['rot']
    vXD = lambda i: 16 + i
    vWD = lambda i: 24 + i
    vX = lambda st, ks: 28 + 2*st + ks
    vW = lambda st: 34 + st
    XF = lambda p, i: 40 + 16*p + 4*i
    WF = lambda p, c: 72 + 28*p + 4*c
    ACC = lambda i, c: 128 + 4*(4*c + i)
    n = 7
    a(f"""s_and_b32 s30, s2, 7
s_lshr_b32 s31, s2, 3
s_and_b32 s32, s{sWAVE}, 3
s_lshr_b32 s33, s30, 2
s_and_b32 s34, s30, 1
s_lshl_b32 s34, s34, 2
s_and_b32 s35, s31, 3
s_add_u32 s34, s34, s35
s_lshr_b32 s35, s30, 1
s_and_b32 s35, s35, 1
s_lshl_b32 s35, s35, 3
s_lshr_b32 s36, s31, 2
s_add_u32 s35, s35, s36
s_lshl_b32 s20, s34, 8
s_lshl_b32 s21, s32, 6
s_add_u32 s38, s20, s21
s_lshl_b32 s37, s32, 13
v_lshrrev_b32 v4, 4, v0
v_and_b32 v3, 15, v0""")
    WC = o["wcomp"]
    a(f"""v_and_b32 v2, 1, v4
v_lshrrev_b32 v5, 1, v4
v_lshlrev_b32 v2, 2, v2
v_lshl_add_u32 v2, v5, 4, v2
v_mul_u32_u24 v2, 3456, v2
v_lshl_add_u32 v2, v3, 4, v2
v_mov_b32 v5, 0x40000000
v_cmp_gt_u32 vcc, 14, v3
s_mul_i32 s20, s38, 1152
s_lshr_b32 s21, s32, 1
v_cndmask_b32 v2, v5, v2, vcc""")
    for i in range(4):
        a(f"v_add_u32 v{vWD(i)}, {3456*i}, v2")
    a(f"""s_lshl_b32 s21, s21, 5
s_and_b32 s22, s32, 1
s_lshl_b32 s23, s22, 3
s_add_u32 s21, s21, s23
s_mul_i32 s21, s21, 3456
s_mul_i32 s23, s35, 216
s_add_u32 s21, s21, s23
s_lshr_b32 s23, s32, 1
s_mul_i32 s23, s23, 8448
s_mul_i32 s22, s22, {4*1056}
s_add_u32 s23, s23, s22
s_add_u32 s23, s23, {WREG}
s_mov_b32 s22, s37
s_add_u32 s24, s35, s34
s_mul_i32 s25, s24, 43
s_lshr_b32 s25, s25, 7
s_mul_i32 s25, s25, 3
s_sub_u32 s24, s24, s25
s_mul_i32 s24, s24, {ROT}
s_lshl_b32 s25, s24, 7
s_add_u32 s20, s20, s25
s_mul_i32 s25, s24, {64*3456}
s_add_u32 s21, s21, s25
s_waitcnt lgkmcnt(0)
s_cmp_eq_u32 s33, 0
s_cselect_b32 s8, s{pAX}, s{pBX}
s_cselect_b32 s9, s{pAX+1}, s{pBX+1}
s_cselect_b32 s12, s{pAW}, s{pBW}
s_cselect_b32 s13, s{pAW+1}, s{pBW+1}
s_mov_b32 s10, {X_BYTES}
s_mov_b32 s11, 0x00020000
s_mov_b32 s14, {W_BYTES}
s_mov_b32 s15, 0x00020000
s_cmp_ge_u32 s{sWAVE}, 4
s_cbranch_scc0 L_p1_compute""")
    wrap = [f"s_add_u32 s21, s21, {64*3456}", "s_add_u32 s20, s20, 128", "s_add_u32 s24, s24, 1", "s_cmp_eq_u32 s24, 9",
            f"s_cselect_b32 s25, {9*128}, 0", f"s_cselect_b32 s26, {9*64*3456}, 0", "s_cselect_b32 s24, 0, s24",
            "s_sub_u32 s20, s20, s25", "s_sub_u32 s21, s21, s26"]
    def w_units(cc):
        st = cc % 3
        U = [[f"s_add_u32 m0, s23, {st*ST1}"]]
        for i in range(4):
            u = [f"buffer_load_dwordx4 v{vWD(i)}, s[12:15], s21 offen lds"]
            u += ["s_add_u32 m0, m0, 1056"] if i < 3 else wrap
            U.append(u)
        return U
    def flat(U):
        for u in U:
            for x in u:
                if x.startswith("buffer_load"): a("s_nop 0")
                a(x)
    XC = o["xcomp"]
    def xsetup():
        a(f"""v_lshrrev_b32 v2, 3, v0
v_and_b32 v5, 7, v0
v_xor_b32 v5, v5, v4
v_mul_u32_u24 v6, 1152, v2
v_lshl_add_u32 v7, v5, 4, v6
v_xor_b32 v8, 64, v7""")
        for i in range(8):
            a(f"v_add_u32 v{vXD(i)}, {9216*i}, v{7 if i % 2 == 0 else 8}")
    if XC:
        for _ in range(9): a("s_barrier")
        a("s_branch L_p1_done")
    xsetup()
    NL = 8 if WC else 12
    def dma(cc):
        st = cc % 3
        a(f"s_add_u32 m0, s22, {st*ST1}")
        for i in range(8):
            a("s_nop 0")
            a(f"buffer_load_dwordx4 v{vXD(i)}, s[8:11], s20 offen lds")
            if i < 7: a("s_add_u32 m0, m0, 1024")
        if WC:
            for x in wrap: a(x)
        else:
            flat(w_units(cc))
    dma(0); dma(1)
    a(f"s_waitcnt vmcnt({NL})")
    a("s_barrier")
    dma(2)
    for cc in range(8):
        rem = min(8, cc + 2) - (cc + 1)
        a(f"s_waitcnt vmcnt({NL*rem})")
        a("s_barrier")
        if cc + 3 <= 8: dma(cc + 3)
    a("s_branch L_p1_done")
    a.label("L_p1_compute")
    def xw_units(cc):
        st = cc % 3
        U = [[f"s_add_u32 m0, s22, {st*ST1}"]]
        for i in range(8):
            U.append([f"buffer_load_dwordx4 v{vXD(i)}, s[8:11], s20 offen lds",
                      "s_add_u32 m0, m0, 1024" if i < 7 else f"s_add_u32 m0, s23, {st*ST1}"])
        return U + w_units(cc)[1:]
    if XC:
        xsetup()
        flat(xw_units(0)); flat(xw_units(1))
    elif WC:
        flat(w_units(0)); flat(w_units(1))
    a(f"""v_lshrrev_b32 v5, 1, v3
v_xor_b32 v5, v5, v4
v_lshlrev_b32 v5, 4, v5
v_lshl_add_u32 v5, v3, 7, v5
v_add_u32 v5, s37, v5
v_xor_b32 v6, 64, v5""")
    for st in range(3):
        a(f"v_add_u32 v{vX(st,0)}, {st*ST1}, v5")
        a(f"v_add_u32 v{vX(st,1)}, {st*ST1}, v6")
    a(f"""v_lshrrev_b32 v5, 2, v3
v_and_b32 v6, 1, v4
v_lshl_add_u32 v5, v6, 2, v5
v_mul_u32_u24 v5, 1056, v5
v_lshrrev_b32 v6, 1, v4
v_lshl_add_u32 v5, v6, 9, v5
v_and_b32 v6, 3, v3
v_lshl_add_u32 v5, v6, 3, v5""")
    for st in range(3):
        a(f"v_add_u32 v{vW(st)}, {st*ST1 + WREG}, v5")
    def reads(g):
        cc, ks = g // 2, g % 2
        st, p = cc % 3, g & 1
        L = []
        for c in range(n):
            if c < 4: L.append(f"ds_read_b128 v[{XF(p,c)}:{XF(p,c)+3}], v{vX(st,ks)} offset:{2048*c}")
            for tr in range(2):
                L.append(f"ds_read_b64_tr_b16 v[{WF(p,c)+2*tr}:{WF(p,c)+2*tr+1}], v{vW(st)} offset:{ks*8448 + tr*256 + 32*c}")
        return L
    def mfmas(g):
        p = g & 1
        L = []
        for c in range(n):
            for i in range(4):
                acc = f"v[{ACC(i,c)}:{ACC(i,c)+3}]"
                L.append(f"v_mfma_f32_16x16x32_bf16 {acc}, v[{WF(p,c)}:{WF(p,c)+3}], v[{XF(p,i)}:{XF(p,i)+3}], {acc if g else 0}")
        return L
    if o["pf"]:
        assert not WC and o["rot"] == 0
        a(f"""s_and_b32 s26, s35, 7
s_lshl_b32 s26, s26, 5
s_lshl_b32 s27, s34, 8
s_add_u32 s26, s26, s27
s_mul_i32 s26, s26, 1152
s_add_u32 s26, s26, 384
v_and_b32 v5, 31, v0
v_lshrrev_b32 v6, 5, v0
v_mul_u32_u24 v5, 1152, v5
v_lshl_add_u32 v240, v6, 6, v5
s_and_b32 s27, s34, 3
s_add_u32 s27, s27, 192
s_mul_i32 s27, s27, 3456
s_mul_i32 s28, s35, 216
s_add_u32 s27, s27, s28
v_lshrrev_b32 v5, 2, v0
v_and_b32 v6, 3, v0
v_mul_u32_u24 v5, {4*3456}, v5
v_lshl_add_u32 v241, v6, 6, v5
s_mul_i32 s28, s32, {3*128}
s_add_u32 s26, s26, s28
s_sub_u32 s28, s32, 2
s_mul_i32 s28, s28, {3*64*3456}
s_add_u32 s27, s27, s28
s_cmp_lt_u32 s32, 2
s_cselect_b32 s48, s8, s12
s_cselect_b32 s49, s9, s13
s_cselect_b32 s50, s10, s14
s_mov_b32 s51, 0x00020000
s_cselect_b32 s26, s26, s27
s_mov_b32 s27, {64*3456}
s_cselect_b32 s27, 128, s27
s_cselect_b64 vcc, -1, 0
s_nop 1
v_cndmask_b32 v240, v241, v240, vcc""")
    NC = 12 if XC else 4
    if WC: a(f"s_waitcnt vmcnt({NC})")
    a("s_barrier")
    stamp(a, o, 1)
    if o["stamp"]: a("s_memtime s[44:45]")
    for x in reads(0): a(x)
    for g in range(18):
        cc, ks = g // 2, g % 2
        if ks == 1 and cc < 8:
            rem = min(8, cc + 2) - (cc + 1)
            a((f"s_waitcnt vmcnt({NC*rem}) lgkmcnt(0)") if WC else "s_waitcnt lgkmcnt(0)")
            a("s_barrier")
        else:
            a("s_waitcnt lgkmcnt(0)")
        units = []
        if XC:
            if g == 0: units = xw_units(2)
            elif ks == 1 and cc + 3 <= 8: units = xw_units(cc + 3)[:7]
            elif ks == 0 and cc >= 1 and cc + 2 <= 8: units = xw_units(cc + 2)[7:]
        elif WC:
            if g == 0: units = w_units(2)
            elif ks == 1 and cc + 3 <= 8: units = w_units(cc + 3)[:3]
            elif ks == 0 and cc >= 1 and cc + 2 <= 8: units = w_units(cc + 2)[3:]
        rd = reads(g + 1) if g + 1 < 18 else []
        M = mfmas(g)
        slots = [[] for _ in M]
        for idx, x in enumerate(rd): slots[min(idx, len(M)-1)].append(x)
        for idx, u in enumerate(units): slots[min(len(M)-1, 2 + (idx*len(M))//len(units))] += u
        if o["pf"] and g == o["pfstep"]:
            for q in range(3):
                slots[3 + 8*q] += [f"buffer_load_dword v{242+q}, v240, s[48:51], s26 offen", "s_add_u32 s26, s26, s27"]
        if g == 16:
            a("v_mov_b32 v254, 0")
            a(f"global_load_dword v255, v254, s[{pDBG}:{pDBG+1}] sc1")
        for m, sl in zip(M, slots):
            a(m)
            for x in sl: a(x)
    stamp(a, o, 2)
    if o["stamp"]: a("s_memtime s[46:47]\ns_waitcnt lgkmcnt(0)\ns_sub_u32 s59, s46, s44")
    nonce_fetch(a)
    a(f"""s_waitcnt lgkmcnt(0)
s_mul_i32 s39, s32, {64*RS}
v_mul_u32_u24 v5, {RS}, v3
v_lshl_add_u32 v5, v4, 3, v5
v_add_u32 v5, s39, v5
s_mul_i32 s40, s35, 6
s_sub_u32 s41, 32, s40
s_cmp_lt_u32 s40, 32
s_cselect_b32 s41, s41, 0
s_lshr_b32 s41, s41, 1
s_mul_i32 s41, s41, 9
s_mov_b32 s44, {f32bits(QSCALE)}
s_cmp_eq_u32 s41, 0
s_cbranch_scc1 L_p1_noscale""")
    for c in range(n):
        a(f"""v_add_u32 v6, {4*c}, v4
v_cmp_gt_u32 vcc, s41, v6
v_mov_b32 v7, 1.0
v_mov_b32 v8, s44
v_cndmask_b32 v6, v7, v8, vcc""")
        for i in range(4):
            r = ACC(i, c)
            a(f"v_pk_mul_f32 v[{r}:{r+1}], v[{r}:{r+1}], v[6:7] op_sel_hi:[1,0]")
            a(f"v_pk_mul_f32 v[{r+2}:{r+3}], v[{r+2}:{r+3}], v[6:7] op_sel_hi:[1,0]")
    a.label("L_p1_noscale")
    for c in range(n):
        for i in range(4):
            r = ACC(i, c); P = 40 + 2*((4*c + i) % 16)
            a(f"v_cvt_pk_bf16_f32 v{P}, v{r}, v{r+1}")
            a(f"v_cvt_pk_bf16_f32 v{P+1}, v{r+2}, v{r+3}")
            a(f"ds_write_b64 v5, v[{P}:{P+1}] offset:{i*16*RS + 32*c}")
    srd(a, 16, pWS, WS_USED)
    a(f"""v_and_b32 v6, 31, v0
v_lshrrev_b32 v7, 5, v0
v_mul_u32_u24 v8, {RS}, v6
v_lshl_add_u32 v8, v7, 4, v8
v_add_u32 v8, s39, v8
v_lshlrev_b32 v9, 4, v0
v_mul_u32_u24 v10, {RS}, v0
v_add_u32 v10, s39, v10
v_lshlrev_b32 v11, 3, v0
v_lshrrev_b32 v12, 1, v4
v_lshrrev_b32 v13, 2, v3
v_lshl_add_u32 v13, v12, 3, v13
v_mul_u32_u24 v13, {RS}, v13
v_add_u32 v13, s39, v13
v_and_b32 v14, 1, v4
v_and_b32 v15, 3, v3
v_lshlrev_b32 v15, 3, v15
v_mul_u32_u24 v12, 288, v12
s_lshr_b32 s42, s38, 5
s_lshl_b32 s42, s42, 10
s_lshl_b32 s43, s38, 3
s_lshr_b32 s45, s38, 4
s_mul_i32 s45, s45, 576
s_waitcnt lgkmcnt(0)""")
    for hl in range(6):
        pl, par = hl // 2, hl % 2
        lab = f"L_p1_h{hl}"
        a(f"""s_add_u32 s46, s40, {hl}
s_lshr_b32 s47, s46, 5
s_and_b32 s46, s46, 31
s_lshl_b32 s48, s33, 5
s_add_u32 s48, s48, s46
s_cmp_eq_u32 s47, 2
s_cbranch_scc1 {lab}_v
s_lshl_b32 s49, s48, 16
s_lshl_b32 s50, s47, 22
s_add_u32 s49, s49, s50
s_add_u32 s49, s49, s42""")
        assert QM_OFF == 0 and KM_OFF == (1 << 22)
        off = 72*pl + 40*par
        a(f"ds_read2_b64 v[40:43], v8 offset0:{off//8} offset1:{off//8+1}")
        a(f"v_add_u32 v48, {32*RS + off}, v8")
        a(f"ds_read2_b64 v[44:47], v48 offset0:0 offset1:1")
        if par == 0:
            a(f"ds_read_b64 v[50:51], v10 offset:{72*pl + 32}")
        a("s_waitcnt lgkmcnt(%d)" % (2 if par == 0 else 1))
        a("buffer_store_dwordx4 v[40:43], v9, s[16:19], s49 offen sc1")
        a("s_waitcnt lgkmcnt(%d)" % (1 if par == 0 else 0))
        a("buffer_store_dwordx4 v[44:47], v9, s[16:19], s49 offen offset:1024 sc1")
        if par == 0:
            a(f"""s_lshr_b32 s50, s48, 1
s_lshl_b32 s50, s50, 14
s_add_u32 s50, s50, s43
s_lshl_b32 s51, s47, 19
s_add_u32 s50, s50, s51
s_add_u32 s50, s50, {QR_OFF}
s_waitcnt lgkmcnt(0)
buffer_store_dwordx2 v[50:51], v11, s[16:19], s50 offen sc1""")
        a(f"s_branch {lab}_e")
        a.label(f"{lab}_v")
        assert KR_OFF - QR_OFF == (1 << 19)
        a(f"""v_add_u32 v16, {72*pl + 40*par}, v15
v_mov_b32 v17, {72*pl + 32}
v_cmp_eq_u32 vcc, 0, v14
s_mul_i32 s49, s48, {VT_STRIDE}
s_add_u32 s49, s49, s45
v_cndmask_b32 v16, v17, v16, vcc
v_add_u32 v16, v16, v13
s_add_u32 s49, s49, {VT_OFF}
v_add_u32 v17, {16 - 2*par}, v3
v_cndmask_b32 v17, v17, v3, vcc
v_lshl_add_u32 v17, v17, 4, v12""")
        m16 = 0xffff | ((0x3 << (2*par)) << 16)
        for grp in range(4):
            R = 40 + 4*grp
            for tr in range(2):
                a(f"ds_read_b64_tr_b16 v[{R+2*tr}:{R+2*tr+1}], v16 offset:{(16*grp + 4*tr)*RS}")
        a(f"s_mov_b32 exec_lo, {m16}\ns_mov_b32 exec_hi, {m16}")
        for grp in range(4):
            R = 40 + 4*grp
            a(f"s_waitcnt lgkmcnt({6 - 2*grp})")
            a(f"buffer_store_dwordx4 v[{R}:{R+3}], v17, s[16:19], s49 offen offset:{576*grp} sc1")
        a("s_mov_b64 exec, -1")
        a.label(f"{lab}_e")
    a.label("L_p1_done")
    a("s_lshl_b32 s39, s33, 4\ns_add_u32 s39, s39, s35\ns_lshl_b32 s39, s39, 3\ns_add_u32 s39, s39, s34")
    signal(a, 39, "p1")

def phase2(a, o):
    NKT, NQ = 64, 2
    QM = lambda j: 16 + 4*j
    QR = 24
    KMn = lambda s: 28 + 6*s
    KRs = lambda s: 32 + 6*s
    V0 = lambda s: 40 + 8*s
    V1 = lambda s: 44 + 8*s
    S = lambda kt, j: 56 + 32*(kt & 1) + 16*j
    O = lambda j: 120 + 16*j
    vL16, vKR, vVa, vVb, vIdx = 2, 3, 4, 5, 6
    T = 152
    name = "p2"
    a(f"""s_and_b32 s18, s2, 7
s_lshr_b32 s19, s2, 3
s_lshr_b32 s12, s19, 2
s_lshl_b32 s18, s18, 3
s_add_u32 s12, s12, s18
s_and_b32 s13, s19, 3
s_mov_b32 s14, s{sWAVE}""")
    a(f"""s_and_b32 s18, s12, 31
s_lshr_b32 s19, s12, 5
s_lshl_b32 s19, s19, 4
v_lshrrev_b32 v7, 3, v0
v_lshlrev_b32 v7, 5, v7
v_add_u32 v7, s18, v7
v_mul_u32_u24 v7, 171, v7
v_lshrrev_b32 v7, 10, v7
v_add_u32 v7, s19, v7
v_and_b32 v8, 7, v0
v_lshl_add_u32 v7, v7, 3, v8
v_lshlrev_b32 v7, 7, v7
v_add_u32 v7, {FLAG_OFF}, v7""")
    poll(a, 7, 0xffffff, "p1")
    stamp(a, o, 4)
    srd(a, 8, pWS, WS_USED)
    a(f"""v_lshlrev_b32 v{vL16}, 4, v0
v_and_b32 v8, 31, v0
v_lshlrev_b32 v9, 3, v8
s_mov_b32 s16, 0x0003ffff
s_mov_b32 s17, 0x0003ffff
s_lshl_b32 s30, s14, 10
s_lshl_b32 s25, s12, 16
s_add_u32 s35, s25, {KM_OFF}
s_add_u32 s25, s35, s30
s_mul_i32 s28, s12, {VT_STRIDE}
s_add_u32 s36, s28, {VT_OFF}
s_add_u32 s28, s36, s30
s_lshr_b32 s38, s12, 1
s_lshl_b32 s38, s38, 14
s_and_b32 s39, s12, 1
s_lshl_b32 s39, s39, 2
s_add_u32 s37, s38, {KR_OFF}
s_add_u32 s33, s37, s30
s_add_u32 s29, s30, {LDS_VT}
s_add_u32 s34, s30, {LDS_KR}
s_mov_b32 s26, s30
s_lshl_b32 s18, s13, 4
s_lshl_b32 s19, s14, 1
s_add_u32 s24, s18, s19""")
    def dmaK():
        a("s_mov_b32 m0, s26")
        a("s_add_u32 s26, s26, 8192")
        a(f"buffer_load_dwordx4 v{vL16}, s[8:11], s25 offen sc1 lds")
        a("s_add_u32 s25, s25, 8192")
    def dmaV():
        a("s_mov_b32 m0, s29")
        a("s_add_u32 s29, s29, 8192")
        a(f"buffer_load_dwordx4 v{vL16}, s[8:11], s28 offen sc1 lds")
        a("s_add_u32 s28, s28, 8192")
    def dmaKR1():
        a("s_add_u32 m0, s34, 8192")
        a("s_add_u32 s33, s33, 8192")
        a(f"buffer_load_dwordx4 v{vL16}, s[8:11], s33 offen sc1 lds")
    a("s_mov_b32 m0, s34")
    a("s_lshl_b32 s18, s12, 16")
    a(f"buffer_load_dwordx4 v{vL16}, s[8:11], s33 offen sc1 lds")
    dmaK(); dmaV(); dmaV()
    a(f"""s_lshl_b32 s19, s24, 10
s_add_u32 s18, s18, s19""")
    for j in range(NQ):
        a(f"buffer_load_dwordx4 v[{QM(j)}:{QM(j)+3}], v{vL16}, s[8:11], s18 offen offset:{1024*j} sc1")
    a(f"""s_lshl_b32 s20, s24, 8
s_add_u32 s19, s38, s20
s_add_u32 s19, s19, s39
s_add_u32 s19, s19, {QR_OFF}
v_lshlrev_b32 v10, 3, v0
buffer_load_dword v{QR}, v10, s[8:11], s19 offen sc1""")
    if o["wopf"]:
        a(f"""s_cmp_lt_u32 s12, 32
s_cselect_b32 s20, s{pAWO}, s{pBWO}
s_cselect_b32 s21, s{pAWO+1}, s{pBWO+1}
s_mov_b32 s22, {WO_BYTES}
s_mov_b32 s23, 0x00020000
s_lshr_b32 s18, s2, 3
s_lshl_b32 s18, s18, 3
s_add_u32 s18, s18, s14
s_lshl_b32 s27, s18, 12
v_lshlrev_b32 v198, 6, v0""")
    late = [dmaK, dmaV, dmaKR1, dmaK, dmaV, dmaK, dmaV] + [dmaK, dmaV]*4
    sched = {0: late[0:3], 1: late[3:5], 2: late[5:7], 3: late[7:9], 4: late[9:11], 5: late[11:13], 6: late[13:15]}
    a(f"""v_lshrrev_b32 v10, 5, v0
v_add_u32 v{vKR}, {LDS_KR}, v9
v_add_u32 v{vKR}, s39, v{vKR}
v_mul_u32_u24 v11, 288, v10
v_lshlrev_b32 v12, 4, v8
v_add_u32 v27, v11, v12
v_add_u32 v{vVa}, {LDS_VT}, v27
v_add_u32 v{vVb}, {LDS_VT + 32*1152}, v27
v_mov_b32 v{vIdx}, 0xdddd
v_and_b32 v13, 27, v8
v_cmp_eq_u32 vcc, 18, v13
v_mov_b32 v14, 0x3f803f80
v_mov_b32 v15, 0
v_cndmask_b32 v13, v15, v14, vcc""")
    for s in range(2):
        a(f"v_mov_b32 v{KRs(s)+1}, 0x3f803f80")
        for i in range(4):
            a(f"v_mov_b32 v{V0(s)+i}, v13")
            a(f"v_mov_b32 v{V1(s)+i}, v13")
    a(f"v_mov_b32 v{QR+1}, 0")
    for j in range(NQ):
        for i in range(16): a(f"v_mov_b32 v{O(j)+i}, 0")
    a("s_waitcnt vmcnt(0)")
    a("s_barrier")
    stamp(a, o, 5)
    if o["stamp"]: a("s_memtime s[52:53]")
    def rdK(kt):
        s = kt & 1
        a(f"ds_read_b128 v[{KMn(s)}:{KMn(s)+3}], v{vL16} offset:{kt*1024}")
        a(f"ds_read_b32 v{KRs(s)}, v{vKR} offset:{kt*256}")
    def rdV(kt):
        s = kt & 1
        base, off = (vVa, kt*1152) if kt < 32 else (vVb, (kt-32)*1152)
        a("s_mov_b64 exec, s[16:17]")
        a(f"ds_read_b128 v[{V0(s)}:{V0(s)+3}], v{base} offset:{off}")
        a(f"ds_read_b128 v[{V1(s)}:{V1(s)+3}], v{base} offset:{off+576}")
        a("s_mov_b64 exec, -1")
    def qk_res(kt, ks=None):
        s = (kt & 1) if ks is None else ks; sb = S(kt, 0)
        a(f"v_mfma_f32_32x32x4_2b_bf16 v[{sb}:{sb+31}], v[{KRs(s)}:{KRs(s)+1}], v[{QR}:{QR+1}], 0")
    def qk_main(kt, j, ks=None):
        s = (kt & 1) if ks is None else ks; sb = S(kt, j)
        a(f"v_mfma_f32_32x32x16_bf16 v[{sb}:{sb+15}], v[{KMn(s)}:{KMn(s)+3}], v[{QM(j)}:{QM(j)+3}], v[{sb}:{sb+15}]")
    def pv(kt, j, half, vs=None):
        s = (kt & 1) if vs is None else vs
        v = V0(s) if half == 0 else V1(s)
        a(f"v_smfmac_f32_32x32x32_bf16 v[{O(j)}:{O(j)+15}], v[{v}:{v+3}], v[{S(kt,j)+8*half}:{S(kt,j)+8*half+7}], v{vIdx}")
    def ex(kt, j, i):
        r = S(kt, j) + i
        a(f"v_exp_f32 v{r}, v{r}")
    def loop(copy, prio):
        rdK(0); rdV(0)
        a("s_waitcnt lgkmcnt(0)")
        qk_res(0)
        rdK(1)
        a("s_nop 15")
        a("s_nop 1")
        qk_main(0, 0); qk_main(0, 1)
        a("s_nop 7")
        a("s_nop 3")
        for kt in range(NKT):
            if kt > 0: pv(kt-1, 1, 1)
            if kt == o["bar1"] or kt == o["bar2"]:
                a(f"s_waitcnt vmcnt({4 if kt == o['bar1'] else 0})")
                a("s_barrier")
            if kt in sched:
                for f in sched[kt]: f()
            if kt == 9 and o["wopf"]:
                a("buffer_load_dword v199, v198, s[20:23], s27 offen")
            p = prio(kt)
            if p is not None: a(f"s_setprio {p}")
            a("s_waitcnt lgkmcnt(0)")
            if kt + 2 < NKT: rdK(kt+2)
            if kt + 1 < NKT: rdV(kt+1)
            for i in range(0, 4): ex(kt, 0, i)
            if kt + 1 < NKT: qk_res(kt+1)
            for i in range(4, 12): ex(kt, 0, i)
            pv(kt, 0, 0)
            for i in range(12, 16): ex(kt, 0, i)
            pv(kt, 0, 1)
            for i in range(0, 4): ex(kt, 1, i)
            if kt + 1 < NKT: qk_main(kt+1, 0)
            for i in range(4, 8): ex(kt, 1, i)
            if kt + 1 < NKT: qk_main(kt+1, 1)
            for i in range(8, 12): ex(kt, 1, i)
            pv(kt, 1, 0)
            for i in range(12, 16): ex(kt, 1, i)
        a("s_nop 1")
        pv(NKT-1, 1, 1)
        a("s_setprio 0")
    if o["dual"]:
        a(f"s_cmp_ge_u32 s14, 4\ns_cbranch_scc1 L_p2_loopB")
        loop(0, lambda kt: 1 if kt == 0 else None)
        a("s_branch L_p2_loopdone")
        a.label("L_p2_loopB")
        pat = o["pat"]
        def pr(kt):
            cur = pat[kt % len(pat)]
            prev = pat[(kt-1) % len(pat)] if kt else None
            return cur if cur != prev else None
        loop(1, pr)
        a.label("L_p2_loopdone")
    else:
        loop(0, lambda kt: None)
    stamp(a, o, 6)
    if o["stamp"]:
        a(f"""s_memtime s[54:55]
s_waitcnt lgkmcnt(0)
s_cmp_lg_u32 s14, 4
s_cbranch_scc1 L_p2_nw4
s_sub_u32 s56, s54, s52
s_sub_u32 s57, s94, s92
s_lshl_b32 s40, s2, 6
s_add_u32 s40, s40, {WS_USED}
v_mov_b32 v200, s40
v_mov_b32 v202, s56
v_mov_b32 v203, s57
s_mov_b64 exec, 1
global_store_dwordx2 v200, v[202:203], s[{pWS}:{pWS+1}] offset:48
s_mov_b64 exec, -1""")
        a.label("L_p2_nw4")
    a("s_nop 7")
    a("s_nop 7")
    a("s_mov_b64 s[20:21], 0")
    a("s_mov_b32 s22, 0x53800000")
    a("s_mov_b32 s23, 0x2b800000")
    for j in range(NQ):
        a(f"v_mul_f32 v{T}, 0, v{O(j)}")
        for i in range(1, 10): a(f"v_fma_f32 v{T}, v{O(j)+i}, 0, v{T}")
        a(f"v_add_f32 v{T}, v{T}, v{O(j)+10}")
        a(f"v_cmp_ngt_f32 vcc, s22, v{T}")
        a("s_or_b64 s[20:21], s[20:21], vcc")
        a(f"v_cmp_nlt_f32 vcc, s23, v{T}")
        a("s_or_b64 s[20:21], s[20:21], vcc")
    a(f"""s_cmp_eq_u64 s[20:21], 0
s_cbranch_scc0 L_p2_fallback""")
    a.label("L_p2_store")
    a(f"""s_lshr_b32 s18, s12, 5
s_and_b32 s19, s12, 31
s_lshl_b32 s20, s18, 21
s_lshl_b32 s21, s24, 15
s_add_u32 s20, s20, s21
s_lshl_b32 s21, s19, 10
s_add_u32 s20, s20, s21
s_add_u32 s20, s20, {OM_OFF}
s_lshl_b32 s22, s18, 18
s_lshl_b32 s21, s24, 12
s_add_u32 s22, s22, s21
s_lshr_b32 s21, s19, 2
s_lshl_b32 s21, s21, 9
s_add_u32 s22, s22, s21
s_and_b32 s21, s19, 3
s_lshl_b32 s21, s21, 2
s_add_u32 s22, s22, s21
s_add_u32 s22, s22, {OR_OFF}
v_lshlrev_b32 v9, 4, v8""")
    for j in range(NQ):
        a(f"v_rcp_f32 v{T}, v{O(j)+10}")
        a("s_nop 0")
        for i in range(10): a(f"v_mul_f32 v{O(j)+i}, v{O(j)+i}, v{T}")
        P = T + 2 + 6*j
        for i in range(4): a(f"v_cvt_pk_bf16_f32 v{P+i}, v{O(j)+2*i}, v{O(j)+2*i+1}")
        a(f"v_cvt_pk_bf16_f32 v{P+4}, v{O(j)+8}, v{O(j)+9}")
        a(f"s_add_u32 s21, s20, {32768*j}")
        a(f"buffer_store_dwordx4 v[{P}:{P+3}], v{vL16}, s[8:11], s21 offen sc1")
        a(f"s_add_u32 s23, s22, {4096*j}")
        a("s_mov_b32 exec_hi, 0")
        a(f"buffer_store_dword v{P+4}, v9, s[8:11], s23 offen sc1")
        a("s_mov_b32 exec_hi, -1")
    a("s_lshl_b32 s39, s18, 2\ns_add_u32 s39, s39, s13\ns_lshl_b32 s39, s39, 5\ns_add_u32 s39, s39, s19\ns_add_u32 s39, s39, 256")
    signal(a, 39, "p2")
    a("s_branch L_p2_end")
    a.label("L_p2_fallback")
    MX = T
    a(f"""v_mov_b32 v{MX}, 0xff800000
v_mov_b32 v{MX+1}, 0xff800000
v_mov_b32 v{QR+1}, 0
v_mov_b32 v{MX+4}, v{vL16}
v_mov_b32 v{MX+5}, v{vKR}
s_mov_b32 s18, {NKT}""")
    a.label("L_p2_fb1")
    a(f"""ds_read_b128 v[{KMn(0)}:{KMn(0)+3}], v{MX+4}
ds_read_b32 v{KRs(0)}, v{MX+5}
v_add_u32 v{MX+4}, 1024, v{MX+4}
v_add_u32 v{MX+5}, 256, v{MX+5}
s_waitcnt lgkmcnt(0)""")
    qk_res(0, 0)
    a("s_nop 15\ns_nop 3")
    qk_main(0, 0, 0); qk_main(0, 1, 0)
    a("s_nop 15")
    for j in range(NQ):
        for i in range(8): a(f"v_max3_f32 v{MX+j}, v{MX+j}, v{S(0,j)+2*i}, v{S(0,j)+2*i+1}")
    a(f"""s_sub_u32 s18, s18, 1
s_cmp_lg_u32 s18, 0
s_cbranch_scc1 L_p2_fb1""")
    x, y, hi, mid = MX+6, MX+7, MX+8, MX+9
    for j in range(NQ):
        a(f"""v_mov_b32 v{x}, v{MX+j}
v_mov_b32 v{y}, v{MX+j}
s_nop 1
v_permlane32_swap_b32 v{x}, v{y}
s_nop 1
v_max_f32 v{MX+j}, v{x}, v{y}""")
    a(f"""v_cmp_gt_u32 vcc, 32, v0
s_nop 1
v_cndmask_b32 v{x}, v{MX+1}, v{MX}, vcc
v_and_b32 v{hi}, 0xffff0000, v{x}
v_sub_f32 v{x}, v{x}, v{hi}
v_and_b32 v{mid}, 0xffff0000, v{x}
v_xor_b32 v{hi}, 0x80000000, v{hi}
v_xor_b32 v{mid}, 0x80000000, v{mid}
v_lshrrev_b32 v{hi}, 16, v{hi}
v_or_b32 v{QR+1}, v{hi}, v{mid}""")
    for j in range(NQ):
        for i in range(16): a(f"v_mov_b32 v{O(j)+i}, 0")
    a(f"""v_mov_b32 v{MX+4}, v{vL16}
v_mov_b32 v{MX+5}, v{vKR}
v_mov_b32 v{MX+6}, v{vVa}
s_mov_b32 s18, {NKT}""")
    a.label("L_p2_fb2")
    a(f"""ds_read_b128 v[{KMn(0)}:{KMn(0)+3}], v{MX+4}
ds_read_b32 v{KRs(0)}, v{MX+5}
s_mov_b64 exec, s[16:17]
ds_read_b128 v[{V0(0)}:{V0(0)+3}], v{MX+6}
ds_read_b128 v[{V1(0)}:{V1(0)+3}], v{MX+6} offset:576
s_mov_b64 exec, -1
v_add_u32 v{MX+4}, 1024, v{MX+4}
v_add_u32 v{MX+5}, 256, v{MX+5}
v_add_u32 v{MX+6}, 1152, v{MX+6}
s_waitcnt lgkmcnt(0)""")
    qk_res(0, 0)
    a("s_nop 15\ns_nop 3")
    qk_main(0, 0, 0); qk_main(0, 1, 0)
    a("s_nop 15")
    for j in range(NQ):
        for i in range(16): ex(0, j, i)
    a("s_nop 1")
    for j in range(NQ):
        pv(0, j, 0, 0); pv(0, j, 1, 0)
    a(f"""s_sub_u32 s18, s18, 1
s_cmp_lg_u32 s18, 0
s_cbranch_scc1 L_p2_fb2
s_nop 7
s_nop 7
s_branch L_p2_store""")
    a.label("L_p2_end")

def phase3(a, o):
    OF = lambda ks: 64 + 4*ks
    WF = lambda p, c: 144 + 24*p + 4*c
    ACC = lambda c: 16 + 4*c
    vL, vWa, vWb, vWr, vWD = 1, 2, 3, 4, 5
    D = o["p3depth"]
    a(f"""s_cmp_ge_u32 s2, 192
s_cbranch_scc1 L_end
s_and_b32 s30, s2, 7
s_lshr_b32 s31, s2, 3
s_mov_b32 s32, s{sWAVE}
s_lshr_b32 s33, s30, 2
s_and_b32 s34, s30, 3
s_lshl_b32 s34, s34, 2
s_and_b32 s35, s31, 3
s_add_u32 s34, s34, s35
s_lshr_b32 s35, s31, 2
s_lshl_b32 s36, s34, 2
s_lshr_b32 s37, s32, 1
s_add_u32 s36, s36, s37""")
    a(f"""v_mul_u32_u24 v9, 37, v0
v_lshrrev_b32 v9, 9, v9
v_mul_u32_u24 v10, 14, v9
v_sub_u32 v10, v0, v10
v_mul_u32_u24 v9, 1152, v9
v_lshl_add_u32 v{vWD}, v10, 4, v9
v_mov_b32 v11, 0x40000000
v_cmp_gt_u32 vcc, 12, v10
s_cmp_eq_u32 s33, 0
s_cselect_b32 s8, s{pAWO}, s{pBWO}
v_cndmask_b32 v{vWD}, v11, v{vWD}, vcc
s_cselect_b32 s9, s{pAWO+1}, s{pBWO+1}
s_mov_b32 s10, {WO_BYTES}
s_mov_b32 s11, 0x00020000
s_mul_i32 s22, s32, {4*1152}
s_mul_i32 s23, s35, 192
s_add_u32 s22, s22, s23
s_mul_i32 s23, s32, {4*WO_RS}
s_mov_b32 exec_hi, 0x00ffffff""")
    for r in range(18):
        a("s_mov_b32 m0, s23")
        a(f"s_add_u32 s23, s23, {32*WO_RS}")
        a(f"buffer_load_dwordx4 v{vWD}, s[8:11], s22 offen lds")
        a(f"s_add_u32 s22, s22, {32*1152}")
    a("s_mov_b32 exec_hi, -1")
    a(f"""v_and_b32 v7, 15, v0
v_lshrrev_b32 v8, 4, v0
v_lshlrev_b32 v9, 9, v8
v_lshl_add_u32 v{vL}, v7, 4, v9
s_and_b32 s37, s32, 1
s_lshl_b32 s37, s37, 8
v_add_u32 v{vL}, s37, v{vL}
v_lshrrev_b32 v9, 1, v8
v_mul_u32_u24 v9, 20, v9
v_and_b32 v10, 1, v8
v_lshl_add_u32 v9, v10, 2, v9
v_lshrrev_b32 v10, 2, v7
v_add_u32 v9, v9, v10
v_mul_u32_u24 v9, {WO_RS}, v9
v_and_b32 v11, 3, v7
v_lshl_add_u32 v{vWa}, v11, 3, v9
v_add_u32 v{vWb}, {7*36*WO_RS}, v{vWa}
v_lshlrev_b32 v9, 2, v8
v_lshrrev_b32 v12, 1, v10
v_add_u32 v9, v9, v12
v_mul_u32_u24 v9, 18, v9
v_and_b32 v13, 1, v10
v_add_u32 v9, v9, v13
v_xor_b32 v12, 1, v12
v_lshl_add_u32 v9, v12, 4, v9
v_mul_u32_u24 v9, {WO_RS}, v9
v_lshl_add_u32 v{vWr}, v11, 3, v9
v_add_u32 v14, {288*WO_RS}, v{vWr}
v_add_u32 v15, {14*36*WO_RS}, v{vWa}
s_lshr_b32 s37, s34, 2
s_lshl_b32 s38, s33, 2
s_add_u32 s37, s37, s38
s_lshl_b32 s37, s37, 5
s_add_u32 s37, s37, 256
v_add_u32 v6, s37, v0
v_lshlrev_b32 v6, 7, v6
v_add_u32 v6, {FLAG_OFF}, v6""")
    srd(a, 16, pWS, WS_USED)
    srd(a, 12, pOUT, OUT_BYTES)
    a(f"""s_lshl_b32 s20, s33, 21
s_lshl_b32 s21, s36, 15
s_add_u32 s20, s20, s21
s_add_u32 s20, s20, {OM_OFF}
s_lshl_b32 s21, s33, 18
s_lshl_b32 s22, s36, 12
s_add_u32 s21, s21, s22
s_add_u32 s21, s21, {OR_OFF}
s_waitcnt vmcnt(0)""")
    poll(a, 6, -1, "p2")
    stamp(a, o, 8)
    def oload(ks):
        if ks < 16:
            L = [f"buffer_load_dwordx4 v[{OF(ks)}:{OF(ks)+3}], v{vL}, s[16:19], s20 offen offset:{(ks%2)*2048} sc1"]
            if ks % 2 == 1: L.append("s_add_u32 s20, s20, 4096")
            return L
        return [f"buffer_load_dwordx4 v[{OF(ks)}:{OF(ks)+3}], v{vL}, s[16:19], s21 offen offset:{(ks-16)*2048} sc1"]
    def reads(ks, p):
        L = []
        for c in range(6):
            for t in range(2):
                if ks < 16:
                    base, k0 = (vWa, ks) if ks < 7 else ((vWb, ks - 7) if ks < 14 else (15, ks - 14))
                    off = (36*k0 + 8*t)*WO_RS + 32*c
                else:
                    base = vWr if ks == 16 else 14
                    off = 36*t*WO_RS + 32*c
                L.append(f"ds_read_b64_tr_b16 v[{WF(p,c)+2*t}:{WF(p,c)+2*t+1}], v{base} offset:{off}")
        return L
    def mfmas(ks):
        p = ks & 1
        return [f"v_mfma_f32_16x16x32_bf16 v[{ACC(c)}:{ACC(c)+3}], v[{WF(p,c)}:{WF(p,c)+3}], v[{OF(ks)}:{OF(ks)+3}], " + (f"v[{ACC(c)}:{ACC(c)+3}]" if ks else "0")
                for c in range(6)]
    for ks in range(D):
        for x in oload(ks): a(x)
    for x in reads(0, 0): a(x)
    for ks in range(18):
        issued = min(17, ks + D - 1)
        a(f"s_waitcnt vmcnt({issued - ks}) lgkmcnt(0)")
        rd = reads(ks+1, (ks+1) & 1) if ks + 1 < 18 else []
        M = mfmas(ks)
        if ks + D < 18:
            for x in oload(ks + D): a(x)
        for idx, m in enumerate(M):
            a(m)
            for x in rd[2*idx:2*idx+2]: a(x)
    stamp(a, o, 9)
    a(f"""s_mul_i32 s23, s32, {16*208}
s_add_u32 s23, s23, {WO_IMG}
v_mul_u32_u24 v9, 208, v7
v_lshl_add_u32 v9, v8, 3, v9
v_add_u32 v9, s23, v9
s_nop 3""")
    for c in range(6):
        r = ACC(c); P = 64 + 2*c
        a(f"v_cvt_pk_bf16_f32 v{P}, v{r}, v{r+1}")
        a(f"v_cvt_pk_bf16_f32 v{P+1}, v{r+2}, v{r+3}")
        a(f"ds_write_b64 v9, v[{P}:{P+1}] offset:{32*c}")
    a(f"""s_lshl_b32 s20, s36, 5
s_and_b32 s21, s32, 1
s_lshl_b32 s21, s21, 4
s_add_u32 s20, s20, s21
s_mul_i32 s20, s20, 2304
s_mul_i32 s21, s33, 1152
s_add_u32 s20, s20, s21
s_mul_i32 s21, s35, 192
s_add_u32 s20, s20, s21
s_mov_b32 s22, 5462""")
    for k in range(3):
        a(f"""v_add_u32 v10, {64*k}, v0
v_mul_u32_u24 v11, s22, v10
v_lshrrev_b32 v11, 16, v11
v_mul_u32_u24 v12, 12, v11
v_sub_u32 v12, v10, v12
v_mul_u32_u24 v13, 208, v11
v_lshl_add_u32 v13, v12, 4, v13
v_add_u32 v{100+k}, s23, v13
v_mul_u32_u24 v13, 2304, v11
v_lshl_add_u32 v{110+k}, v12, 4, v13""")
    a("s_waitcnt lgkmcnt(0)")
    for k in range(3): a(f"ds_read_b128 v[{120+4*k}:{123+4*k}], v{100+k}")
    for k in range(3):
        a(f"s_waitcnt lgkmcnt({2-k})")
        a(f"buffer_store_dwordx4 v[{120+4*k}:{123+4*k}], v{110+k}, s[12:15], s20 offen{o['outflag']}")

def gen(opts=None):
    o = dict(stamp=False, bar1=5, bar2=26, rot=3, dual=True, pat=[2,2,2,2,2,2,2,0], wopf=True, wcomp=False, xcomp=False, pf=False, pfstep=0, p3depth=8, outflag='')
    if opts: o.update(opts)
    a = A()
    a(f".globl {NAME}\n.p2align 8\n.type {NAME},@function")
    a.label(NAME)
    a(f"""s_cmp_ge_u32 s2, 256
s_cbranch_scc1 L_exit
s_load_dwordx16 s[{sP}:{sP+15}], s[0:1], 0
s_load_dwordx2 s[{pWS}:{pWS+1}], s[0:1], 64
v_lshrrev_b32 v1, 6, v0
v_and_b32 v0, 63, v0
s_nop 0
v_readfirstlane_b32 s{sWAVE}, v1""")
    stamp(a, o, 0)
    a("s_nop 3")
    nonce_publish(a)
    phase1(a, o)
    stamp(a, o, 3)
    phase2(a, o)
    stamp(a, o, 7)
    phase3(a, o)
    a.label("L_end")
    if o["stamp"]:
        a(f"""s_cmp_lg_u32 s{sWAVE}, 0
s_cbranch_scc1 L_exit
s_memrealtime s[42:43]
s_waitcnt lgkmcnt(0)
s_lshl_b32 s40, s2, 6
s_add_u32 s40, s40, {WS_USED}
v_mov_b32 v2, s40
s_mov_b64 exec, 1""")
        for i in range(11):
            a(f"v_mov_b32 v3, s{82+2*i if i < 10 else 42}")
            a(f"global_store_dword v2, v3, s[{pWS}:{pWS+1}] offset:{4*i}")
        a("s_sub_u32 s54, s54, s52\nv_mov_b32 v3, s54")
        a(f"global_store_dword v2, v3, s[{pWS}:{pWS+1}] offset:44")
        a("v_mov_b32 v3, s59")
        a(f"global_store_dword v2, v3, s[{pWS}:{pWS+1}] offset:56")
        if o.get("p3trace"):
            for c in range(4):
                a(f"s_sub_u32 s40, s{44+2*c}, s98\nv_mov_b32 v3, s40")
                a(f"global_store_dword v2, v3, s[{pWS}:{pWS+1}] offset:{48+4*c}")
        if o.get("dbgstamp"):
            a(f"s_cmp_lg_u32 s2, {o['dbgstamp']}\ns_cbranch_scc1 L_exit\nv_mov_b32 v2, 0")
            for i in range(11):
                src = 82+2*i if i < 10 else 42
                a(f"s_sub_u32 s44, s{src}, s82" if i else "s_mov_b32 s44, s82")
                a("v_mov_b32 v3, s44")
                a(f"global_store_dword v2, v3, s[{pDBG}:{pDBG+1}] offset:{4*(i+1)}")
    a.label("L_exit")
    a("s_endpgm")
    return a.text(), kdesc(NAME, 256, 102)
```

```python
from asmlib import *
NAME = "concat_heads__mha_block__mha_block__prompt_kernel"
THREADS = 512
ST1 = 49664
WREG = 32768
RS = 232
LDS_KM, LDS_VT, LDS_KR = 0, 65536, 139264
WO_RS = 224
WO_IMG = 576 * WO_RS
K3_STG = 32 * 208
LDS_BYTES = 155648
SPIN_MAX = 400000
sWAVE = 3
sP = 64
pAX, pAW, pAWO, pBX, pBW, pBWO, pOUT, pDBG, pWS = [sP + 2*i for i in range(9)]
CNT1 = 0
CNT2 = 128

def srd(a, d, p, nbytes):
    a(f"s_mov_b32 s{d}, s{p}\ns_mov_b32 s{d+1}, s{p+1}\ns_mov_b32 s{d+2}, {nbytes}\ns_mov_b32 s{d+3}, 0x00020000")

def stamp(a, o, idx):
    if o["stamp"]:
        a(f"s_memrealtime s[{82+2*idx}:{83+2*idx}]")

sNONCE = 63
def trace(a, o, k, tag):
    if o.get("p1trace"):
        a(f"""s_cmp_lg_u32 s{sWAVE}, {o['p1trace']-1}
s_cbranch_scc1 L_tr_{tag}
s_memrealtime s[60:61]
s_waitcnt lgkmcnt(0)
s_lshl_b32 s62, s2, 6
s_add_u32 s62, s62, {WS_USED}
v_mov_b32 v250, s62
v_mov_b32 v251, s60
s_mov_b64 exec, 1
global_store_dword v250, v251, s[{pWS}:{pWS+1}] offset:{48+4*k}
s_mov_b64 exec, -1""")
        a.label(f"L_tr_{tag}")

def nonce_publish(a):
    a(f"""s_cmp_lg_u32 s2, 0
s_cbranch_scc1 L_nonce_done
s_cmp_lg_u32 s{sWAVE}, 0
s_cbranch_scc1 L_nonce_done
s_memrealtime s[40:41]
s_waitcnt lgkmcnt(0)
s_or_b32 s40, s40, 1
v_mov_b32 v2, 0
v_mov_b32 v3, s40
s_mov_b64 exec, 1
global_store_dword v2, v3, s[{pDBG}:{pDBG+1}] sc1
s_mov_b64 exec, -1""")
    a.label("L_nonce_done")

def nonce_fetch(a):
    a(f"""s_cmp_lg_u32 s{sWAVE}, 0
s_cbranch_scc1 L_nf_done
s_mov_b32 s58, 0""")
    a.label("L_nf_loop")
    a(f"""s_waitcnt vmcnt(0)
v_readfirstlane_b32 s{sNONCE}, v255
s_add_u32 s58, s58, 1
s_cmp_lg_u32 s{sNONCE}, 0
s_cbranch_scc1 L_nf_done
s_sleep 4
global_load_dword v255, v254, s[{pDBG}:{pDBG+1}] sc1
s_cmp_lt_u32 s58, {SPIN_MAX}
s_cbranch_scc1 L_nf_loop""")
    a.label("L_nf_done")

def signal(a, line_sgpr, tag):
    a("s_waitcnt vmcnt(0)")
    a("s_barrier")
    a(f"""s_cmp_lg_u32 s{sWAVE}, 0
s_cbranch_scc1 L_sig_{tag}
s_lshl_b32 s{line_sgpr}, s{line_sgpr}, 7
s_add_u32 s{line_sgpr}, s{line_sgpr}, {FLAG_OFF}
v_mov_b32 v254, s{line_sgpr}
v_mov_b32 v255, s{sNONCE}
s_mov_b64 exec, 1
global_store_dword v254, v255, s[{pWS}:{pWS+1}] sc1
s_mov_b64 exec, -1""")
    a.label(f"L_sig_{tag}")

def poll(a, addr_vgpr, nlanes_mask_lo, tag):
    a(f"""s_cmp_lg_u32 s{sWAVE}, 0
s_cbranch_scc1 L_polled_{tag}
s_mov_b32 s40, 0
s_mov_b32 exec_hi, 0
s_mov_b32 exec_lo, {nlanes_mask_lo}""")
    a.label(f"L_poll_{tag}")
    a(f"""global_load_dword v255, v{addr_vgpr}, s[{pWS}:{pWS+1}] sc1
s_add_u32 s40, s40, 1
s_waitcnt vmcnt(0)
v_cmp_ne_u32 vcc, s{sNONCE}, v255
s_cmp_eq_u64 vcc, 0
s_cbranch_scc1 L_pollok_{tag}
s_sleep 2
s_cmp_lt_u32 s40, {SPIN_MAX}
s_cbranch_scc1 L_poll_{tag}""")
    a.label(f"L_pollok_{tag}")
    a("s_mov_b64 exec, -1")
    a.label(f"L_polled_{tag}")
    a("s_barrier")

def p1_epilogue_consts(a):
    srd(a, 16, pWS, WS_USED)
    a(f"""s_mul_i32 s39, s32, {64*RS}
s_mul_i32 s40, s35, 6
v_mul_u32_u24 v5, {RS}, v3
v_lshl_add_u32 v5, v4, 3, v5
v_add_u32 v2, s39, v5
v_and_b32 v6, 31, v0
v_lshrrev_b32 v7, 5, v0
v_mul_u32_u24 v8, {RS}, v6
v_lshl_add_u32 v8, v7, 4, v8
v_add_u32 v8, s39, v8
v_lshlrev_b32 v9, 4, v0
v_mul_u32_u24 v10, {RS}, v0
v_add_u32 v10, s39, v10
v_lshlrev_b32 v11, 3, v0
v_lshrrev_b32 v12, 1, v4
v_lshrrev_b32 v13, 2, v3
v_lshl_add_u32 v13, v12, 3, v13
v_mul_u32_u24 v13, {RS}, v13
v_add_u32 v13, s39, v13
v_and_b32 v14, 1, v4
v_and_b32 v15, 3, v3
v_lshlrev_b32 v15, 3, v15
v_mul_u32_u24 v12, 288, v12
s_lshr_b32 s42, s38, 5
s_lshl_b32 s42, s42, 10
s_lshl_b32 s43, s38, 3
s_lshr_b32 s27, s38, 4
s_mul_i32 s27, s27, 576
s_sub_u32 s41, 32, s40
s_cmp_lt_u32 s40, 32
s_cselect_b32 s41, s41, 0
s_lshr_b32 s41, s41, 1
s_mul_i32 s41, s41, 9""")

def p1_epilogue_pipe(a, o, ACC, P1F):
    assert QM_OFF == 0 and KM_OFF == (1 << 22) and KR_OFF - QR_OFF == (1 << 19)
    a(f"s_mov_b32 s28, {f32bits(QSCALE)}")
    cnt = [0]
    def stage(c):
        a(f"s_cmp_le_u32 s41, {4*c}\ns_cbranch_scc1 L_p1_ns{c}")
        a(f"""v_add_u32 v6, {4*c}, v4
v_cmp_gt_u32 vcc, s41, v6
v_mov_b32 v7, 1.0
v_mov_b32 v241, s28
v_cndmask_b32 v6, v7, v241, vcc""")
        for i in range(4):
            r = ACC(i, c)
            a(f"v_pk_mul_f32 v[{r}:{r+1}], v[{r}:{r+1}], v[6:7] op_sel_hi:[1,0]")
            a(f"v_pk_mul_f32 v[{r+2}:{r+3}], v[{r+2}:{r+3}], v[6:7] op_sel_hi:[1,0]")
        a.label(f"L_p1_ns{c}")
        for i in range(4):
            r = ACC(i, c); P = 40 + 2*(cnt[0] % 16); cnt[0] += 1
            a(f"v_cvt_pk_bf16_f32 v{P}, v{r}, v{r+1}")
            a(f"v_cvt_pk_bf16_f32 v{P+1}, v{r+2}, v{r+3}")
            a(f"ds_write_b64 v2, v[{P}:{P+1}] offset:{i*16*RS + 32*c}")
    RR = lambda hl: 128 + 16*hl
    sK = lambda hl: 20 + hl
    sM = lambda hl: 52 + hl if hl < 6 else None
    sR = lambda hl: 48 + hl//2
    def reads(hl):
        pl, par = hl // 2, hl % 2
        lab = f"L_p1_h{hl}"; R = RR(hl); va = 20 + 2*hl
        a(f"""s_add_u32 s46, s40, {hl}
s_lshr_b32 s{sK(hl)}, s46, 5
s_and_b32 s46, s46, 31
s_lshl_b32 s47, s33, 5
s_add_u32 s47, s47, s46
s_cmp_eq_u32 s{sK(hl)}, 2
s_cbranch_scc1 {lab}_v""")
        off = 72*pl + 40*par
        a(f"ds_read2_b64 v[{R}:{R+3}], v8 offset0:{off//8} offset1:{off//8+1}")
        a(f"v_add_u32 v{va}, {32*RS + off}, v8")
        a(f"ds_read2_b64 v[{R+4}:{R+7}], v{va} offset0:0 offset1:1")
        if par == 0: a(f"ds_read_b64 v[{R+8}:{R+9}], v10 offset:{72*pl + 32}")
        a(f"""s_lshl_b32 s{sM(hl)}, s47, 16
s_lshl_b32 s46, s{sK(hl)}, 22
s_add_u32 s{sM(hl)}, s{sM(hl)}, s46
s_add_u32 s{sM(hl)}, s{sM(hl)}, s42""")
        if par == 0:
            a(f"""s_lshr_b32 s{sR(hl)}, s47, 1
s_lshl_b32 s{sR(hl)}, s{sR(hl)}, 14
s_add_u32 s{sR(hl)}, s{sR(hl)}, s43
s_lshl_b32 s46, s{sK(hl)}, 19
s_add_u32 s{sR(hl)}, s{sR(hl)}, s46
s_add_u32 s{sR(hl)}, s{sR(hl)}, {QR_OFF}""")
        a(f"s_branch {lab}_e")
        a.label(f"{lab}_v")
        a(f"""v_add_u32 v{va}, {72*pl + 40*par}, v15
v_mov_b32 v17, {72*pl + 32}
v_cmp_eq_u32 vcc, 0, v14
s_mul_i32 s{sM(hl)}, s47, {VT_STRIDE}
s_add_u32 s{sM(hl)}, s{sM(hl)}, s27
v_cndmask_b32 v{va}, v17, v{va}, vcc
v_add_u32 v{va}, v{va}, v13
s_add_u32 s{sM(hl)}, s{sM(hl)}, {VT_OFF}""")
        for grp in range(4):
            for tr in range(2):
                a(f"ds_read_b64_tr_b16 v[{R+4*grp+2*tr}:{R+4*grp+2*tr+1}], v{va} offset:{(16*grp + 4*tr)*RS}")
        a(f"""v_add_u32 v17, {16 - 2*par}, v3
v_cndmask_b32 v17, v17, v3, vcc
v_lshl_add_u32 v{va+1}, v17, 4, v12""")
        a.label(f"{lab}_e")
    def stores(hl):
        pl, par = hl // 2, hl % 2
        lab = f"L_p1_s{hl}"; R = RR(hl); va = 20 + 2*hl
        a(f"s_cmp_eq_u32 s{sK(hl)}, 2\ns_cbranch_scc1 {lab}_v")
        a(f"buffer_store_dwordx4 v[{R}:{R+3}], v9, s[16:19], s{sM(hl)} offen{P1F}")
        a(f"buffer_store_dwordx4 v[{R+4}:{R+7}], v9, s[16:19], s{sM(hl)} offen offset:1024{P1F}")
        if par == 0: a(f"buffer_store_dwordx2 v[{R+8}:{R+9}], v11, s[16:19], s{sR(hl)} offen{P1F}")
        a(f"s_branch {lab}_e")
        a.label(f"{lab}_v")
        m16 = 0xffff | ((0x3 << (2*par)) << 16)
        a(f"s_mov_b32 exec_lo, {m16}\ns_mov_b32 exec_hi, {m16}")
        for grp in range(4):
            a(f"buffer_store_dwordx4 v[{R+4*grp}:{R+4*grp+3}], v{va+1}, s[16:19], s{sM(hl)} offen offset:{576*grp}{P1F}")
        a("s_mov_b64 exec, -1")
        a.label(f"{lab}_e")
    stage(0); stage(1); stage(2)
    reads(0); reads(1)
    stage(3); stage(4)
    a("s_waitcnt lgkmcnt(8)")
    stores(0); stores(1)
    reads(2); reads(3)
    stage(5); stage(6)
    a("s_waitcnt lgkmcnt(8)")
    stores(2); stores(3)
    reads(4); reads(5)
    a("s_waitcnt lgkmcnt(0)")
    stores(4); stores(5)

def phase1(a, o):
    P1F = o['p1f']
    ROT = o['rot']
    vXD = lambda i: 16 + i
    vWD = lambda i: 24 + i
    vX = lambda st, ks: 28 + 2*st + ks
    vW = lambda st: 34 + st
    XF = lambda p, i: 40 + 16*p + 4*i
    WF = lambda p, c: 72 + 28*p + 4*c
    ACC = lambda i, c: 128 + 4*(4*c + i)
    n = 7
    a(f"""s_and_b32 s30, s2, 7
s_lshr_b32 s31, s2, 3
s_and_b32 s32, s{sWAVE}, 3
s_lshr_b32 s33, s30, 2
s_and_b32 s34, s30, 1
s_lshl_b32 s34, s34, 2
s_and_b32 s35, s31, 3
s_add_u32 s34, s34, s35
s_lshr_b32 s35, s30, 1
s_and_b32 s35, s35, 1
s_lshl_b32 s35, s35, 3
s_lshr_b32 s36, s31, 2
s_add_u32 s35, s35, s36
s_lshl_b32 s20, s34, 8
s_lshl_b32 s21, s32, 6
s_add_u32 s38, s20, s21
s_lshl_b32 s37, s32, 13
v_lshrrev_b32 v4, 4, v0
v_and_b32 v3, 15, v0""")
    WC = o["wcomp"]
    a(f"""v_and_b32 v2, 1, v4
v_lshrrev_b32 v5, 1, v4
v_lshlrev_b32 v2, 2, v2
v_lshl_add_u32 v2, v5, 4, v2
v_mul_u32_u24 v2, 3456, v2
v_lshl_add_u32 v2, v3, 4, v2
v_mov_b32 v5, 0x40000000
v_cmp_gt_u32 vcc, 14, v3
s_mul_i32 s20, s38, 1152
s_lshr_b32 s21, s32, 1
v_cndmask_b32 v2, v5, v2, vcc""")
    for i in range(4):
        a(f"v_add_u32 v{vWD(i)}, {3456*i}, v2")
    a(f"""s_lshl_b32 s21, s21, 5
s_and_b32 s22, s32, 1
s_lshl_b32 s23, s22, 3
s_add_u32 s21, s21, s23
s_mul_i32 s21, s21, 3456
s_mul_i32 s23, s35, 216
s_add_u32 s21, s21, s23
s_lshr_b32 s23, s32, 1
s_mul_i32 s23, s23, 8448
s_mul_i32 s22, s22, {4*1056}
s_add_u32 s23, s23, s22
s_add_u32 s23, s23, {WREG}
s_mov_b32 s22, s37
s_add_u32 s24, s35, s34
s_mul_i32 s25, s24, 43
s_lshr_b32 s25, s25, 7
s_mul_i32 s25, s25, 3
s_sub_u32 s24, s24, s25
s_mul_i32 s24, s24, {ROT}
s_lshl_b32 s25, s24, 7
s_add_u32 s20, s20, s25
s_mul_i32 s25, s24, {64*3456}
s_add_u32 s21, s21, s25
s_waitcnt lgkmcnt(0)
s_cmp_eq_u32 s33, 0
s_cselect_b32 s8, s{pAX}, s{pBX}
s_cselect_b32 s9, s{pAX+1}, s{pBX+1}
s_cselect_b32 s12, s{pAW}, s{pBW}
s_cselect_b32 s13, s{pAW+1}, s{pBW+1}
s_mov_b32 s10, {X_BYTES}
s_mov_b32 s11, 0x00020000
s_mov_b32 s14, {W_BYTES}
s_mov_b32 s15, 0x00020000
s_cmp_ge_u32 s{sWAVE}, 4
s_cbranch_scc0 L_p1_compute""")
    wrap = [f"s_add_u32 s21, s21, {64*3456}", "s_add_u32 s20, s20, 128", "s_add_u32 s24, s24, 1", "s_cmp_eq_u32 s24, 9",
            f"s_cselect_b32 s25, {9*128}, 0", f"s_cselect_b32 s26, {9*64*3456}, 0", "s_cselect_b32 s24, 0, s24",
            "s_sub_u32 s20, s20, s25", "s_sub_u32 s21, s21, s26"]
    def w_units(cc):
        st = cc % 3
        U = [[f"s_add_u32 m0, s23, {st*ST1}"]]
        for i in range(4):
            u = [f"buffer_load_dwordx4 v{vWD(i)}, s[12:15], s21 offen lds"]
            u += ["s_add_u32 m0, m0, 1056"] if i < 3 else wrap
            U.append(u)
        return U
    def flat(U):
        for u in U:
            for x in u:
                if x.startswith("buffer_load"): a("s_nop 0")
                a(x)
    XC = o["xcomp"]
    def xsetup():
        a(f"""v_lshrrev_b32 v2, 3, v0
v_and_b32 v5, 7, v0
v_xor_b32 v5, v5, v4
v_mul_u32_u24 v6, 1152, v2
v_lshl_add_u32 v7, v5, 4, v6
v_xor_b32 v8, 64, v7""")
        for i in range(8):
            a(f"v_add_u32 v{vXD(i)}, {9216*i}, v{7 if i % 2 == 0 else 8}")
    if XC:
        for _ in range(9): a("s_barrier")
        a("s_branch L_p1_rb" if o["epi8"] else "s_branch L_p1_done")
    xsetup()
    NL = 8 if WC else 12
    def dma(cc):
        st = cc % 3
        a(f"s_add_u32 m0, s22, {st*ST1}")
        for i in range(8):
            a("s_nop 0")
            a(f"buffer_load_dwordx4 v{vXD(i)}, s[8:11], s20 offen lds")
            if i < 7: a("s_add_u32 m0, m0, 1024")
        if WC:
            for x in wrap: a(x)
        else:
            flat(w_units(cc))
    dma(0); dma(1)
    a(f"s_waitcnt vmcnt({NL})")
    a("s_barrier")
    dma(2)
    for cc in range(8):
        rem = min(8, cc + 2) - (cc + 1)
        a(f"s_waitcnt vmcnt({NL*rem})")
        a("s_barrier")
        if cc + 3 <= 8: dma(cc + 3)
    a("s_branch L_p1_rb" if o["epi8"] else "s_branch L_p1_done")
    a.label("L_p1_compute")
    def xw_units(cc):
        st = cc % 3
        U = [[f"s_add_u32 m0, s22, {st*ST1}"]]
        for i in range(8):
            U.append([f"buffer_load_dwordx4 v{vXD(i)}, s[8:11], s20 offen lds",
                      "s_add_u32 m0, m0, 1024" if i < 7 else f"s_add_u32 m0, s23, {st*ST1}"])
        return U + w_units(cc)[1:]
    if XC:
        xsetup()
        flat(xw_units(0)); flat(xw_units(1))
    elif WC:
        flat(w_units(0)); flat(w_units(1))
    a(f"""v_lshrrev_b32 v5, 1, v3
v_xor_b32 v5, v5, v4
v_lshlrev_b32 v5, 4, v5
v_lshl_add_u32 v5, v3, 7, v5
v_add_u32 v5, s37, v5
v_xor_b32 v6, 64, v5""")
    for st in range(3):
        a(f"v_add_u32 v{vX(st,0)}, {st*ST1}, v5")
        a(f"v_add_u32 v{vX(st,1)}, {st*ST1}, v6")
    a(f"""v_lshrrev_b32 v5, 2, v3
v_and_b32 v6, 1, v4
v_lshl_add_u32 v5, v6, 2, v5
v_mul_u32_u24 v5, 1056, v5
v_lshrrev_b32 v6, 1, v4
v_lshl_add_u32 v5, v6, 9, v5
v_and_b32 v6, 3, v3
v_lshl_add_u32 v5, v6, 3, v5""")
    for st in range(3):
        a(f"v_add_u32 v{vW(st)}, {st*ST1 + WREG}, v5")
    def reads(g):
        cc, ks = g // 2, g % 2
        st, p = cc % 3, g & 1
        L = []
        for c in range(n):
            if c < 4: L.append(f"ds_read_b128 v[{XF(p,c)}:{XF(p,c)+3}], v{vX(st,ks)} offset:{2048*c}")
            for tr in range(2):
                L.append(f"ds_read_b64_tr_b16 v[{WF(p,c)+2*tr}:{WF(p,c)+2*tr+1}], v{vW(st)} offset:{ks*8448 + tr*256 + 32*c}")
        return L
    def mfmas(g):
        p = g & 1
        L = []
        for c in range(n):
            for i in range(4):
                acc = f"v[{ACC(i,c)}:{ACC(i,c)+3}]"
                L.append(f"v_mfma_f32_16x16x32_bf16 {acc}, v[{WF(p,c)}:{WF(p,c)+3}], v[{XF(p,i)}:{XF(p,i)+3}], {acc if g else 0}")
        return L
    if o["pf"]:
        assert not WC and o["rot"] == 0
        a(f"""s_and_b32 s26, s35, 7
s_lshl_b32 s26, s26, 5
s_lshl_b32 s27, s34, 8
s_add_u32 s26, s26, s27
s_mul_i32 s26, s26, 1152
s_add_u32 s26, s26, 384
v_and_b32 v5, 31, v0
v_lshrrev_b32 v6, 5, v0
v_mul_u32_u24 v5, 1152, v5
v_lshl_add_u32 v240, v6, 6, v5
s_and_b32 s27, s34, 3
s_add_u32 s27, s27, 192
s_mul_i32 s27, s27, 3456
s_mul_i32 s28, s35, 216
s_add_u32 s27, s27, s28
v_lshrrev_b32 v5, 2, v0
v_and_b32 v6, 3, v0
v_mul_u32_u24 v5, {4*3456}, v5
v_lshl_add_u32 v241, v6, 6, v5
s_mul_i32 s28, s32, {3*128}
s_add_u32 s26, s26, s28
s_sub_u32 s28, s32, 2
s_mul_i32 s28, s28, {3*64*3456}
s_add_u32 s27, s27, s28
s_cmp_lt_u32 s32, 2
s_cselect_b32 s48, s8, s12
s_cselect_b32 s49, s9, s13
s_cselect_b32 s50, s10, s14
s_mov_b32 s51, 0x00020000
s_cselect_b32 s26, s26, s27
s_mov_b32 s27, {64*3456}
s_cselect_b32 s27, 128, s27
s_cselect_b64 vcc, -1, 0
s_nop 1
v_cndmask_b32 v240, v241, v240, vcc""")
    if o["epipipe"]: p1_epilogue_consts(a)
    NC = 12 if XC else 4
    if WC: a(f"s_waitcnt vmcnt({NC})")
    a("s_barrier")
    stamp(a, o, 1)
    if o["stamp"]: a("s_memtime s[44:45]")
    for x in reads(0): a(x)
    for g in range(18):
        cc, ks = g // 2, g % 2
        if ks == 1 and cc < 8:
            rem = min(8, cc + 2) - (cc + 1)
            a((f"s_waitcnt vmcnt({NC*rem}) lgkmcnt(0)") if WC else "s_waitcnt lgkmcnt(0)")
            a("s_barrier")
        else:
            a("s_waitcnt lgkmcnt(0)")
        units = []
        if XC:
            if g == 0: units = xw_units(2)
            elif ks == 1 and cc + 3 <= 8: units = xw_units(cc + 3)[:7]
            elif ks == 0 and cc >= 1 and cc + 2 <= 8: units = xw_units(cc + 2)[7:]
        elif WC:
            if g == 0: units = w_units(2)
            elif ks == 1 and cc + 3 <= 8: units = w_units(cc + 3)[:3]
            elif ks == 0 and cc >= 1 and cc + 2 <= 8: units = w_units(cc + 2)[3:]
        rd = reads(g + 1) if g + 1 < 18 else []
        M = mfmas(g)
        slots = [[] for _ in M]
        for idx, x in enumerate(rd): slots[min(idx, len(M)-1)].append(x)
        for idx, u in enumerate(units): slots[min(len(M)-1, 2 + (idx*len(M))//len(units))] += u
        if o["pf"] and g == o["pfstep"]:
            for q in range(3):
                slots[3 + 8*q] += [f"buffer_load_dword v{242+q}, v240, s[48:51], s26 offen", "s_add_u32 s26, s26, s27"]
        if g == (16 if WC else 6):
            a("v_mov_b32 v254, 0")
            a(f"global_load_dword v255, v254, s[{pDBG}:{pDBG+1}] sc1")
        for m, sl in zip(M, slots):
            a(m)
            for x in sl: a(x)
    stamp(a, o, 2)
    if o["stamp"]: a("s_memtime s[46:47]\ns_waitcnt lgkmcnt(0)\ns_sub_u32 s59, s46, s44")
    nonce_fetch(a)
    if o["epipipe"]:
        p1_epilogue_pipe(a, o, ACC, P1F)
        a("s_branch L_p1_done")
    if not o["epipipe"]:
        a(f"""s_waitcnt lgkmcnt(0)
s_mul_i32 s39, s32, {64*RS}
v_mul_u32_u24 v5, {RS}, v3
v_lshl_add_u32 v5, v4, 3, v5
v_add_u32 v5, s39, v5
s_mul_i32 s40, s35, 6
s_sub_u32 s41, 32, s40
s_cmp_lt_u32 s40, 32
s_cselect_b32 s41, s41, 0
s_lshr_b32 s41, s41, 1
s_mul_i32 s41, s41, 9
s_mov_b32 s44, {f32bits(QSCALE)}
s_cmp_eq_u32 s41, 0
s_cbranch_scc1 L_p1_noscale""")
        for c in range(n):
            a(f"""v_add_u32 v6, {4*c}, v4
v_cmp_gt_u32 vcc, s41, v6
v_mov_b32 v7, 1.0
v_mov_b32 v8, s44
v_cndmask_b32 v6, v7, v8, vcc""")
            for i in range(4):
                r = ACC(i, c)
                a(f"v_pk_mul_f32 v[{r}:{r+1}], v[{r}:{r+1}], v[6:7] op_sel_hi:[1,0]")
                a(f"v_pk_mul_f32 v[{r+2}:{r+3}], v[{r+2}:{r+3}], v[6:7] op_sel_hi:[1,0]")
        a.label("L_p1_noscale")
        for c in range(n):
            for i in range(4):
                r = ACC(i, c); P = 40 + 2*((4*c + i) % 16)
                a(f"v_cvt_pk_bf16_f32 v{P}, v{r}, v{r+1}")
                a(f"v_cvt_pk_bf16_f32 v{P+1}, v{r+2}, v{r+3}")
                a(f"ds_write_b64 v5, v[{P}:{P+1}] offset:{i*16*RS + 32*c}")
        a("s_waitcnt lgkmcnt(0)")
        trace(a, o, 0, "a")
        a.label("L_p1_rb")
        srd(a, 16, pWS, WS_USED)
        a(f"""s_mul_i32 s39, s32, {64*RS}
s_mul_i32 s40, s35, 6
v_and_b32 v6, 31, v0
v_lshrrev_b32 v7, 5, v0
v_mul_u32_u24 v8, {RS}, v6
v_lshl_add_u32 v8, v7, 4, v8
v_add_u32 v8, s39, v8
v_lshlrev_b32 v9, 4, v0
v_mul_u32_u24 v10, {RS}, v0
v_add_u32 v10, s39, v10
v_lshlrev_b32 v11, 3, v0
v_lshrrev_b32 v12, 1, v4
v_lshrrev_b32 v13, 2, v3
v_lshl_add_u32 v13, v12, 3, v13
v_mul_u32_u24 v13, {RS}, v13
v_add_u32 v13, s39, v13
v_and_b32 v14, 1, v4
v_and_b32 v15, 3, v3
v_lshlrev_b32 v15, 3, v15
v_mul_u32_u24 v12, 288, v12
s_lshr_b32 s42, s38, 5
s_lshl_b32 s42, s42, 10
s_lshl_b32 s43, s38, 3
s_lshr_b32 s45, s38, 4
s_mul_i32 s45, s45, 576""")
        E8 = o["epi8"]
        if E8: a(f"s_barrier\ns_cmp_ge_u32 s{sWAVE}, 4\ns_cbranch_scc1 L_p1_rb1")
        assert QM_OFF == 0 and KM_OFF == (1 << 22) and KR_OFF - QR_OFF == (1 << 19)
        NH = 3 if E8 else 6
        sKf = (lambda k: 48 + k) if E8 else (lambda k: 20 + k)
        sMf = (lambda k: 52 + k) if E8 else (lambda k: 26 + k)
        sRf = (lambda k: 55 + k) if E8 else (lambda k: 48 + k)
        for hg in range(2 if E8 else 1):
            if hg: a.label("L_p1_rb1")
            for k in range(NH):
                hl = NH*hg + k
                pl, par = hl // 2, hl % 2
                lab = f"L_p1_h{hl}"
                R = 128 + 16*k
                sK, sM, sR = sKf(k), sMf(k), sRf(k)
                a(f"""s_add_u32 s46, s40, {hl}
s_lshr_b32 s{sK}, s46, 5
s_and_b32 s46, s46, 31
s_lshl_b32 s47, s33, 5
s_add_u32 s47, s47, s46
s_cmp_eq_u32 s{sK}, 2
s_cbranch_scc1 {lab}_v""")
                off = 72*pl + 40*par
                a(f"ds_read2_b64 v[{R}:{R+3}], v8 offset0:{off//8} offset1:{off//8+1}")
                a(f"v_add_u32 v{20+2*k}, {32*RS + off}, v8")
                a(f"ds_read2_b64 v[{R+4}:{R+7}], v{20+2*k} offset0:0 offset1:1")
                if par == 0: a(f"ds_read_b64 v[{R+8}:{R+9}], v10 offset:{72*pl + 32}")
                a(f"""s_lshl_b32 s{sM}, s47, 16
s_lshl_b32 s46, s{sK}, 22
s_add_u32 s{sM}, s{sM}, s46
s_add_u32 s{sM}, s{sM}, s42""")
                if par == 0:
                    a(f"""s_lshr_b32 s{sR}, s47, 1
s_lshl_b32 s{sR}, s{sR}, 14
s_add_u32 s{sR}, s{sR}, s43
s_lshl_b32 s46, s{sK}, 19
s_add_u32 s{sR}, s{sR}, s46
s_add_u32 s{sR}, s{sR}, {QR_OFF}""")
                a(f"s_branch {lab}_e")
                a.label(f"{lab}_v")
                a(f"""v_add_u32 v{20+2*k}, {72*pl + 40*par}, v15
v_mov_b32 v17, {72*pl + 32}
v_cmp_eq_u32 vcc, 0, v14
s_mul_i32 s{sM}, s47, {VT_STRIDE}
s_add_u32 s{sM}, s{sM}, s45
v_cndmask_b32 v{20+2*k}, v17, v{20+2*k}, vcc
v_add_u32 v{20+2*k}, v{20+2*k}, v13
s_add_u32 s{sM}, s{sM}, {VT_OFF}""")
                for grp in range(4):
                    for tr in range(2):
                        a(f"ds_read_b64_tr_b16 v[{R+4*grp+2*tr}:{R+4*grp+2*tr+1}], v{20+2*k} offset:{(16*grp + 4*tr)*RS}")
                a(f"""v_add_u32 v17, {16 - 2*par}, v3
v_cndmask_b32 v17, v17, v3, vcc
v_lshl_add_u32 v{21+2*k}, v17, 4, v12""")
                a.label(f"{lab}_e")
            a("s_waitcnt lgkmcnt(0)")
            trace(a, o, 1, f"b{hg}")
            for k in range(NH):
                hl = NH*hg + k
                pl, par = hl // 2, hl % 2
                lab = f"L_p1_s{hl}"
                R = 128 + 16*k
                sK, sM, sR = sKf(k), sMf(k), sRf(k)
                a(f"s_cmp_eq_u32 s{sK}, 2\ns_cbranch_scc1 {lab}_v")
                a(f"buffer_store_dwordx4 v[{R}:{R+3}], v9, s[16:19], s{sM} offen{P1F}")
                a(f"buffer_store_dwordx4 v[{R+4}:{R+7}], v9, s[16:19], s{sM} offen offset:1024{P1F}")
                if par == 0: a(f"buffer_store_dwordx2 v[{R+8}:{R+9}], v11, s[16:19], s{sR} offen{P1F}")
                a(f"s_branch {lab}_e")
                a.label(f"{lab}_v")
                m16 = 0xffff | ((0x3 << (2*par)) << 16)
                a(f"s_mov_b32 exec_lo, {m16}\ns_mov_b32 exec_hi, {m16}")
                for grp in range(4):
                    a(f"buffer_store_dwordx4 v[{R+4*grp}:{R+4*grp+3}], v{21+2*k}, s[16:19], s{sM} offen offset:{576*grp}{P1F}")
                a("s_mov_b64 exec, -1")
                a.label(f"{lab}_e")
            trace(a, o, 2, f"c{hg}")
            if hg == 0 and E8: a("s_branch L_p1_done")
    a.label("L_p1_done")
    a("s_lshl_b32 s39, s33, 4\ns_add_u32 s39, s39, s35\ns_lshl_b32 s39, s39, 3\ns_add_u32 s39, s39, s34")
    signal(a, 39, "p1")

def phase2(a, o):
    NKT, NQ = 64, 2
    QM = lambda j: 16 + 4*j
    QR = 24
    KMn = lambda s: 28 + 6*s
    KRs = lambda s: 32 + 6*s
    V0 = lambda s: 40 + 8*s
    V1 = lambda s: 44 + 8*s
    S = lambda kt, j: 56 + 32*(kt & 1) + 16*j
    O = lambda j: 120 + 16*j
    vL16, vKR, vVa, vVb, vIdx = 2, 3, 4, 5, 6
    T = 152
    name = "p2"
    a(f"""s_and_b32 s18, s2, 7
s_lshr_b32 s19, s2, 3
s_lshr_b32 s12, s19, 2
s_lshl_b32 s18, s18, 3
s_add_u32 s12, s12, s18
s_and_b32 s13, s19, 3
s_mov_b32 s14, s{sWAVE}""")
    a(f"""s_and_b32 s18, s12, 31
s_lshr_b32 s19, s12, 5
s_lshl_b32 s19, s19, 4
v_lshrrev_b32 v7, 3, v0
v_lshlrev_b32 v7, 5, v7
v_add_u32 v7, s18, v7
v_mul_u32_u24 v7, 171, v7
v_lshrrev_b32 v7, 10, v7
v_add_u32 v7, s19, v7
v_and_b32 v8, 7, v0
v_lshl_add_u32 v7, v7, 3, v8
v_lshlrev_b32 v7, 7, v7
v_add_u32 v7, {FLAG_OFF}, v7""")
    poll(a, 7, 0xffffff, "p1")
    stamp(a, o, 4)
    srd(a, 8, pWS, WS_USED)
    a(f"""v_lshlrev_b32 v{vL16}, 4, v0
v_and_b32 v8, 31, v0
v_lshlrev_b32 v9, 3, v8
s_mov_b32 s16, 0x0003ffff
s_mov_b32 s17, 0x0003ffff
s_lshl_b32 s30, s14, 10
s_lshl_b32 s25, s12, 16
s_add_u32 s35, s25, {KM_OFF}
s_add_u32 s25, s35, s30
s_mul_i32 s28, s12, {VT_STRIDE}
s_add_u32 s36, s28, {VT_OFF}
s_add_u32 s28, s36, s30
s_lshr_b32 s38, s12, 1
s_lshl_b32 s38, s38, 14
s_and_b32 s39, s12, 1
s_lshl_b32 s39, s39, 2
s_add_u32 s37, s38, {KR_OFF}
s_add_u32 s33, s37, s30
s_add_u32 s29, s30, {LDS_VT}
s_add_u32 s34, s30, {LDS_KR}
s_mov_b32 s26, s30
s_lshl_b32 s18, s13, 4
s_lshl_b32 s19, s14, 1
s_add_u32 s24, s18, s19""")
    def dmaK():
        a("s_mov_b32 m0, s26")
        a("s_add_u32 s26, s26, 8192")
        a(f"buffer_load_dwordx4 v{vL16}, s[8:11], s25 offen sc1 lds")
        a("s_add_u32 s25, s25, 8192")
    def dmaV():
        a("s_mov_b32 m0, s29")
        a("s_add_u32 s29, s29, 8192")
        a(f"buffer_load_dwordx4 v{vL16}, s[8:11], s28 offen sc1 lds")
        a("s_add_u32 s28, s28, 8192")
    def dmaKR1():
        a("s_add_u32 m0, s34, 8192")
        a("s_add_u32 s33, s33, 8192")
        a(f"buffer_load_dwordx4 v{vL16}, s[8:11], s33 offen sc1 lds")
    a("s_mov_b32 m0, s34")
    a("s_lshl_b32 s18, s12, 16")
    a(f"buffer_load_dwordx4 v{vL16}, s[8:11], s33 offen sc1 lds")
    dmaK(); dmaV(); dmaV()
    a(f"""s_lshl_b32 s19, s24, 10
s_add_u32 s18, s18, s19""")
    for j in range(NQ):
        a(f"buffer_load_dwordx4 v[{QM(j)}:{QM(j)+3}], v{vL16}, s[8:11], s18 offen offset:{1024*j} sc1")
    a(f"""s_lshl_b32 s20, s24, 8
s_add_u32 s19, s38, s20
s_add_u32 s19, s19, s39
s_add_u32 s19, s19, {QR_OFF}
v_lshlrev_b32 v10, 3, v0
buffer_load_dword v{QR}, v10, s[8:11], s19 offen sc1""")
    if o["wopf"]:
        a(f"""s_cmp_lt_u32 s12, 32
s_cselect_b32 s20, s{pAWO}, s{pBWO}
s_cselect_b32 s21, s{pAWO+1}, s{pBWO+1}
s_mov_b32 s22, {WO_BYTES}
s_mov_b32 s23, 0x00020000
s_lshr_b32 s18, s2, 3
s_lshl_b32 s18, s18, 3
s_add_u32 s18, s18, s14
s_lshl_b32 s27, s18, 12
v_lshlrev_b32 v198, 6, v0""")
    late = [dmaK, dmaV, dmaKR1, dmaK, dmaV, dmaK, dmaV] + [dmaK, dmaV]*4
    sched = {0: late[0:3], 1: late[3:5], 2: late[5:7], 3: late[7:9], 4: late[9:11], 5: late[11:13], 6: late[13:15]}
    a(f"""v_lshrrev_b32 v10, 5, v0
v_add_u32 v{vKR}, {LDS_KR}, v9
v_add_u32 v{vKR}, s39, v{vKR}
v_mul_u32_u24 v11, 288, v10
v_lshlrev_b32 v12, 4, v8
v_add_u32 v27, v11, v12
v_add_u32 v{vVa}, {LDS_VT}, v27
v_add_u32 v{vVb}, {LDS_VT + 32*1152}, v27
v_mov_b32 v{vIdx}, 0xdddd
v_and_b32 v13, 27, v8
v_cmp_eq_u32 vcc, 18, v13
v_mov_b32 v14, 0x3f803f80
v_mov_b32 v15, 0
v_cndmask_b32 v13, v15, v14, vcc""")
    for s in range(2):
        a(f"v_mov_b32 v{KRs(s)+1}, 0x3f803f80")
        for i in range(4):
            a(f"v_mov_b32 v{V0(s)+i}, v13")
            a(f"v_mov_b32 v{V1(s)+i}, v13")
    a(f"v_mov_b32 v{QR+1}, 0")
    for j in range(NQ):
        for i in range(16): a(f"v_mov_b32 v{O(j)+i}, 0")
    a("s_waitcnt vmcnt(0)")
    a("s_barrier")
    stamp(a, o, 5)
    if o["stamp"]: a("s_memtime s[52:53]")
    def rdK(kt):
        s = kt & 1
        a(f"ds_read_b128 v[{KMn(s)}:{KMn(s)+3}], v{vL16} offset:{kt*1024}")
        a(f"ds_read_b32 v{KRs(s)}, v{vKR} offset:{kt*256}")
    def rdV(kt):
        s = kt & 1
        base, off = (vVa, kt*1152) if kt < 32 else (vVb, (kt-32)*1152)
        a("s_mov_b64 exec, s[16:17]")
        a(f"ds_read_b128 v[{V0(s)}:{V0(s)+3}], v{base} offset:{off}")
        a(f"ds_read_b128 v[{V1(s)}:{V1(s)+3}], v{base} offset:{off+576}")
        a("s_mov_b64 exec, -1")
    def qk_res(kt, ks=None):
        s = (kt & 1) if ks is None else ks; sb = S(kt, 0)
        a(f"v_mfma_f32_32x32x4_2b_bf16 v[{sb}:{sb+31}], v[{KRs(s)}:{KRs(s)+1}], v[{QR}:{QR+1}], 0")
    def qk_main(kt, j, ks=None):
        s = (kt & 1) if ks is None else ks; sb = S(kt, j)
        a(f"v_mfma_f32_32x32x16_bf16 v[{sb}:{sb+15}], v[{KMn(s)}:{KMn(s)+3}], v[{QM(j)}:{QM(j)+3}], v[{sb}:{sb+15}]")
    def pv(kt, j, half, vs=None):
        s = (kt & 1) if vs is None else vs
        v = V0(s) if half == 0 else V1(s)
        a(f"v_smfmac_f32_32x32x32_bf16 v[{O(j)}:{O(j)+15}], v[{v}:{v+3}], v[{S(kt,j)+8*half}:{S(kt,j)+8*half+7}], v{vIdx}")
    def ex(kt, j, i):
        r = S(kt, j) + i
        a(f"v_exp_f32 v{r}, v{r}")
    def loop(copy, prio):
        rdK(0); rdV(0)
        a("s_waitcnt lgkmcnt(0)")
        qk_res(0)
        rdK(1)
        a("s_nop 15")
        a("s_nop 1")
        qk_main(0, 0); qk_main(0, 1)
        a("s_nop 7")
        a("s_nop 3")
        def tile(kt, rel=None):
            if rel is None:
                if kt == o["bar1"] or (kt == o["bar2"] and not ROLL):
                    a(f"s_waitcnt vmcnt({4 if kt == o['bar1'] else 0})")
                    a("s_barrier")
                if kt in sched:
                    for f in sched[kt]: f()
                if kt == 9 and o["wopf"]:
                    a("buffer_load_dword v199, v198, s[20:23], s27 offen")
            p = prio(kt)
            a(f"s_setprio {p}" if p is not None else "s_nop 0")
            a("s_waitcnt lgkmcnt(0)")
            if kt > 0: pv(kt-1, 1, 1)
            if kt + 1 < NKT:
                if rel is None: rdV(kt+1)
                else:
                    s_ = (kt+1) & 1; off = (kt+1-rel)*1152
                    a("s_mov_b64 exec, s[16:17]")
                    a(f"ds_read_b128 v[{V0(s_)}:{V0(s_)+3}], v206 offset:{off}")
                    a(f"ds_read_b128 v[{V1(s_)}:{V1(s_)+3}], v206 offset:{off+576}")
                    a("s_mov_b64 exec, -1")
            for i in range(0, 4): ex(kt, 0, i)
            if kt + 1 < NKT: qk_res(kt+1)
            for i in range(4, 12): ex(kt, 0, i)
            pv(kt, 0, 0)
            for i in range(12, 16): ex(kt, 0, i)
            if kt + 2 < NKT:
                if rel is None: rdK(kt+2)
                else:
                    s_ = kt & 1
                    a(f"ds_read_b128 v[{KMn(s_)}:{KMn(s_)+3}], v204 offset:{(kt+2-rel)*1024}")
                    a(f"ds_read_b32 v{KRs(s_)}, v205 offset:{(kt+2-rel)*256}")
            else: a("s_nop 1")
            pv(kt, 0, 1)
            for i in range(4): ex(kt, 1, i)
            if kt + 1 < NKT: qk_main(kt+1, 0)
            for i in range(4, 8): ex(kt, 1, i)
            if kt + 1 < NKT: qk_main(kt+1, 1)
            for i in range(8, 12): ex(kt, 1, i)
            pv(kt, 1, 0)
            for i in range(12, 16): ex(kt, 1, i)
        ROLL = o["roll"]
        if not ROLL:
            for kt in range(NKT): tile(kt)
        else:
            G = len(o["pat"]); L0 = 10; NIT = (NKT - 2 - L0) // G
            assert G % 2 == 0
            for kt in range(L0): tile(kt)
            a(f"""v_add_u32 v204, {L0*1024}, v{vL16}
v_add_u32 v205, {L0*256}, v{vKR}
v_add_u32 v206, {L0*1152}, v{vVa}
s_mov_b32 s44, 0""")
            itb = -(-(30 - L0 - G + 1) // G)
            itb = (28 - L0) // G
            a.label(f"L_p2_roll{copy}")
            a(f"""s_cmp_lg_u32 s44, {itb}
s_cbranch_scc1 L_p2_rnb{copy}
s_waitcnt vmcnt(0)
s_barrier""")
            a.label(f"L_p2_rnb{copy}")
            for u in range(G): tile(L0 + u, rel=L0)
            a(f"""v_add_u32 v204, {G*1024}, v204
v_add_u32 v205, {G*256}, v205
v_add_u32 v206, {G*1152}, v206
s_add_u32 s44, s44, 1
s_cmp_lt_u32 s44, {NIT}
s_cbranch_scc1 L_p2_roll{copy}""")
            for kt in range(L0 + NIT*G, NKT): tile(kt)
        a("s_nop 1")
        pv(NKT-1, 1, 1)
        a("s_setprio 0")
    if o["dual"]:
        a(f"s_cmp_ge_u32 s14, 4\ns_cbranch_scc1 L_p2_loopB")
        loop(0, lambda kt: 1 if kt == 0 else None)
        a("s_branch L_p2_loopdone")
        a.label("L_p2_loopB")
        pat = o["pat"]
        def pr(kt):
            cur = pat[kt % len(pat)]
            prev = pat[(kt-1) % len(pat)] if kt else None
            return cur if cur != prev else None
        loop(1, pr)
        a.label("L_p2_loopdone")
    else:
        loop(0, lambda kt: None)
    stamp(a, o, 6)
    if o["stamp"]:
        a(f"""s_memtime s[54:55]
s_waitcnt lgkmcnt(0)
s_cmp_lg_u32 s14, {99 if o.get("p1trace") else 4}
s_cbranch_scc1 L_p2_nw4
s_sub_u32 s56, s54, s52
s_sub_u32 s57, s94, s92
s_lshl_b32 s40, s2, 6
s_add_u32 s40, s40, {WS_USED}
v_mov_b32 v200, s40
v_mov_b32 v202, s56
v_mov_b32 v203, s57
s_mov_b64 exec, 1
global_store_dwordx2 v200, v[202:203], s[{pWS}:{pWS+1}] offset:48
s_mov_b64 exec, -1""")
        a.label("L_p2_nw4")
    a("s_nop 7")
    a("s_nop 7")
    a("s_mov_b64 s[20:21], 0")
    a("s_mov_b32 s22, 0x53800000")
    a("s_mov_b32 s23, 0x2b800000")
    for j in range(NQ):
        a(f"v_mul_f32 v{T}, 0, v{O(j)}")
        for i in range(1, 10): a(f"v_fma_f32 v{T}, v{O(j)+i}, 0, v{T}")
        a(f"v_add_f32 v{T}, v{T}, v{O(j)+10}")
        a(f"v_cmp_ngt_f32 vcc, s22, v{T}")
        a("s_or_b64 s[20:21], s[20:21], vcc")
        a(f"v_cmp_nlt_f32 vcc, s23, v{T}")
        a("s_or_b64 s[20:21], s[20:21], vcc")
    if o.get("halflds"): a("s_mov_b64 s[20:21], 0")
    a(f"""s_cmp_eq_u64 s[20:21], 0
s_cbranch_scc0 L_p2_fallback""")
    a.label("L_p2_store")
    a(f"""s_lshr_b32 s18, s12, 5
s_and_b32 s19, s12, 31
s_lshl_b32 s20, s18, 21
s_lshl_b32 s21, s24, 15
s_add_u32 s20, s20, s21
s_lshl_b32 s21, s19, 10
s_add_u32 s20, s20, s21
s_add_u32 s20, s20, {OM_OFF}
s_lshl_b32 s22, s18, 18
s_lshl_b32 s21, s24, 12
s_add_u32 s22, s22, s21
s_lshr_b32 s21, s19, 2
s_lshl_b32 s21, s21, 9
s_add_u32 s22, s22, s21
s_and_b32 s21, s19, 3
s_lshl_b32 s21, s21, 2
s_add_u32 s22, s22, s21
s_add_u32 s22, s22, {OR_OFF}
v_lshlrev_b32 v9, 4, v8""")
    for j in range(NQ):
        a(f"v_rcp_f32 v{T}, v{O(j)+10}")
        a("s_nop 0")
        for i in range(10): a(f"v_mul_f32 v{O(j)+i}, v{O(j)+i}, v{T}")
        P = T + 2 + 6*j
        for i in range(4): a(f"v_cvt_pk_bf16_f32 v{P+i}, v{O(j)+2*i}, v{O(j)+2*i+1}")
        a(f"v_cvt_pk_bf16_f32 v{P+4}, v{O(j)+8}, v{O(j)+9}")
        a(f"s_add_u32 s21, s20, {32768*j}")
        a(f"buffer_store_dwordx4 v[{P}:{P+3}], v{vL16}, s[8:11], s21 offen sc1")
        a(f"s_add_u32 s23, s22, {4096*j}")
        a("s_mov_b32 exec_hi, 0")
        a(f"buffer_store_dword v{P+4}, v9, s[8:11], s23 offen sc1")
        a("s_mov_b32 exec_hi, -1")
    a("s_lshl_b32 s39, s18, 2\ns_add_u32 s39, s39, s13\ns_lshl_b32 s39, s39, 5\ns_add_u32 s39, s39, s19\ns_add_u32 s39, s39, 256")
    signal(a, 39, "p2")
    a("s_branch L_p2_end")
    a.label("L_p2_fallback")
    MX = T
    a(f"""v_mov_b32 v{MX}, 0xff800000
v_mov_b32 v{MX+1}, 0xff800000
v_mov_b32 v{QR+1}, 0
v_mov_b32 v{MX+4}, v{vL16}
v_mov_b32 v{MX+5}, v{vKR}
s_mov_b32 s18, {NKT}""")
    a.label("L_p2_fb1")
    a(f"""ds_read_b128 v[{KMn(0)}:{KMn(0)+3}], v{MX+4}
ds_read_b32 v{KRs(0)}, v{MX+5}
v_add_u32 v{MX+4}, 1024, v{MX+4}
v_add_u32 v{MX+5}, 256, v{MX+5}
s_waitcnt lgkmcnt(0)""")
    qk_res(0, 0)
    a("s_nop 15\ns_nop 3")
    qk_main(0, 0, 0); qk_main(0, 1, 0)
    a("s_nop 15")
    for j in range(NQ):
        for i in range(8): a(f"v_max3_f32 v{MX+j}, v{MX+j}, v{S(0,j)+2*i}, v{S(0,j)+2*i+1}")
    a(f"""s_sub_u32 s18, s18, 1
s_cmp_lg_u32 s18, 0
s_cbranch_scc1 L_p2_fb1""")
    x, y, hi, mid = MX+6, MX+7, MX+8, MX+9
    for j in range(NQ):
        a(f"""v_mov_b32 v{x}, v{MX+j}
v_mov_b32 v{y}, v{MX+j}
s_nop 1
v_permlane32_swap_b32 v{x}, v{y}
s_nop 1
v_max_f32 v{MX+j}, v{x}, v{y}""")
    a(f"""v_cmp_gt_u32 vcc, 32, v0
s_nop 1
v_cndmask_b32 v{x}, v{MX+1}, v{MX}, vcc
v_and_b32 v{hi}, 0xffff0000, v{x}
v_sub_f32 v{x}, v{x}, v{hi}
v_and_b32 v{mid}, 0xffff0000, v{x}
v_xor_b32 v{hi}, 0x80000000, v{hi}
v_xor_b32 v{mid}, 0x80000000, v{mid}
v_lshrrev_b32 v{hi}, 16, v{hi}
v_or_b32 v{QR+1}, v{hi}, v{mid}""")
    for j in range(NQ):
        for i in range(16): a(f"v_mov_b32 v{O(j)+i}, 0")
    a(f"""v_mov_b32 v{MX+4}, v{vL16}
v_mov_b32 v{MX+5}, v{vKR}
v_mov_b32 v{MX+6}, v{vVa}
s_mov_b32 s18, {NKT}""")
    a.label("L_p2_fb2")
    a(f"""ds_read_b128 v[{KMn(0)}:{KMn(0)+3}], v{MX+4}
ds_read_b32 v{KRs(0)}, v{MX+5}
s_mov_b64 exec, s[16:17]
ds_read_b128 v[{V0(0)}:{V0(0)+3}], v{MX+6}
ds_read_b128 v[{V1(0)}:{V1(0)+3}], v{MX+6} offset:576
s_mov_b64 exec, -1
v_add_u32 v{MX+4}, 1024, v{MX+4}
v_add_u32 v{MX+5}, 256, v{MX+5}
v_add_u32 v{MX+6}, 1152, v{MX+6}
s_waitcnt lgkmcnt(0)""")
    qk_res(0, 0)
    a("s_nop 15\ns_nop 3")
    qk_main(0, 0, 0); qk_main(0, 1, 0)
    a("s_nop 15")
    for j in range(NQ):
        for i in range(16): ex(0, j, i)
    a("s_nop 1")
    for j in range(NQ):
        pv(0, j, 0, 0); pv(0, j, 1, 0)
    a(f"""s_sub_u32 s18, s18, 1
s_cmp_lg_u32 s18, 0
s_cbranch_scc1 L_p2_fb2
s_nop 7
s_nop 7
s_branch L_p2_store""")
    a.label("L_p2_end")

def phase3(a, o):
    OF = lambda ks: 64 + 4*ks
    WF = lambda p, c: 144 + 24*p + 4*c
    ACC = lambda c: 16 + 4*c
    vL, vWa, vWb, vWr, vWD = 1, 2, 3, 4, 5
    D = o["p3depth"]
    a(f"""s_cmp_ge_u32 s2, 192
s_cbranch_scc1 L_end
s_and_b32 s30, s2, 7
s_lshr_b32 s31, s2, 3
s_mov_b32 s32, s{sWAVE}
s_lshr_b32 s33, s30, 2
s_and_b32 s34, s30, 3
s_lshl_b32 s34, s34, 2
s_and_b32 s35, s31, 3
s_add_u32 s34, s34, s35
s_lshr_b32 s35, s31, 2
s_lshl_b32 s36, s34, 2
s_lshr_b32 s37, s32, 1
s_add_u32 s36, s36, s37""")
    a(f"""v_mul_u32_u24 v9, 37, v0
v_lshrrev_b32 v9, 9, v9
v_mul_u32_u24 v10, 14, v9
v_sub_u32 v10, v0, v10
v_mul_u32_u24 v9, 1152, v9
v_lshl_add_u32 v{vWD}, v10, 4, v9
v_mov_b32 v11, 0x40000000
v_cmp_gt_u32 vcc, 12, v10
s_cmp_eq_u32 s33, 0
s_cselect_b32 s8, s{pAWO}, s{pBWO}
v_cndmask_b32 v{vWD}, v11, v{vWD}, vcc
s_cselect_b32 s9, s{pAWO+1}, s{pBWO+1}
s_mov_b32 s10, {WO_BYTES}
s_mov_b32 s11, 0x00020000
s_mul_i32 s22, s32, {4*1152}
s_mul_i32 s23, s35, 192
s_add_u32 s22, s22, s23
s_mul_i32 s23, s32, {4*WO_RS}
s_mov_b32 exec_hi, 0x00ffffff""")
    for r in range(18):
        a("s_mov_b32 m0, s23")
        a(f"s_add_u32 s23, s23, {32*WO_RS}")
        a(f"buffer_load_dwordx4 v{vWD}, s[8:11], s22 offen lds")
        a(f"s_add_u32 s22, s22, {32*1152}")
    a("s_mov_b32 exec_hi, -1")
    a(f"""v_and_b32 v7, 15, v0
v_lshrrev_b32 v8, 4, v0
v_lshlrev_b32 v9, 9, v8
v_lshl_add_u32 v{vL}, v7, 4, v9
s_and_b32 s37, s32, 1
s_lshl_b32 s37, s37, 8
v_add_u32 v{vL}, s37, v{vL}
v_lshrrev_b32 v9, 1, v8
v_mul_u32_u24 v9, 20, v9
v_and_b32 v10, 1, v8
v_lshl_add_u32 v9, v10, 2, v9
v_lshrrev_b32 v10, 2, v7
v_add_u32 v9, v9, v10
v_mul_u32_u24 v9, {WO_RS}, v9
v_and_b32 v11, 3, v7
v_lshl_add_u32 v{vWa}, v11, 3, v9
v_add_u32 v{vWb}, {7*36*WO_RS}, v{vWa}
v_lshlrev_b32 v9, 2, v8
v_lshrrev_b32 v12, 1, v10
v_add_u32 v9, v9, v12
v_mul_u32_u24 v9, 18, v9
v_and_b32 v13, 1, v10
v_add_u32 v9, v9, v13
v_xor_b32 v12, 1, v12
v_lshl_add_u32 v9, v12, 4, v9
v_mul_u32_u24 v9, {WO_RS}, v9
v_lshl_add_u32 v{vWr}, v11, 3, v9
v_add_u32 v14, {288*WO_RS}, v{vWr}
v_add_u32 v15, {14*36*WO_RS}, v{vWa}
s_lshr_b32 s37, s34, 2
s_lshl_b32 s38, s33, 2
s_add_u32 s37, s37, s38
s_lshl_b32 s37, s37, 5
s_add_u32 s37, s37, 256
v_add_u32 v6, s37, v0
v_lshlrev_b32 v6, 7, v6
v_add_u32 v6, {FLAG_OFF}, v6""")
    srd(a, 16, pWS, WS_USED)
    srd(a, 12, pOUT, OUT_BYTES)
    a(f"""s_lshl_b32 s20, s33, 21
s_lshl_b32 s21, s36, 15
s_add_u32 s20, s20, s21
s_add_u32 s20, s20, {OM_OFF}
s_lshl_b32 s21, s33, 18
s_lshl_b32 s22, s36, 12
s_add_u32 s21, s21, s22
s_add_u32 s21, s21, {OR_OFF}
s_waitcnt vmcnt(0)""")
    poll(a, 6, -1, "p2")
    stamp(a, o, 8)
    def oload(ks):
        if ks < 16:
            L = [f"buffer_load_dwordx4 v[{OF(ks)}:{OF(ks)+3}], v{vL}, s[16:19], s20 offen offset:{(ks%2)*2048} sc1"]
            if ks % 2 == 1: L.append("s_add_u32 s20, s20, 4096")
            return L
        return [f"buffer_load_dwordx4 v[{OF(ks)}:{OF(ks)+3}], v{vL}, s[16:19], s21 offen offset:{(ks-16)*2048} sc1"]
    def reads(ks, p):
        L = []
        for c in range(6):
            for t in range(2):
                if ks < 16:
                    base, k0 = (vWa, ks) if ks < 7 else ((vWb, ks - 7) if ks < 14 else (15, ks - 14))
                    off = (36*k0 + 8*t)*WO_RS + 32*c
                else:
                    base = vWr if ks == 16 else 14
                    off = 36*t*WO_RS + 32*c
                L.append(f"ds_read_b64_tr_b16 v[{WF(p,c)+2*t}:{WF(p,c)+2*t+1}], v{base} offset:{off}")
        return L
    def mfmas(ks):
        p = ks & 1
        return [f"v_mfma_f32_16x16x32_bf16 v[{ACC(c)}:{ACC(c)+3}], v[{WF(p,c)}:{WF(p,c)+3}], v[{OF(ks)}:{OF(ks)+3}], " + (f"v[{ACC(c)}:{ACC(c)+3}]" if ks else "0")
                for c in range(6)]
    for ks in range(D):
        for x in oload(ks): a(x)
    for x in reads(0, 0): a(x)
    for ks in range(18):
        issued = min(17, ks + D - 1)
        a(f"s_waitcnt vmcnt({issued - ks}) lgkmcnt(0)")
        rd = reads(ks+1, (ks+1) & 1) if ks + 1 < 18 else []
        M = mfmas(ks)
        if ks + D < 18:
            for x in oload(ks + D): a(x)
        for idx, m in enumerate(M):
            a(m)
            for x in rd[2*idx:2*idx+2]: a(x)
    stamp(a, o, 9)
    a(f"""s_mul_i32 s23, s32, {16*208}
s_add_u32 s23, s23, {WO_IMG}
v_mul_u32_u24 v9, 208, v7
v_lshl_add_u32 v9, v8, 3, v9
v_add_u32 v9, s23, v9
s_nop 3""")
    for c in range(6):
        r = ACC(c); P = 64 + 2*c
        a(f"v_cvt_pk_bf16_f32 v{P}, v{r}, v{r+1}")
        a(f"v_cvt_pk_bf16_f32 v{P+1}, v{r+2}, v{r+3}")
        a(f"ds_write_b64 v9, v[{P}:{P+1}] offset:{32*c}")
    a(f"""s_lshl_b32 s20, s36, 5
s_and_b32 s21, s32, 1
s_lshl_b32 s21, s21, 4
s_add_u32 s20, s20, s21
s_mul_i32 s20, s20, 2304
s_mul_i32 s21, s33, 1152
s_add_u32 s20, s20, s21
s_mul_i32 s21, s35, 192
s_add_u32 s20, s20, s21
s_mov_b32 s22, 5462""")
    for k in range(3):
        a(f"""v_add_u32 v10, {64*k}, v0
v_mul_u32_u24 v11, s22, v10
v_lshrrev_b32 v11, 16, v11
v_mul_u32_u24 v12, 12, v11
v_sub_u32 v12, v10, v12
v_mul_u32_u24 v13, 208, v11
v_lshl_add_u32 v13, v12, 4, v13
v_add_u32 v{100+k}, s23, v13
v_mul_u32_u24 v13, 2304, v11
v_lshl_add_u32 v{110+k}, v12, 4, v13""")
    a("s_waitcnt lgkmcnt(0)")
    for k in range(3): a(f"ds_read_b128 v[{120+4*k}:{123+4*k}], v{100+k}")
    for k in range(3):
        a(f"s_waitcnt lgkmcnt({2-k})")
        a(f"buffer_store_dwordx4 v[{120+4*k}:{123+4*k}], v{110+k}, s[12:15], s20 offen{o['outflag']}")

def gen(opts=None):
    o = dict(stamp=False, bar1=5, bar2=26, rot=3, dual=True, pat=[2,2,2,2,2,2,0], wopf=True, wcomp=False, xcomp=False, pf=False, pfstep=0, p3depth=8, outflag='', midnop=True, p1f=' sc1', epi8=False, epipipe=True, roll=False)
    if opts: o.update(opts)
    a = A()
    a(f".globl {NAME}\n.p2align 8\n.type {NAME},@function")
    a.label(NAME)
    a(f"""s_cmp_ge_u32 s2, 256
s_cbranch_scc1 L_exit
s_load_dwordx16 s[{sP}:{sP+15}], s[0:1], 0
s_load_dwordx2 s[{pWS}:{pWS+1}], s[0:1], 64
v_lshrrev_b32 v1, 6, v0
v_and_b32 v0, 63, v0
s_nop 0
v_readfirstlane_b32 s{sWAVE}, v1""")
    stamp(a, o, 0)
    a("s_nop 3")
    nonce_publish(a)
    phase1(a, o)
    stamp(a, o, 3)
    phase2(a, o)
    stamp(a, o, 7)
    phase3(a, o)
    a.label("L_end")
    if o["stamp"]:
        a(f"""s_cmp_lg_u32 s{sWAVE}, 0
s_cbranch_scc1 L_exit
s_memrealtime s[42:43]
s_waitcnt lgkmcnt(0)
s_lshl_b32 s40, s2, 6
s_add_u32 s40, s40, {WS_USED}
v_mov_b32 v2, s40
s_mov_b64 exec, 1""")
        for i in range(11):
            a(f"v_mov_b32 v3, s{82+2*i if i < 10 else 42}")
            a(f"global_store_dword v2, v3, s[{pWS}:{pWS+1}] offset:{4*i}")
        a("s_sub_u32 s54, s54, s52\nv_mov_b32 v3, s54")
        a(f"global_store_dword v2, v3, s[{pWS}:{pWS+1}] offset:44")
        if not o.get("p1trace"):
            a("v_mov_b32 v3, s59")
            a(f"global_store_dword v2, v3, s[{pWS}:{pWS+1}] offset:56")
        if o.get("p3trace"):
            for c in range(4):
                a(f"s_sub_u32 s40, s{44+2*c}, s98\nv_mov_b32 v3, s40")
                a(f"global_store_dword v2, v3, s[{pWS}:{pWS+1}] offset:{48+4*c}")
        if o.get("dbgstamp"):
            a(f"s_cmp_lg_u32 s2, {o['dbgstamp']}\ns_cbranch_scc1 L_exit\nv_mov_b32 v2, 0")
            for i in range(11):
                src = 82+2*i if i < 10 else 42
                a(f"s_sub_u32 s44, s{src}, s82" if i else "s_mov_b32 s44, s82")
                a("v_mov_b32 v3, s44")
                a(f"global_store_dword v2, v3, s[{pDBG}:{pDBG+1}] offset:{4*(i+1)}")
    a.label("L_exit")
    a("s_endpgm")
    return a.text(), kdesc(NAME, 256, 102)
```

```python
from asmlib import *
NAME = "concat_heads__mha_block__mha_block__prompt_kernel"
THREADS = 512
ST1 = 49664
WREG = 32768
RS = 232
LDS_KM, LDS_VT, LDS_KR = 0, 65536, 139264
WO_RS = 224
WO_IMG = 576 * WO_RS
K3_STG = 32 * 208
LDS_BYTES = 155648
SPIN_MAX = 400000
sWAVE = 3
sP = 64
pAX, pAW, pAWO, pBX, pBW, pBWO, pOUT, pDBG, pWS = [sP + 2*i for i in range(9)]
CNT1 = 0
CNT2 = 128

def srd(a, d, p, nbytes):
    a(f"s_mov_b32 s{d}, s{p}\ns_mov_b32 s{d+1}, s{p+1}\ns_mov_b32 s{d+2}, {nbytes}\ns_mov_b32 s{d+3}, 0x00020000")

def stamp(a, o, idx):
    if o["stamp"]:
        a(f"s_memrealtime s[{82+2*idx}:{83+2*idx}]")

sNONCE = 63
def trace(a, o, k, tag):
    if o.get("p1trace"):
        a(f"""s_cmp_lg_u32 s{sWAVE}, {o['p1trace']-1}
s_cbranch_scc1 L_tr_{tag}
s_memrealtime s[60:61]
s_waitcnt lgkmcnt(0)
s_lshl_b32 s62, s2, 6
s_add_u32 s62, s62, {WS_USED}
v_mov_b32 v250, s62
v_mov_b32 v251, s60
s_mov_b64 exec, 1
global_store_dword v250, v251, s[{pWS}:{pWS+1}] offset:{48+4*k}
s_mov_b64 exec, -1""")
        a.label(f"L_tr_{tag}")

def nonce_publish(a):
    a(f"""s_cmp_lg_u32 s2, 0
s_cbranch_scc1 L_nonce_done
s_cmp_lg_u32 s{sWAVE}, 0
s_cbranch_scc1 L_nonce_done
s_memrealtime s[40:41]
s_waitcnt lgkmcnt(0)
s_or_b32 s40, s40, 1
v_mov_b32 v2, 0
v_mov_b32 v3, s40
s_mov_b64 exec, 1
global_store_dword v2, v3, s[{pDBG}:{pDBG+1}] sc1
s_mov_b64 exec, -1""")
    a.label("L_nonce_done")

def nonce_fetch(a):
    a(f"""s_cmp_lg_u32 s{sWAVE}, 0
s_cbranch_scc1 L_nf_done
s_mov_b32 s58, 0""")
    a.label("L_nf_loop")
    a(f"""s_waitcnt vmcnt(0)
v_readfirstlane_b32 s{sNONCE}, v255
s_add_u32 s58, s58, 1
s_cmp_lg_u32 s{sNONCE}, 0
s_cbranch_scc1 L_nf_done
s_sleep 4
global_load_dword v255, v254, s[{pDBG}:{pDBG+1}] sc1
s_cmp_lt_u32 s58, {SPIN_MAX}
s_cbranch_scc1 L_nf_loop""")
    a.label("L_nf_done")

def signal(a, line_sgpr, tag):
    a("s_waitcnt vmcnt(0)")
    a("s_barrier")
    a(f"""s_cmp_lg_u32 s{sWAVE}, 0
s_cbranch_scc1 L_sig_{tag}
s_lshl_b32 s{line_sgpr}, s{line_sgpr}, 7
s_add_u32 s{line_sgpr}, s{line_sgpr}, {FLAG_OFF}
v_mov_b32 v254, s{line_sgpr}
v_mov_b32 v255, s{sNONCE}
s_mov_b64 exec, 1
global_store_dword v254, v255, s[{pWS}:{pWS+1}] sc1
s_mov_b64 exec, -1""")
    a.label(f"L_sig_{tag}")

def poll(a, addr_vgpr, nlanes_mask_lo, tag):
    a(f"""s_cmp_lg_u32 s{sWAVE}, 0
s_cbranch_scc1 L_polled_{tag}
s_mov_b32 s40, 0
s_mov_b32 exec_hi, 0
s_mov_b32 exec_lo, {nlanes_mask_lo}""")
    a.label(f"L_poll_{tag}")
    a(f"""global_load_dword v255, v{addr_vgpr}, s[{pWS}:{pWS+1}] sc1
s_add_u32 s40, s40, 1
s_waitcnt vmcnt(0)
v_cmp_ne_u32 vcc, s{sNONCE}, v255
s_cmp_eq_u64 vcc, 0
s_cbranch_scc1 L_pollok_{tag}
s_sleep 1
s_cmp_lt_u32 s40, {SPIN_MAX}
s_cbranch_scc1 L_poll_{tag}""")
    a.label(f"L_pollok_{tag}")
    a("s_mov_b64 exec, -1")
    a.label(f"L_polled_{tag}")
    a("s_barrier")

def p1_epilogue_consts(a):
    srd(a, 16, pWS, WS_USED)
    a(f"""s_mul_i32 s39, s32, {64*RS}
s_mul_i32 s40, s35, 6
v_mul_u32_u24 v5, {RS}, v3
v_lshl_add_u32 v5, v4, 3, v5
v_add_u32 v2, s39, v5
v_and_b32 v6, 31, v0
v_lshrrev_b32 v7, 5, v0
v_mul_u32_u24 v8, {RS}, v6
v_lshl_add_u32 v8, v7, 4, v8
v_add_u32 v8, s39, v8
v_lshlrev_b32 v9, 4, v0
v_mul_u32_u24 v10, {RS}, v0
v_add_u32 v10, s39, v10
v_lshlrev_b32 v11, 3, v0
v_lshrrev_b32 v12, 1, v4
v_lshrrev_b32 v13, 2, v3
v_lshl_add_u32 v13, v12, 3, v13
v_mul_u32_u24 v13, {RS}, v13
v_add_u32 v13, s39, v13
v_and_b32 v14, 1, v4
v_and_b32 v15, 3, v3
v_lshlrev_b32 v15, 3, v15
v_mul_u32_u24 v12, 288, v12
s_lshr_b32 s42, s38, 5
s_lshl_b32 s42, s42, 10
s_lshl_b32 s43, s38, 3
s_lshr_b32 s27, s38, 4
s_mul_i32 s27, s27, 576
s_sub_u32 s41, 32, s40
s_cmp_lt_u32 s40, 32
s_cselect_b32 s41, s41, 0
s_lshr_b32 s41, s41, 1
s_mul_i32 s41, s41, 9""")

def p1_epilogue_pipe(a, o, ACC, P1F):
    assert QM_OFF == 0 and KM_OFF == (1 << 22) and KR_OFF - QR_OFF == (1 << 19)
    a(f"s_mov_b32 s28, {f32bits(QSCALE)}")
    for hl in range(6): a(f"v_mov_b32 v{21+2*hl}, 0")
    cnt = [0]
    def stage(c):
        a(f"s_cmp_le_u32 s41, {4*c}\ns_cbranch_scc1 L_p1_ns{c}")
        a(f"""v_add_u32 v6, {4*c}, v4
v_cmp_gt_u32 vcc, s41, v6
v_mov_b32 v7, 1.0
v_mov_b32 v241, s28
v_cndmask_b32 v6, v7, v241, vcc""")
        for i in range(4):
            r = ACC(i, c)
            a(f"v_pk_mul_f32 v[{r}:{r+1}], v[{r}:{r+1}], v[6:7] op_sel_hi:[1,0]")
            a(f"v_pk_mul_f32 v[{r+2}:{r+3}], v[{r+2}:{r+3}], v[6:7] op_sel_hi:[1,0]")
        a.label(f"L_p1_ns{c}")
        for i in range(4):
            r = ACC(i, c); P = 40 + 2*(cnt[0] % 16); cnt[0] += 1
            a(f"v_cvt_pk_bf16_f32 v{P}, v{r}, v{r+1}")
            a(f"v_cvt_pk_bf16_f32 v{P+1}, v{r+2}, v{r+3}")
            a(f"ds_write_b64 v2, v[{P}:{P+1}] offset:{i*16*RS + 32*c}")
    RR = lambda hl: 128 + 16*hl
    sK = lambda hl: 20 + hl
    sM = lambda hl: 52 + hl if hl < 6 else None
    sR = lambda hl: 48 + hl//2
    def reads(hl):
        pl, par = hl // 2, hl % 2
        lab = f"L_p1_h{hl}"; R = RR(hl); va = 20 + 2*hl
        a(f"""s_add_u32 s46, s40, {hl}
s_lshr_b32 s{sK(hl)}, s46, 5
s_and_b32 s46, s46, 31
s_lshl_b32 s47, s33, 5
s_add_u32 s47, s47, s46
s_cmp_eq_u32 s{sK(hl)}, 2
s_cbranch_scc1 {lab}_v""")
        off = 72*pl + 40*par
        a(f"ds_read2_b64 v[{R}:{R+3}], v8 offset0:{off//8} offset1:{off//8+1}")
        a(f"v_add_u32 v{va}, {32*RS + off}, v8")
        a(f"ds_read2_b64 v[{R+4}:{R+7}], v{va} offset0:0 offset1:1")
        if par == 0: a(f"ds_read_b64 v[{R+8}:{R+9}], v10 offset:{72*pl + 32}")
        a(f"""s_lshl_b32 s{sM(hl)}, s47, 16
s_lshl_b32 s46, s{sK(hl)}, 22
s_add_u32 s{sM(hl)}, s{sM(hl)}, s46
s_add_u32 s{sM(hl)}, s{sM(hl)}, s42""")
        if par == 0:
            a(f"""s_lshr_b32 s{sR(hl)}, s47, 1
s_lshl_b32 s{sR(hl)}, s{sR(hl)}, 14
s_add_u32 s{sR(hl)}, s{sR(hl)}, s43
s_lshl_b32 s46, s{sK(hl)}, 19
s_add_u32 s{sR(hl)}, s{sR(hl)}, s46
s_add_u32 s{sR(hl)}, s{sR(hl)}, {QR_OFF}""")
        a(f"s_branch {lab}_e")
        a.label(f"{lab}_v")
        a(f"""v_add_u32 v{va}, {72*pl + 40*par}, v15
v_mov_b32 v17, {72*pl + 32}
v_cmp_eq_u32 vcc, 0, v14
s_mul_i32 s{sM(hl)}, s47, {VT_STRIDE}
s_add_u32 s{sM(hl)}, s{sM(hl)}, s27
v_cndmask_b32 v{va}, v17, v{va}, vcc
v_add_u32 v{va}, v{va}, v13
s_add_u32 s{sM(hl)}, s{sM(hl)}, {VT_OFF}""")
        for grp in range(4):
            for tr in range(2):
                a(f"ds_read_b64_tr_b16 v[{R+4*grp+2*tr}:{R+4*grp+2*tr+1}], v{va} offset:{(16*grp + 4*tr)*RS}")
        a(f"""v_add_u32 v17, {16 - 2*par}, v3
v_cndmask_b32 v17, v17, v3, vcc
v_lshl_add_u32 v{va+1}, v17, 4, v12""")
        a.label(f"{lab}_e")
    def stores(hl):
        pl, par = hl // 2, hl % 2
        lab = f"L_p1_s{hl}"; R = RR(hl); va = 20 + 2*hl
        a(f"s_cmp_eq_u32 s{sK(hl)}, 2\ns_cbranch_scc1 {lab}_v")
        a(f"buffer_store_dwordx4 v[{R}:{R+3}], v9, s[16:19], s{sM(hl)} offen{P1F}")
        a(f"buffer_store_dwordx4 v[{R+4}:{R+7}], v9, s[16:19], s{sM(hl)} offen offset:1024{P1F}")
        if par == 0: a(f"buffer_store_dwordx2 v[{R+8}:{R+9}], v11, s[16:19], s{sR(hl)} offen{P1F}")
        a(f"s_branch {lab}_e")
        a.label(f"{lab}_v")
        m16 = 0xffff | ((0x3 << (2*par)) << 16)
        a(f"s_mov_b32 exec_lo, {m16}\ns_mov_b32 exec_hi, {m16}")
        for grp in range(4):
            a(f"buffer_store_dwordx4 v[{R+4*grp}:{R+4*grp+3}], v{va+1}, s[16:19], s{sM(hl)} offen offset:{576*grp}{P1F}")
        a("s_mov_b64 exec, -1")
        a.label(f"{lab}_e")
    stage(0); stage(1); stage(2)
    reads(0); reads(1)
    stage(3); stage(4)
    a("s_waitcnt lgkmcnt(8)")
    stores(0); stores(1)
    reads(2); reads(3)
    stage(5); stage(6)
    a("s_waitcnt lgkmcnt(8)")
    stores(2); stores(3)
    reads(4); reads(5)
    a("s_waitcnt lgkmcnt(0)")
    stores(4); stores(5)

def phase1(a, o):
    P1F = o['p1f']
    ROT = o['rot']
    vXD = lambda i: 16 + i
    vWD = lambda i: 24 + i
    vX = lambda st, ks: 28 + 2*st + ks
    vW = lambda st: 34 + st
    XF = lambda p, i: 40 + 16*p + 4*i
    WF = lambda p, c: 72 + 28*p + 4*c
    ACC = lambda i, c: 128 + 4*(4*c + i)
    n = 7
    a(f"""s_and_b32 s30, s2, 7
s_lshr_b32 s31, s2, 3
s_and_b32 s32, s{sWAVE}, 3
s_lshr_b32 s33, s30, 2
s_and_b32 s34, s30, 1
s_lshl_b32 s34, s34, 2
s_and_b32 s35, s31, 3
s_add_u32 s34, s34, s35
s_lshr_b32 s35, s30, 1
s_and_b32 s35, s35, 1
s_lshl_b32 s35, s35, 3
s_lshr_b32 s36, s31, 2
s_add_u32 s35, s35, s36
s_lshl_b32 s20, s34, 8
s_lshl_b32 s21, s32, 6
s_add_u32 s38, s20, s21
s_lshl_b32 s37, s32, 13
v_lshrrev_b32 v4, 4, v0
v_and_b32 v3, 15, v0""")
    WC = o["wcomp"]
    a(f"""v_and_b32 v2, 1, v4
v_lshrrev_b32 v5, 1, v4
v_lshlrev_b32 v2, 2, v2
v_lshl_add_u32 v2, v5, 4, v2
v_mul_u32_u24 v2, 3456, v2
v_lshl_add_u32 v2, v3, 4, v2
v_mov_b32 v5, 0x40000000
v_cmp_gt_u32 vcc, 14, v3
s_mul_i32 s20, s38, 1152
s_lshr_b32 s21, s32, 1
v_cndmask_b32 v2, v5, v2, vcc""")
    for i in range(4):
        a(f"v_add_u32 v{vWD(i)}, {3456*i}, v2")
    a(f"""s_lshl_b32 s21, s21, 5
s_and_b32 s22, s32, 1
s_lshl_b32 s23, s22, 3
s_add_u32 s21, s21, s23
s_mul_i32 s21, s21, 3456
s_mul_i32 s23, s35, 216
s_add_u32 s21, s21, s23
s_lshr_b32 s23, s32, 1
s_mul_i32 s23, s23, 8448
s_mul_i32 s22, s22, {4*1056}
s_add_u32 s23, s23, s22
s_add_u32 s23, s23, {WREG}
s_mov_b32 s22, s37
s_add_u32 s24, s35, s34
s_mul_i32 s25, s24, 43
s_lshr_b32 s25, s25, 7
s_mul_i32 s25, s25, 3
s_sub_u32 s24, s24, s25
s_mul_i32 s24, s24, {ROT}
s_lshl_b32 s25, s24, 7
s_add_u32 s20, s20, s25
s_mul_i32 s25, s24, {64*3456}
s_add_u32 s21, s21, s25
s_waitcnt lgkmcnt(0)
s_cmp_eq_u32 s33, 0
s_cselect_b32 s8, s{pAX}, s{pBX}
s_cselect_b32 s9, s{pAX+1}, s{pBX+1}
s_cselect_b32 s12, s{pAW}, s{pBW}
s_cselect_b32 s13, s{pAW+1}, s{pBW+1}
s_mov_b32 s10, {X_BYTES}
s_mov_b32 s11, 0x00020000
s_mov_b32 s14, {W_BYTES}
s_mov_b32 s15, 0x00020000
s_cmp_ge_u32 s{sWAVE}, 4
s_cbranch_scc0 L_p1_compute""")
    wrap = [f"s_add_u32 s21, s21, {64*3456}", "s_add_u32 s20, s20, 128", "s_add_u32 s24, s24, 1", "s_cmp_eq_u32 s24, 9",
            f"s_cselect_b32 s25, {9*128}, 0", f"s_cselect_b32 s26, {9*64*3456}, 0", "s_cselect_b32 s24, 0, s24",
            "s_sub_u32 s20, s20, s25", "s_sub_u32 s21, s21, s26"]
    def w_units(cc):
        st = cc % 3
        U = [[f"s_add_u32 m0, s23, {st*ST1}"]]
        for i in range(4):
            u = [f"buffer_load_dwordx4 v{vWD(i)}, s[12:15], s21 offen lds"]
            u += ["s_add_u32 m0, m0, 1056"] if i < 3 else wrap
            U.append(u)
        return U
    def flat(U):
        for u in U:
            for x in u:
                if x.startswith("buffer_load"): a("s_nop 0")
                a(x)
    XC = o["xcomp"]
    def xsetup():
        a(f"""v_lshrrev_b32 v2, 3, v0
v_and_b32 v5, 7, v0
v_xor_b32 v5, v5, v4
v_mul_u32_u24 v6, 1152, v2
v_lshl_add_u32 v7, v5, 4, v6
v_xor_b32 v8, 64, v7""")
        for i in range(8):
            a(f"v_add_u32 v{vXD(i)}, {9216*i}, v{7 if i % 2 == 0 else 8}")
    if XC:
        for _ in range(9): a("s_barrier")
        a("s_branch L_p1_rb" if o["epi8"] else "s_branch L_p1_done")
    xsetup()
    NL = 8 if WC else 12
    def dma(cc):
        st = cc % 3
        a(f"s_add_u32 m0, s22, {st*ST1}")
        for i in range(8):
            a("s_nop 0")
            a(f"buffer_load_dwordx4 v{vXD(i)}, s[8:11], s20 offen lds")
            if i < 7: a("s_add_u32 m0, m0, 1024")
        if WC:
            for x in wrap: a(x)
        else:
            flat(w_units(cc))
    dma(0); dma(1)
    a(f"s_waitcnt vmcnt({NL})")
    a("s_barrier")
    dma(2)
    for cc in range(8):
        rem = min(8, cc + 2) - (cc + 1)
        a(f"s_waitcnt vmcnt({NL*rem})")
        a("s_barrier")
        if cc + 3 <= 8: dma(cc + 3)
    a("s_branch L_p1_rb" if o["epi8"] else "s_branch L_p1_done")
    a.label("L_p1_compute")
    def xw_units(cc):
        st = cc % 3
        U = [[f"s_add_u32 m0, s22, {st*ST1}"]]
        for i in range(8):
            U.append([f"buffer_load_dwordx4 v{vXD(i)}, s[8:11], s20 offen lds",
                      "s_add_u32 m0, m0, 1024" if i < 7 else f"s_add_u32 m0, s23, {st*ST1}"])
        return U + w_units(cc)[1:]
    if XC:
        xsetup()
        flat(xw_units(0)); flat(xw_units(1))
    elif WC:
        flat(w_units(0)); flat(w_units(1))
    a(f"""v_lshrrev_b32 v5, 1, v3
v_xor_b32 v5, v5, v4
v_lshlrev_b32 v5, 4, v5
v_lshl_add_u32 v5, v3, 7, v5
v_add_u32 v5, s37, v5
v_xor_b32 v6, 64, v5""")
    for st in range(3):
        a(f"v_add_u32 v{vX(st,0)}, {st*ST1}, v5")
        a(f"v_add_u32 v{vX(st,1)}, {st*ST1}, v6")
    a(f"""v_lshrrev_b32 v5, 2, v3
v_and_b32 v6, 1, v4
v_lshl_add_u32 v5, v6, 2, v5
v_mul_u32_u24 v5, 1056, v5
v_lshrrev_b32 v6, 1, v4
v_lshl_add_u32 v5, v6, 9, v5
v_and_b32 v6, 3, v3
v_lshl_add_u32 v5, v6, 3, v5""")
    for st in range(3):
        a(f"v_add_u32 v{vW(st)}, {st*ST1 + WREG}, v5")
    def reads(g):
        cc, ks = g // 2, g % 2
        st, p = cc % 3, g & 1
        L = []
        for c in range(n):
            if c < 4: L.append(f"ds_read_b128 v[{XF(p,c)}:{XF(p,c)+3}], v{vX(st,ks)} offset:{2048*c}")
            for tr in range(2):
                L.append(f"ds_read_b64_tr_b16 v[{WF(p,c)+2*tr}:{WF(p,c)+2*tr+1}], v{vW(st)} offset:{ks*8448 + tr*256 + 32*c}")
        return L
    def mfmas(g):
        p = g & 1
        L = []
        for c in range(n):
            for i in range(4):
                acc = f"v[{ACC(i,c)}:{ACC(i,c)+3}]"
                L.append(f"v_mfma_f32_16x16x32_bf16 {acc}, v[{WF(p,c)}:{WF(p,c)+3}], v[{XF(p,i)}:{XF(p,i)+3}], {acc if g else 0}")
        return L
    if o["pf"]:
        assert not WC and o["rot"] == 0
        a(f"""s_and_b32 s26, s35, 7
s_lshl_b32 s26, s26, 5
s_lshl_b32 s27, s34, 8
s_add_u32 s26, s26, s27
s_mul_i32 s26, s26, 1152
s_add_u32 s26, s26, 384
v_and_b32 v5, 31, v0
v_lshrrev_b32 v6, 5, v0
v_mul_u32_u24 v5, 1152, v5
v_lshl_add_u32 v240, v6, 6, v5
s_and_b32 s27, s34, 3
s_add_u32 s27, s27, 192
s_mul_i32 s27, s27, 3456
s_mul_i32 s28, s35, 216
s_add_u32 s27, s27, s28
v_lshrrev_b32 v5, 2, v0
v_and_b32 v6, 3, v0
v_mul_u32_u24 v5, {4*3456}, v5
v_lshl_add_u32 v241, v6, 6, v5
s_mul_i32 s28, s32, {3*128}
s_add_u32 s26, s26, s28
s_sub_u32 s28, s32, 2
s_mul_i32 s28, s28, {3*64*3456}
s_add_u32 s27, s27, s28
s_cmp_lt_u32 s32, 2
s_cselect_b32 s48, s8, s12
s_cselect_b32 s49, s9, s13
s_cselect_b32 s50, s10, s14
s_mov_b32 s51, 0x00020000
s_cselect_b32 s26, s26, s27
s_mov_b32 s27, {64*3456}
s_cselect_b32 s27, 128, s27
s_cselect_b64 vcc, -1, 0
s_nop 1
v_cndmask_b32 v240, v241, v240, vcc""")
    if o["epipipe"]: p1_epilogue_consts(a)
    NC = 12 if XC else 4
    if WC: a(f"s_waitcnt vmcnt({NC})")
    a("s_barrier")
    stamp(a, o, 1)
    if o["stamp"]: a("s_memtime s[44:45]")
    for x in reads(0): a(x)
    for g in range(18):
        cc, ks = g // 2, g % 2
        if ks == 1 and cc < 8:
            rem = min(8, cc + 2) - (cc + 1)
            a((f"s_waitcnt vmcnt({NC*rem}) lgkmcnt(0)") if WC else "s_waitcnt lgkmcnt(0)")
            a("s_barrier")
        else:
            a("s_waitcnt lgkmcnt(0)")
        units = []
        if XC:
            if g == 0: units = xw_units(2)
            elif ks == 1 and cc + 3 <= 8: units = xw_units(cc + 3)[:7]
            elif ks == 0 and cc >= 1 and cc + 2 <= 8: units = xw_units(cc + 2)[7:]
        elif WC:
            if g == 0: units = w_units(2)
            elif ks == 1 and cc + 3 <= 8: units = w_units(cc + 3)[:3]
            elif ks == 0 and cc >= 1 and cc + 2 <= 8: units = w_units(cc + 2)[3:]
        rd = reads(g + 1) if g + 1 < 18 else []
        M = mfmas(g)
        slots = [[] for _ in M]
        for idx, x in enumerate(rd): slots[min(idx, len(M)-1)].append(x)
        for idx, u in enumerate(units): slots[min(len(M)-1, 2 + (idx*len(M))//len(units))] += u
        if o["pf"] and g == o["pfstep"]:
            for q in range(3):
                slots[3 + 8*q] += [f"buffer_load_dword v{242+q}, v240, s[48:51], s26 offen", "s_add_u32 s26, s26, s27"]
        if g == (16 if WC else 6):
            a("v_mov_b32 v254, 0")
            a(f"global_load_dword v255, v254, s[{pDBG}:{pDBG+1}] sc1")
        for m, sl in zip(M, slots):
            a(m)
            for x in sl: a(x)
    stamp(a, o, 2)
    if o["stamp"]: a("s_memtime s[46:47]\ns_waitcnt lgkmcnt(0)\ns_sub_u32 s59, s46, s44")
    nonce_fetch(a)
    if o["epipipe"]:
        p1_epilogue_pipe(a, o, ACC, P1F)
        a("s_branch L_p1_done")
    if not o["epipipe"]:
        a(f"""s_waitcnt lgkmcnt(0)
s_mul_i32 s39, s32, {64*RS}
v_mul_u32_u24 v5, {RS}, v3
v_lshl_add_u32 v5, v4, 3, v5
v_add_u32 v5, s39, v5
s_mul_i32 s40, s35, 6
s_sub_u32 s41, 32, s40
s_cmp_lt_u32 s40, 32
s_cselect_b32 s41, s41, 0
s_lshr_b32 s41, s41, 1
s_mul_i32 s41, s41, 9
s_mov_b32 s44, {f32bits(QSCALE)}
s_cmp_eq_u32 s41, 0
s_cbranch_scc1 L_p1_noscale""")
        for c in range(n):
            a(f"""v_add_u32 v6, {4*c}, v4
v_cmp_gt_u32 vcc, s41, v6
v_mov_b32 v7, 1.0
v_mov_b32 v8, s44
v_cndmask_b32 v6, v7, v8, vcc""")
            for i in range(4):
                r = ACC(i, c)
                a(f"v_pk_mul_f32 v[{r}:{r+1}], v[{r}:{r+1}], v[6:7] op_sel_hi:[1,0]")
                a(f"v_pk_mul_f32 v[{r+2}:{r+3}], v[{r+2}:{r+3}], v[6:7] op_sel_hi:[1,0]")
        a.label("L_p1_noscale")
        for c in range(n):
            for i in range(4):
                r = ACC(i, c); P = 40 + 2*((4*c + i) % 16)
                a(f"v_cvt_pk_bf16_f32 v{P}, v{r}, v{r+1}")
                a(f"v_cvt_pk_bf16_f32 v{P+1}, v{r+2}, v{r+3}")
                a(f"ds_write_b64 v5, v[{P}:{P+1}] offset:{i*16*RS + 32*c}")
        a("s_waitcnt lgkmcnt(0)")
        trace(a, o, 0, "a")
        a.label("L_p1_rb")
        srd(a, 16, pWS, WS_USED)
        a(f"""s_mul_i32 s39, s32, {64*RS}
s_mul_i32 s40, s35, 6
v_and_b32 v6, 31, v0
v_lshrrev_b32 v7, 5, v0
v_mul_u32_u24 v8, {RS}, v6
v_lshl_add_u32 v8, v7, 4, v8
v_add_u32 v8, s39, v8
v_lshlrev_b32 v9, 4, v0
v_mul_u32_u24 v10, {RS}, v0
v_add_u32 v10, s39, v10
v_lshlrev_b32 v11, 3, v0
v_lshrrev_b32 v12, 1, v4
v_lshrrev_b32 v13, 2, v3
v_lshl_add_u32 v13, v12, 3, v13
v_mul_u32_u24 v13, {RS}, v13
v_add_u32 v13, s39, v13
v_and_b32 v14, 1, v4
v_and_b32 v15, 3, v3
v_lshlrev_b32 v15, 3, v15
v_mul_u32_u24 v12, 288, v12
s_lshr_b32 s42, s38, 5
s_lshl_b32 s42, s42, 10
s_lshl_b32 s43, s38, 3
s_lshr_b32 s45, s38, 4
s_mul_i32 s45, s45, 576""")
        E8 = o["epi8"]
        if E8: a(f"s_barrier\ns_cmp_ge_u32 s{sWAVE}, 4\ns_cbranch_scc1 L_p1_rb1")
        assert QM_OFF == 0 and KM_OFF == (1 << 22) and KR_OFF - QR_OFF == (1 << 19)
        NH = 3 if E8 else 6
        sKf = (lambda k: 48 + k) if E8 else (lambda k: 20 + k)
        sMf = (lambda k: 52 + k) if E8 else (lambda k: 26 + k)
        sRf = (lambda k: 55 + k) if E8 else (lambda k: 48 + k)
        for hg in range(2 if E8 else 1):
            if hg: a.label("L_p1_rb1")
            for k in range(NH):
                hl = NH*hg + k
                pl, par = hl // 2, hl % 2
                lab = f"L_p1_h{hl}"
                R = 128 + 16*k
                sK, sM, sR = sKf(k), sMf(k), sRf(k)
                a(f"""s_add_u32 s46, s40, {hl}
s_lshr_b32 s{sK}, s46, 5
s_and_b32 s46, s46, 31
s_lshl_b32 s47, s33, 5
s_add_u32 s47, s47, s46
s_cmp_eq_u32 s{sK}, 2
s_cbranch_scc1 {lab}_v""")
                off = 72*pl + 40*par
                a(f"ds_read2_b64 v[{R}:{R+3}], v8 offset0:{off//8} offset1:{off//8+1}")
                a(f"v_add_u32 v{20+2*k}, {32*RS + off}, v8")
                a(f"ds_read2_b64 v[{R+4}:{R+7}], v{20+2*k} offset0:0 offset1:1")
                if par == 0: a(f"ds_read_b64 v[{R+8}:{R+9}], v10 offset:{72*pl + 32}")
                a(f"""s_lshl_b32 s{sM}, s47, 16
s_lshl_b32 s46, s{sK}, 22
s_add_u32 s{sM}, s{sM}, s46
s_add_u32 s{sM}, s{sM}, s42""")
                if par == 0:
                    a(f"""s_lshr_b32 s{sR}, s47, 1
s_lshl_b32 s{sR}, s{sR}, 14
s_add_u32 s{sR}, s{sR}, s43
s_lshl_b32 s46, s{sK}, 19
s_add_u32 s{sR}, s{sR}, s46
s_add_u32 s{sR}, s{sR}, {QR_OFF}""")
                a(f"s_branch {lab}_e")
                a.label(f"{lab}_v")
                a(f"""v_add_u32 v{20+2*k}, {72*pl + 40*par}, v15
v_mov_b32 v17, {72*pl + 32}
v_cmp_eq_u32 vcc, 0, v14
s_mul_i32 s{sM}, s47, {VT_STRIDE}
s_add_u32 s{sM}, s{sM}, s45
v_cndmask_b32 v{20+2*k}, v17, v{20+2*k}, vcc
v_add_u32 v{20+2*k}, v{20+2*k}, v13
s_add_u32 s{sM}, s{sM}, {VT_OFF}""")
                for grp in range(4):
                    for tr in range(2):
                        a(f"ds_read_b64_tr_b16 v[{R+4*grp+2*tr}:{R+4*grp+2*tr+1}], v{20+2*k} offset:{(16*grp + 4*tr)*RS}")
                a(f"""v_add_u32 v17, {16 - 2*par}, v3
v_cndmask_b32 v17, v17, v3, vcc
v_lshl_add_u32 v{21+2*k}, v17, 4, v12""")
                a.label(f"{lab}_e")
            a("s_waitcnt lgkmcnt(0)")
            trace(a, o, 1, f"b{hg}")
            for k in range(NH):
                hl = NH*hg + k
                pl, par = hl // 2, hl % 2
                lab = f"L_p1_s{hl}"
                R = 128 + 16*k
                sK, sM, sR = sKf(k), sMf(k), sRf(k)
                a(f"s_cmp_eq_u32 s{sK}, 2\ns_cbranch_scc1 {lab}_v")
                a(f"buffer_store_dwordx4 v[{R}:{R+3}], v9, s[16:19], s{sM} offen{P1F}")
                a(f"buffer_store_dwordx4 v[{R+4}:{R+7}], v9, s[16:19], s{sM} offen offset:1024{P1F}")
                if par == 0: a(f"buffer_store_dwordx2 v[{R+8}:{R+9}], v11, s[16:19], s{sR} offen{P1F}")
                a(f"s_branch {lab}_e")
                a.label(f"{lab}_v")
                m16 = 0xffff | ((0x3 << (2*par)) << 16)
                a(f"s_mov_b32 exec_lo, {m16}\ns_mov_b32 exec_hi, {m16}")
                for grp in range(4):
                    a(f"buffer_store_dwordx4 v[{R+4*grp}:{R+4*grp+3}], v{21+2*k}, s[16:19], s{sM} offen offset:{576*grp}{P1F}")
                a("s_mov_b64 exec, -1")
                a.label(f"{lab}_e")
            trace(a, o, 2, f"c{hg}")
            if hg == 0 and E8: a("s_branch L_p1_done")
    a.label("L_p1_done")
    a("s_lshl_b32 s39, s33, 4\ns_add_u32 s39, s39, s35\ns_lshl_b32 s39, s39, 3\ns_add_u32 s39, s39, s34")
    signal(a, 39, "p1")

def phase2(a, o):
    NKT, NQ = 64, 2
    QM = lambda j: 16 + 4*j
    QR = 24
    KMn = lambda s: 28 + 6*s
    KRs = lambda s: 32 + 6*s
    V0 = lambda s: 40 + 8*s
    V1 = lambda s: 44 + 8*s
    S = lambda kt, j: 56 + 32*(kt & 1) + 16*j
    O = lambda j: 120 + 16*j
    vL16, vKR, vVa, vVb, vIdx = 2, 3, 4, 5, 6
    T = 152
    name = "p2"
    a(f"""s_and_b32 s18, s2, 7
s_lshr_b32 s19, s2, 3
s_lshr_b32 s12, s19, 2
s_lshl_b32 s18, s18, 3
s_add_u32 s12, s12, s18
s_and_b32 s13, s19, 3
s_mov_b32 s14, s{sWAVE}""")
    a(f"""s_and_b32 s18, s12, 31
s_lshr_b32 s19, s12, 5
s_lshl_b32 s19, s19, 4
v_lshrrev_b32 v7, 3, v0
v_lshlrev_b32 v7, 5, v7
v_add_u32 v7, s18, v7
v_mul_u32_u24 v7, 171, v7
v_lshrrev_b32 v7, 10, v7
v_add_u32 v7, s19, v7
v_and_b32 v8, 7, v0
v_lshl_add_u32 v7, v7, 3, v8
v_lshlrev_b32 v7, 7, v7
v_add_u32 v7, {FLAG_OFF}, v7""")
    srd(a, 8, pWS, WS_USED)
    a(f"""v_lshlrev_b32 v{vL16}, 4, v0
v_and_b32 v8, 31, v0
v_lshlrev_b32 v9, 3, v8
s_mov_b32 s16, 0x0003ffff
s_mov_b32 s17, 0x0003ffff
s_lshl_b32 s30, s14, 10
s_lshl_b32 s25, s12, 16
s_add_u32 s35, s25, {KM_OFF}
s_add_u32 s25, s35, s30
s_mul_i32 s28, s12, {VT_STRIDE}
s_add_u32 s36, s28, {VT_OFF}
s_add_u32 s28, s36, s30
s_lshr_b32 s38, s12, 1
s_lshl_b32 s38, s38, 14
s_and_b32 s39, s12, 1
s_lshl_b32 s39, s39, 2
s_add_u32 s37, s38, {KR_OFF}
s_add_u32 s33, s37, s30
s_add_u32 s29, s30, {LDS_VT}
s_add_u32 s34, s30, {LDS_KR}
s_mov_b32 s26, s30
s_lshl_b32 s18, s13, 4
s_lshl_b32 s19, s14, 1
s_add_u32 s24, s18, s19""")
    def dmaK():
        a("s_mov_b32 m0, s26")
        a("s_add_u32 s26, s26, 8192")
        a(f"buffer_load_dwordx4 v{vL16}, s[8:11], s25 offen sc1 lds")
        a("s_add_u32 s25, s25, 8192")
    def dmaV():
        a("s_mov_b32 m0, s29")
        a("s_add_u32 s29, s29, 8192")
        a(f"buffer_load_dwordx4 v{vL16}, s[8:11], s28 offen sc1 lds")
        a("s_add_u32 s28, s28, 8192")
    def dmaKR1():
        a("s_add_u32 m0, s34, 8192")
        a("s_add_u32 s33, s33, 8192")
        a(f"buffer_load_dwordx4 v{vL16}, s[8:11], s33 offen sc1 lds")
    a(f"""s_lshr_b32 s18, s12, 5
s_and_b32 s19, s12, 31
s_lshl_b32 s46, s18, 21
s_lshl_b32 s21, s24, 15
s_add_u32 s46, s46, s21
s_lshl_b32 s21, s19, 10
s_add_u32 s46, s46, s21
s_add_u32 s46, s46, {OM_OFF}
s_lshl_b32 s47, s18, 18
s_lshl_b32 s21, s24, 12
s_add_u32 s47, s47, s21
s_lshr_b32 s21, s19, 2
s_lshl_b32 s21, s21, 9
s_add_u32 s47, s47, s21
s_and_b32 s21, s19, 3
s_lshl_b32 s21, s21, 2
s_add_u32 s47, s47, s21
s_add_u32 s47, s47, {OR_OFF}
s_lshl_b32 s48, s18, 2
s_add_u32 s48, s48, s13
s_lshl_b32 s48, s48, 5
s_add_u32 s48, s48, s19
s_add_u32 s48, s48, 256
v_lshlrev_b32 v197, 4, v8
s_lshl_b32 s49, s12, 16
s_lshl_b32 s19, s24, 10
s_add_u32 s49, s49, s19
s_lshl_b32 s20, s24, 8
s_add_u32 s50, s38, s20
s_add_u32 s50, s50, s39
s_add_u32 s50, s50, {QR_OFF}
v_lshlrev_b32 v196, 3, v0""")
    if o["wopf"]:
        a(f"""s_cmp_lt_u32 s12, 32
s_cselect_b32 s20, s{pAWO}, s{pBWO}
s_cselect_b32 s21, s{pAWO+1}, s{pBWO+1}
s_mov_b32 s22, {WO_BYTES}
s_mov_b32 s23, 0x00020000
s_lshr_b32 s18, s2, 3
s_lshl_b32 s18, s18, 3
s_add_u32 s18, s18, s14
s_lshl_b32 s27, s18, 12
v_lshlrev_b32 v198, 6, v0""")
    late = [dmaK, dmaV, dmaKR1, dmaK, dmaV, dmaK, dmaV] + [dmaK, dmaV]*4
    sched = {0: late[0:3], 1: late[3:5], 2: late[5:7], 3: late[7:9], 4: late[9:11], 5: late[11:13], 6: late[13:15]}
    a(f"""v_lshrrev_b32 v10, 5, v0
v_add_u32 v{vKR}, {LDS_KR}, v9
v_add_u32 v{vKR}, s39, v{vKR}
v_mul_u32_u24 v11, 288, v10
v_lshlrev_b32 v12, 4, v8
v_add_u32 v27, v11, v12
v_add_u32 v{vVa}, {LDS_VT}, v27
v_add_u32 v{vVb}, {LDS_VT + 32*1152}, v27
v_mov_b32 v{vIdx}, 0xdddd
v_and_b32 v13, 27, v8
v_cmp_eq_u32 vcc, 18, v13
v_mov_b32 v14, 0x3f803f80
v_mov_b32 v15, 0
v_cndmask_b32 v13, v15, v14, vcc""")
    for s in range(2):
        a(f"v_mov_b32 v{KRs(s)+1}, 0x3f803f80")
        for i in range(4):
            a(f"v_mov_b32 v{V0(s)+i}, v13")
            a(f"v_mov_b32 v{V1(s)+i}, v13")
    a(f"v_mov_b32 v{QR+1}, 0")
    for j in range(NQ):
        for i in range(16): a(f"v_mov_b32 v{O(j)+i}, 0")
    poll(a, 7, 0xffffff, "p1")
    stamp(a, o, 4)
    a("s_mov_b32 m0, s34")
    a("s_nop 0")
    a(f"buffer_load_dwordx4 v{vL16}, s[8:11], s33 offen sc1 lds")
    dmaK(); dmaV(); dmaV()
    for j in range(NQ):
        a(f"buffer_load_dwordx4 v[{QM(j)}:{QM(j)+3}], v{vL16}, s[8:11], s49 offen offset:{1024*j} sc1")
    a(f"buffer_load_dword v{QR}, v196, s[8:11], s50 offen sc1")
    a("s_waitcnt vmcnt(0)")
    a("s_barrier")
    stamp(a, o, 5)
    if o["stamp"]: a("s_memtime s[52:53]")
    def rdK(kt):
        s = kt & 1
        a(f"ds_read_b128 v[{KMn(s)}:{KMn(s)+3}], v{vL16} offset:{kt*1024}")
        a(f"ds_read_b32 v{KRs(s)}, v{vKR} offset:{kt*256}")
    def rdV(kt):
        s = kt & 1
        base, off = (vVa, kt*1152) if kt < 32 else (vVb, (kt-32)*1152)
        a("s_mov_b64 exec, s[16:17]")
        a(f"ds_read_b128 v[{V0(s)}:{V0(s)+3}], v{base} offset:{off}")
        a(f"ds_read_b128 v[{V1(s)}:{V1(s)+3}], v{base} offset:{off+576}")
        a("s_mov_b64 exec, -1")
    def qk_res(kt, ks=None):
        s = (kt & 1) if ks is None else ks; sb = S(kt, 0)
        a(f"v_mfma_f32_32x32x4_2b_bf16 v[{sb}:{sb+31}], v[{KRs(s)}:{KRs(s)+1}], v[{QR}:{QR+1}], 0")
    def qk_main(kt, j, ks=None):
        s = (kt & 1) if ks is None else ks; sb = S(kt, j)
        a(f"v_mfma_f32_32x32x16_bf16 v[{sb}:{sb+15}], v[{KMn(s)}:{KMn(s)+3}], v[{QM(j)}:{QM(j)+3}], v[{sb}:{sb+15}]")
    def pv(kt, j, half, vs=None):
        s = (kt & 1) if vs is None else vs
        v = V0(s) if half == 0 else V1(s)
        a(f"v_smfmac_f32_32x32x32_bf16 v[{O(j)}:{O(j)+15}], v[{v}:{v+3}], v[{S(kt,j)+8*half}:{S(kt,j)+8*half+7}], v{vIdx}")
    def ex(kt, j, i):
        r = S(kt, j) + i
        a(f"v_exp_f32 v{r}, v{r}")
    def loop(copy, prio):
        rdK(0); rdV(0)
        a("s_waitcnt lgkmcnt(0)")
        qk_res(0)
        rdK(1)
        a("s_nop 15")
        a("s_nop 1")
        qk_main(0, 0); qk_main(0, 1)
        a("s_nop 7")
        a("s_nop 3")
        def tile(kt, rel=None):
            if rel is None:
                if kt == o["bar1"] or (kt == o["bar2"] and not ROLL):
                    a(f"s_waitcnt vmcnt({4 if kt == o['bar1'] else 0})")
                    a("s_barrier")
                if kt in sched:
                    for f in sched[kt]: f()
                if kt == 9 and o["wopf"]:
                    a("buffer_load_dword v199, v198, s[20:23], s27 offen")
            p = prio(kt)
            a(f"s_setprio {p}" if p is not None else "s_nop 0")
            a("s_waitcnt lgkmcnt(0)")
            if kt > 0: pv(kt-1, 1, 1)
            if kt + 1 < NKT:
                if rel is None: rdV(kt+1)
                else:
                    s_ = (kt+1) & 1; off = (kt+1-rel)*1152
                    a("s_mov_b64 exec, s[16:17]")
                    a(f"ds_read_b128 v[{V0(s_)}:{V0(s_)+3}], v206 offset:{off}")
                    a(f"ds_read_b128 v[{V1(s_)}:{V1(s_)+3}], v206 offset:{off+576}")
                    a("s_mov_b64 exec, -1")
            for i in range(0, 4): ex(kt, 0, i)
            if kt + 1 < NKT: qk_res(kt+1)
            for i in range(4, 12): ex(kt, 0, i)
            pv(kt, 0, 0)
            for i in range(12, 16): ex(kt, 0, i)
            if kt + 2 < NKT:
                if rel is None: rdK(kt+2)
                else:
                    s_ = kt & 1
                    a(f"ds_read_b128 v[{KMn(s_)}:{KMn(s_)+3}], v204 offset:{(kt+2-rel)*1024}")
                    a(f"ds_read_b32 v{KRs(s_)}, v205 offset:{(kt+2-rel)*256}")
            else: a("s_nop 1")
            pv(kt, 0, 1)
            for i in range(4): ex(kt, 1, i)
            if kt + 1 < NKT: qk_main(kt+1, 0)
            for i in range(4, 8): ex(kt, 1, i)
            if kt + 1 < NKT: qk_main(kt+1, 1)
            for i in range(8, 12): ex(kt, 1, i)
            pv(kt, 1, 0)
            for i in range(12, 16): ex(kt, 1, i)
        ROLL = o["roll"]
        if not ROLL:
            for kt in range(NKT): tile(kt)
        else:
            G = len(o["pat"]); L0 = 10; NIT = (NKT - 2 - L0) // G
            assert G % 2 == 0
            for kt in range(L0): tile(kt)
            a(f"""v_add_u32 v204, {L0*1024}, v{vL16}
v_add_u32 v205, {L0*256}, v{vKR}
v_add_u32 v206, {L0*1152}, v{vVa}
s_mov_b32 s44, 0""")
            itb = -(-(30 - L0 - G + 1) // G)
            itb = (28 - L0) // G
            a.label(f"L_p2_roll{copy}")
            a(f"""s_cmp_lg_u32 s44, {itb}
s_cbranch_scc1 L_p2_rnb{copy}
s_waitcnt vmcnt(0)
s_barrier""")
            a.label(f"L_p2_rnb{copy}")
            for u in range(G): tile(L0 + u, rel=L0)
            a(f"""v_add_u32 v204, {G*1024}, v204
v_add_u32 v205, {G*256}, v205
v_add_u32 v206, {G*1152}, v206
s_add_u32 s44, s44, 1
s_cmp_lt_u32 s44, {NIT}
s_cbranch_scc1 L_p2_roll{copy}""")
            for kt in range(L0 + NIT*G, NKT): tile(kt)
        a("s_nop 1")
        pv(NKT-1, 1, 1)
        a("s_setprio 0")
    if o["dual"]:
        a(f"s_cmp_ge_u32 s14, 4\ns_cbranch_scc1 L_p2_loopB")
        loop(0, lambda kt: 1 if kt == 0 else None)
        a("s_branch L_p2_loopdone")
        a.label("L_p2_loopB")
        pat = o["pat"]
        def pr(kt):
            cur = pat[kt % len(pat)]
            prev = pat[(kt-1) % len(pat)] if kt else None
            return cur if cur != prev else None
        loop(1, pr)
        a.label("L_p2_loopdone")
    else:
        loop(0, lambda kt: None)
    stamp(a, o, 6)
    if o["stamp"]:
        a(f"""s_memtime s[54:55]
s_waitcnt lgkmcnt(0)
s_cmp_lg_u32 s14, {99 if o.get("p1trace") else 4}
s_cbranch_scc1 L_p2_nw4
s_sub_u32 s56, s54, s52
s_sub_u32 s57, s94, s92
s_lshl_b32 s40, s2, 6
s_add_u32 s40, s40, {WS_USED}
v_mov_b32 v200, s40
v_mov_b32 v202, s56
v_mov_b32 v203, s57
s_mov_b64 exec, 1
global_store_dwordx2 v200, v[202:203], s[{pWS}:{pWS+1}] offset:48
s_mov_b64 exec, -1""")
        a.label("L_p2_nw4")
    a("s_nop 7")
    a("s_nop 7")
    a("s_mov_b64 s[20:21], 0")
    a("s_mov_b32 s22, 0x53800000")
    a("s_mov_b32 s23, 0x2b800000")
    for j in range(NQ):
        a(f"v_mul_f32 v{T}, 0, v{O(j)}")
        for i in range(1, 10): a(f"v_fma_f32 v{T}, v{O(j)+i}, 0, v{T}")
        a(f"v_add_f32 v{T}, v{T}, v{O(j)+10}")
        a(f"v_cmp_ngt_f32 vcc, s22, v{T}")
        a("s_or_b64 s[20:21], s[20:21], vcc")
        a(f"v_cmp_nlt_f32 vcc, s23, v{T}")
        a("s_or_b64 s[20:21], s[20:21], vcc")
    if o.get("halflds"): a("s_mov_b64 s[20:21], 0")
    a(f"""s_cmp_eq_u64 s[20:21], 0
s_cbranch_scc0 L_p2_fallback""")
    a.label("L_p2_store")
    for j in range(NQ):
        a(f"v_rcp_f32 v{T}, v{O(j)+10}")
        a("s_nop 0")
        for i in range(10): a(f"v_mul_f32 v{O(j)+i}, v{O(j)+i}, v{T}")
        P = T + 2 + 6*j
        for i in range(4): a(f"v_cvt_pk_bf16_f32 v{P+i}, v{O(j)+2*i}, v{O(j)+2*i+1}")
        a(f"v_cvt_pk_bf16_f32 v{P+4}, v{O(j)+8}, v{O(j)+9}")
        a(f"buffer_store_dwordx4 v[{P}:{P+3}], v{vL16}, s[8:11], s46 offen sc1")
        a("s_mov_b32 exec_hi, 0")
        a(f"buffer_store_dword v{P+4}, v197, s[8:11], s47 offen sc1")
        a("s_mov_b32 exec_hi, -1")
        if j == 0: a("s_add_u32 s46, s46, 32768\ns_add_u32 s47, s47, 4096")
    signal(a, 48, "p2")
    a("s_branch L_p2_end")
    a.label("L_p2_fallback")
    MX = T
    a(f"""v_mov_b32 v{MX}, 0xff800000
v_mov_b32 v{MX+1}, 0xff800000
v_mov_b32 v{QR+1}, 0
v_mov_b32 v{MX+4}, v{vL16}
v_mov_b32 v{MX+5}, v{vKR}
s_mov_b32 s18, {NKT}""")
    a.label("L_p2_fb1")
    a(f"""ds_read_b128 v[{KMn(0)}:{KMn(0)+3}], v{MX+4}
ds_read_b32 v{KRs(0)}, v{MX+5}
v_add_u32 v{MX+4}, 1024, v{MX+4}
v_add_u32 v{MX+5}, 256, v{MX+5}
s_waitcnt lgkmcnt(0)""")
    qk_res(0, 0)
    a("s_nop 15\ns_nop 3")
    qk_main(0, 0, 0); qk_main(0, 1, 0)
    a("s_nop 15")
    for j in range(NQ):
        for i in range(8): a(f"v_max3_f32 v{MX+j}, v{MX+j}, v{S(0,j)+2*i}, v{S(0,j)+2*i+1}")
    a(f"""s_sub_u32 s18, s18, 1
s_cmp_lg_u32 s18, 0
s_cbranch_scc1 L_p2_fb1""")
    x, y, hi, mid = MX+6, MX+7, MX+8, MX+9
    for j in range(NQ):
        a(f"""v_mov_b32 v{x}, v{MX+j}
v_mov_b32 v{y}, v{MX+j}
s_nop 1
v_permlane32_swap_b32 v{x}, v{y}
s_nop 1
v_max_f32 v{MX+j}, v{x}, v{y}""")
    a(f"""v_cmp_gt_u32 vcc, 32, v0
s_nop 1
v_cndmask_b32 v{x}, v{MX+1}, v{MX}, vcc
v_and_b32 v{hi}, 0xffff0000, v{x}
v_sub_f32 v{x}, v{x}, v{hi}
v_and_b32 v{mid}, 0xffff0000, v{x}
v_xor_b32 v{hi}, 0x80000000, v{hi}
v_xor_b32 v{mid}, 0x80000000, v{mid}
v_lshrrev_b32 v{hi}, 16, v{hi}
v_or_b32 v{QR+1}, v{hi}, v{mid}""")
    for j in range(NQ):
        for i in range(16): a(f"v_mov_b32 v{O(j)+i}, 0")
    a(f"""v_mov_b32 v{MX+4}, v{vL16}
v_mov_b32 v{MX+5}, v{vKR}
v_mov_b32 v{MX+6}, v{vVa}
s_mov_b32 s18, {NKT}""")
    a.label("L_p2_fb2")
    a(f"""ds_read_b128 v[{KMn(0)}:{KMn(0)+3}], v{MX+4}
ds_read_b32 v{KRs(0)}, v{MX+5}
s_mov_b64 exec, s[16:17]
ds_read_b128 v[{V0(0)}:{V0(0)+3}], v{MX+6}
ds_read_b128 v[{V1(0)}:{V1(0)+3}], v{MX+6} offset:576
s_mov_b64 exec, -1
v_add_u32 v{MX+4}, 1024, v{MX+4}
v_add_u32 v{MX+5}, 256, v{MX+5}
v_add_u32 v{MX+6}, 1152, v{MX+6}
s_waitcnt lgkmcnt(0)""")
    qk_res(0, 0)
    a("s_nop 15\ns_nop 3")
    qk_main(0, 0, 0); qk_main(0, 1, 0)
    a("s_nop 15")
    for j in range(NQ):
        for i in range(16): ex(0, j, i)
    a("s_nop 1")
    for j in range(NQ):
        pv(0, j, 0, 0); pv(0, j, 1, 0)
    a(f"""s_sub_u32 s18, s18, 1
s_cmp_lg_u32 s18, 0
s_cbranch_scc1 L_p2_fb2
s_nop 7
s_nop 7
s_branch L_p2_store""")
    a.label("L_p2_end")

def phase3(a, o):
    OF = lambda ks: 64 + 4*ks
    WF = lambda p, c: 144 + 24*p + 4*c
    ACC = lambda c: 16 + 4*c
    vL, vWa, vWb, vWr, vWD = 1, 2, 3, 4, 5
    D = o["p3depth"]
    a(f"""s_cmp_ge_u32 s2, 192
s_cbranch_scc1 L_end
s_and_b32 s30, s2, 7
s_lshr_b32 s31, s2, 3
s_mov_b32 s32, s{sWAVE}
s_lshr_b32 s33, s30, 2
s_and_b32 s34, s30, 3
s_lshl_b32 s34, s34, 2
s_and_b32 s35, s31, 3
s_add_u32 s34, s34, s35
s_lshr_b32 s35, s31, 2
s_lshl_b32 s36, s34, 2
s_lshr_b32 s37, s32, 1
s_add_u32 s36, s36, s37""")
    a(f"""v_mul_u32_u24 v9, 37, v0
v_lshrrev_b32 v9, 9, v9
v_mul_u32_u24 v10, 14, v9
v_sub_u32 v10, v0, v10
v_mul_u32_u24 v9, 1152, v9
v_lshl_add_u32 v{vWD}, v10, 4, v9
v_mov_b32 v11, 0x40000000
v_cmp_gt_u32 vcc, 12, v10
s_cmp_eq_u32 s33, 0
s_cselect_b32 s8, s{pAWO}, s{pBWO}
v_cndmask_b32 v{vWD}, v11, v{vWD}, vcc
s_cselect_b32 s9, s{pAWO+1}, s{pBWO+1}
s_mov_b32 s10, {WO_BYTES}
s_mov_b32 s11, 0x00020000
s_mul_i32 s22, s32, {4*1152}
s_mul_i32 s23, s35, 192
s_add_u32 s22, s22, s23
s_mul_i32 s23, s32, {4*WO_RS}
s_mov_b32 exec_hi, 0x00ffffff""")
    for r in range(18):
        a("s_mov_b32 m0, s23")
        a(f"s_add_u32 s23, s23, {32*WO_RS}")
        a(f"buffer_load_dwordx4 v{vWD}, s[8:11], s22 offen lds")
        a(f"s_add_u32 s22, s22, {32*1152}")
    a("s_mov_b32 exec_hi, -1")
    a(f"""v_and_b32 v7, 15, v0
v_lshrrev_b32 v8, 4, v0
v_lshlrev_b32 v9, 9, v8
v_lshl_add_u32 v{vL}, v7, 4, v9
s_and_b32 s37, s32, 1
s_lshl_b32 s37, s37, 8
v_add_u32 v{vL}, s37, v{vL}
v_lshrrev_b32 v9, 1, v8
v_mul_u32_u24 v9, 20, v9
v_and_b32 v10, 1, v8
v_lshl_add_u32 v9, v10, 2, v9
v_lshrrev_b32 v10, 2, v7
v_add_u32 v9, v9, v10
v_mul_u32_u24 v9, {WO_RS}, v9
v_and_b32 v11, 3, v7
v_lshl_add_u32 v{vWa}, v11, 3, v9
v_add_u32 v{vWb}, {7*36*WO_RS}, v{vWa}
v_lshlrev_b32 v9, 2, v8
v_lshrrev_b32 v12, 1, v10
v_add_u32 v9, v9, v12
v_mul_u32_u24 v9, 18, v9
v_and_b32 v13, 1, v10
v_add_u32 v9, v9, v13
v_xor_b32 v12, 1, v12
v_lshl_add_u32 v9, v12, 4, v9
v_mul_u32_u24 v9, {WO_RS}, v9
v_lshl_add_u32 v{vWr}, v11, 3, v9
v_add_u32 v14, {288*WO_RS}, v{vWr}
v_add_u32 v15, {14*36*WO_RS}, v{vWa}
s_lshr_b32 s37, s34, 2
s_lshl_b32 s38, s33, 2
s_add_u32 s37, s37, s38
s_lshl_b32 s37, s37, 5
s_add_u32 s37, s37, 256
v_add_u32 v6, s37, v0
v_lshlrev_b32 v6, 7, v6
v_add_u32 v6, {FLAG_OFF}, v6""")
    srd(a, 16, pWS, WS_USED)
    srd(a, 12, pOUT, OUT_BYTES)
    a(f"""s_lshl_b32 s20, s33, 21
s_lshl_b32 s21, s36, 15
s_add_u32 s20, s20, s21
s_add_u32 s20, s20, {OM_OFF}
s_lshl_b32 s21, s33, 18
s_lshl_b32 s22, s36, 12
s_add_u32 s21, s21, s22
s_add_u32 s21, s21, {OR_OFF}
s_waitcnt vmcnt(0)""")
    poll(a, 6, -1, "p2")
    stamp(a, o, 8)
    def oload(ks):
        if ks < 16:
            L = [f"buffer_load_dwordx4 v[{OF(ks)}:{OF(ks)+3}], v{vL}, s[16:19], s20 offen offset:{(ks%2)*2048} sc1"]
            if ks % 2 == 1: L.append("s_add_u32 s20, s20, 4096")
            return L
        return [f"buffer_load_dwordx4 v[{OF(ks)}:{OF(ks)+3}], v{vL}, s[16:19], s21 offen offset:{(ks-16)*2048} sc1"]
    def reads(ks, p):
        L = []
        for c in range(6):
            for t in range(2):
                if ks < 16:
                    base, k0 = (vWa, ks) if ks < 7 else ((vWb, ks - 7) if ks < 14 else (15, ks - 14))
                    off = (36*k0 + 8*t)*WO_RS + 32*c
                else:
                    base = vWr if ks == 16 else 14
                    off = 36*t*WO_RS + 32*c
                L.append(f"ds_read_b64_tr_b16 v[{WF(p,c)+2*t}:{WF(p,c)+2*t+1}], v{base} offset:{off}")
        return L
    def mfmas(ks):
        p = ks & 1
        return [f"v_mfma_f32_16x16x32_bf16 v[{ACC(c)}:{ACC(c)+3}], v[{WF(p,c)}:{WF(p,c)+3}], v[{OF(ks)}:{OF(ks)+3}], " + (f"v[{ACC(c)}:{ACC(c)+3}]" if ks else "0")
                for c in range(6)]
    for ks in range(D):
        for x in oload(ks): a(x)
    for x in reads(0, 0): a(x)
    for ks in range(18):
        issued = min(17, ks + D - 1)
        a(f"s_waitcnt vmcnt({issued - ks}) lgkmcnt(0)")
        rd = reads(ks+1, (ks+1) & 1) if ks + 1 < 18 else []
        M = mfmas(ks)
        if ks + D < 18:
            for x in oload(ks + D): a(x)
        for idx, m in enumerate(M):
            a(m)
            for x in rd[2*idx:2*idx+2]: a(x)
    stamp(a, o, 9)
    a(f"""s_mul_i32 s23, s32, {16*208}
s_add_u32 s23, s23, {WO_IMG}
v_mul_u32_u24 v9, 208, v7
v_lshl_add_u32 v9, v8, 3, v9
v_add_u32 v9, s23, v9
s_nop 3""")
    for c in range(6):
        r = ACC(c); P = 64 + 2*c
        a(f"v_cvt_pk_bf16_f32 v{P}, v{r}, v{r+1}")
        a(f"v_cvt_pk_bf16_f32 v{P+1}, v{r+2}, v{r+3}")
        a(f"ds_write_b64 v9, v[{P}:{P+1}] offset:{32*c}")
    a(f"""s_lshl_b32 s20, s36, 5
s_and_b32 s21, s32, 1
s_lshl_b32 s21, s21, 4
s_add_u32 s20, s20, s21
s_mul_i32 s20, s20, 2304
s_mul_i32 s21, s33, 1152
s_add_u32 s20, s20, s21
s_mul_i32 s21, s35, 192
s_add_u32 s20, s20, s21
s_mov_b32 s22, 5462""")
    for k in range(3):
        a(f"""v_add_u32 v10, {64*k}, v0
v_mul_u32_u24 v11, s22, v10
v_lshrrev_b32 v11, 16, v11
v_mul_u32_u24 v12, 12, v11
v_sub_u32 v12, v10, v12
v_mul_u32_u24 v13, 208, v11
v_lshl_add_u32 v13, v12, 4, v13
v_add_u32 v{100+k}, s23, v13
v_mul_u32_u24 v13, 2304, v11
v_lshl_add_u32 v{110+k}, v12, 4, v13""")
    a("s_waitcnt lgkmcnt(0)")
    for k in range(3): a(f"ds_read_b128 v[{120+4*k}:{123+4*k}], v{100+k}")
    for k in range(3):
        a(f"s_waitcnt lgkmcnt({2-k})")
        a(f"buffer_store_dwordx4 v[{120+4*k}:{123+4*k}], v{110+k}, s[12:15], s20 offen{o['outflag']}")

def gen(opts=None):
    o = dict(stamp=False, bar1=5, bar2=26, rot=3, dual=True, pat=[2,2,2,2,2,2,0], wopf=True, wcomp=False, xcomp=False, pf=False, pfstep=0, p3depth=8, outflag='', midnop=True, p1f=' sc1', epi8=False, epipipe=True, roll=False)
    if opts: o.update(opts)
    a = A()
    a(f".globl {NAME}\n.p2align 8\n.type {NAME},@function")
    a.label(NAME)
    a(f"""s_cmp_ge_u32 s2, 256
s_cbranch_scc1 L_exit
s_load_dwordx16 s[{sP}:{sP+15}], s[0:1], 0
s_load_dwordx2 s[{pWS}:{pWS+1}], s[0:1], 64
v_lshrrev_b32 v1, 6, v0
v_and_b32 v0, 63, v0
s_nop 0
v_readfirstlane_b32 s{sWAVE}, v1""")
    stamp(a, o, 0)
    a("s_nop 3")
    nonce_publish(a)
    phase1(a, o)
    stamp(a, o, 3)
    phase2(a, o)
    stamp(a, o, 7)
    phase3(a, o)
    a.label("L_end")
    if o["stamp"]:
        a(f"""s_cmp_lg_u32 s{sWAVE}, 0
s_cbranch_scc1 L_exit
s_memrealtime s[42:43]
s_waitcnt lgkmcnt(0)
s_lshl_b32 s40, s2, 6
s_add_u32 s40, s40, {WS_USED}
v_mov_b32 v2, s40
s_mov_b64 exec, 1""")
        for i in range(11):
            a(f"v_mov_b32 v3, s{82+2*i if i < 10 else 42}")
            a(f"global_store_dword v2, v3, s[{pWS}:{pWS+1}] offset:{4*i}")
        a("s_sub_u32 s54, s54, s52\nv_mov_b32 v3, s54")
        a(f"global_store_dword v2, v3, s[{pWS}:{pWS+1}] offset:44")
        if not o.get("p1trace"):
            a("v_mov_b32 v3, s59")
            a(f"global_store_dword v2, v3, s[{pWS}:{pWS+1}] offset:56")
        if o.get("p3trace"):
            for c in range(4):
                a(f"s_sub_u32 s40, s{44+2*c}, s98\nv_mov_b32 v3, s40")
                a(f"global_store_dword v2, v3, s[{pWS}:{pWS+1}] offset:{48+4*c}")
        if o.get("dbgstamp"):
            a(f"s_cmp_lg_u32 s2, {o['dbgstamp']}\ns_cbranch_scc1 L_exit\nv_mov_b32 v2, 0")
            for i in range(11):
                src = 82+2*i if i < 10 else 42
                a(f"s_sub_u32 s44, s{src}, s82" if i else "s_mov_b32 s44, s82")
                a("v_mov_b32 v3, s44")
                a(f"global_store_dword v2, v3, s[{pDBG}:{pDBG+1}] offset:{4*(i+1)}")
    a.label("L_exit")
    a("s_endpgm")
    return a.text(), kdesc(NAME, 256, 102)
```

```python
from asmlib import *
NAME = "concat_heads__mha_block__mha_block__prompt_kernel"
THREADS = 512
ST1 = 49664
WREG = 32768
RS = 232
LDS_KM, LDS_VT, LDS_KR = 0, 65536, 139264
WO_RS = 224
WO_IMG = 576 * WO_RS
K3_STG = 32 * 208
LDS_BYTES = 155648
SPIN_MAX = 400000
sWAVE = 3
sP = 64
pAX, pAW, pAWO, pBX, pBW, pBWO, pOUT, pDBG, pWS = [sP + 2*i for i in range(9)]
CNT1 = 0
CNT2 = 128

def srd(a, d, p, nbytes):
    a(f"s_mov_b32 s{d}, s{p}\ns_mov_b32 s{d+1}, s{p+1}\ns_mov_b32 s{d+2}, {nbytes}\ns_mov_b32 s{d+3}, 0x00020000")

def stamp(a, o, idx):
    if o["stamp"]:
        a(f"s_memrealtime s[{82+2*idx}:{83+2*idx}]")

sNONCE = 63
def trace(a, o, k, tag):
    if o.get("p1trace"):
        a(f"""s_cmp_lg_u32 s{sWAVE}, {o['p1trace']-1}
s_cbranch_scc1 L_tr_{tag}
s_memrealtime s[60:61]
s_waitcnt lgkmcnt(0)
s_lshl_b32 s62, s2, 6
s_add_u32 s62, s62, {WS_USED}
v_mov_b32 v250, s62
v_mov_b32 v251, s60
s_mov_b64 exec, 1
global_store_dword v250, v251, s[{pWS}:{pWS+1}] offset:{48+4*k}
s_mov_b64 exec, -1""")
        a.label(f"L_tr_{tag}")

def nonce_publish(a):
    a(f"""s_cmp_lg_u32 s2, 0
s_cbranch_scc1 L_nonce_done
s_cmp_lg_u32 s{sWAVE}, 0
s_cbranch_scc1 L_nonce_done
s_memrealtime s[40:41]
s_waitcnt lgkmcnt(0)
s_or_b32 s40, s40, 1
v_mov_b32 v2, 0
v_mov_b32 v3, s40
s_mov_b64 exec, 1
global_store_dword v2, v3, s[{pDBG}:{pDBG+1}] sc1
s_mov_b64 exec, -1""")
    a.label("L_nonce_done")

def nonce_fetch(a):
    a(f"""s_cmp_lg_u32 s{sWAVE}, 0
s_cbranch_scc1 L_nf_done
s_mov_b32 s58, 0""")
    a.label("L_nf_loop")
    a(f"""s_waitcnt vmcnt(0)
v_readfirstlane_b32 s{sNONCE}, v255
s_add_u32 s58, s58, 1
s_cmp_lg_u32 s{sNONCE}, 0
s_cbranch_scc1 L_nf_done
s_sleep 4
global_load_dword v255, v254, s[{pDBG}:{pDBG+1}] sc1
s_cmp_lt_u32 s58, {SPIN_MAX}
s_cbranch_scc1 L_nf_loop""")
    a.label("L_nf_done")

def signal(a, line_sgpr, tag):
    a("s_waitcnt vmcnt(0)")
    a("s_barrier")
    a(f"""s_cmp_lg_u32 s{sWAVE}, 0
s_cbranch_scc1 L_sig_{tag}
s_lshl_b32 s{line_sgpr}, s{line_sgpr}, 7
s_add_u32 s{line_sgpr}, s{line_sgpr}, {FLAG_OFF}
v_mov_b32 v254, s{line_sgpr}
v_mov_b32 v255, s{sNONCE}
s_mov_b64 exec, 1
global_store_dword v254, v255, s[{pWS}:{pWS+1}] sc1
s_mov_b64 exec, -1""")
    a.label(f"L_sig_{tag}")

def poll(a, addr_vgpr, nlanes_mask_lo, tag):
    a(f"""s_cmp_lg_u32 s{sWAVE}, 0
s_cbranch_scc1 L_polled_{tag}
s_mov_b32 s40, 0
s_mov_b32 exec_hi, 0
s_mov_b32 exec_lo, {nlanes_mask_lo}""")
    a.label(f"L_poll_{tag}")
    a(f"""global_load_dword v255, v{addr_vgpr}, s[{pWS}:{pWS+1}] sc1
s_add_u32 s40, s40, 1
s_waitcnt vmcnt(0)
v_cmp_ne_u32 vcc, s{sNONCE}, v255
s_cmp_eq_u64 vcc, 0
s_cbranch_scc1 L_pollok_{tag}
s_sleep 1
s_cmp_lt_u32 s40, {SPIN_MAX}
s_cbranch_scc1 L_poll_{tag}""")
    a.label(f"L_pollok_{tag}")
    a("s_mov_b64 exec, -1")
    a.label(f"L_polled_{tag}")
    a("s_barrier")

def p1_epilogue_consts(a):
    srd(a, 16, pWS, WS_USED)
    a(f"""s_mul_i32 s39, s32, {64*RS}
s_mul_i32 s40, s35, 6
v_mul_u32_u24 v5, {RS}, v3
v_lshl_add_u32 v5, v4, 3, v5
v_add_u32 v2, s39, v5
v_and_b32 v6, 31, v0
v_lshrrev_b32 v7, 5, v0
v_mul_u32_u24 v8, {RS}, v6
v_lshl_add_u32 v8, v7, 4, v8
v_add_u32 v8, s39, v8
v_lshlrev_b32 v9, 4, v0
v_mul_u32_u24 v10, {RS}, v0
v_add_u32 v10, s39, v10
v_lshlrev_b32 v11, 3, v0
v_lshrrev_b32 v12, 1, v4
v_lshrrev_b32 v13, 2, v3
v_lshl_add_u32 v13, v12, 3, v13
v_mul_u32_u24 v13, {RS}, v13
v_add_u32 v13, s39, v13
v_and_b32 v14, 1, v4
v_and_b32 v15, 3, v3
v_lshlrev_b32 v15, 3, v15
v_mul_u32_u24 v12, 288, v12
s_lshr_b32 s42, s38, 5
s_lshl_b32 s42, s42, 10
s_lshl_b32 s43, s38, 3
s_lshr_b32 s27, s38, 4
s_mul_i32 s27, s27, 576
s_sub_u32 s41, 32, s40
s_cmp_lt_u32 s40, 32
s_cselect_b32 s41, s41, 0
s_lshr_b32 s41, s41, 1
s_mul_i32 s41, s41, 9""")

def p1_epilogue_pipe(a, o, ACC, P1F):
    assert QM_OFF == 0 and KM_OFF == (1 << 22) and KR_OFF - QR_OFF == (1 << 19)
    a(f"s_mov_b32 s28, {f32bits(QSCALE)}")
    for hl in range(6): a(f"v_mov_b32 v{21+2*hl}, 0")
    cnt = [0]
    def stage(c):
        a(f"s_cmp_le_u32 s41, {4*c}\ns_cbranch_scc1 L_p1_ns{c}")
        a(f"""v_add_u32 v6, {4*c}, v4
v_cmp_gt_u32 vcc, s41, v6
v_mov_b32 v7, 1.0
v_mov_b32 v241, s28
v_cndmask_b32 v6, v7, v241, vcc""")
        for i in range(4):
            r = ACC(i, c)
            a(f"v_pk_mul_f32 v[{r}:{r+1}], v[{r}:{r+1}], v[6:7] op_sel_hi:[1,0]")
            a(f"v_pk_mul_f32 v[{r+2}:{r+3}], v[{r+2}:{r+3}], v[6:7] op_sel_hi:[1,0]")
        a.label(f"L_p1_ns{c}")
        for i in range(4):
            r = ACC(i, c); P = 40 + 2*(cnt[0] % 16); cnt[0] += 1
            a(f"v_cvt_pk_bf16_f32 v{P}, v{r}, v{r+1}")
            a(f"v_cvt_pk_bf16_f32 v{P+1}, v{r+2}, v{r+3}")
            a(f"ds_write_b64 v2, v[{P}:{P+1}] offset:{i*16*RS + 32*c}")
    RR = lambda hl: 128 + 16*hl
    sK = lambda hl: 20 + hl
    sM = lambda hl: 52 + hl if hl < 6 else None
    sR = lambda hl: 48 + hl//2
    def reads(hl):
        pl, par = hl // 2, hl % 2
        lab = f"L_p1_h{hl}"; R = RR(hl); va = 20 + 2*hl
        a(f"""s_add_u32 s46, s40, {hl}
s_lshr_b32 s{sK(hl)}, s46, 5
s_and_b32 s46, s46, 31
s_lshl_b32 s47, s33, 5
s_add_u32 s47, s47, s46
s_cmp_eq_u32 s{sK(hl)}, 2
s_cbranch_scc1 {lab}_v""")
        off = 72*pl + 40*par
        a(f"ds_read2_b64 v[{R}:{R+3}], v8 offset0:{off//8} offset1:{off//8+1}")
        a(f"v_add_u32 v{va}, {32*RS + off}, v8")
        a(f"ds_read2_b64 v[{R+4}:{R+7}], v{va} offset0:0 offset1:1")
        if par == 0: a(f"ds_read_b64 v[{R+8}:{R+9}], v10 offset:{72*pl + 32}")
        a(f"""s_lshl_b32 s{sM(hl)}, s47, 16
s_lshl_b32 s46, s{sK(hl)}, 22
s_add_u32 s{sM(hl)}, s{sM(hl)}, s46
s_add_u32 s{sM(hl)}, s{sM(hl)}, s42""")
        if par == 0:
            a(f"""s_lshr_b32 s{sR(hl)}, s47, 1
s_lshl_b32 s{sR(hl)}, s{sR(hl)}, 14
s_add_u32 s{sR(hl)}, s{sR(hl)}, s43
s_lshl_b32 s46, s{sK(hl)}, 19
s_add_u32 s{sR(hl)}, s{sR(hl)}, s46
s_add_u32 s{sR(hl)}, s{sR(hl)}, {QR_OFF}""")
        a(f"s_branch {lab}_e")
        a.label(f"{lab}_v")
        a(f"""v_add_u32 v{va}, {72*pl + 40*par}, v15
v_mov_b32 v17, {72*pl + 32}
v_cmp_eq_u32 vcc, 0, v14
s_mul_i32 s{sM(hl)}, s47, {VT_STRIDE}
s_add_u32 s{sM(hl)}, s{sM(hl)}, s27
v_cndmask_b32 v{va}, v17, v{va}, vcc
v_add_u32 v{va}, v{va}, v13
s_add_u32 s{sM(hl)}, s{sM(hl)}, {VT_OFF}""")
        for grp in range(4):
            for tr in range(2):
                a(f"ds_read_b64_tr_b16 v[{R+4*grp+2*tr}:{R+4*grp+2*tr+1}], v{va} offset:{(16*grp + 4*tr)*RS}")
        a(f"""v_add_u32 v17, {16 - 2*par}, v3
v_cndmask_b32 v17, v17, v3, vcc
v_lshl_add_u32 v{va+1}, v17, 4, v12""")
        a.label(f"{lab}_e")
    def stores(hl):
        pl, par = hl // 2, hl % 2
        lab = f"L_p1_s{hl}"; R = RR(hl); va = 20 + 2*hl
        a(f"s_cmp_eq_u32 s{sK(hl)}, 2\ns_cbranch_scc1 {lab}_v")
        a(f"buffer_store_dwordx4 v[{R}:{R+3}], v9, s[16:19], s{sM(hl)} offen{P1F}")
        a(f"buffer_store_dwordx4 v[{R+4}:{R+7}], v9, s[16:19], s{sM(hl)} offen offset:1024{P1F}")
        if par == 0: a(f"buffer_store_dwordx2 v[{R+8}:{R+9}], v11, s[16:19], s{sR(hl)} offen{P1F}")
        a(f"s_branch {lab}_e")
        a.label(f"{lab}_v")
        m16 = 0xffff | ((0x3 << (2*par)) << 16)
        a(f"s_mov_b32 exec_lo, {m16}\ns_mov_b32 exec_hi, {m16}")
        for grp in range(4):
            a(f"buffer_store_dwordx4 v[{R+4*grp}:{R+4*grp+3}], v{va+1}, s[16:19], s{sM(hl)} offen offset:{576*grp}{P1F}")
        a("s_mov_b64 exec, -1")
        a.label(f"{lab}_e")
    stage(0); stage(1); stage(2)
    reads(0); reads(1)
    stage(3); stage(4)
    a("s_waitcnt lgkmcnt(8)")
    stores(0); stores(1)
    reads(2); reads(3)
    stage(5); stage(6)
    a("s_waitcnt lgkmcnt(8)")
    stores(2); stores(3)
    reads(4); reads(5)
    a("s_waitcnt lgkmcnt(0)")
    stores(4); stores(5)

def phase1(a, o):
    P1F = o['p1f']
    ROT = o['rot']
    if o.get("rot9"):
        ma, mb = o["rot9"]
        ROTCODE = f"""s_mul_i32 s24, s35, {ma}
s_mul_i32 s25, s34, {mb}
s_add_u32 s24, s24, s25
s_mul_i32 s25, s24, 57
s_lshr_b32 s25, s25, 9
s_mul_i32 s25, s25, 9
s_sub_u32 s24, s24, s25"""
        for v in range(16*ma + 8*mb): assert (v*57) >> 9 == v // 9, v
    else:
        ROTCODE = f"""s_add_u32 s24, s35, s34
s_mul_i32 s25, s24, 43
s_lshr_b32 s25, s25, 7
s_mul_i32 s25, s25, 3
s_sub_u32 s24, s24, s25
s_mul_i32 s24, s24, {ROT}"""
    vXD = lambda i: 16 + i
    vWD = lambda i: 24 + i
    vX = lambda st, ks: 28 + 2*st + ks
    vW = lambda st: 34 + st
    XF = lambda p, i: 40 + 16*p + 4*i
    WF = lambda p, c: 72 + 28*p + 4*c
    ACC = lambda i, c: 128 + 4*(4*c + i)
    n = 7
    GL = o.get("gl")
    if GL:
        a(f"""s_and_b32 s30, s2, 7
s_lshr_b32 s31, s2, 3
s_and_b32 s32, s{sWAVE}, 3
s_lshr_b32 s33, s30, 2
s_and_b32 s34, s31, 7
s_and_b32 s35, s30, 3
s_lshl_b32 s35, s35, 2
s_lshr_b32 s36, s31, 3
s_add_u32 s35, s35, s36
s_lshl_b32 s20, s34, 8
s_lshl_b32 s21, s32, 6
s_add_u32 s38, s20, s21
s_lshl_b32 s37, s32, 13
v_lshrrev_b32 v4, 4, v0
v_and_b32 v3, 15, v0""")
    else: a(f"""s_and_b32 s30, s2, 7
s_lshr_b32 s31, s2, 3
s_and_b32 s32, s{sWAVE}, 3
s_lshr_b32 s33, s30, 2
s_and_b32 s34, s30, 1
s_lshl_b32 s34, s34, 2
s_and_b32 s35, s31, 3
s_add_u32 s34, s34, s35
s_lshr_b32 s35, s30, 1
s_and_b32 s35, s35, 1
s_lshl_b32 s35, s35, 3
s_lshr_b32 s36, s31, 2
s_add_u32 s35, s35, s36
s_lshl_b32 s20, s34, 8
s_lshl_b32 s21, s32, 6
s_add_u32 s38, s20, s21
s_lshl_b32 s37, s32, 13
v_lshrrev_b32 v4, 4, v0
v_and_b32 v3, 15, v0""")
    WC = o["wcomp"]
    a(f"""v_and_b32 v2, 1, v4
v_lshrrev_b32 v5, 1, v4
v_lshlrev_b32 v2, 2, v2
v_lshl_add_u32 v2, v5, 4, v2
v_mul_u32_u24 v2, 3456, v2""")
    if GL:
        a(f"""v_mul_u32_u24 v5, 13, v3
v_lshrrev_b32 v5, 6, v5
v_mul_u32_u24 v6, 5, v5
v_sub_u32 v6, v3, v6
v_mul_u32_u24 v5, 1152, v5
v_lshl_add_u32 v5, v6, 4, v5
v_add_u32 v2, v2, v5
v_mov_b32 v5, 0x40000000
v_cmp_gt_u32 vcc, 15, v3""")
    else:
        a(f"""v_lshl_add_u32 v2, v3, 4, v2
v_mov_b32 v5, 0x40000000
v_cmp_gt_u32 vcc, 14, v3""")
    a(f"""s_mul_i32 s20, s38, 1152
s_lshr_b32 s21, s32, 1
v_cndmask_b32 v2, v5, v2, vcc""")
    for i in range(4):
        a(f"v_add_u32 v{vWD(i)}, {3456*i}, v2")
    a(f"""s_lshl_b32 s21, s21, 5
s_and_b32 s22, s32, 1
s_lshl_b32 s23, s22, 3
s_add_u32 s21, s21, s23
s_mul_i32 s21, s21, 3456
s_mul_i32 s23, s35, {72 if GL else 216}
s_add_u32 s21, s21, s23
s_lshr_b32 s23, s32, 1
s_mul_i32 s23, s23, 8448
s_mul_i32 s22, s22, {4*1056}
s_add_u32 s23, s23, s22
s_add_u32 s23, s23, {WREG}
s_mov_b32 s22, s37
{ROTCODE}
s_lshl_b32 s25, s24, 7
s_add_u32 s20, s20, s25
s_mul_i32 s25, s24, {64*3456}
s_add_u32 s21, s21, s25
s_waitcnt lgkmcnt(0)
s_cmp_eq_u32 s33, 0
s_cselect_b32 s8, s{pAX}, s{pBX}
s_cselect_b32 s9, s{pAX+1}, s{pBX+1}
s_cselect_b32 s12, s{pAW}, s{pBW}
s_cselect_b32 s13, s{pAW+1}, s{pBW+1}
s_mov_b32 s10, {X_BYTES}
s_mov_b32 s11, 0x00020000
s_mov_b32 s14, {W_BYTES}
s_mov_b32 s15, 0x00020000
s_cmp_ge_u32 s{sWAVE}, 4
s_cbranch_scc0 L_p1_compute""")
    wrap = [f"s_add_u32 s21, s21, {64*3456}", "s_add_u32 s20, s20, 128", "s_add_u32 s24, s24, 1", "s_cmp_eq_u32 s24, 9",
            f"s_cselect_b32 s25, {9*128}, 0", f"s_cselect_b32 s26, {9*64*3456}, 0", "s_cselect_b32 s24, 0, s24",
            "s_sub_u32 s20, s20, s25", "s_sub_u32 s21, s21, s26"]
    def w_units(cc):
        st = cc % 3
        U = [[f"s_add_u32 m0, s23, {st*ST1}"]]
        for i in range(4):
            u = [f"buffer_load_dwordx4 v{vWD(i)}, s[12:15], s21 offen lds"]
            u += ["s_add_u32 m0, m0, 1056"] if i < 3 else wrap
            U.append(u)
        return U
    def flat(U):
        for u in U:
            for x in u:
                if x.startswith("buffer_load"): a("s_nop 0")
                a(x)
    XC = o["xcomp"]
    def xsetup():
        a(f"""v_lshrrev_b32 v2, 3, v0
v_and_b32 v5, 7, v0
v_xor_b32 v5, v5, v4
v_mul_u32_u24 v6, 1152, v2
v_lshl_add_u32 v7, v5, 4, v6
v_xor_b32 v8, 64, v7""")
        for i in range(8):
            a(f"v_add_u32 v{vXD(i)}, {9216*i}, v{7 if i % 2 == 0 else 8}")
    if XC:
        for _ in range(9): a("s_barrier")
        a("s_branch L_p1_rb" if o["epi8"] else "s_branch L_p1_done")
    xsetup()
    NL = 8 if WC else 12
    def dma(cc):
        st = cc % 3
        a(f"s_add_u32 m0, s22, {st*ST1}")
        for i in range(8):
            a("s_nop 0")
            a(f"buffer_load_dwordx4 v{vXD(i)}, s[8:11], s20 offen lds")
            if i < 7: a("s_add_u32 m0, m0, 1024")
        if WC:
            for x in wrap: a(x)
        else:
            flat(w_units(cc))
    dma(0); dma(1)
    a(f"s_waitcnt vmcnt({NL})")
    a("s_barrier")
    dma(2)
    for cc in range(8):
        rem = min(8, cc + 2) - (cc + 1)
        a(f"s_waitcnt vmcnt({NL*rem})")
        a("s_barrier")
        if cc + 3 <= 8: dma(cc + 3)
    a("s_branch L_p1_rb" if o["epi8"] else "s_branch L_p1_done")
    a.label("L_p1_compute")
    def xw_units(cc):
        st = cc % 3
        U = [[f"s_add_u32 m0, s22, {st*ST1}"]]
        for i in range(8):
            U.append([f"buffer_load_dwordx4 v{vXD(i)}, s[8:11], s20 offen lds",
                      "s_add_u32 m0, m0, 1024" if i < 7 else f"s_add_u32 m0, s23, {st*ST1}"])
        return U + w_units(cc)[1:]
    if XC:
        xsetup()
        flat(xw_units(0)); flat(xw_units(1))
    elif WC:
        flat(w_units(0)); flat(w_units(1))
    a(f"""v_lshrrev_b32 v5, 1, v3
v_xor_b32 v5, v5, v4
v_lshlrev_b32 v5, 4, v5
v_lshl_add_u32 v5, v3, 7, v5
v_add_u32 v5, s37, v5
v_xor_b32 v6, 64, v5""")
    for st in range(3):
        a(f"v_add_u32 v{vX(st,0)}, {st*ST1}, v5")
        a(f"v_add_u32 v{vX(st,1)}, {st*ST1}, v6")
    a(f"""v_lshrrev_b32 v5, 2, v3
v_and_b32 v6, 1, v4
v_lshl_add_u32 v5, v6, 2, v5
v_mul_u32_u24 v5, 1056, v5
v_lshrrev_b32 v6, 1, v4
v_lshl_add_u32 v5, v6, 9, v5
v_and_b32 v6, 3, v3
v_lshl_add_u32 v5, v6, 3, v5""")
    for st in range(3):
        a(f"v_add_u32 v{vW(st)}, {st*ST1 + WREG}, v5")
    def reads(g):
        cc, ks = g // 2, g % 2
        st, p = cc % 3, g & 1
        L = []
        for c in range(n):
            if c < 4: L.append(f"ds_read_b128 v[{XF(p,c)}:{XF(p,c)+3}], v{vX(st,ks)} offset:{2048*c}")
            for tr in range(2):
                L.append(f"ds_read_b64_tr_b16 v[{WF(p,c)+2*tr}:{WF(p,c)+2*tr+1}], v{vW(st)} offset:{ks*8448 + tr*256 + 32*c}")
        return L
    def mfmas(g):
        p = g & 1
        L = []
        for c in range(n):
            for i in range(4):
                acc = f"v[{ACC(i,c)}:{ACC(i,c)+3}]"
                L.append(f"v_mfma_f32_16x16x32_bf16 {acc}, v[{WF(p,c)}:{WF(p,c)+3}], v[{XF(p,i)}:{XF(p,i)+3}], {acc if g else 0}")
        return L
    if o["pf"]:
        assert not WC and o["rot"] == 0
        a(f"""s_and_b32 s26, s35, 7
s_lshl_b32 s26, s26, 5
s_lshl_b32 s27, s34, 8
s_add_u32 s26, s26, s27
s_mul_i32 s26, s26, 1152
s_add_u32 s26, s26, 384
v_and_b32 v5, 31, v0
v_lshrrev_b32 v6, 5, v0
v_mul_u32_u24 v5, 1152, v5
v_lshl_add_u32 v240, v6, 6, v5
s_and_b32 s27, s34, 3
s_add_u32 s27, s27, 192
s_mul_i32 s27, s27, 3456
s_mul_i32 s28, s35, 216
s_add_u32 s27, s27, s28
v_lshrrev_b32 v5, 2, v0
v_and_b32 v6, 3, v0
v_mul_u32_u24 v5, {4*3456}, v5
v_lshl_add_u32 v241, v6, 6, v5
s_mul_i32 s28, s32, {3*128}
s_add_u32 s26, s26, s28
s_sub_u32 s28, s32, 2
s_mul_i32 s28, s28, {3*64*3456}
s_add_u32 s27, s27, s28
s_cmp_lt_u32 s32, 2
s_cselect_b32 s48, s8, s12
s_cselect_b32 s49, s9, s13
s_cselect_b32 s50, s10, s14
s_mov_b32 s51, 0x00020000
s_cselect_b32 s26, s26, s27
s_mov_b32 s27, {64*3456}
s_cselect_b32 s27, 128, s27
s_cselect_b64 vcc, -1, 0
s_nop 1
v_cndmask_b32 v240, v241, v240, vcc""")
    if o["epipipe"]: p1_epilogue_consts(a)
    NC = 12 if XC else 4
    if WC: a(f"s_waitcnt vmcnt({NC})")
    if o["p1pad"] >= 0:
        a(".p2align 6")
        for _ in range(o["p1pad"]): a("s_nop 0")
    a("s_barrier")
    stamp(a, o, 1)
    if o["stamp"]: a("s_memtime s[44:45]")
    for x in reads(0): a(x)
    for g in range(18):
        cc, ks = g // 2, g % 2
        if ks == 1 and cc < 8:
            rem = min(8, cc + 2) - (cc + 1)
            a((f"s_waitcnt vmcnt({NC*rem}) lgkmcnt(0)") if WC else "s_waitcnt lgkmcnt(0)")
            a("s_barrier")
        else:
            a("s_waitcnt lgkmcnt(0)")
        units = []
        if XC:
            if g == 0: units = xw_units(2)
            elif ks == 1 and cc + 3 <= 8: units = xw_units(cc + 3)[:7]
            elif ks == 0 and cc >= 1 and cc + 2 <= 8: units = xw_units(cc + 2)[7:]
        elif WC:
            if g == 0: units = w_units(2)
            elif ks == 1 and cc + 3 <= 8: units = w_units(cc + 3)[:3]
            elif ks == 0 and cc >= 1 and cc + 2 <= 8: units = w_units(cc + 2)[3:]
        rd = reads(g + 1) if g + 1 < 18 else []
        M = mfmas(g)
        slots = [[] for _ in M]
        for idx, x in enumerate(rd): slots[min(idx, len(M)-1)].append(x)
        for idx, u in enumerate(units): slots[min(len(M)-1, 2 + (idx*len(M))//len(units))] += u
        if o["pf"] and g == o["pfstep"]:
            for q in range(3):
                slots[3 + 8*q] += [f"buffer_load_dword v{242+q}, v240, s[48:51], s26 offen", "s_add_u32 s26, s26, s27"]
        if g == (16 if WC else 6):
            a("v_mov_b32 v254, 0")
            a(f"global_load_dword v255, v254, s[{pDBG}:{pDBG+1}] sc1")
        for m, sl in zip(M, slots):
            a(m)
            for x in sl: a(x)
    stamp(a, o, 2)
    if o["stamp"]: a("s_memtime s[46:47]\ns_waitcnt lgkmcnt(0)\ns_sub_u32 s59, s46, s44")
    nonce_fetch(a)
    if o["epipipe"]:
        p1_epilogue_pipe(a, o, ACC, P1F)
        a("s_branch L_p1_done")
    if not o["epipipe"]:
        a(f"""s_waitcnt lgkmcnt(0)
s_mul_i32 s39, s32, {64*RS}
v_mul_u32_u24 v5, {RS}, v3
v_lshl_add_u32 v5, v4, 3, v5
v_add_u32 v5, s39, v5
s_mul_i32 s40, s35, 6
s_sub_u32 s41, 32, s40
s_cmp_lt_u32 s40, 32
s_cselect_b32 s41, s41, 0
s_lshr_b32 s41, s41, 1
s_mul_i32 s41, s41, 9
s_mov_b32 s44, {f32bits(QSCALE)}
s_cmp_eq_u32 s41, 0
s_cbranch_scc1 L_p1_noscale""")
        for c in range(n):
            a(f"""v_add_u32 v6, {4*c}, v4
v_cmp_gt_u32 vcc, s41, v6
v_mov_b32 v7, 1.0
v_mov_b32 v8, s44
v_cndmask_b32 v6, v7, v8, vcc""")
            for i in range(4):
                r = ACC(i, c)
                a(f"v_pk_mul_f32 v[{r}:{r+1}], v[{r}:{r+1}], v[6:7] op_sel_hi:[1,0]")
                a(f"v_pk_mul_f32 v[{r+2}:{r+3}], v[{r+2}:{r+3}], v[6:7] op_sel_hi:[1,0]")
        a.label("L_p1_noscale")
        for c in range(n):
            for i in range(4):
                r = ACC(i, c); P = 40 + 2*((4*c + i) % 16)
                a(f"v_cvt_pk_bf16_f32 v{P}, v{r}, v{r+1}")
                a(f"v_cvt_pk_bf16_f32 v{P+1}, v{r+2}, v{r+3}")
                a(f"ds_write_b64 v5, v[{P}:{P+1}] offset:{i*16*RS + 32*c}")
        a("s_waitcnt lgkmcnt(0)")
        trace(a, o, 0, "a")
        a.label("L_p1_rb")
        srd(a, 16, pWS, WS_USED)
        a(f"""s_mul_i32 s39, s32, {64*RS}
s_mul_i32 s40, s35, 6
v_and_b32 v6, 31, v0
v_lshrrev_b32 v7, 5, v0
v_mul_u32_u24 v8, {RS}, v6
v_lshl_add_u32 v8, v7, 4, v8
v_add_u32 v8, s39, v8
v_lshlrev_b32 v9, 4, v0
v_mul_u32_u24 v10, {RS}, v0
v_add_u32 v10, s39, v10
v_lshlrev_b32 v11, 3, v0
v_lshrrev_b32 v12, 1, v4
v_lshrrev_b32 v13, 2, v3
v_lshl_add_u32 v13, v12, 3, v13
v_mul_u32_u24 v13, {RS}, v13
v_add_u32 v13, s39, v13
v_and_b32 v14, 1, v4
v_and_b32 v15, 3, v3
v_lshlrev_b32 v15, 3, v15
v_mul_u32_u24 v12, 288, v12
s_lshr_b32 s42, s38, 5
s_lshl_b32 s42, s42, 10
s_lshl_b32 s43, s38, 3
s_lshr_b32 s45, s38, 4
s_mul_i32 s45, s45, 576""")
        E8 = o["epi8"]
        if E8: a(f"s_barrier\ns_cmp_ge_u32 s{sWAVE}, 4\ns_cbranch_scc1 L_p1_rb1")
        assert QM_OFF == 0 and KM_OFF == (1 << 22) and KR_OFF - QR_OFF == (1 << 19)
        NH = 3 if E8 else 6
        sKf = (lambda k: 48 + k) if E8 else (lambda k: 20 + k)
        sMf = (lambda k: 52 + k) if E8 else (lambda k: 26 + k)
        sRf = (lambda k: 55 + k) if E8 else (lambda k: 48 + k)
        for hg in range(2 if E8 else 1):
            if hg: a.label("L_p1_rb1")
            for k in range(NH):
                hl = NH*hg + k
                pl, par = hl // 2, hl % 2
                lab = f"L_p1_h{hl}"
                R = 128 + 16*k
                sK, sM, sR = sKf(k), sMf(k), sRf(k)
                a(f"""s_add_u32 s46, s40, {hl}
s_lshr_b32 s{sK}, s46, 5
s_and_b32 s46, s46, 31
s_lshl_b32 s47, s33, 5
s_add_u32 s47, s47, s46
s_cmp_eq_u32 s{sK}, 2
s_cbranch_scc1 {lab}_v""")
                off = 72*pl + 40*par
                a(f"ds_read2_b64 v[{R}:{R+3}], v8 offset0:{off//8} offset1:{off//8+1}")
                a(f"v_add_u32 v{20+2*k}, {32*RS + off}, v8")
                a(f"ds_read2_b64 v[{R+4}:{R+7}], v{20+2*k} offset0:0 offset1:1")
                if par == 0: a(f"ds_read_b64 v[{R+8}:{R+9}], v10 offset:{72*pl + 32}")
                a(f"""s_lshl_b32 s{sM}, s47, 16
s_lshl_b32 s46, s{sK}, 22
s_add_u32 s{sM}, s{sM}, s46
s_add_u32 s{sM}, s{sM}, s42""")
                if par == 0:
                    a(f"""s_lshr_b32 s{sR}, s47, 1
s_lshl_b32 s{sR}, s{sR}, 14
s_add_u32 s{sR}, s{sR}, s43
s_lshl_b32 s46, s{sK}, 19
s_add_u32 s{sR}, s{sR}, s46
s_add_u32 s{sR}, s{sR}, {QR_OFF}""")
                a(f"s_branch {lab}_e")
                a.label(f"{lab}_v")
                a(f"""v_add_u32 v{20+2*k}, {72*pl + 40*par}, v15
v_mov_b32 v17, {72*pl + 32}
v_cmp_eq_u32 vcc, 0, v14
s_mul_i32 s{sM}, s47, {VT_STRIDE}
s_add_u32 s{sM}, s{sM}, s45
v_cndmask_b32 v{20+2*k}, v17, v{20+2*k}, vcc
v_add_u32 v{20+2*k}, v{20+2*k}, v13
s_add_u32 s{sM}, s{sM}, {VT_OFF}""")
                for grp in range(4):
                    for tr in range(2):
                        a(f"ds_read_b64_tr_b16 v[{R+4*grp+2*tr}:{R+4*grp+2*tr+1}], v{20+2*k} offset:{(16*grp + 4*tr)*RS}")
                a(f"""v_add_u32 v17, {16 - 2*par}, v3
v_cndmask_b32 v17, v17, v3, vcc
v_lshl_add_u32 v{21+2*k}, v17, 4, v12""")
                a.label(f"{lab}_e")
            a("s_waitcnt lgkmcnt(0)")
            trace(a, o, 1, f"b{hg}")
            for k in range(NH):
                hl = NH*hg + k
                pl, par = hl // 2, hl % 2
                lab = f"L_p1_s{hl}"
                R = 128 + 16*k
                sK, sM, sR = sKf(k), sMf(k), sRf(k)
                a(f"s_cmp_eq_u32 s{sK}, 2\ns_cbranch_scc1 {lab}_v")
                a(f"buffer_store_dwordx4 v[{R}:{R+3}], v9, s[16:19], s{sM} offen{P1F}")
                a(f"buffer_store_dwordx4 v[{R+4}:{R+7}], v9, s[16:19], s{sM} offen offset:1024{P1F}")
                if par == 0: a(f"buffer_store_dwordx2 v[{R+8}:{R+9}], v11, s[16:19], s{sR} offen{P1F}")
                a(f"s_branch {lab}_e")
                a.label(f"{lab}_v")
                m16 = 0xffff | ((0x3 << (2*par)) << 16)
                a(f"s_mov_b32 exec_lo, {m16}\ns_mov_b32 exec_hi, {m16}")
                for grp in range(4):
                    a(f"buffer_store_dwordx4 v[{R+4*grp}:{R+4*grp+3}], v{21+2*k}, s[16:19], s{sM} offen offset:{576*grp}{P1F}")
                a("s_mov_b64 exec, -1")
                a.label(f"{lab}_e")
            trace(a, o, 2, f"c{hg}")
            if hg == 0 and E8: a("s_branch L_p1_done")
    a.label("L_p1_done")
    a("s_lshl_b32 s39, s33, 4\ns_add_u32 s39, s39, s35\ns_lshl_b32 s39, s39, 3\ns_add_u32 s39, s39, s34")
    signal(a, 39, "p1")

def phase2(a, o):
    NKT, NQ = 64, 2
    QM = lambda j: 16 + 4*j
    QR = 24
    KMn = lambda s: 28 + 6*s
    KRs = lambda s: 32 + 6*s
    V0 = lambda s: 40 + 8*s
    V1 = lambda s: 44 + 8*s
    S = lambda kt, j: 56 + 32*(kt & 1) + 16*j
    O = lambda j: 120 + 16*j
    vL16, vKR, vVa, vVb, vIdx = 2, 3, 4, 5, 6
    T = 152
    name = "p2"
    a(f"""s_and_b32 s18, s2, 7
s_lshr_b32 s19, s2, 3
s_lshr_b32 s12, s19, 2
s_lshl_b32 s18, s18, 3
s_add_u32 s12, s12, s18
s_and_b32 s13, s19, 3
s_mov_b32 s14, s{sWAVE}""")
    a(f"""s_and_b32 s18, s12, 31
s_lshr_b32 s19, s12, 5
s_lshl_b32 s19, s19, 4
v_lshrrev_b32 v7, 3, v0
v_lshlrev_b32 v7, 5, v7
v_add_u32 v7, s18, v7
v_mul_u32_u24 v7, 171, v7
v_lshrrev_b32 v7, 10, v7
v_add_u32 v7, s19, v7
v_and_b32 v8, 7, v0
v_lshl_add_u32 v7, v7, 3, v8
v_lshlrev_b32 v7, 7, v7
v_add_u32 v7, {FLAG_OFF}, v7""")
    srd(a, 8, pWS, WS_USED)
    a(f"""v_lshlrev_b32 v{vL16}, 4, v0
v_and_b32 v8, 31, v0
v_lshlrev_b32 v9, 3, v8
s_mov_b32 s16, 0x0003ffff
s_mov_b32 s17, 0x0003ffff
s_lshl_b32 s30, s14, 10
s_lshl_b32 s25, s12, 16
s_add_u32 s35, s25, {KM_OFF}
s_add_u32 s25, s35, s30
s_mul_i32 s28, s12, {VT_STRIDE}
s_add_u32 s36, s28, {VT_OFF}
s_add_u32 s28, s36, s30
s_lshr_b32 s38, s12, 1
s_lshl_b32 s38, s38, 14
s_and_b32 s39, s12, 1
s_lshl_b32 s39, s39, 2
s_add_u32 s37, s38, {KR_OFF}
s_add_u32 s33, s37, s30
s_add_u32 s29, s30, {LDS_VT}
s_add_u32 s34, s30, {LDS_KR}
s_mov_b32 s26, s30
s_lshl_b32 s18, s13, 4
s_lshl_b32 s19, s14, 1
s_add_u32 s24, s18, s19""")
    def dmaK():
        a("s_mov_b32 m0, s26")
        a("s_add_u32 s26, s26, 8192")
        a(f"buffer_load_dwordx4 v{vL16}, s[8:11], s25 offen sc1 lds")
        a("s_add_u32 s25, s25, 8192")
    def dmaV():
        a("s_mov_b32 m0, s29")
        a("s_add_u32 s29, s29, 8192")
        a(f"buffer_load_dwordx4 v{vL16}, s[8:11], s28 offen sc1 lds")
        a("s_add_u32 s28, s28, 8192")
    def dmaKR1():
        a("s_add_u32 m0, s34, 8192")
        a("s_add_u32 s33, s33, 8192")
        a(f"buffer_load_dwordx4 v{vL16}, s[8:11], s33 offen sc1 lds")
    a(f"""s_lshr_b32 s18, s12, 5
s_and_b32 s19, s12, 31
s_lshl_b32 s46, s18, 21
s_lshl_b32 s21, s24, 15
s_add_u32 s46, s46, s21
s_lshl_b32 s21, s19, 10
s_add_u32 s46, s46, s21
s_add_u32 s46, s46, {OM_OFF}
s_lshl_b32 s47, s18, 18
s_lshl_b32 s21, s24, 12
s_add_u32 s47, s47, s21
s_lshr_b32 s21, s19, 2
s_lshl_b32 s21, s21, 9
s_add_u32 s47, s47, s21
s_and_b32 s21, s19, 3
s_lshl_b32 s21, s21, 2
s_add_u32 s47, s47, s21
s_add_u32 s47, s47, {OR_OFF}
s_lshl_b32 s48, s18, 2
s_add_u32 s48, s48, s13
s_lshl_b32 s48, s48, 5
s_add_u32 s48, s48, s19
s_add_u32 s48, s48, 256
v_lshlrev_b32 v197, 4, v8
s_lshl_b32 s49, s12, 16
s_lshl_b32 s19, s24, 10
s_add_u32 s49, s49, s19
s_lshl_b32 s20, s24, 8
s_add_u32 s50, s38, s20
s_add_u32 s50, s50, s39
s_add_u32 s50, s50, {QR_OFF}
v_lshlrev_b32 v196, 3, v0""")
    if o["wopf"]:
        a(f"""s_cmp_lt_u32 s12, 32
s_cselect_b32 s20, s{pAWO}, s{pBWO}
s_cselect_b32 s21, s{pAWO+1}, s{pBWO+1}
s_mov_b32 s22, {WO_BYTES}
s_mov_b32 s23, 0x00020000
s_lshr_b32 s18, s2, 3
s_lshl_b32 s18, s18, 3
s_add_u32 s18, s18, s14
s_lshl_b32 s27, s18, 12
v_lshlrev_b32 v198, 6, v0""")
    late = [dmaK, dmaV, dmaKR1, dmaK, dmaV, dmaK, dmaV] + [dmaK, dmaV]*4
    sched = {0: late[0:3], 1: late[3:5], 2: late[5:7], 3: late[7:9], 4: late[9:11], 5: late[11:13], 6: late[13:15]}
    a(f"""v_lshrrev_b32 v10, 5, v0
v_add_u32 v{vKR}, {LDS_KR}, v9
v_add_u32 v{vKR}, s39, v{vKR}
v_mul_u32_u24 v11, 288, v10
v_lshlrev_b32 v12, 4, v8
v_add_u32 v27, v11, v12
v_add_u32 v{vVa}, {LDS_VT}, v27
v_add_u32 v{vVb}, {LDS_VT + 32*1152}, v27
v_mov_b32 v{vIdx}, 0xdddd
v_and_b32 v13, 27, v8
v_cmp_eq_u32 vcc, 18, v13
v_mov_b32 v14, 0x3f803f80
v_mov_b32 v15, 0
v_cndmask_b32 v13, v15, v14, vcc""")
    for s in range(2):
        a(f"v_mov_b32 v{KRs(s)+1}, 0x3f803f80")
        for i in range(4):
            a(f"v_mov_b32 v{V0(s)+i}, v13")
            a(f"v_mov_b32 v{V1(s)+i}, v13")
    a(f"v_mov_b32 v{QR+1}, 0")
    for j in range(NQ):
        for i in range(16): a(f"v_mov_b32 v{O(j)+i}, 0")
    poll(a, 7, 0xffffff, "p1")
    stamp(a, o, 4)
    a("s_mov_b32 m0, s34")
    a("s_nop 0")
    a(f"buffer_load_dwordx4 v{vL16}, s[8:11], s33 offen sc1 lds")
    dmaK(); dmaV(); dmaV()
    for j in range(NQ):
        a(f"buffer_load_dwordx4 v[{QM(j)}:{QM(j)+3}], v{vL16}, s[8:11], s49 offen offset:{1024*j} sc1")
    a(f"buffer_load_dword v{QR}, v196, s[8:11], s50 offen sc1")
    a("s_waitcnt vmcnt(0)")
    a("s_barrier")
    stamp(a, o, 5)
    if o["stamp"]: a("s_memtime s[52:53]")
    def rdK(kt):
        s = kt & 1
        a(f"ds_read_b128 v[{KMn(s)}:{KMn(s)+3}], v{vL16} offset:{kt*1024}")
        a(f"ds_read_b32 v{KRs(s)}, v{vKR} offset:{kt*256}")
    def rdV(kt):
        s = kt & 1
        base, off = (vVa, kt*1152) if kt < 32 else (vVb, (kt-32)*1152)
        a("s_mov_b64 exec, s[16:17]")
        a(f"ds_read_b128 v[{V0(s)}:{V0(s)+3}], v{base} offset:{off}")
        a(f"ds_read_b128 v[{V1(s)}:{V1(s)+3}], v{base} offset:{off+576}")
        a("s_mov_b64 exec, -1")
    def qk_res(kt, ks=None):
        s = (kt & 1) if ks is None else ks; sb = S(kt, 0)
        a(f"v_mfma_f32_32x32x4_2b_bf16 v[{sb}:{sb+31}], v[{KRs(s)}:{KRs(s)+1}], v[{QR}:{QR+1}], 0")
    def qk_main(kt, j, ks=None):
        s = (kt & 1) if ks is None else ks; sb = S(kt, j)
        a(f"v_mfma_f32_32x32x16_bf16 v[{sb}:{sb+15}], v[{KMn(s)}:{KMn(s)+3}], v[{QM(j)}:{QM(j)+3}], v[{sb}:{sb+15}]")
    def pv(kt, j, half, vs=None):
        s = (kt & 1) if vs is None else vs
        v = V0(s) if half == 0 else V1(s)
        a(f"v_smfmac_f32_32x32x32_bf16 v[{O(j)}:{O(j)+15}], v[{v}:{v+3}], v[{S(kt,j)+8*half}:{S(kt,j)+8*half+7}], v{vIdx}")
    def ex(kt, j, i):
        r = S(kt, j) + i
        a(f"v_exp_f32 v{r}, v{r}")
    def loop(copy, prio):
        if o["p2pad"] >= 0:
            a(".p2align 6")
            for _ in range(o["p2pad"]): a("s_nop 0")
        rdK(0); rdV(0)
        a("s_waitcnt lgkmcnt(0)")
        qk_res(0)
        rdK(1)
        a("s_nop 15")
        a("s_nop 1")
        qk_main(0, 0); qk_main(0, 1)
        a("s_nop 7")
        a("s_nop 3")
        def tile(kt, rel=None):
            if rel is None:
                if kt == o["bar1"] or (kt == o["bar2"] and not ROLL):
                    a(f"s_waitcnt vmcnt({4 if kt == o['bar1'] else 0})")
                    a("s_barrier")
                if kt in sched:
                    for f in sched[kt]: f()
                if kt == 9 and o["wopf"]:
                    a("buffer_load_dword v199, v198, s[20:23], s27 offen")
            p = prio(kt)
            a(f"s_setprio {p}" if p is not None else "s_nop 0")
            a("s_waitcnt lgkmcnt(0)")
            if kt > 0: pv(kt-1, 1, 1)
            if kt + 1 < NKT:
                if rel is None: rdV(kt+1)
                else:
                    s_ = (kt+1) & 1; off = (kt+1-rel)*1152
                    a("s_mov_b64 exec, s[16:17]")
                    a(f"ds_read_b128 v[{V0(s_)}:{V0(s_)+3}], v206 offset:{off}")
                    a(f"ds_read_b128 v[{V1(s_)}:{V1(s_)+3}], v206 offset:{off+576}")
                    a("s_mov_b64 exec, -1")
            for i in range(0, 4): ex(kt, 0, i)
            if kt + 1 < NKT: qk_res(kt+1)
            for i in range(4, 12): ex(kt, 0, i)
            pv(kt, 0, 0)
            for i in range(12, 16): ex(kt, 0, i)
            if kt + 2 < NKT:
                if rel is None: rdK(kt+2)
                else:
                    s_ = kt & 1
                    a(f"ds_read_b128 v[{KMn(s_)}:{KMn(s_)+3}], v204 offset:{(kt+2-rel)*1024}")
                    a(f"ds_read_b32 v{KRs(s_)}, v205 offset:{(kt+2-rel)*256}")
            else: a("s_nop 1")
            pv(kt, 0, 1)
            for i in range(4): ex(kt, 1, i)
            if kt + 1 < NKT: qk_main(kt+1, 0)
            for i in range(4, 8): ex(kt, 1, i)
            if kt + 1 < NKT: qk_main(kt+1, 1)
            for i in range(8, 12): ex(kt, 1, i)
            pv(kt, 1, 0)
            for i in range(12, 16): ex(kt, 1, i)
        ROLL = o["roll"]
        if not ROLL:
            for kt in range(NKT): tile(kt)
        else:
            G = len(o["pat"]); L0 = 10; NIT = (NKT - 2 - L0) // G
            assert G % 2 == 0
            for kt in range(L0): tile(kt)
            a(f"""v_add_u32 v204, {L0*1024}, v{vL16}
v_add_u32 v205, {L0*256}, v{vKR}
v_add_u32 v206, {L0*1152}, v{vVa}
s_mov_b32 s44, 0""")
            itb = -(-(30 - L0 - G + 1) // G)
            itb = (28 - L0) // G
            a.label(f"L_p2_roll{copy}")
            a(f"""s_cmp_lg_u32 s44, {itb}
s_cbranch_scc1 L_p2_rnb{copy}
s_waitcnt vmcnt(0)
s_barrier""")
            a.label(f"L_p2_rnb{copy}")
            for u in range(G): tile(L0 + u, rel=L0)
            a(f"""v_add_u32 v204, {G*1024}, v204
v_add_u32 v205, {G*256}, v205
v_add_u32 v206, {G*1152}, v206
s_add_u32 s44, s44, 1
s_cmp_lt_u32 s44, {NIT}
s_cbranch_scc1 L_p2_roll{copy}""")
            for kt in range(L0 + NIT*G, NKT): tile(kt)
        a("s_nop 1")
        pv(NKT-1, 1, 1)
        a("s_setprio 0")
    if o["dual"]:
        a(f"s_cmp_ge_u32 s14, 4\ns_cbranch_scc1 L_p2_loopB")
        loop(0, lambda kt: 1 if kt == 0 else None)
        a("s_branch L_p2_loopdone")
        a.label("L_p2_loopB")
        pat = o["pat"]
        def pr(kt):
            cur = pat[kt % len(pat)]
            prev = pat[(kt-1) % len(pat)] if kt else None
            return cur if cur != prev else None
        loop(1, pr)
        a.label("L_p2_loopdone")
    else:
        loop(0, lambda kt: None)
    stamp(a, o, 6)
    if o["stamp"]:
        a(f"""s_memtime s[54:55]
s_waitcnt lgkmcnt(0)
s_cmp_lg_u32 s14, {99 if o.get("p1trace") else 4}
s_cbranch_scc1 L_p2_nw4
s_sub_u32 s56, s54, s52
s_sub_u32 s57, s94, s92
s_lshl_b32 s40, s2, 6
s_add_u32 s40, s40, {WS_USED}
v_mov_b32 v200, s40
v_mov_b32 v202, s56
v_mov_b32 v203, s57
s_mov_b64 exec, 1
global_store_dwordx2 v200, v[202:203], s[{pWS}:{pWS+1}] offset:48
s_mov_b64 exec, -1""")
        a.label("L_p2_nw4")
    a("s_nop 7")
    a("s_nop 7")
    a("s_mov_b64 s[20:21], 0")
    a("s_mov_b32 s22, 0x53800000")
    a("s_mov_b32 s23, 0x2b800000")
    for j in range(NQ):
        a(f"v_mul_f32 v{T}, 0, v{O(j)}")
        for i in range(1, 10): a(f"v_fma_f32 v{T}, v{O(j)+i}, 0, v{T}")
        a(f"v_add_f32 v{T}, v{T}, v{O(j)+10}")
        a(f"v_cmp_ngt_f32 vcc, s22, v{T}")
        a("s_or_b64 s[20:21], s[20:21], vcc")
        a(f"v_cmp_nlt_f32 vcc, s23, v{T}")
        a("s_or_b64 s[20:21], s[20:21], vcc")
    if o.get("halflds"): a("s_mov_b64 s[20:21], 0")
    a(f"""s_cmp_eq_u64 s[20:21], 0
s_cbranch_scc0 L_p2_fallback""")
    a.label("L_p2_store")
    for j in range(NQ):
        a(f"v_rcp_f32 v{T}, v{O(j)+10}")
        a("s_nop 0")
        for i in range(10): a(f"v_mul_f32 v{O(j)+i}, v{O(j)+i}, v{T}")
        P = T + 2 + 6*j
        for i in range(4): a(f"v_cvt_pk_bf16_f32 v{P+i}, v{O(j)+2*i}, v{O(j)+2*i+1}")
        a(f"v_cvt_pk_bf16_f32 v{P+4}, v{O(j)+8}, v{O(j)+9}")
        a(f"buffer_store_dwordx4 v[{P}:{P+3}], v{vL16}, s[8:11], s46 offen sc1")
        a("s_mov_b32 exec_hi, 0")
        a(f"buffer_store_dword v{P+4}, v197, s[8:11], s47 offen sc1")
        a("s_mov_b32 exec_hi, -1")
        if j == 0: a("s_add_u32 s46, s46, 32768\ns_add_u32 s47, s47, 4096")
    signal(a, 48, "p2")
    a("s_branch L_p2_end")
    a.label("L_p2_fallback")
    MX = T
    a(f"""v_mov_b32 v{MX}, 0xff800000
v_mov_b32 v{MX+1}, 0xff800000
v_mov_b32 v{QR+1}, 0
v_mov_b32 v{MX+4}, v{vL16}
v_mov_b32 v{MX+5}, v{vKR}
s_mov_b32 s18, {NKT}""")
    a.label("L_p2_fb1")
    a(f"""ds_read_b128 v[{KMn(0)}:{KMn(0)+3}], v{MX+4}
ds_read_b32 v{KRs(0)}, v{MX+5}
v_add_u32 v{MX+4}, 1024, v{MX+4}
v_add_u32 v{MX+5}, 256, v{MX+5}
s_waitcnt lgkmcnt(0)""")
    qk_res(0, 0)
    a("s_nop 15\ns_nop 3")
    qk_main(0, 0, 0); qk_main(0, 1, 0)
    a("s_nop 15")
    for j in range(NQ):
        for i in range(8): a(f"v_max3_f32 v{MX+j}, v{MX+j}, v{S(0,j)+2*i}, v{S(0,j)+2*i+1}")
    a(f"""s_sub_u32 s18, s18, 1
s_cmp_lg_u32 s18, 0
s_cbranch_scc1 L_p2_fb1""")
    x, y, hi, mid = MX+6, MX+7, MX+8, MX+9
    for j in range(NQ):
        a(f"""v_mov_b32 v{x}, v{MX+j}
v_mov_b32 v{y}, v{MX+j}
s_nop 1
v_permlane32_swap_b32 v{x}, v{y}
s_nop 1
v_max_f32 v{MX+j}, v{x}, v{y}""")
    a(f"""v_cmp_gt_u32 vcc, 32, v0
s_nop 1
v_cndmask_b32 v{x}, v{MX+1}, v{MX}, vcc
v_and_b32 v{hi}, 0xffff0000, v{x}
v_sub_f32 v{x}, v{x}, v{hi}
v_and_b32 v{mid}, 0xffff0000, v{x}
v_xor_b32 v{hi}, 0x80000000, v{hi}
v_xor_b32 v{mid}, 0x80000000, v{mid}
v_lshrrev_b32 v{hi}, 16, v{hi}
v_or_b32 v{QR+1}, v{hi}, v{mid}""")
    for j in range(NQ):
        for i in range(16): a(f"v_mov_b32 v{O(j)+i}, 0")
    a(f"""v_mov_b32 v{MX+4}, v{vL16}
v_mov_b32 v{MX+5}, v{vKR}
v_mov_b32 v{MX+6}, v{vVa}
s_mov_b32 s18, {NKT}""")
    a.label("L_p2_fb2")
    a(f"""ds_read_b128 v[{KMn(0)}:{KMn(0)+3}], v{MX+4}
ds_read_b32 v{KRs(0)}, v{MX+5}
s_mov_b64 exec, s[16:17]
ds_read_b128 v[{V0(0)}:{V0(0)+3}], v{MX+6}
ds_read_b128 v[{V1(0)}:{V1(0)+3}], v{MX+6} offset:576
s_mov_b64 exec, -1
v_add_u32 v{MX+4}, 1024, v{MX+4}
v_add_u32 v{MX+5}, 256, v{MX+5}
v_add_u32 v{MX+6}, 1152, v{MX+6}
s_waitcnt lgkmcnt(0)""")
    qk_res(0, 0)
    a("s_nop 15\ns_nop 3")
    qk_main(0, 0, 0); qk_main(0, 1, 0)
    a("s_nop 15")
    for j in range(NQ):
        for i in range(16): ex(0, j, i)
    a("s_nop 1")
    for j in range(NQ):
        pv(0, j, 0, 0); pv(0, j, 1, 0)
    a(f"""s_sub_u32 s18, s18, 1
s_cmp_lg_u32 s18, 0
s_cbranch_scc1 L_p2_fb2
s_nop 7
s_nop 7
s_branch L_p2_store""")
    a.label("L_p2_end")

def phase3(a, o):
    OF = lambda ks: 64 + 4*ks
    WF = lambda p, c: 144 + 24*p + 4*c
    ACC = lambda c: 16 + 4*c
    vL, vWa, vWb, vWr, vWD = 1, 2, 3, 4, 5
    D = o["p3depth"]
    a(f"""s_cmp_ge_u32 s2, 192
s_cbranch_scc1 L_end
s_and_b32 s30, s2, 7
s_lshr_b32 s31, s2, 3
s_mov_b32 s32, s{sWAVE}
s_lshr_b32 s33, s30, 2
s_and_b32 s34, s30, 3
s_lshl_b32 s34, s34, 2
s_and_b32 s35, s31, 3
s_add_u32 s34, s34, s35
s_lshr_b32 s35, s31, 2
s_lshl_b32 s36, s34, 2
s_lshr_b32 s37, s32, 1
s_add_u32 s36, s36, s37""")
    a(f"""v_mul_u32_u24 v9, 37, v0
v_lshrrev_b32 v9, 9, v9
v_mul_u32_u24 v10, 14, v9
v_sub_u32 v10, v0, v10
v_mul_u32_u24 v9, 1152, v9
v_lshl_add_u32 v{vWD}, v10, 4, v9
v_mov_b32 v11, 0x40000000
v_cmp_gt_u32 vcc, 12, v10
s_cmp_eq_u32 s33, 0
s_cselect_b32 s8, s{pAWO}, s{pBWO}
v_cndmask_b32 v{vWD}, v11, v{vWD}, vcc
s_cselect_b32 s9, s{pAWO+1}, s{pBWO+1}
s_mov_b32 s10, {WO_BYTES}
s_mov_b32 s11, 0x00020000
s_mul_i32 s22, s32, {4*1152}
s_mul_i32 s23, s35, 192
s_add_u32 s22, s22, s23
s_mul_i32 s23, s32, {4*WO_RS}
s_mov_b32 exec_hi, 0x00ffffff""")
    for r in range(18):
        a("s_mov_b32 m0, s23")
        a(f"s_add_u32 s23, s23, {32*WO_RS}")
        a(f"buffer_load_dwordx4 v{vWD}, s[8:11], s22 offen lds")
        a(f"s_add_u32 s22, s22, {32*1152}")
    a("s_mov_b32 exec_hi, -1")
    a(f"""v_and_b32 v7, 15, v0
v_lshrrev_b32 v8, 4, v0
v_lshlrev_b32 v9, 9, v8
v_lshl_add_u32 v{vL}, v7, 4, v9
s_and_b32 s37, s32, 1
s_lshl_b32 s37, s37, 8
v_add_u32 v{vL}, s37, v{vL}
v_lshrrev_b32 v9, 1, v8
v_mul_u32_u24 v9, 20, v9
v_and_b32 v10, 1, v8
v_lshl_add_u32 v9, v10, 2, v9
v_lshrrev_b32 v10, 2, v7
v_add_u32 v9, v9, v10
v_mul_u32_u24 v9, {WO_RS}, v9
v_and_b32 v11, 3, v7
v_lshl_add_u32 v{vWa}, v11, 3, v9
v_add_u32 v{vWb}, {7*36*WO_RS}, v{vWa}
v_lshlrev_b32 v9, 2, v8
v_lshrrev_b32 v12, 1, v10
v_add_u32 v9, v9, v12
v_mul_u32_u24 v9, 18, v9
v_and_b32 v13, 1, v10
v_add_u32 v9, v9, v13
v_xor_b32 v12, 1, v12
v_lshl_add_u32 v9, v12, 4, v9
v_mul_u32_u24 v9, {WO_RS}, v9
v_lshl_add_u32 v{vWr}, v11, 3, v9
v_add_u32 v14, {288*WO_RS}, v{vWr}
v_add_u32 v15, {14*36*WO_RS}, v{vWa}
s_lshr_b32 s37, s34, 2
s_lshl_b32 s38, s33, 2
s_add_u32 s37, s37, s38
s_lshl_b32 s37, s37, 5
s_add_u32 s37, s37, 256
v_add_u32 v6, s37, v0
v_lshlrev_b32 v6, 7, v6
v_add_u32 v6, {FLAG_OFF}, v6""")
    srd(a, 16, pWS, WS_USED)
    srd(a, 12, pOUT, OUT_BYTES)
    a(f"""s_lshl_b32 s20, s33, 21
s_lshl_b32 s21, s36, 15
s_add_u32 s20, s20, s21
s_add_u32 s20, s20, {OM_OFF}
s_lshl_b32 s21, s33, 18
s_lshl_b32 s22, s36, 12
s_add_u32 s21, s21, s22
s_add_u32 s21, s21, {OR_OFF}
s_waitcnt vmcnt(0)""")
    poll(a, 6, -1, "p2")
    stamp(a, o, 8)
    def oload(ks):
        if ks < 16:
            L = [f"buffer_load_dwordx4 v[{OF(ks)}:{OF(ks)+3}], v{vL}, s[16:19], s20 offen offset:{(ks%2)*2048} sc1"]
            if ks % 2 == 1: L.append("s_add_u32 s20, s20, 4096")
            return L
        return [f"buffer_load_dwordx4 v[{OF(ks)}:{OF(ks)+3}], v{vL}, s[16:19], s21 offen offset:{(ks-16)*2048} sc1"]
    def reads(ks, p):
        L = []
        for c in range(6):
            for t in range(2):
                if ks < 16:
                    base, k0 = (vWa, ks) if ks < 7 else ((vWb, ks - 7) if ks < 14 else (15, ks - 14))
                    off = (36*k0 + 8*t)*WO_RS + 32*c
                else:
                    base = vWr if ks == 16 else 14
                    off = 36*t*WO_RS + 32*c
                L.append(f"ds_read_b64_tr_b16 v[{WF(p,c)+2*t}:{WF(p,c)+2*t+1}], v{base} offset:{off}")
        return L
    def mfmas(ks):
        p = ks & 1
        return [f"v_mfma_f32_16x16x32_bf16 v[{ACC(c)}:{ACC(c)+3}], v[{WF(p,c)}:{WF(p,c)+3}], v[{OF(ks)}:{OF(ks)+3}], " + (f"v[{ACC(c)}:{ACC(c)+3}]" if ks else "0")
                for c in range(6)]
    for ks in range(D):
        for x in oload(ks): a(x)
    for x in reads(0, 0): a(x)
    for ks in range(18):
        issued = min(17, ks + D - 1)
        a(f"s_waitcnt vmcnt({issued - ks}) lgkmcnt(0)")
        rd = reads(ks+1, (ks+1) & 1) if ks + 1 < 18 else []
        M = mfmas(ks)
        if ks + D < 18:
            for x in oload(ks + D): a(x)
        for idx, m in enumerate(M):
            a(m)
            for x in rd[2*idx:2*idx+2]: a(x)
    stamp(a, o, 9)
    a(f"""s_mul_i32 s23, s32, {16*208}
s_add_u32 s23, s23, {WO_IMG}
v_mul_u32_u24 v9, 208, v7
v_lshl_add_u32 v9, v8, 3, v9
v_add_u32 v9, s23, v9
s_nop 3""")
    for c in range(6):
        r = ACC(c); P = 64 + 2*c
        a(f"v_cvt_pk_bf16_f32 v{P}, v{r}, v{r+1}")
        a(f"v_cvt_pk_bf16_f32 v{P+1}, v{r+2}, v{r+3}")
        a(f"ds_write_b64 v9, v[{P}:{P+1}] offset:{32*c}")
    a(f"""s_lshl_b32 s20, s36, 5
s_and_b32 s21, s32, 1
s_lshl_b32 s21, s21, 4
s_add_u32 s20, s20, s21
s_mul_i32 s20, s20, 2304
s_mul_i32 s21, s33, 1152
s_add_u32 s20, s20, s21
s_mul_i32 s21, s35, 192
s_add_u32 s20, s20, s21
s_mov_b32 s22, 5462""")
    for k in range(3):
        a(f"""v_add_u32 v10, {64*k}, v0
v_mul_u32_u24 v11, s22, v10
v_lshrrev_b32 v11, 16, v11
v_mul_u32_u24 v12, 12, v11
v_sub_u32 v12, v10, v12
v_mul_u32_u24 v13, 208, v11
v_lshl_add_u32 v13, v12, 4, v13
v_add_u32 v{100+k}, s23, v13
v_mul_u32_u24 v13, 2304, v11
v_lshl_add_u32 v{110+k}, v12, 4, v13""")
    a("s_waitcnt lgkmcnt(0)")
    for k in range(3): a(f"ds_read_b128 v[{120+4*k}:{123+4*k}], v{100+k}")
    for k in range(3):
        a(f"s_waitcnt lgkmcnt({2-k})")
        a(f"buffer_store_dwordx4 v[{120+4*k}:{123+4*k}], v{110+k}, s[12:15], s20 offen{o['outflag']}")

def gen(opts=None):
    o = dict(stamp=False, bar1=5, bar2=26, rot=3, dual=True, pat=[2,2,2,2,2,2,0], wopf=True, wcomp=False, xcomp=False, pf=False, pfstep=0, p3depth=8, outflag='', midnop=True, p1f=' sc1', epi8=False, epipipe=True, roll=False, p2pad=-1, p1pad=-1)
    if opts: o.update(opts)
    a = A()
    a(f".globl {NAME}\n.p2align 8\n.type {NAME},@function")
    a.label(NAME)
    a(f"""s_cmp_ge_u32 s2, 256
s_cbranch_scc1 L_exit
s_load_dwordx16 s[{sP}:{sP+15}], s[0:1], 0
s_load_dwordx2 s[{pWS}:{pWS+1}], s[0:1], 64
v_lshrrev_b32 v1, 6, v0
v_and_b32 v0, 63, v0
s_nop 0
v_readfirstlane_b32 s{sWAVE}, v1""")
    stamp(a, o, 0)
    a("s_nop 3")
    nonce_publish(a)
    phase1(a, o)
    stamp(a, o, 3)
    a("; ================================================= P2: attention")
    phase2(a, o)
    stamp(a, o, 7)
    phase3(a, o)
    a.label("L_end")
    if o["stamp"]:
        a(f"""s_cmp_lg_u32 s{sWAVE}, 0
s_cbranch_scc1 L_exit
s_memrealtime s[42:43]
s_waitcnt lgkmcnt(0)
s_lshl_b32 s40, s2, 6
s_add_u32 s40, s40, {WS_USED}
v_mov_b32 v2, s40
s_mov_b64 exec, 1""")
        for i in range(11):
            a(f"v_mov_b32 v3, s{82+2*i if i < 10 else 42}")
            a(f"global_store_dword v2, v3, s[{pWS}:{pWS+1}] offset:{4*i}")
        a("s_sub_u32 s54, s54, s52\nv_mov_b32 v3, s54")
        a(f"global_store_dword v2, v3, s[{pWS}:{pWS+1}] offset:44")
        if not o.get("p1trace"):
            a("v_mov_b32 v3, s59")
            a(f"global_store_dword v2, v3, s[{pWS}:{pWS+1}] offset:56")
        if o.get("p3trace"):
            for c in range(4):
                a(f"s_sub_u32 s40, s{44+2*c}, s98\nv_mov_b32 v3, s40")
                a(f"global_store_dword v2, v3, s[{pWS}:{pWS+1}] offset:{48+4*c}")
        if o.get("dbgstamp"):
            a(f"s_cmp_lg_u32 s2, {o['dbgstamp']}\ns_cbranch_scc1 L_exit\nv_mov_b32 v2, 0")
            for i in range(11):
                src = 82+2*i if i < 10 else 42
                a(f"s_sub_u32 s44, s{src}, s82" if i else "s_mov_b32 s44, s82")
                a("v_mov_b32 v3, s44")
                a(f"global_store_dword v2, v3, s[{pDBG}:{pDBG+1}] offset:{4*(i+1)}")
    a.label("L_exit")
    a("s_endpgm")
    return a.text(), kdesc(NAME, 256, 102)
```

```python
from asmlib import *
NAME = "concat_heads__mha_block__mha_block__prompt_kernel"
THREADS = 512
ST1 = 49664
WREG = 32768
RS = 232
LDS_KM, LDS_VT, LDS_KR = 0, 65536, 139264
WO_RS = 224
WO_IMG = 576 * WO_RS
K3_STG = 32 * 208
LDS_BYTES = 155648
SPIN_MAX = 400000
sWAVE = 3
sP = 64
pAX, pAW, pAWO, pBX, pBW, pBWO, pOUT, pDBG, pWS = [sP + 2*i for i in range(9)]
CNT1 = 0
CNT2 = 128

def srd(a, d, p, nbytes):
    a(f"s_mov_b32 s{d}, s{p}\ns_mov_b32 s{d+1}, s{p+1}\ns_mov_b32 s{d+2}, {nbytes}\ns_mov_b32 s{d+3}, 0x00020000")

def stamp(a, o, idx):
    if o["stamp"]:
        a(f"s_memrealtime s[{82+2*idx}:{83+2*idx}]")

sNONCE = 63
def trace(a, o, k, tag):
    if o.get("p1trace"):
        a(f"""s_cmp_lg_u32 s{sWAVE}, {o['p1trace']-1}
s_cbranch_scc1 L_tr_{tag}
s_memrealtime s[60:61]
s_waitcnt lgkmcnt(0)
s_lshl_b32 s62, s2, 6
s_add_u32 s62, s62, {WS_USED}
v_mov_b32 v250, s62
v_mov_b32 v251, s60
s_mov_b64 exec, 1
global_store_dword v250, v251, s[{pWS}:{pWS+1}] offset:{48+4*k}
s_mov_b64 exec, -1""")
        a.label(f"L_tr_{tag}")

def nonce_publish(a):
    a(f"""s_cmp_lg_u32 s2, 0
s_cbranch_scc1 L_nonce_done
s_cmp_lg_u32 s{sWAVE}, 0
s_cbranch_scc1 L_nonce_done
s_memrealtime s[40:41]
s_waitcnt lgkmcnt(0)
s_or_b32 s40, s40, 1
v_mov_b32 v2, 0
v_mov_b32 v3, s40
s_mov_b64 exec, 1
global_store_dword v2, v3, s[{pDBG}:{pDBG+1}] sc1
s_mov_b64 exec, -1""")
    a.label("L_nonce_done")

def nonce_fetch(a):
    a(f"""s_cmp_lg_u32 s{sWAVE}, 0
s_cbranch_scc1 L_nf_done
s_mov_b32 s58, 0""")
    a.label("L_nf_loop")
    a(f"""s_waitcnt vmcnt(0)
v_readfirstlane_b32 s{sNONCE}, v255
s_add_u32 s58, s58, 1
s_cmp_lg_u32 s{sNONCE}, 0
s_cbranch_scc1 L_nf_done
s_sleep 4
global_load_dword v255, v254, s[{pDBG}:{pDBG+1}] sc1
s_cmp_lt_u32 s58, {SPIN_MAX}
s_cbranch_scc1 L_nf_loop""")
    a.label("L_nf_done")

def signal(a, line_sgpr, tag):
    a("s_waitcnt vmcnt(0)")
    a("s_barrier")
    a(f"""s_cmp_lg_u32 s{sWAVE}, 0
s_cbranch_scc1 L_sig_{tag}
s_lshl_b32 s{line_sgpr}, s{line_sgpr}, 7
s_add_u32 s{line_sgpr}, s{line_sgpr}, {FLAG_OFF}
v_mov_b32 v254, s{line_sgpr}
v_mov_b32 v255, s{sNONCE}
s_mov_b64 exec, 1
global_store_dword v254, v255, s[{pWS}:{pWS+1}] sc1
s_mov_b64 exec, -1""")
    a.label(f"L_sig_{tag}")

def poll(a, addr_vgpr, nlanes_mask_lo, tag):
    a(f"""s_cmp_lg_u32 s{sWAVE}, 0
s_cbranch_scc1 L_polled_{tag}
s_mov_b32 s40, 0
s_mov_b32 exec_hi, 0
s_mov_b32 exec_lo, {nlanes_mask_lo}""")
    a.label(f"L_poll_{tag}")
    a(f"""global_load_dword v255, v{addr_vgpr}, s[{pWS}:{pWS+1}] sc1
s_add_u32 s40, s40, 1
s_waitcnt vmcnt(0)
v_cmp_ne_u32 vcc, s{sNONCE}, v255
s_cmp_eq_u64 vcc, 0
s_cbranch_scc1 L_pollok_{tag}
s_sleep 1
s_cmp_lt_u32 s40, {SPIN_MAX}
s_cbranch_scc1 L_poll_{tag}""")
    a.label(f"L_pollok_{tag}")
    a("s_mov_b64 exec, -1")
    a.label(f"L_polled_{tag}")
    a("s_barrier")

def p1_epilogue_consts(a):
    srd(a, 16, pWS, WS_USED)
    a(f"""s_mul_i32 s39, s32, {64*RS}
s_mul_i32 s40, s35, 6
v_mul_u32_u24 v5, {RS}, v3
v_lshl_add_u32 v5, v4, 3, v5
v_add_u32 v2, s39, v5
v_and_b32 v6, 31, v0
v_lshrrev_b32 v7, 5, v0
v_mul_u32_u24 v8, {RS}, v6
v_lshl_add_u32 v8, v7, 4, v8
v_add_u32 v8, s39, v8
v_lshlrev_b32 v9, 4, v0
v_mul_u32_u24 v10, {RS}, v0
v_add_u32 v10, s39, v10
v_lshlrev_b32 v11, 3, v0
v_lshrrev_b32 v12, 1, v4
v_lshrrev_b32 v13, 2, v3
v_lshl_add_u32 v13, v12, 3, v13
v_mul_u32_u24 v13, {RS}, v13
v_add_u32 v13, s39, v13
v_and_b32 v14, 1, v4
v_and_b32 v15, 3, v3
v_lshlrev_b32 v15, 3, v15
v_mul_u32_u24 v12, 288, v12
s_lshr_b32 s42, s38, 5
s_lshl_b32 s42, s42, 10
s_lshl_b32 s43, s38, 3
s_lshr_b32 s27, s38, 4
s_mul_i32 s27, s27, 576
s_sub_u32 s41, 32, s40
s_cmp_lt_u32 s40, 32
s_cselect_b32 s41, s41, 0
s_lshr_b32 s41, s41, 1
s_mul_i32 s41, s41, 9""")

def p1_epilogue_pipe(a, o, ACC, P1F):
    assert QM_OFF == 0 and KM_OFF == (1 << 22) and KR_OFF - QR_OFF == (1 << 19)
    a(f"s_mov_b32 s28, {f32bits(QSCALE)}")
    for hl in range(6): a(f"v_mov_b32 v{21+2*hl}, 0")
    cnt = [0]
    def stage(c):
        a(f"s_cmp_le_u32 s41, {4*c}\ns_cbranch_scc1 L_p1_ns{c}")
        a(f"""v_add_u32 v6, {4*c}, v4
v_cmp_gt_u32 vcc, s41, v6
v_mov_b32 v7, 1.0
v_mov_b32 v241, s28
v_cndmask_b32 v6, v7, v241, vcc""")
        for i in range(4):
            r = ACC(i, c)
            a(f"v_pk_mul_f32 v[{r}:{r+1}], v[{r}:{r+1}], v[6:7] op_sel_hi:[1,0]")
            a(f"v_pk_mul_f32 v[{r+2}:{r+3}], v[{r+2}:{r+3}], v[6:7] op_sel_hi:[1,0]")
        a.label(f"L_p1_ns{c}")
        for i in range(4):
            r = ACC(i, c); P = 40 + 2*(cnt[0] % 16); cnt[0] += 1
            a(f"v_cvt_pk_bf16_f32 v{P}, v{r}, v{r+1}")
            a(f"v_cvt_pk_bf16_f32 v{P+1}, v{r+2}, v{r+3}")
            a(f"ds_write_b64 v2, v[{P}:{P+1}] offset:{i*16*RS + 32*c}")
    RR = lambda hl: 128 + 16*hl
    sK = lambda hl: 20 + hl
    sM = lambda hl: 52 + hl if hl < 6 else None
    sR = lambda hl: 48 + hl//2
    def reads(hl):
        pl, par = hl // 2, hl % 2
        lab = f"L_p1_h{hl}"; R = RR(hl); va = 20 + 2*hl
        a(f"""s_add_u32 s46, s40, {hl}
s_lshr_b32 s{sK(hl)}, s46, 5
s_and_b32 s46, s46, 31
s_lshl_b32 s47, s33, 5
s_add_u32 s47, s47, s46
s_cmp_eq_u32 s{sK(hl)}, 2
s_cbranch_scc1 {lab}_v""")
        off = 72*pl + 40*par
        a(f"ds_read2_b64 v[{R}:{R+3}], v8 offset0:{off//8} offset1:{off//8+1}")
        a(f"v_add_u32 v{va}, {32*RS + off}, v8")
        a(f"ds_read2_b64 v[{R+4}:{R+7}], v{va} offset0:0 offset1:1")
        if par == 0: a(f"ds_read_b64 v[{R+8}:{R+9}], v10 offset:{72*pl + 32}")
        a(f"""s_lshl_b32 s{sM(hl)}, s47, 16
s_lshl_b32 s46, s{sK(hl)}, 22
s_add_u32 s{sM(hl)}, s{sM(hl)}, s46
s_add_u32 s{sM(hl)}, s{sM(hl)}, s42""")
        if par == 0:
            a(f"""s_lshr_b32 s{sR(hl)}, s47, 1
s_lshl_b32 s{sR(hl)}, s{sR(hl)}, 14
s_add_u32 s{sR(hl)}, s{sR(hl)}, s43
s_lshl_b32 s46, s{sK(hl)}, 19
s_add_u32 s{sR(hl)}, s{sR(hl)}, s46
s_add_u32 s{sR(hl)}, s{sR(hl)}, {QR_OFF}""")
        a(f"s_branch {lab}_e")
        a.label(f"{lab}_v")
        a(f"""v_add_u32 v{va}, {72*pl + 40*par}, v15
v_mov_b32 v17, {72*pl + 32}
v_cmp_eq_u32 vcc, 0, v14
s_mul_i32 s{sM(hl)}, s47, {VT_STRIDE}
s_add_u32 s{sM(hl)}, s{sM(hl)}, s27
v_cndmask_b32 v{va}, v17, v{va}, vcc
v_add_u32 v{va}, v{va}, v13
s_add_u32 s{sM(hl)}, s{sM(hl)}, {VT_OFF}""")
        for grp in range(4):
            for tr in range(2):
                a(f"ds_read_b64_tr_b16 v[{R+4*grp+2*tr}:{R+4*grp+2*tr+1}], v{va} offset:{(16*grp + 4*tr)*RS}")
        a(f"""v_add_u32 v17, {16 - 2*par}, v3
v_cndmask_b32 v17, v17, v3, vcc
v_lshl_add_u32 v{va+1}, v17, 4, v12""")
        a.label(f"{lab}_e")
    def stores(hl):
        pl, par = hl // 2, hl % 2
        lab = f"L_p1_s{hl}"; R = RR(hl); va = 20 + 2*hl
        a(f"s_cmp_eq_u32 s{sK(hl)}, 2\ns_cbranch_scc1 {lab}_v")
        a(f"buffer_store_dwordx4 v[{R}:{R+3}], v9, s[16:19], s{sM(hl)} offen{P1F}")
        a(f"buffer_store_dwordx4 v[{R+4}:{R+7}], v9, s[16:19], s{sM(hl)} offen offset:1024{P1F}")
        if par == 0: a(f"buffer_store_dwordx2 v[{R+8}:{R+9}], v11, s[16:19], s{sR(hl)} offen{P1F}")
        a(f"s_branch {lab}_e")
        a.label(f"{lab}_v")
        m16 = 0xffff | ((0x3 << (2*par)) << 16)
        a(f"s_mov_b32 exec_lo, {m16}\ns_mov_b32 exec_hi, {m16}")
        for grp in range(4):
            a(f"buffer_store_dwordx4 v[{R+4*grp}:{R+4*grp+3}], v{va+1}, s[16:19], s{sM(hl)} offen offset:{576*grp}{P1F}")
        a("s_mov_b64 exec, -1")
        a.label(f"{lab}_e")
    stage(0); stage(1); stage(2)
    reads(0); reads(1)
    stage(3); stage(4)
    a("s_waitcnt lgkmcnt(8)")
    stores(0); stores(1)
    reads(2); reads(3)
    stage(5); stage(6)
    a("s_waitcnt lgkmcnt(8)")
    stores(2); stores(3)
    reads(4); reads(5)
    a("s_waitcnt lgkmcnt(0)")
    stores(4); stores(5)

def phase1(a, o):
    P1F = o['p1f']
    ROT = o['rot']
    if o.get("rot9"):
        ma, mb = o["rot9"]
        ROTCODE = f"""s_mul_i32 s24, s35, {ma}
s_mul_i32 s25, s34, {mb}
s_add_u32 s24, s24, s25
s_mul_i32 s25, s24, 57
s_lshr_b32 s25, s25, 9
s_mul_i32 s25, s25, 9
s_sub_u32 s24, s24, s25"""
        for v in range(16*ma + 8*mb): assert (v*57) >> 9 == v // 9, v
    else:
        ROTCODE = f"""s_add_u32 s24, s35, s34
s_mul_i32 s25, s24, 43
s_lshr_b32 s25, s25, 7
s_mul_i32 s25, s25, 3
s_sub_u32 s24, s24, s25
s_mul_i32 s24, s24, {ROT}"""
    vXD = lambda i: 16 + i
    vWD = lambda i: 24 + i
    vX = lambda st, ks: 28 + 2*st + ks
    vW = lambda st: 34 + st
    XF = lambda p, i: 40 + 16*p + 4*i
    WF = lambda p, c: 72 + 28*p + 4*c
    ACC = lambda i, c: 128 + 4*(4*c + i)
    n = 7
    GL = o.get("gl")
    if GL:
        a(f"""s_and_b32 s30, s2, 7
s_lshr_b32 s31, s2, 3
s_and_b32 s32, s{sWAVE}, 3
s_lshr_b32 s33, s30, 2
s_and_b32 s34, s31, 7
s_and_b32 s35, s30, 3
s_lshl_b32 s35, s35, 2
s_lshr_b32 s36, s31, 3
s_add_u32 s35, s35, s36
s_lshl_b32 s20, s34, 8
s_lshl_b32 s21, s32, 6
s_add_u32 s38, s20, s21
s_lshl_b32 s37, s32, 13
v_lshrrev_b32 v4, 4, v0
v_and_b32 v3, 15, v0""")
    else: a(f"""s_and_b32 s30, s2, 7
s_lshr_b32 s31, s2, 3
s_and_b32 s32, s{sWAVE}, 3
s_lshr_b32 s33, s30, 2
s_and_b32 s34, s30, 1
s_lshl_b32 s34, s34, 2
s_and_b32 s35, s31, 3
s_add_u32 s34, s34, s35
s_lshr_b32 s35, s30, 1
s_and_b32 s35, s35, 1
s_lshl_b32 s35, s35, 3
s_lshr_b32 s36, s31, 2
s_add_u32 s35, s35, s36
s_lshl_b32 s20, s34, 8
s_lshl_b32 s21, s32, 6
s_add_u32 s38, s20, s21
s_lshl_b32 s37, s32, 13
v_lshrrev_b32 v4, 4, v0
v_and_b32 v3, 15, v0""")
    WC = o["wcomp"]
    a(f"""v_and_b32 v2, 1, v4
v_lshrrev_b32 v5, 1, v4
v_lshlrev_b32 v2, 2, v2
v_lshl_add_u32 v2, v5, 4, v2
v_mul_u32_u24 v2, 3456, v2""")
    if GL:
        a(f"""v_mul_u32_u24 v5, 13, v3
v_lshrrev_b32 v5, 6, v5
v_mul_u32_u24 v6, 5, v5
v_sub_u32 v6, v3, v6
v_mul_u32_u24 v5, 1152, v5
v_lshl_add_u32 v5, v6, 4, v5
v_add_u32 v2, v2, v5
v_mov_b32 v5, 0x40000000
v_cmp_gt_u32 vcc, 15, v3""")
    else:
        a(f"""v_lshl_add_u32 v2, v3, 4, v2
v_mov_b32 v5, 0x40000000
v_cmp_gt_u32 vcc, 14, v3""")
    a(f"""s_mul_i32 s20, s38, 1152
s_lshr_b32 s21, s32, 1
v_cndmask_b32 v2, v5, v2, vcc""")
    for i in range(4):
        a(f"v_add_u32 v{vWD(i)}, {3456*i}, v2")
    a(f"""s_lshl_b32 s21, s21, 5
s_and_b32 s22, s32, 1
s_lshl_b32 s23, s22, 3
s_add_u32 s21, s21, s23
s_mul_i32 s21, s21, 3456
s_mul_i32 s23, s35, {72 if GL else 216}
s_add_u32 s21, s21, s23
s_lshr_b32 s23, s32, 1
s_mul_i32 s23, s23, 8448
s_mul_i32 s22, s22, {4*1056}
s_add_u32 s23, s23, s22
s_add_u32 s23, s23, {WREG}
s_mov_b32 s22, s37
{ROTCODE}
s_lshl_b32 s25, s24, 7
s_add_u32 s20, s20, s25
s_mul_i32 s25, s24, {64*3456}
s_add_u32 s21, s21, s25
s_waitcnt lgkmcnt(0)
s_cmp_eq_u32 s33, 0
s_cselect_b32 s8, s{pAX}, s{pBX}
s_cselect_b32 s9, s{pAX+1}, s{pBX+1}
s_cselect_b32 s12, s{pAW}, s{pBW}
s_cselect_b32 s13, s{pAW+1}, s{pBW+1}
s_mov_b32 s10, {X_BYTES}
s_mov_b32 s11, 0x00020000
s_mov_b32 s14, {W_BYTES}
s_mov_b32 s15, 0x00020000
s_cmp_ge_u32 s{sWAVE}, 4
s_cbranch_scc0 L_p1_compute""")
    wrap = [f"s_add_u32 s21, s21, {64*3456}", "s_add_u32 s20, s20, 128", "s_add_u32 s24, s24, 1", "s_cmp_eq_u32 s24, 9",
            f"s_cselect_b32 s25, {9*128}, 0", f"s_cselect_b32 s26, {9*64*3456}, 0", "s_cselect_b32 s24, 0, s24",
            "s_sub_u32 s20, s20, s25", "s_sub_u32 s21, s21, s26"]
    def w_units(cc):
        st = cc % 3
        U = [[f"s_add_u32 m0, s23, {st*ST1}"]]
        for i in range(4):
            u = [f"buffer_load_dwordx4 v{vWD(i)}, s[12:15], s21 offen lds"]
            u += ["s_add_u32 m0, m0, 1056"] if i < 3 else wrap
            U.append(u)
        return U
    def flat(U):
        for u in U:
            for x in u:
                if x.startswith("buffer_load"): a("s_nop 0")
                a(x)
    XC = o["xcomp"]
    def xsetup():
        a(f"""v_lshrrev_b32 v2, 3, v0
v_and_b32 v5, 7, v0
v_xor_b32 v5, v5, v4
v_mul_u32_u24 v6, 1152, v2
v_lshl_add_u32 v7, v5, 4, v6
v_xor_b32 v8, 64, v7""")
        for i in range(8):
            a(f"v_add_u32 v{vXD(i)}, {9216*i}, v{7 if i % 2 == 0 else 8}")
    if XC:
        for _ in range(9): a("s_barrier")
        a("s_branch L_p1_rb" if o["epi8"] else "s_branch L_p1_done")
    xsetup()
    NL = 8 if WC else 12
    def dma(cc):
        st = cc % 3
        a(f"s_add_u32 m0, s22, {st*ST1}")
        for i in range(8):
            a("s_nop 0")
            a(f"buffer_load_dwordx4 v{vXD(i)}, s[8:11], s20 offen lds")
            if i < 7: a("s_add_u32 m0, m0, 1024")
        if WC:
            for x in wrap: a(x)
        else:
            flat(w_units(cc))
    dma(0); dma(1)
    a(f"s_waitcnt vmcnt({NL})")
    a("s_barrier")
    dma(2)
    for cc in range(8):
        rem = min(8, cc + 2) - (cc + 1)
        a(f"s_waitcnt vmcnt({NL*rem})")
        a("s_barrier")
        if cc + 3 <= 8: dma(cc + 3)
    a("s_branch L_p1_rb" if o["epi8"] else "s_branch L_p1_done")
    a.label("L_p1_compute")
    def xw_units(cc):
        st = cc % 3
        U = [[f"s_add_u32 m0, s22, {st*ST1}"]]
        for i in range(8):
            U.append([f"buffer_load_dwordx4 v{vXD(i)}, s[8:11], s20 offen lds",
                      "s_add_u32 m0, m0, 1024" if i < 7 else f"s_add_u32 m0, s23, {st*ST1}"])
        return U + w_units(cc)[1:]
    if XC:
        xsetup()
        flat(xw_units(0)); flat(xw_units(1))
    elif WC:
        flat(w_units(0)); flat(w_units(1))
    a(f"""v_lshrrev_b32 v5, 1, v3
v_xor_b32 v5, v5, v4
v_lshlrev_b32 v5, 4, v5
v_lshl_add_u32 v5, v3, 7, v5
v_add_u32 v5, s37, v5
v_xor_b32 v6, 64, v5""")
    for st in range(3):
        a(f"v_add_u32 v{vX(st,0)}, {st*ST1}, v5")
        a(f"v_add_u32 v{vX(st,1)}, {st*ST1}, v6")
    a(f"""v_lshrrev_b32 v5, 2, v3
v_and_b32 v6, 1, v4
v_lshl_add_u32 v5, v6, 2, v5
v_mul_u32_u24 v5, 1056, v5
v_lshrrev_b32 v6, 1, v4
v_lshl_add_u32 v5, v6, 9, v5
v_and_b32 v6, 3, v3
v_lshl_add_u32 v5, v6, 3, v5""")
    for st in range(3):
        a(f"v_add_u32 v{vW(st)}, {st*ST1 + WREG}, v5")
    def reads(g):
        cc, ks = g // 2, g % 2
        st, p = cc % 3, g & 1
        L = []
        for c in range(n):
            if c < 4: L.append(f"ds_read_b128 v[{XF(p,c)}:{XF(p,c)+3}], v{vX(st,ks)} offset:{2048*c}")
            for tr in range(2):
                L.append(f"ds_read_b64_tr_b16 v[{WF(p,c)+2*tr}:{WF(p,c)+2*tr+1}], v{vW(st)} offset:{ks*8448 + tr*256 + 32*c}")
        return L
    def mfmas(g):
        p = g & 1
        L = []
        for c in range(n):
            for i in range(4):
                acc = f"v[{ACC(i,c)}:{ACC(i,c)+3}]"
                L.append(f"v_mfma_f32_16x16x32_bf16 {acc}, v[{WF(p,c)}:{WF(p,c)+3}], v[{XF(p,i)}:{XF(p,i)+3}], {acc if g else 0}")
        return L
    if o["pf"]:
        assert not WC and o["rot"] == 0
        a(f"""s_and_b32 s26, s35, 7
s_lshl_b32 s26, s26, 5
s_lshl_b32 s27, s34, 8
s_add_u32 s26, s26, s27
s_mul_i32 s26, s26, 1152
s_add_u32 s26, s26, 384
v_and_b32 v5, 31, v0
v_lshrrev_b32 v6, 5, v0
v_mul_u32_u24 v5, 1152, v5
v_lshl_add_u32 v240, v6, 6, v5
s_and_b32 s27, s34, 3
s_add_u32 s27, s27, 192
s_mul_i32 s27, s27, 3456
s_mul_i32 s28, s35, 216
s_add_u32 s27, s27, s28
v_lshrrev_b32 v5, 2, v0
v_and_b32 v6, 3, v0
v_mul_u32_u24 v5, {4*3456}, v5
v_lshl_add_u32 v241, v6, 6, v5
s_mul_i32 s28, s32, {3*128}
s_add_u32 s26, s26, s28
s_sub_u32 s28, s32, 2
s_mul_i32 s28, s28, {3*64*3456}
s_add_u32 s27, s27, s28
s_cmp_lt_u32 s32, 2
s_cselect_b32 s48, s8, s12
s_cselect_b32 s49, s9, s13
s_cselect_b32 s50, s10, s14
s_mov_b32 s51, 0x00020000
s_cselect_b32 s26, s26, s27
s_mov_b32 s27, {64*3456}
s_cselect_b32 s27, 128, s27
s_cselect_b64 vcc, -1, 0
s_nop 1
v_cndmask_b32 v240, v241, v240, vcc""")
    if o["epipipe"]: p1_epilogue_consts(a)
    NC = 12 if XC else 4
    if WC: a(f"s_waitcnt vmcnt({NC})")
    if o["p1pad"] >= 0:
        a(".p2align 6")
        for _ in range(o["p1pad"]): a("s_nop 0")
    a("s_barrier")
    stamp(a, o, 1)
    if o["stamp"]: a("s_memtime s[44:45]")
    for x in reads(0): a(x)
    for g in range(18):
        cc, ks = g // 2, g % 2
        if ks == 1 and cc < 8:
            rem = min(8, cc + 2) - (cc + 1)
            a((f"s_waitcnt vmcnt({NC*rem}) lgkmcnt(0)") if WC else "s_waitcnt lgkmcnt(0)")
            a("s_barrier")
        else:
            a("s_waitcnt lgkmcnt(0)")
        units = []
        if XC:
            if g == 0: units = xw_units(2)
            elif ks == 1 and cc + 3 <= 8: units = xw_units(cc + 3)[:7]
            elif ks == 0 and cc >= 1 and cc + 2 <= 8: units = xw_units(cc + 2)[7:]
        elif WC:
            if g == 0: units = w_units(2)
            elif ks == 1 and cc + 3 <= 8: units = w_units(cc + 3)[:3]
            elif ks == 0 and cc >= 1 and cc + 2 <= 8: units = w_units(cc + 2)[3:]
        rd = reads(g + 1) if g + 1 < 18 else []
        M = mfmas(g)
        slots = [[] for _ in M]
        for idx, x in enumerate(rd): slots[min(idx, len(M)-1)].append(x)
        for idx, u in enumerate(units): slots[min(len(M)-1, 2 + (idx*len(M))//len(units))] += u
        if o["pf"] and g == o["pfstep"]:
            for q in range(3):
                slots[3 + 8*q] += [f"buffer_load_dword v{242+q}, v240, s[48:51], s26 offen", "s_add_u32 s26, s26, s27"]
        if g == (16 if WC else 6):
            a("v_mov_b32 v254, 0")
            a(f"global_load_dword v255, v254, s[{pDBG}:{pDBG+1}] sc1")
        for m, sl in zip(M, slots):
            a(m)
            for x in sl: a(x)
    stamp(a, o, 2)
    if o["stamp"]: a("s_memtime s[46:47]\ns_waitcnt lgkmcnt(0)\ns_sub_u32 s59, s46, s44")
    nonce_fetch(a)
    if o["epipipe"]:
        p1_epilogue_pipe(a, o, ACC, P1F)
        a("s_branch L_p1_done")
    if not o["epipipe"]:
        a(f"""s_waitcnt lgkmcnt(0)
s_mul_i32 s39, s32, {64*RS}
v_mul_u32_u24 v5, {RS}, v3
v_lshl_add_u32 v5, v4, 3, v5
v_add_u32 v5, s39, v5
s_mul_i32 s40, s35, 6
s_sub_u32 s41, 32, s40
s_cmp_lt_u32 s40, 32
s_cselect_b32 s41, s41, 0
s_lshr_b32 s41, s41, 1
s_mul_i32 s41, s41, 9
s_mov_b32 s44, {f32bits(QSCALE)}
s_cmp_eq_u32 s41, 0
s_cbranch_scc1 L_p1_noscale""")
        for c in range(n):
            a(f"""v_add_u32 v6, {4*c}, v4
v_cmp_gt_u32 vcc, s41, v6
v_mov_b32 v7, 1.0
v_mov_b32 v8, s44
v_cndmask_b32 v6, v7, v8, vcc""")
            for i in range(4):
                r = ACC(i, c)
                a(f"v_pk_mul_f32 v[{r}:{r+1}], v[{r}:{r+1}], v[6:7] op_sel_hi:[1,0]")
                a(f"v_pk_mul_f32 v[{r+2}:{r+3}], v[{r+2}:{r+3}], v[6:7] op_sel_hi:[1,0]")
        a.label("L_p1_noscale")
        for c in range(n):
            for i in range(4):
                r = ACC(i, c); P = 40 + 2*((4*c + i) % 16)
                a(f"v_cvt_pk_bf16_f32 v{P}, v{r}, v{r+1}")
                a(f"v_cvt_pk_bf16_f32 v{P+1}, v{r+2}, v{r+3}")
                a(f"ds_write_b64 v5, v[{P}:{P+1}] offset:{i*16*RS + 32*c}")
        a("s_waitcnt lgkmcnt(0)")
        trace(a, o, 0, "a")
        a.label("L_p1_rb")
        srd(a, 16, pWS, WS_USED)
        a(f"""s_mul_i32 s39, s32, {64*RS}
s_mul_i32 s40, s35, 6
v_and_b32 v6, 31, v0
v_lshrrev_b32 v7, 5, v0
v_mul_u32_u24 v8, {RS}, v6
v_lshl_add_u32 v8, v7, 4, v8
v_add_u32 v8, s39, v8
v_lshlrev_b32 v9, 4, v0
v_mul_u32_u24 v10, {RS}, v0
v_add_u32 v10, s39, v10
v_lshlrev_b32 v11, 3, v0
v_lshrrev_b32 v12, 1, v4
v_lshrrev_b32 v13, 2, v3
v_lshl_add_u32 v13, v12, 3, v13
v_mul_u32_u24 v13, {RS}, v13
v_add_u32 v13, s39, v13
v_and_b32 v14, 1, v4
v_and_b32 v15, 3, v3
v_lshlrev_b32 v15, 3, v15
v_mul_u32_u24 v12, 288, v12
s_lshr_b32 s42, s38, 5
s_lshl_b32 s42, s42, 10
s_lshl_b32 s43, s38, 3
s_lshr_b32 s45, s38, 4
s_mul_i32 s45, s45, 576""")
        E8 = o["epi8"]
        if E8: a(f"s_barrier\ns_cmp_ge_u32 s{sWAVE}, 4\ns_cbranch_scc1 L_p1_rb1")
        assert QM_OFF == 0 and KM_OFF == (1 << 22) and KR_OFF - QR_OFF == (1 << 19)
        NH = 3 if E8 else 6
        sKf = (lambda k: 48 + k) if E8 else (lambda k: 20 + k)
        sMf = (lambda k: 52 + k) if E8 else (lambda k: 26 + k)
        sRf = (lambda k: 55 + k) if E8 else (lambda k: 48 + k)
        for hg in range(2 if E8 else 1):
            if hg: a.label("L_p1_rb1")
            for k in range(NH):
                hl = NH*hg + k
                pl, par = hl // 2, hl % 2
                lab = f"L_p1_h{hl}"
                R = 128 + 16*k
                sK, sM, sR = sKf(k), sMf(k), sRf(k)
                a(f"""s_add_u32 s46, s40, {hl}
s_lshr_b32 s{sK}, s46, 5
s_and_b32 s46, s46, 31
s_lshl_b32 s47, s33, 5
s_add_u32 s47, s47, s46
s_cmp_eq_u32 s{sK}, 2
s_cbranch_scc1 {lab}_v""")
                off = 72*pl + 40*par
                a(f"ds_read2_b64 v[{R}:{R+3}], v8 offset0:{off//8} offset1:{off//8+1}")
                a(f"v_add_u32 v{20+2*k}, {32*RS + off}, v8")
                a(f"ds_read2_b64 v[{R+4}:{R+7}], v{20+2*k} offset0:0 offset1:1")
                if par == 0: a(f"ds_read_b64 v[{R+8}:{R+9}], v10 offset:{72*pl + 32}")
                a(f"""s_lshl_b32 s{sM}, s47, 16
s_lshl_b32 s46, s{sK}, 22
s_add_u32 s{sM}, s{sM}, s46
s_add_u32 s{sM}, s{sM}, s42""")
                if par == 0:
                    a(f"""s_lshr_b32 s{sR}, s47, 1
s_lshl_b32 s{sR}, s{sR}, 14
s_add_u32 s{sR}, s{sR}, s43
s_lshl_b32 s46, s{sK}, 19
s_add_u32 s{sR}, s{sR}, s46
s_add_u32 s{sR}, s{sR}, {QR_OFF}""")
                a(f"s_branch {lab}_e")
                a.label(f"{lab}_v")
                a(f"""v_add_u32 v{20+2*k}, {72*pl + 40*par}, v15
v_mov_b32 v17, {72*pl + 32}
v_cmp_eq_u32 vcc, 0, v14
s_mul_i32 s{sM}, s47, {VT_STRIDE}
s_add_u32 s{sM}, s{sM}, s45
v_cndmask_b32 v{20+2*k}, v17, v{20+2*k}, vcc
v_add_u32 v{20+2*k}, v{20+2*k}, v13
s_add_u32 s{sM}, s{sM}, {VT_OFF}""")
                for grp in range(4):
                    for tr in range(2):
                        a(f"ds_read_b64_tr_b16 v[{R+4*grp+2*tr}:{R+4*grp+2*tr+1}], v{20+2*k} offset:{(16*grp + 4*tr)*RS}")
                a(f"""v_add_u32 v17, {16 - 2*par}, v3
v_cndmask_b32 v17, v17, v3, vcc
v_lshl_add_u32 v{21+2*k}, v17, 4, v12""")
                a.label(f"{lab}_e")
            a("s_waitcnt lgkmcnt(0)")
            trace(a, o, 1, f"b{hg}")
            for k in range(NH):
                hl = NH*hg + k
                pl, par = hl // 2, hl % 2
                lab = f"L_p1_s{hl}"
                R = 128 + 16*k
                sK, sM, sR = sKf(k), sMf(k), sRf(k)
                a(f"s_cmp_eq_u32 s{sK}, 2\ns_cbranch_scc1 {lab}_v")
                a(f"buffer_store_dwordx4 v[{R}:{R+3}], v9, s[16:19], s{sM} offen{P1F}")
                a(f"buffer_store_dwordx4 v[{R+4}:{R+7}], v9, s[16:19], s{sM} offen offset:1024{P1F}")
                if par == 0: a(f"buffer_store_dwordx2 v[{R+8}:{R+9}], v11, s[16:19], s{sR} offen{P1F}")
                a(f"s_branch {lab}_e")
                a.label(f"{lab}_v")
                m16 = 0xffff | ((0x3 << (2*par)) << 16)
                a(f"s_mov_b32 exec_lo, {m16}\ns_mov_b32 exec_hi, {m16}")
                for grp in range(4):
                    a(f"buffer_store_dwordx4 v[{R+4*grp}:{R+4*grp+3}], v{21+2*k}, s[16:19], s{sM} offen offset:{576*grp}{P1F}")
                a("s_mov_b64 exec, -1")
                a.label(f"{lab}_e")
            trace(a, o, 2, f"c{hg}")
            if hg == 0 and E8: a("s_branch L_p1_done")
    a.label("L_p1_done")
    a("s_lshl_b32 s39, s33, 4\ns_add_u32 s39, s39, s35\ns_lshl_b32 s39, s39, 3\ns_add_u32 s39, s39, s34")
    signal(a, 39, "p1")

def phase2(a, o):
    NKT, NQ = 64, 2
    QM = lambda j: 16 + 4*j
    QR = 24
    KMn = lambda s: 28 + 6*s
    KRs = lambda s: 32 + 6*s
    V0 = lambda s: 40 + 8*s
    V1 = lambda s: 44 + 8*s
    S = lambda kt, j: 56 + 32*(kt & 1) + 16*j
    O = lambda j: 120 + 16*j
    vL16, vKR, vVa, vVb, vIdx = 2, 3, 4, 5, 6
    T = 152
    name = "p2"
    a(f"""s_and_b32 s18, s2, 7
s_lshr_b32 s19, s2, 3
s_lshr_b32 s12, s19, 2
s_lshl_b32 s18, s18, 3
s_add_u32 s12, s12, s18
s_and_b32 s13, s19, 3
s_mov_b32 s14, s{sWAVE}""")
    a(f"""s_and_b32 s18, s12, 31
s_lshr_b32 s19, s12, 5
s_lshl_b32 s19, s19, 4
v_lshrrev_b32 v7, 3, v0
v_lshlrev_b32 v7, 5, v7
v_add_u32 v7, s18, v7
v_mul_u32_u24 v7, 171, v7
v_lshrrev_b32 v7, 10, v7
v_add_u32 v7, s19, v7
v_and_b32 v8, 7, v0
v_lshl_add_u32 v7, v7, 3, v8
v_lshlrev_b32 v7, 7, v7
v_add_u32 v7, {FLAG_OFF}, v7""")
    srd(a, 8, pWS, WS_USED)
    a(f"""v_lshlrev_b32 v{vL16}, 4, v0
v_and_b32 v8, 31, v0
v_lshlrev_b32 v9, 3, v8
s_mov_b32 s16, 0x0003ffff
s_mov_b32 s17, 0x0003ffff
s_lshl_b32 s30, s14, 10
s_lshl_b32 s25, s12, 16
s_add_u32 s35, s25, {KM_OFF}
s_add_u32 s25, s35, s30
s_mul_i32 s28, s12, {VT_STRIDE}
s_add_u32 s36, s28, {VT_OFF}
s_add_u32 s28, s36, s30
s_lshr_b32 s38, s12, 1
s_lshl_b32 s38, s38, 14
s_and_b32 s39, s12, 1
s_lshl_b32 s39, s39, 2
s_add_u32 s37, s38, {KR_OFF}
s_add_u32 s33, s37, s30
s_add_u32 s29, s30, {LDS_VT}
s_add_u32 s34, s30, {LDS_KR}
s_mov_b32 s26, s30
s_lshl_b32 s18, s13, 4
s_lshl_b32 s19, s14, 1
s_add_u32 s24, s18, s19""")
    def dmaK():
        a("s_mov_b32 m0, s26")
        a("s_add_u32 s26, s26, 8192")
        a(f"buffer_load_dwordx4 v{vL16}, s[8:11], s25 offen sc1 lds")
        a("s_add_u32 s25, s25, 8192")
    def dmaV():
        a("s_mov_b32 m0, s29")
        a("s_add_u32 s29, s29, 8192")
        a(f"buffer_load_dwordx4 v{vL16}, s[8:11], s28 offen sc1 lds")
        a("s_add_u32 s28, s28, 8192")
    def dmaKR1():
        a("s_add_u32 m0, s34, 8192")
        a("s_add_u32 s33, s33, 8192")
        a(f"buffer_load_dwordx4 v{vL16}, s[8:11], s33 offen sc1 lds")
    a(f"""s_lshr_b32 s18, s12, 5
s_and_b32 s19, s12, 31
s_lshl_b32 s46, s18, 21
s_lshl_b32 s21, s24, 15
s_add_u32 s46, s46, s21
s_lshl_b32 s21, s19, 10
s_add_u32 s46, s46, s21
s_add_u32 s46, s46, {OM_OFF}
s_lshl_b32 s47, s18, 18
s_lshl_b32 s21, s24, 12
s_add_u32 s47, s47, s21
s_lshr_b32 s21, s19, 2
s_lshl_b32 s21, s21, 9
s_add_u32 s47, s47, s21
s_and_b32 s21, s19, 3
s_lshl_b32 s21, s21, 2
s_add_u32 s47, s47, s21
s_add_u32 s47, s47, {OR_OFF}
s_lshl_b32 s48, s18, 2
s_add_u32 s48, s48, s13
s_lshl_b32 s48, s48, 5
s_add_u32 s48, s48, s19
s_add_u32 s48, s48, 256
v_lshlrev_b32 v197, 4, v8
s_lshl_b32 s49, s12, 16
s_lshl_b32 s19, s24, 10
s_add_u32 s49, s49, s19
s_lshl_b32 s20, s24, 8
s_add_u32 s50, s38, s20
s_add_u32 s50, s50, s39
s_add_u32 s50, s50, {QR_OFF}
v_lshlrev_b32 v196, 3, v0""")
    if o["wopf"]:
        a(f"""s_cmp_lt_u32 s12, 32
s_cselect_b32 s20, s{pAWO}, s{pBWO}
s_cselect_b32 s21, s{pAWO+1}, s{pBWO+1}
s_mov_b32 s22, {WO_BYTES}
s_mov_b32 s23, 0x00020000
s_lshr_b32 s18, s2, 3
s_lshl_b32 s18, s18, 3
s_add_u32 s18, s18, s14
s_lshl_b32 s27, s18, 12
v_lshlrev_b32 v198, 6, v0""")
    late = [dmaK, dmaV, dmaKR1, dmaK, dmaV, dmaK, dmaV] + [dmaK, dmaV]*4
    sched = {0: late[0:3], 1: late[3:5], 2: late[5:7], 3: late[7:9], 4: late[9:11], 5: late[11:13], 6: late[13:15]}
    a(f"""v_lshrrev_b32 v10, 5, v0
v_add_u32 v{vKR}, {LDS_KR}, v9
v_add_u32 v{vKR}, s39, v{vKR}
v_mul_u32_u24 v11, 288, v10
v_lshlrev_b32 v12, 4, v8
v_add_u32 v27, v11, v12
v_add_u32 v{vVa}, {LDS_VT}, v27
v_add_u32 v{vVb}, {LDS_VT + 32*1152}, v27
v_mov_b32 v{vIdx}, 0xdddd
v_and_b32 v13, 27, v8
v_cmp_eq_u32 vcc, 18, v13
v_mov_b32 v14, 0x3f803f80
v_mov_b32 v15, 0
v_cndmask_b32 v13, v15, v14, vcc""")
    for s in range(2):
        a(f"v_mov_b32 v{KRs(s)+1}, 0x3f803f80")
        for i in range(4):
            a(f"v_mov_b32 v{V0(s)+i}, v13")
            a(f"v_mov_b32 v{V1(s)+i}, v13")
    a(f"v_mov_b32 v{QR+1}, 0")
    for j in range(NQ):
        for i in range(16): a(f"v_mov_b32 v{O(j)+i}, 0")
    poll(a, 7, 0xffffff, "p1")
    stamp(a, o, 4)
    a("s_mov_b32 m0, s34")
    a("s_nop 0")
    a(f"buffer_load_dwordx4 v{vL16}, s[8:11], s33 offen sc1 lds")
    dmaK(); dmaV(); dmaV()
    for j in range(NQ):
        a(f"buffer_load_dwordx4 v[{QM(j)}:{QM(j)+3}], v{vL16}, s[8:11], s49 offen offset:{1024*j} sc1")
    a(f"buffer_load_dword v{QR}, v196, s[8:11], s50 offen sc1")
    a("s_waitcnt vmcnt(0)")
    a("s_barrier")
    stamp(a, o, 5)
    if o["stamp"]: a("s_memtime s[52:53]")
    def rdK(kt):
        s = kt & 1
        a(f"ds_read_b128 v[{KMn(s)}:{KMn(s)+3}], v{vL16} offset:{kt*1024}")
        a(f"ds_read_b32 v{KRs(s)}, v{vKR} offset:{kt*256}")
    def rdV(kt):
        s = kt & 1
        base, off = (vVa, kt*1152) if kt < 32 else (vVb, (kt-32)*1152)
        a("s_mov_b64 exec, s[16:17]")
        a(f"ds_read_b128 v[{V0(s)}:{V0(s)+3}], v{base} offset:{off}")
        a(f"ds_read_b128 v[{V1(s)}:{V1(s)+3}], v{base} offset:{off+576}")
        a("s_mov_b64 exec, -1")
    def qk_res(kt, ks=None):
        s = (kt & 1) if ks is None else ks; sb = S(kt, 0)
        a(f"v_mfma_f32_32x32x4_2b_bf16 v[{sb}:{sb+31}], v[{KRs(s)}:{KRs(s)+1}], v[{QR}:{QR+1}], 0")
    def qk_main(kt, j, ks=None):
        s = (kt & 1) if ks is None else ks; sb = S(kt, j)
        a(f"v_mfma_f32_32x32x16_bf16 v[{sb}:{sb+15}], v[{KMn(s)}:{KMn(s)+3}], v[{QM(j)}:{QM(j)+3}], v[{sb}:{sb+15}]")
    def pv(kt, j, half, vs=None):
        s = (kt & 1) if vs is None else vs
        v = V0(s) if half == 0 else V1(s)
        a(f"v_smfmac_f32_32x32x32_bf16 v[{O(j)}:{O(j)+15}], v[{v}:{v+3}], v[{S(kt,j)+8*half}:{S(kt,j)+8*half+7}], v{vIdx}")
    def ex(kt, j, i):
        r = S(kt, j) + i
        a(f"v_exp_f32 v{r}, v{r}")
    def loop(copy, prio):
        if o["p2pad"] >= 0:
            a(".p2align 6")
            for _ in range(o["p2pad"]): a("s_nop 0")
        rdK(0); rdV(0)
        a("s_waitcnt lgkmcnt(0)")
        qk_res(0)
        rdK(1)
        a("s_nop 15")
        a("s_nop 1")
        qk_main(0, 0); qk_main(0, 1)
        a("s_nop 7")
        a("s_nop 3")
        def tile(kt, rel=None):
            if rel is None:
                if kt == o["bar1"] or (kt == o["bar2"] and not ROLL):
                    a(f"s_waitcnt vmcnt({4 if kt == o['bar1'] else 0})")
                    a("s_barrier")
                if kt in sched:
                    for f in sched[kt]: f()
                if kt == 9 and o["wopf"]:
                    a("buffer_load_dword v199, v198, s[20:23], s27 offen")
            p = prio(kt)
            a(f"s_setprio {p}" if p is not None else "s_nop 0")
            a("s_waitcnt lgkmcnt(0)")
            if kt > 0: pv(kt-1, 1, 1)
            if kt + 1 < NKT:
                if rel is None: rdV(kt+1)
                else:
                    s_ = (kt+1) & 1; off = (kt+1-rel)*1152
                    a("s_mov_b64 exec, s[16:17]")
                    a(f"ds_read_b128 v[{V0(s_)}:{V0(s_)+3}], v206 offset:{off}")
                    a(f"ds_read_b128 v[{V1(s_)}:{V1(s_)+3}], v206 offset:{off+576}")
                    a("s_mov_b64 exec, -1")
            for i in range(0, 4): ex(kt, 0, i)
            if kt + 1 < NKT: qk_res(kt+1)
            for i in range(4, 12): ex(kt, 0, i)
            pv(kt, 0, 0)
            for i in range(12, 16): ex(kt, 0, i)
            if kt + 2 < NKT:
                if rel is None: rdK(kt+2)
                else:
                    s_ = kt & 1
                    a(f"ds_read_b128 v[{KMn(s_)}:{KMn(s_)+3}], v204 offset:{(kt+2-rel)*1024}")
                    a(f"ds_read_b32 v{KRs(s_)}, v205 offset:{(kt+2-rel)*256}")
            else: a("s_nop 1")
            pv(kt, 0, 1)
            for i in range(4): ex(kt, 1, i)
            if kt + 1 < NKT: qk_main(kt+1, 0)
            for i in range(4, 8): ex(kt, 1, i)
            if kt + 1 < NKT: qk_main(kt+1, 1)
            for i in range(8, 12): ex(kt, 1, i)
            pv(kt, 1, 0)
            for i in range(12, 16): ex(kt, 1, i)
        ROLL = o["roll"]
        if not ROLL:
            for kt in range(NKT): tile(kt)
        else:
            G = len(o["pat"]); L0 = 10; NIT = (NKT - 2 - L0) // G
            assert G % 2 == 0
            for kt in range(L0): tile(kt)
            a(f"""v_add_u32 v204, {L0*1024}, v{vL16}
v_add_u32 v205, {L0*256}, v{vKR}
v_add_u32 v206, {L0*1152}, v{vVa}
s_mov_b32 s44, 0""")
            itb = -(-(30 - L0 - G + 1) // G)
            itb = (28 - L0) // G
            a.label(f"L_p2_roll{copy}")
            a(f"""s_cmp_lg_u32 s44, {itb}
s_cbranch_scc1 L_p2_rnb{copy}
s_waitcnt vmcnt(0)
s_barrier""")
            a.label(f"L_p2_rnb{copy}")
            for u in range(G): tile(L0 + u, rel=L0)
            a(f"""v_add_u32 v204, {G*1024}, v204
v_add_u32 v205, {G*256}, v205
v_add_u32 v206, {G*1152}, v206
s_add_u32 s44, s44, 1
s_cmp_lt_u32 s44, {NIT}
s_cbranch_scc1 L_p2_roll{copy}""")
            for kt in range(L0 + NIT*G, NKT): tile(kt)
        a("s_nop 1")
        pv(NKT-1, 1, 1)
        a("s_setprio 0")
    if o["dual"]:
        a(f"s_cmp_ge_u32 s14, 4\ns_cbranch_scc1 L_p2_loopB")
        loop(0, lambda kt: 1 if kt == 0 else None)
        a("s_branch L_p2_loopdone")
        a.label("L_p2_loopB")
        pat = o["pat"]
        def pr(kt):
            cur = pat[kt % len(pat)]
            prev = pat[(kt-1) % len(pat)] if kt else None
            return cur if cur != prev else None
        loop(1, pr)
        a.label("L_p2_loopdone")
    else:
        loop(0, lambda kt: None)
    stamp(a, o, 6)
    if o["stamp"]:
        a(f"""s_memtime s[54:55]
s_waitcnt lgkmcnt(0)
s_cmp_lg_u32 s14, {99 if o.get("p1trace") else 4}
s_cbranch_scc1 L_p2_nw4
s_sub_u32 s56, s54, s52
s_sub_u32 s57, s94, s92
s_lshl_b32 s40, s2, 6
s_add_u32 s40, s40, {WS_USED}
v_mov_b32 v200, s40
v_mov_b32 v202, s56
v_mov_b32 v203, s57
s_mov_b64 exec, 1
global_store_dwordx2 v200, v[202:203], s[{pWS}:{pWS+1}] offset:48
s_mov_b64 exec, -1""")
        a.label("L_p2_nw4")
    a("s_nop 7")
    a("s_nop 7")
    a("s_mov_b64 s[20:21], 0")
    a("s_mov_b32 s22, 0x53800000")
    a("s_mov_b32 s23, 0x2b800000")
    for j in range(NQ):
        a(f"v_mul_f32 v{T}, 0, v{O(j)}")
        for i in range(1, 10): a(f"v_fma_f32 v{T}, v{O(j)+i}, 0, v{T}")
        a(f"v_add_f32 v{T}, v{T}, v{O(j)+10}")
        a(f"v_cmp_ngt_f32 vcc, s22, v{T}")
        a("s_or_b64 s[20:21], s[20:21], vcc")
        a(f"v_cmp_nlt_f32 vcc, s23, v{T}")
        a("s_or_b64 s[20:21], s[20:21], vcc")
    if o.get("halflds"): a("s_mov_b64 s[20:21], 0")
    a(f"""s_cmp_eq_u64 s[20:21], 0
s_cbranch_scc0 L_p2_fallback""")
    a.label("L_p2_store")
    for j in range(NQ):
        a(f"v_rcp_f32 v{T}, v{O(j)+10}")
        a("s_nop 0")
        for i in range(10): a(f"v_mul_f32 v{O(j)+i}, v{O(j)+i}, v{T}")
        P = T + 2 + 6*j
        for i in range(4): a(f"v_cvt_pk_bf16_f32 v{P+i}, v{O(j)+2*i}, v{O(j)+2*i+1}")
        a(f"v_cvt_pk_bf16_f32 v{P+4}, v{O(j)+8}, v{O(j)+9}")
        a(f"buffer_store_dwordx4 v[{P}:{P+3}], v{vL16}, s[8:11], s46 offen sc1")
        a("s_mov_b32 exec_hi, 0")
        a(f"buffer_store_dword v{P+4}, v197, s[8:11], s47 offen sc1")
        a("s_mov_b32 exec_hi, -1")
        if j == 0: a("s_add_u32 s46, s46, 32768\ns_add_u32 s47, s47, 4096")
    signal(a, 48, "p2")
    a("s_branch L_p2_end")
    a.label("L_p2_fallback")
    MX = T
    a(f"""v_mov_b32 v{MX}, 0xff800000
v_mov_b32 v{MX+1}, 0xff800000
v_mov_b32 v{QR+1}, 0
v_mov_b32 v{MX+4}, v{vL16}
v_mov_b32 v{MX+5}, v{vKR}
s_mov_b32 s18, {NKT}""")
    a.label("L_p2_fb1")
    a(f"""ds_read_b128 v[{KMn(0)}:{KMn(0)+3}], v{MX+4}
ds_read_b32 v{KRs(0)}, v{MX+5}
v_add_u32 v{MX+4}, 1024, v{MX+4}
v_add_u32 v{MX+5}, 256, v{MX+5}
s_waitcnt lgkmcnt(0)""")
    qk_res(0, 0)
    a("s_nop 15\ns_nop 3")
    qk_main(0, 0, 0); qk_main(0, 1, 0)
    a("s_nop 15")
    for j in range(NQ):
        for i in range(8): a(f"v_max3_f32 v{MX+j}, v{MX+j}, v{S(0,j)+2*i}, v{S(0,j)+2*i+1}")
    a(f"""s_sub_u32 s18, s18, 1
s_cmp_lg_u32 s18, 0
s_cbranch_scc1 L_p2_fb1""")
    x, y, hi, mid = MX+6, MX+7, MX+8, MX+9
    for j in range(NQ):
        a(f"""v_mov_b32 v{x}, v{MX+j}
v_mov_b32 v{y}, v{MX+j}
s_nop 1
v_permlane32_swap_b32 v{x}, v{y}
s_nop 1
v_max_f32 v{MX+j}, v{x}, v{y}""")
    a(f"""v_cmp_gt_u32 vcc, 32, v0
s_nop 1
v_cndmask_b32 v{x}, v{MX+1}, v{MX}, vcc
v_and_b32 v{hi}, 0xffff0000, v{x}
v_sub_f32 v{x}, v{x}, v{hi}
v_and_b32 v{mid}, 0xffff0000, v{x}
v_xor_b32 v{hi}, 0x80000000, v{hi}
v_xor_b32 v{mid}, 0x80000000, v{mid}
v_lshrrev_b32 v{hi}, 16, v{hi}
v_or_b32 v{QR+1}, v{hi}, v{mid}""")
    for j in range(NQ):
        for i in range(16): a(f"v_mov_b32 v{O(j)+i}, 0")
    a(f"""v_mov_b32 v{MX+4}, v{vL16}
v_mov_b32 v{MX+5}, v{vKR}
v_mov_b32 v{MX+6}, v{vVa}
s_mov_b32 s18, {NKT}""")
    a.label("L_p2_fb2")
    a(f"""ds_read_b128 v[{KMn(0)}:{KMn(0)+3}], v{MX+4}
ds_read_b32 v{KRs(0)}, v{MX+5}
s_mov_b64 exec, s[16:17]
ds_read_b128 v[{V0(0)}:{V0(0)+3}], v{MX+6}
ds_read_b128 v[{V1(0)}:{V1(0)+3}], v{MX+6} offset:576
s_mov_b64 exec, -1
v_add_u32 v{MX+4}, 1024, v{MX+4}
v_add_u32 v{MX+5}, 256, v{MX+5}
v_add_u32 v{MX+6}, 1152, v{MX+6}
s_waitcnt lgkmcnt(0)""")
    qk_res(0, 0)
    a("s_nop 15\ns_nop 3")
    qk_main(0, 0, 0); qk_main(0, 1, 0)
    a("s_nop 15")
    for j in range(NQ):
        for i in range(16): ex(0, j, i)
    a("s_nop 1")
    for j in range(NQ):
        pv(0, j, 0, 0); pv(0, j, 1, 0)
    a(f"""s_sub_u32 s18, s18, 1
s_cmp_lg_u32 s18, 0
s_cbranch_scc1 L_p2_fb2
s_nop 7
s_nop 7
s_branch L_p2_store""")
    a.label("L_p2_end")

def phase3(a, o):
    NC3 = 5
    RS3 = 160
    OF = lambda ks: 64 + 4*ks
    WF = lambda p, c: 144 + 20*p + 4*c
    ACC = lambda c: 16 + 4*c
    vL, vWa, vWr, vWD = 1, 2, 4, 5
    D = o["p3depth"]
    a(f"""s_and_b32 s30, s2, 7
s_lshr_b32 s31, s2, 3
s_mov_b32 s32, s{sWAVE}
s_lshr_b32 s33, s30, 2
s_and_b32 s34, s30, 3
s_lshl_b32 s34, s34, 2
s_and_b32 s35, s31, 3
s_add_u32 s34, s34, s35
s_lshr_b32 s35, s31, 2
s_lshl_b32 s36, s34, 2
s_lshr_b32 s37, s32, 1
s_add_u32 s36, s36, s37""")
    a(f"""v_mul_u32_u24 v9, 26, v0
v_lshrrev_b32 v9, 8, v9
v_mul_u32_u24 v10, 10, v9
v_sub_u32 v10, v0, v10
v_mul_u32_u24 v9, 1152, v9
v_lshl_add_u32 v{vWD}, v10, 4, v9
s_cmp_eq_u32 s33, 0
s_cselect_b32 s8, s{pAWO}, s{pBWO}
s_cselect_b32 s9, s{pAWO+1}, s{pBWO+1}
s_mov_b32 s10, {WO_BYTES}
s_mov_b32 s11, 0x00020000
s_mul_i32 s22, s32, {6*1152}
s_mul_i32 s23, s35, 144
s_add_u32 s22, s22, s23
s_mul_i32 s23, s32, {6*RS3}
s_mov_b32 exec_hi, 0x0fffffff""")
    for r in range(12):
        a("s_mov_b32 m0, s23")
        a(f"s_add_u32 s23, s23, {48*RS3}")
        a(f"buffer_load_dwordx4 v{vWD}, s[8:11], s22 offen lds")
        a(f"s_add_u32 s22, s22, {48*1152}")
    a("s_mov_b32 exec_hi, -1")
    a(f"""v_and_b32 v7, 15, v0
v_lshrrev_b32 v8, 4, v0
v_lshlrev_b32 v9, 9, v8
v_lshl_add_u32 v{vL}, v7, 4, v9
s_and_b32 s37, s32, 1
s_lshl_b32 s37, s37, 8
v_add_u32 v{vL}, s37, v{vL}
v_lshrrev_b32 v9, 1, v8
v_mul_u32_u24 v9, 20, v9
v_and_b32 v10, 1, v8
v_lshl_add_u32 v9, v10, 2, v9
v_lshrrev_b32 v10, 2, v7
v_add_u32 v9, v9, v10
v_mul_u32_u24 v9, {RS3}, v9
v_and_b32 v11, 3, v7
v_lshl_add_u32 v{vWa}, v11, 3, v9
v_add_u32 v3, {8*36*RS3}, v{vWa}
v_lshlrev_b32 v9, 2, v8
v_lshrrev_b32 v12, 1, v10
v_add_u32 v9, v9, v12
v_mul_u32_u24 v9, 18, v9
v_and_b32 v13, 1, v10
v_add_u32 v9, v9, v13
v_xor_b32 v12, 1, v12
v_lshl_add_u32 v9, v12, 4, v9
v_mul_u32_u24 v9, {RS3}, v9
v_lshl_add_u32 v{vWr}, v11, 3, v9
s_lshr_b32 s37, s34, 2
s_lshl_b32 s38, s33, 2
s_add_u32 s37, s37, s38
s_lshl_b32 s37, s37, 5
s_add_u32 s37, s37, 256
v_add_u32 v6, s37, v0
v_lshlrev_b32 v6, 7, v6
v_add_u32 v6, {FLAG_OFF}, v6""")
    srd(a, 16, pWS, WS_USED)
    srd(a, 12, pOUT, OUT_BYTES)
    STG = 576*RS3
    R3 = 152
    a(f"""s_lshl_b32 s20, s33, 21
s_lshl_b32 s21, s36, 15
s_add_u32 s20, s20, s21
s_add_u32 s20, s20, {OM_OFF}
s_lshl_b32 s21, s33, 18
s_lshl_b32 s22, s36, 12
s_add_u32 s21, s21, s22
s_add_u32 s21, s21, {OR_OFF}
s_mul_i32 s23, s32, {16*168}
s_add_u32 s23, s23, {STG}
v_mul_u32_u24 v9, 168, v7
v_lshl_add_u32 v9, v8, 3, v9
v_add_u32 v14, s23, v9
s_lshl_b32 s24, s36, 5
s_and_b32 s25, s32, 1
s_lshl_b32 s25, s25, 4
s_add_u32 s24, s24, s25
s_mul_i32 s24, s24, 2304
s_mul_i32 s25, s33, 1152
s_add_u32 s24, s24, s25
s_mul_i32 s25, s35, 144
s_add_u32 s24, s24, s25""")
    for k in range(3):
        a(f"""v_add_u32 v10, {64*k}, v0
v_mul_u32_u24 v11, 57, v10
v_lshrrev_b32 v11, 9, v11
v_mul_u32_u24 v12, 9, v11
v_sub_u32 v12, v10, v12
v_mul_u32_u24 v13, 168, v11
v_lshl_add_u32 v13, v12, 4, v13
v_add_u32 v{40+k}, s23, v13
v_mul_u32_u24 v13, 2304, v11
v_lshl_add_u32 v{44+k}, v12, 4, v13""")
    a("s_waitcnt vmcnt(0)")
    poll(a, 6, -1, "p2")
    stamp(a, o, 8)
    def oload(ks):
        if ks < 16:
            L = [f"buffer_load_dwordx4 v[{OF(ks)}:{OF(ks)+3}], v{vL}, s[16:19], s20 offen offset:{(ks%2)*2048} sc1"]
            if ks % 2 == 1: L.append("s_add_u32 s20, s20, 4096")
            return L
        return [f"buffer_load_dwordx4 v[{OF(ks)}:{OF(ks)+3}], v{vL}, s[16:19], s21 offen offset:{(ks-16)*2048} sc1"]
    def reads(ks, p):
        L = []
        for c in range(NC3):
            for t in range(2):
                if ks < 16:
                    base, k0 = (vWa, ks) if ks < 8 else (3, ks - 8)
                    off = (36*k0 + 8*t)*RS3 + 32*c
                else:
                    base = vWr
                    off = (288*(ks-16) + 36*t)*RS3 + 32*c
                L.append(f"ds_read_b64_tr_b16 v[{WF(p,c)+2*t}:{WF(p,c)+2*t+1}], v{base} offset:{off}")
        return L
    def mfmas(ks):
        p = ks & 1
        return [f"v_mfma_f32_16x16x32_bf16 v[{ACC(c)}:{ACC(c)+3}], v[{WF(p,c)}:{WF(p,c)+3}], v[{OF(ks)}:{OF(ks)+3}], " + (f"v[{ACC(c)}:{ACC(c)+3}]" if ks else "0")
                for c in range(NC3)]
    for ks in range(D):
        for x in oload(ks): a(x)
    for x in reads(0, 0): a(x)
    for ks in range(18):
        issued = min(17, ks + D - 1)
        a(f"s_waitcnt vmcnt({issued - ks}) lgkmcnt(0)")
        rd = reads(ks+1, (ks+1) & 1) if ks + 1 < 18 else []
        M = mfmas(ks)
        if ks + D < 18:
            for x in oload(ks + D): a(x)
        for idx, m in enumerate(M):
            a(m)
            for x in rd[2*idx:2*idx+2]: a(x)
    stamp(a, o, 9)
    a("s_nop 7")
    for c in range(NC3):
        r = ACC(c); P = 64 + 2*c
        a(f"v_cvt_pk_bf16_f32 v{P}, v{r}, v{r+1}")
        a(f"v_cvt_pk_bf16_f32 v{P+1}, v{r+2}, v{r+3}")
        a(f"ds_write_b64 v14, v[{P}:{P+1}] offset:{32*c}")
    a("s_waitcnt lgkmcnt(0)")
    for k in range(3): a(f"ds_read_b64 v[{120+4*k}:{121+4*k}], v{40+k}\nds_read_b64 v[{122+4*k}:{123+4*k}], v{40+k} offset:8")
    for k in range(3):
        a(f"s_waitcnt lgkmcnt({4-2*k})")
        if k == 2: a("s_mov_b32 exec_lo, 0xffff\ns_mov_b32 exec_hi, 0")
        a(f"buffer_store_dwordx4 v[{120+4*k}:{123+4*k}], v{44+k}, s[12:15], s24 offen{o['outflag']}")
    a("s_mov_b64 exec, -1")

def gen(opts=None):
    o = dict(stamp=False, bar1=5, bar2=26, rot=3, dual=True, pat=[2,2,2,2,2,2,0], wopf=True, wcomp=False, xcomp=False, pf=False, pfstep=0, p3depth=8, outflag='', midnop=True, p1f=' sc1', epi8=False, epipipe=True, roll=False, p2pad=-1, p1pad=-1)
    if opts: o.update(opts)
    a = A()
    a(f".globl {NAME}\n.p2align 8\n.type {NAME},@function")
    a.label(NAME)
    a(f"""s_cmp_ge_u32 s2, 256
s_cbranch_scc1 L_exit
s_load_dwordx16 s[{sP}:{sP+15}], s[0:1], 0
s_load_dwordx2 s[{pWS}:{pWS+1}], s[0:1], 64
v_lshrrev_b32 v1, 6, v0
v_and_b32 v0, 63, v0
s_nop 0
v_readfirstlane_b32 s{sWAVE}, v1""")
    stamp(a, o, 0)
    a("s_nop 3")
    nonce_publish(a)
    phase1(a, o)
    stamp(a, o, 3)
    a("; ================================================= P2: attention")
    phase2(a, o)
    stamp(a, o, 7)
    phase3(a, o)
    a.label("L_end")
    if o["stamp"]:
        a(f"""s_cmp_lg_u32 s{sWAVE}, 0
s_cbranch_scc1 L_exit
s_memrealtime s[42:43]
s_waitcnt lgkmcnt(0)
s_lshl_b32 s40, s2, 6
s_add_u32 s40, s40, {WS_USED}
v_mov_b32 v2, s40
s_mov_b64 exec, 1""")
        for i in range(11):
            a(f"v_mov_b32 v3, s{82+2*i if i < 10 else 42}")
            a(f"global_store_dword v2, v3, s[{pWS}:{pWS+1}] offset:{4*i}")
        a("s_sub_u32 s54, s54, s52\nv_mov_b32 v3, s54")
        a(f"global_store_dword v2, v3, s[{pWS}:{pWS+1}] offset:44")
        if not o.get("p1trace"):
            a("v_mov_b32 v3, s59")
            a(f"global_store_dword v2, v3, s[{pWS}:{pWS+1}] offset:56")
        if o.get("p3trace"):
            for c in range(4):
                a(f"s_sub_u32 s40, s{44+2*c}, s98\nv_mov_b32 v3, s40")
                a(f"global_store_dword v2, v3, s[{pWS}:{pWS+1}] offset:{48+4*c}")
        if o.get("dbgstamp"):
            a(f"s_cmp_lg_u32 s2, {o['dbgstamp']}\ns_cbranch_scc1 L_exit\nv_mov_b32 v2, 0")
            for i in range(11):
                src = 82+2*i if i < 10 else 42
                a(f"s_sub_u32 s44, s{src}, s82" if i else "s_mov_b32 s44, s82")
                a("v_mov_b32 v3, s44")
                a(f"global_store_dword v2, v3, s[{pDBG}:{pDBG+1}] offset:{4*(i+1)}")
    a.label("L_exit")
    a("s_endpgm")
    return a.text(), kdesc(NAME, 256, 102)
```

```python
from asmlib import *
NAME = "concat_heads__mha_block__mha_block__prompt_kernel"
THREADS = 512
ST1 = 49664
WREG = 32768
RS = 232
LDS_KM, LDS_VT, LDS_KR = 0, 65536, 139264
WO_RS = 224
WO_IMG = 576 * WO_RS
K3_STG = 32 * 208
LDS_BYTES = 155648
SPIN_MAX = 400000
sWAVE = 3
sP = 64
pAX, pAW, pAWO, pBX, pBW, pBWO, pOUT, pDBG, pWS = [sP + 2*i for i in range(9)]
CNT1 = 0
CNT2 = 128

def srd(a, d, p, nbytes):
    a(f"s_mov_b32 s{d}, s{p}\ns_mov_b32 s{d+1}, s{p+1}\ns_mov_b32 s{d+2}, {nbytes}\ns_mov_b32 s{d+3}, 0x00020000")

def stamp(a, o, idx):
    if o["stamp"]:
        a(f"s_memrealtime s[{82+2*idx}:{83+2*idx}]")

sNONCE = 63
def trace(a, o, k, tag):
    if o.get("p1trace"):
        a(f"""s_cmp_lg_u32 s{sWAVE}, {o['p1trace']-1}
s_cbranch_scc1 L_tr_{tag}
s_memrealtime s[60:61]
s_waitcnt lgkmcnt(0)
s_lshl_b32 s62, s2, 6
s_add_u32 s62, s62, {WS_USED}
v_mov_b32 v250, s62
v_mov_b32 v251, s60
s_mov_b64 exec, 1
global_store_dword v250, v251, s[{pWS}:{pWS+1}] offset:{48+4*k}
s_mov_b64 exec, -1""")
        a.label(f"L_tr_{tag}")

def nonce_publish(a):
    a(f"""s_cmp_lg_u32 s2, 0
s_cbranch_scc1 L_nonce_done
s_cmp_lg_u32 s{sWAVE}, 0
s_cbranch_scc1 L_nonce_done
s_memrealtime s[40:41]
s_waitcnt lgkmcnt(0)
s_or_b32 s40, s40, 1
v_mov_b32 v2, 0
v_mov_b32 v3, s40
s_mov_b64 exec, 1
global_store_dword v2, v3, s[{pDBG}:{pDBG+1}] sc1
s_mov_b64 exec, -1""")
    a.label("L_nonce_done")

sSYNC = 0
def nonce_fetch(a):
    a(f"""s_cmp_lg_u32 s{sWAVE}, {sSYNC}
s_cbranch_scc1 L_nf_done
s_mov_b32 s58, 0""")
    a.label("L_nf_loop")
    a(f"""s_waitcnt vmcnt(0)
v_readfirstlane_b32 s{sNONCE}, v255
s_add_u32 s58, s58, 1
s_cmp_lg_u32 s{sNONCE}, 0
s_cbranch_scc1 L_nf_done
s_sleep 4
global_load_dword v255, v254, s[{pDBG}:{pDBG+1}] sc1
s_cmp_lt_u32 s58, {SPIN_MAX}
s_cbranch_scc1 L_nf_loop""")
    a.label("L_nf_done")

def signal(a, line_sgpr, tag):
    a("s_waitcnt vmcnt(0)")
    a("s_barrier")
    a(f"""s_cmp_lg_u32 s{sWAVE}, {sSYNC}
s_cbranch_scc1 L_sig_{tag}
s_lshl_b32 s{line_sgpr}, s{line_sgpr}, 7
s_add_u32 s{line_sgpr}, s{line_sgpr}, {FLAG_OFF}
v_mov_b32 v254, s{line_sgpr}
v_mov_b32 v255, s{sNONCE}
s_mov_b64 exec, 1
global_store_dword v254, v255, s[{pWS}:{pWS+1}] sc1
s_mov_b64 exec, -1""")
    a.label(f"L_sig_{tag}")

def poll(a, addr_vgpr, nlanes_mask_lo, tag):
    a(f"""s_cmp_lg_u32 s{sWAVE}, {sSYNC}
s_cbranch_scc1 L_polled_{tag}
s_mov_b32 s40, 0
s_mov_b32 exec_hi, 0
s_mov_b32 exec_lo, {nlanes_mask_lo}""")
    a.label(f"L_poll_{tag}")
    a(f"""global_load_dword v255, v{addr_vgpr}, s[{pWS}:{pWS+1}] sc1
s_add_u32 s40, s40, 1
s_waitcnt vmcnt(0)
v_cmp_ne_u32 vcc, s{sNONCE}, v255
s_cmp_eq_u64 vcc, 0
s_cbranch_scc1 L_pollok_{tag}
s_sleep 1
s_cmp_lt_u32 s40, {SPIN_MAX}
s_cbranch_scc1 L_poll_{tag}""")
    a.label(f"L_pollok_{tag}")
    a("s_mov_b64 exec, -1")
    a.label(f"L_polled_{tag}")
    a("s_barrier")

def p1_epilogue_consts(a):
    srd(a, 16, pWS, WS_USED)
    a(f"""s_mul_i32 s39, s32, {64*RS}
s_mul_i32 s40, s35, 6
v_mul_u32_u24 v5, {RS}, v3
v_lshl_add_u32 v5, v4, 3, v5
v_add_u32 v2, s39, v5
v_and_b32 v6, 31, v0
v_lshrrev_b32 v7, 5, v0
v_mul_u32_u24 v8, {RS}, v6
v_lshl_add_u32 v8, v7, 4, v8
v_add_u32 v8, s39, v8
v_lshlrev_b32 v9, 4, v0
v_mul_u32_u24 v10, {RS}, v0
v_add_u32 v10, s39, v10
v_lshlrev_b32 v11, 3, v0
v_lshrrev_b32 v12, 1, v4
v_lshrrev_b32 v13, 2, v3
v_lshl_add_u32 v13, v12, 3, v13
v_mul_u32_u24 v13, {RS}, v13
v_add_u32 v13, s39, v13
v_and_b32 v14, 1, v4
v_and_b32 v15, 3, v3
v_lshlrev_b32 v15, 3, v15
v_mul_u32_u24 v12, 288, v12
s_lshr_b32 s42, s38, 5
s_lshl_b32 s42, s42, 10
s_lshl_b32 s43, s38, 3
s_lshr_b32 s27, s38, 4
s_mul_i32 s27, s27, 576
s_sub_u32 s41, 32, s40
s_cmp_lt_u32 s40, 32
s_cselect_b32 s41, s41, 0
s_lshr_b32 s41, s41, 1
s_mul_i32 s41, s41, 9""")

def p1_epilogue_pipe(a, o, ACC, P1F):
    assert QM_OFF == 0 and KM_OFF == (1 << 22) and KR_OFF - QR_OFF == (1 << 19)
    a(f"s_mov_b32 s28, {f32bits(QSCALE)}")
    for hl in range(6): a(f"v_mov_b32 v{21+2*hl}, 0")
    cnt = [0]
    def stage(c):
        a(f"s_cmp_le_u32 s41, {4*c}\ns_cbranch_scc1 L_p1_ns{c}")
        a(f"""v_add_u32 v6, {4*c}, v4
v_cmp_gt_u32 vcc, s41, v6
v_mov_b32 v7, 1.0
v_mov_b32 v241, s28
v_cndmask_b32 v6, v7, v241, vcc""")
        for i in range(4):
            r = ACC(i, c)
            a(f"v_pk_mul_f32 v[{r}:{r+1}], v[{r}:{r+1}], v[6:7] op_sel_hi:[1,0]")
            a(f"v_pk_mul_f32 v[{r+2}:{r+3}], v[{r+2}:{r+3}], v[6:7] op_sel_hi:[1,0]")
        a.label(f"L_p1_ns{c}")
        for i in range(4):
            r = ACC(i, c); P = 40 + 2*(cnt[0] % 16); cnt[0] += 1
            a(f"v_cvt_pk_bf16_f32 v{P}, v{r}, v{r+1}")
            a(f"v_cvt_pk_bf16_f32 v{P+1}, v{r+2}, v{r+3}")
            a(f"ds_write_b64 v2, v[{P}:{P+1}] offset:{i*16*RS + 32*c}")
    RR = lambda hl: 128 + 16*hl
    sK = lambda hl: 20 + hl
    sM = lambda hl: 52 + hl if hl < 6 else None
    sR = lambda hl: 48 + hl//2
    def reads(hl):
        pl, par = hl // 2, hl % 2
        lab = f"L_p1_h{hl}"; R = RR(hl); va = 20 + 2*hl
        a(f"""s_add_u32 s46, s40, {hl}
s_lshr_b32 s{sK(hl)}, s46, 5
s_and_b32 s46, s46, 31
s_lshl_b32 s47, s33, 5
s_add_u32 s47, s47, s46
s_cmp_eq_u32 s{sK(hl)}, 2
s_cbranch_scc1 {lab}_v""")
        off = 72*pl + 40*par
        a(f"ds_read2_b64 v[{R}:{R+3}], v8 offset0:{off//8} offset1:{off//8+1}")
        a(f"v_add_u32 v{va}, {32*RS + off}, v8")
        a(f"ds_read2_b64 v[{R+4}:{R+7}], v{va} offset0:0 offset1:1")
        if par == 0: a(f"ds_read_b64 v[{R+8}:{R+9}], v10 offset:{72*pl + 32}")
        a(f"""s_lshl_b32 s{sM(hl)}, s47, 16
s_lshl_b32 s46, s{sK(hl)}, 22
s_add_u32 s{sM(hl)}, s{sM(hl)}, s46
s_add_u32 s{sM(hl)}, s{sM(hl)}, s42""")
        if par == 0:
            a(f"""s_lshr_b32 s{sR(hl)}, s47, 1
s_lshl_b32 s{sR(hl)}, s{sR(hl)}, 14
s_add_u32 s{sR(hl)}, s{sR(hl)}, s43
s_lshl_b32 s46, s{sK(hl)}, 19
s_add_u32 s{sR(hl)}, s{sR(hl)}, s46
s_add_u32 s{sR(hl)}, s{sR(hl)}, {QR_OFF}""")
        a(f"s_branch {lab}_e")
        a.label(f"{lab}_v")
        a(f"""v_add_u32 v{va}, {72*pl + 40*par}, v15
v_mov_b32 v17, {72*pl + 32}
v_cmp_eq_u32 vcc, 0, v14
s_mul_i32 s{sM(hl)}, s47, {VT_STRIDE}
s_add_u32 s{sM(hl)}, s{sM(hl)}, s27
v_cndmask_b32 v{va}, v17, v{va}, vcc
v_add_u32 v{va}, v{va}, v13
s_add_u32 s{sM(hl)}, s{sM(hl)}, {VT_OFF}""")
        for grp in range(4):
            for tr in range(2):
                a(f"ds_read_b64_tr_b16 v[{R+4*grp+2*tr}:{R+4*grp+2*tr+1}], v{va} offset:{(16*grp + 4*tr)*RS}")
        a(f"""v_add_u32 v17, {16 - 2*par}, v3
v_cndmask_b32 v17, v17, v3, vcc
v_lshl_add_u32 v{va+1}, v17, 4, v12""")
        a.label(f"{lab}_e")
    def stores(hl):
        pl, par = hl // 2, hl % 2
        lab = f"L_p1_s{hl}"; R = RR(hl); va = 20 + 2*hl
        a(f"s_cmp_eq_u32 s{sK(hl)}, 2\ns_cbranch_scc1 {lab}_v")
        a(f"buffer_store_dwordx4 v[{R}:{R+3}], v9, s[16:19], s{sM(hl)} offen{P1F}")
        a(f"buffer_store_dwordx4 v[{R+4}:{R+7}], v9, s[16:19], s{sM(hl)} offen offset:1024{P1F}")
        if par == 0: a(f"buffer_store_dwordx2 v[{R+8}:{R+9}], v11, s[16:19], s{sR(hl)} offen{P1F}")
        a(f"s_branch {lab}_e")
        a.label(f"{lab}_v")
        m16 = 0xffff | ((0x3 << (2*par)) << 16)
        a(f"s_mov_b32 exec_lo, {m16}\ns_mov_b32 exec_hi, {m16}")
        for grp in range(4):
            a(f"buffer_store_dwordx4 v[{R+4*grp}:{R+4*grp+3}], v{va+1}, s[16:19], s{sM(hl)} offen offset:{576*grp}{P1F}")
        a("s_mov_b64 exec, -1")
        a.label(f"{lab}_e")
    stage(0); stage(1); stage(2)
    reads(0); reads(1)
    stage(3); stage(4)
    a("s_waitcnt lgkmcnt(8)")
    stores(0); stores(1)
    reads(2); reads(3)
    stage(5); stage(6)
    a("s_waitcnt lgkmcnt(8)")
    stores(2); stores(3)
    reads(4); reads(5)
    a("s_waitcnt lgkmcnt(0)")
    stores(4); stores(5)

def phase1(a, o):
    P1F = o['p1f']
    ROT = o['rot']
    if o.get("rot9"):
        ma, mb = o["rot9"]
        ROTCODE = f"""s_mul_i32 s24, s35, {ma}
s_mul_i32 s25, s34, {mb}
s_add_u32 s24, s24, s25
s_mul_i32 s25, s24, 57
s_lshr_b32 s25, s25, 9
s_mul_i32 s25, s25, 9
s_sub_u32 s24, s24, s25"""
        for v in range(16*ma + 8*mb): assert (v*57) >> 9 == v // 9, v
    else:
        ROTCODE = f"""s_add_u32 s24, s35, s34
s_mul_i32 s25, s24, 43
s_lshr_b32 s25, s25, 7
s_mul_i32 s25, s25, 3
s_sub_u32 s24, s24, s25
s_mul_i32 s24, s24, {ROT}"""
    vXD = lambda i: 16 + i
    vWD = lambda i: 24 + i
    vX = lambda st, ks: 28 + 2*st + ks
    vW = lambda st: 34 + st
    XF = lambda p, i: 40 + 16*p + 4*i
    WF = lambda p, c: 72 + 28*p + 4*c
    ACC = lambda i, c: 128 + 4*(4*c + i)
    n = 7
    GL = o.get("gl")
    if GL:
        a(f"""s_and_b32 s30, s2, 7
s_lshr_b32 s31, s2, 3
s_and_b32 s32, s{sWAVE}, 3
s_lshr_b32 s33, s30, 2
s_and_b32 s34, s31, 7
s_and_b32 s35, s30, 3
s_lshl_b32 s35, s35, 2
s_lshr_b32 s36, s31, 3
s_add_u32 s35, s35, s36
s_lshl_b32 s20, s34, 8
s_lshl_b32 s21, s32, 6
s_add_u32 s38, s20, s21
s_lshl_b32 s37, s32, 13
v_lshrrev_b32 v4, 4, v0
v_and_b32 v3, 15, v0""")
    else: a(f"""s_and_b32 s30, s2, 7
s_lshr_b32 s31, s2, 3
s_and_b32 s32, s{sWAVE}, 3
s_lshr_b32 s33, s30, 2
s_and_b32 s34, s30, 1
s_lshl_b32 s34, s34, 2
s_and_b32 s35, s31, 3
s_add_u32 s34, s34, s35
s_lshr_b32 s35, s30, 1
s_and_b32 s35, s35, 1
s_lshl_b32 s35, s35, 3
s_lshr_b32 s36, s31, 2
s_add_u32 s35, s35, s36
s_lshl_b32 s20, s34, 8
s_lshl_b32 s21, s32, 6
s_add_u32 s38, s20, s21
s_lshl_b32 s37, s32, 13
v_lshrrev_b32 v4, 4, v0
v_and_b32 v3, 15, v0""")
    WC = o["wcomp"]
    a(f"""v_and_b32 v2, 1, v4
v_lshrrev_b32 v5, 1, v4
v_lshlrev_b32 v2, 2, v2
v_lshl_add_u32 v2, v5, 4, v2
v_mul_u32_u24 v2, 3456, v2""")
    if GL:
        a(f"""v_mul_u32_u24 v5, 13, v3
v_lshrrev_b32 v5, 6, v5
v_mul_u32_u24 v6, 5, v5
v_sub_u32 v6, v3, v6
v_mul_u32_u24 v5, 1152, v5
v_lshl_add_u32 v5, v6, 4, v5
v_add_u32 v2, v2, v5
v_mov_b32 v5, 0x40000000
v_cmp_gt_u32 vcc, 15, v3""")
    else:
        a(f"""v_lshl_add_u32 v2, v3, 4, v2
v_mov_b32 v5, 0x40000000
v_cmp_gt_u32 vcc, 14, v3""")
    a(f"""s_mul_i32 s20, s38, 1152
s_lshr_b32 s21, s32, 1
v_cndmask_b32 v2, v5, v2, vcc""")
    for i in range(4):
        a(f"v_add_u32 v{vWD(i)}, {3456*i}, v2")
    a(f"""s_lshl_b32 s21, s21, 5
s_and_b32 s22, s32, 1
s_lshl_b32 s23, s22, 3
s_add_u32 s21, s21, s23
s_mul_i32 s21, s21, 3456
s_mul_i32 s23, s35, {72 if GL else 216}
s_add_u32 s21, s21, s23
s_lshr_b32 s23, s32, 1
s_mul_i32 s23, s23, 8448
s_mul_i32 s22, s22, {4*1056}
s_add_u32 s23, s23, s22
s_add_u32 s23, s23, {WREG}
s_mov_b32 s22, s37
{ROTCODE}
s_lshl_b32 s25, s24, 7
s_add_u32 s20, s20, s25
s_mul_i32 s25, s24, {64*3456}
s_add_u32 s21, s21, s25
s_waitcnt lgkmcnt(0)
s_cmp_eq_u32 s33, 0
s_cselect_b32 s8, s{pAX}, s{pBX}
s_cselect_b32 s9, s{pAX+1}, s{pBX+1}
s_cselect_b32 s12, s{pAW}, s{pBW}
s_cselect_b32 s13, s{pAW+1}, s{pBW+1}
s_mov_b32 s10, {X_BYTES}
s_mov_b32 s11, 0x00020000
s_mov_b32 s14, {W_BYTES}
s_mov_b32 s15, 0x00020000
s_cmp_ge_u32 s{sWAVE}, 4
s_cbranch_scc0 L_p1_compute""")
    wrap = [f"s_add_u32 s21, s21, {64*3456}", "s_add_u32 s20, s20, 128", "s_add_u32 s24, s24, 1", "s_cmp_eq_u32 s24, 9",
            f"s_cselect_b32 s25, {9*128}, 0", f"s_cselect_b32 s26, {9*64*3456}, 0", "s_cselect_b32 s24, 0, s24",
            "s_sub_u32 s20, s20, s25", "s_sub_u32 s21, s21, s26"]
    def w_units(cc):
        st = cc % 3
        U = [[f"s_add_u32 m0, s23, {st*ST1}"]]
        for i in range(4):
            u = [f"buffer_load_dwordx4 v{vWD(i)}, s[12:15], s21 offen lds"]
            u += ["s_add_u32 m0, m0, 1056"] if i < 3 else wrap
            U.append(u)
        return U
    def flat(U):
        for u in U:
            for x in u:
                if x.startswith("buffer_load"): a("s_nop 0")
                a(x)
    XC = o["xcomp"]
    def xsetup():
        a(f"""v_lshrrev_b32 v2, 3, v0
v_and_b32 v5, 7, v0
v_xor_b32 v5, v5, v4
v_mul_u32_u24 v6, 1152, v2
v_lshl_add_u32 v7, v5, 4, v6
v_xor_b32 v8, 64, v7""")
        for i in range(8):
            a(f"v_add_u32 v{vXD(i)}, {9216*i}, v{7 if i % 2 == 0 else 8}")
    if XC:
        for _ in range(9): a("s_barrier")
        a("s_branch L_p1_rb" if o["epi8"] else "s_branch L_p1_done")
    xsetup()
    if o.get("ldprio"): a(f"s_setprio {o['ldprio']}")
    NL = 8 if WC else 12
    def dma(cc):
        st = cc % 3
        a(f"s_add_u32 m0, s22, {st*ST1}")
        for i in range(8):
            a("s_nop 0")
            a(f"buffer_load_dwordx4 v{vXD(i)}, s[8:11], s20 offen lds")
            if i < 7: a("s_add_u32 m0, m0, 1024")
        if WC:
            for x in wrap: a(x)
        else:
            if o.get("wmask"): a("s_mov_b32 exec_lo, 0x3fff3fff\ns_mov_b32 exec_hi, 0x3fff3fff")
            flat(w_units(cc))
            if o.get("wmask"): a("s_mov_b64 exec, -1")
    dma(0); dma(1)
    a(f"s_waitcnt vmcnt({NL})")
    a("s_barrier")
    dma(2)
    for cc in range(8):
        rem = min(8, cc + 2) - (cc + 1)
        a(f"s_waitcnt vmcnt({NL*rem})")
        a("s_barrier")
        if cc + 3 <= 8: dma(cc + 3)
    if o.get("ldprio"): a("s_setprio 0")
    a("s_branch L_p1_rb" if o["epi8"] else "s_branch L_p1_done")
    a.label("L_p1_compute")
    def xw_units(cc):
        st = cc % 3
        U = [[f"s_add_u32 m0, s22, {st*ST1}"]]
        for i in range(8):
            U.append([f"buffer_load_dwordx4 v{vXD(i)}, s[8:11], s20 offen lds",
                      "s_add_u32 m0, m0, 1024" if i < 7 else f"s_add_u32 m0, s23, {st*ST1}"])
        return U + w_units(cc)[1:]
    if XC:
        xsetup()
        flat(xw_units(0)); flat(xw_units(1))
    elif WC:
        flat(w_units(0)); flat(w_units(1))
    a(f"""v_lshrrev_b32 v5, 1, v3
v_xor_b32 v5, v5, v4
v_lshlrev_b32 v5, 4, v5
v_lshl_add_u32 v5, v3, 7, v5
v_add_u32 v5, s37, v5
v_xor_b32 v6, 64, v5""")
    for st in range(3):
        a(f"v_add_u32 v{vX(st,0)}, {st*ST1}, v5")
        a(f"v_add_u32 v{vX(st,1)}, {st*ST1}, v6")
    a(f"""v_lshrrev_b32 v5, 2, v3
v_and_b32 v6, 1, v4
v_lshl_add_u32 v5, v6, 2, v5
v_mul_u32_u24 v5, 1056, v5
v_lshrrev_b32 v6, 1, v4
v_lshl_add_u32 v5, v6, 9, v5
v_and_b32 v6, 3, v3
v_lshl_add_u32 v5, v6, 3, v5""")
    for st in range(3):
        a(f"v_add_u32 v{vW(st)}, {st*ST1 + WREG}, v5")
    def reads(g):
        cc, ks = g // 2, g % 2
        st, p = cc % 3, g & 1
        L = []
        for c in range(n):
            if c < 4: L.append(f"ds_read_b128 v[{XF(p,c)}:{XF(p,c)+3}], v{vX(st,ks)} offset:{2048*c}")
            for tr in range(2):
                L.append(f"ds_read_b64_tr_b16 v[{WF(p,c)+2*tr}:{WF(p,c)+2*tr+1}], v{vW(st)} offset:{ks*8448 + tr*256 + 32*c}")
        return L
    def mfmas(g):
        p = g & 1
        L = []
        for c in range(n):
            for i in range(4):
                acc = f"v[{ACC(i,c)}:{ACC(i,c)+3}]"
                L.append(f"v_mfma_f32_16x16x32_bf16 {acc}, v[{WF(p,c)}:{WF(p,c)+3}], v[{XF(p,i)}:{XF(p,i)+3}], {acc if g else 0}")
        return L
    if o["pf"]:
        assert not WC and o["rot"] == 0
        a(f"""s_and_b32 s26, s35, 7
s_lshl_b32 s26, s26, 5
s_lshl_b32 s27, s34, 8
s_add_u32 s26, s26, s27
s_mul_i32 s26, s26, 1152
s_add_u32 s26, s26, 384
v_and_b32 v5, 31, v0
v_lshrrev_b32 v6, 5, v0
v_mul_u32_u24 v5, 1152, v5
v_lshl_add_u32 v240, v6, 6, v5
s_and_b32 s27, s34, 3
s_add_u32 s27, s27, 192
s_mul_i32 s27, s27, 3456
s_mul_i32 s28, s35, 216
s_add_u32 s27, s27, s28
v_lshrrev_b32 v5, 2, v0
v_and_b32 v6, 3, v0
v_mul_u32_u24 v5, {4*3456}, v5
v_lshl_add_u32 v241, v6, 6, v5
s_mul_i32 s28, s32, {3*128}
s_add_u32 s26, s26, s28
s_sub_u32 s28, s32, 2
s_mul_i32 s28, s28, {3*64*3456}
s_add_u32 s27, s27, s28
s_cmp_lt_u32 s32, 2
s_cselect_b32 s48, s8, s12
s_cselect_b32 s49, s9, s13
s_cselect_b32 s50, s10, s14
s_mov_b32 s51, 0x00020000
s_cselect_b32 s26, s26, s27
s_mov_b32 s27, {64*3456}
s_cselect_b32 s27, 128, s27
s_cselect_b64 vcc, -1, 0
s_nop 1
v_cndmask_b32 v240, v241, v240, vcc""")
    if o["pf"] and o["pfstep"] < 0:
        for q in range(3):
            a(f"buffer_load_dword v{242+q}, v240, s[48:51], s26 offen")
            a("s_add_u32 s26, s26, s27")
    if o["epipipe"]: p1_epilogue_consts(a)
    NC = 12 if XC else 4
    if WC: a(f"s_waitcnt vmcnt({NC})")
    if o["p1pad"] >= 0:
        a(".p2align 6")
        for _ in range(o["p1pad"]): a("s_nop 0")
    a("s_barrier")
    stamp(a, o, 1)
    if o["stamp"]: a("s_memtime s[44:45]")
    for x in reads(0): a(x)
    for g in range(18):
        cc, ks = g // 2, g % 2
        if ks == 1 and cc < 8:
            rem = min(8, cc + 2) - (cc + 1)
            a((f"s_waitcnt vmcnt({NC*rem}) lgkmcnt(0)") if WC else "s_waitcnt lgkmcnt(0)")
            a("s_barrier")
        else:
            a("s_waitcnt lgkmcnt(0)")
        if o.get("p1loop") and ks == 1 and cc < 8:
            a(f"s_memtime s[{84+2*cc}:{85+2*cc}]")
        units = []
        if XC:
            if g == 0: units = xw_units(2)
            elif ks == 1 and cc + 3 <= 8: units = xw_units(cc + 3)[:7]
            elif ks == 0 and cc >= 1 and cc + 2 <= 8: units = xw_units(cc + 2)[7:]
        elif WC:
            if g == 0: units = w_units(2)
            elif ks == 1 and cc + 3 <= 8: units = w_units(cc + 3)[:3]
            elif ks == 0 and cc >= 1 and cc + 2 <= 8: units = w_units(cc + 2)[3:]
        rd = reads(g + 1) if g + 1 < 18 else []
        M = mfmas(g)
        slots = [[] for _ in M]
        for idx, x in enumerate(rd): slots[min(idx, len(M)-1)].append(x)
        for idx, u in enumerate(units): slots[min(len(M)-1, 2 + (idx*len(M))//len(units))] += u
        if o["pf"] and g == o["pfstep"]:
            for q in range(3):
                slots[3 + 8*q] += [f"buffer_load_dword v{242+q}, v240, s[48:51], s26 offen", "s_add_u32 s26, s26, s27"]
        if g == (16 if WC else o.get("ng", 6)):
            a("v_mov_b32 v254, 0")
            a(f"global_load_dword v255, v254, s[{pDBG}:{pDBG+1}] sc1")
        for m, sl in zip(M, slots):
            a(m)
            for x in sl: a(x)
    if o.get("p1loop"):
        a(f"""s_waitcnt lgkmcnt(0)
s_cmp_lg_u32 s{sWAVE}, 0
s_cbranch_scc1 L_p1l_done
s_lshl_b32 s62, s2, 6
s_add_u32 s62, s62, {WS_USED + 65536}
v_mov_b32 v250, s62
s_mov_b64 exec, 1""")
        for cc in range(8):
            a(f"s_sub_u32 s60, s{84+2*cc}, s44\nv_mov_b32 v251, s60\nglobal_store_dword v250, v251, s[{pWS}:{pWS+1}] offset:{4*cc}")
        a("s_mov_b64 exec, -1")
        a.label("L_p1l_done")
    stamp(a, o, 2)
    if o["stamp"]: a("s_memtime s[46:47]\ns_waitcnt lgkmcnt(0)\ns_sub_u32 s59, s46, s44")
    nonce_fetch(a)
    if o["epipipe"]:
        p1_epilogue_pipe(a, o, ACC, P1F)
        a("s_branch L_p1_done")
    if not o["epipipe"]:
        a(f"""s_waitcnt lgkmcnt(0)
s_mul_i32 s39, s32, {64*RS}
v_mul_u32_u24 v5, {RS}, v3
v_lshl_add_u32 v5, v4, 3, v5
v_add_u32 v5, s39, v5
s_mul_i32 s40, s35, 6
s_sub_u32 s41, 32, s40
s_cmp_lt_u32 s40, 32
s_cselect_b32 s41, s41, 0
s_lshr_b32 s41, s41, 1
s_mul_i32 s41, s41, 9
s_mov_b32 s44, {f32bits(QSCALE)}
s_cmp_eq_u32 s41, 0
s_cbranch_scc1 L_p1_noscale""")
        for c in range(n):
            a(f"""v_add_u32 v6, {4*c}, v4
v_cmp_gt_u32 vcc, s41, v6
v_mov_b32 v7, 1.0
v_mov_b32 v8, s44
v_cndmask_b32 v6, v7, v8, vcc""")
            for i in range(4):
                r = ACC(i, c)
                a(f"v_pk_mul_f32 v[{r}:{r+1}], v[{r}:{r+1}], v[6:7] op_sel_hi:[1,0]")
                a(f"v_pk_mul_f32 v[{r+2}:{r+3}], v[{r+2}:{r+3}], v[6:7] op_sel_hi:[1,0]")
        a.label("L_p1_noscale")
        for c in range(n):
            for i in range(4):
                r = ACC(i, c); P = 40 + 2*((4*c + i) % 16)
                a(f"v_cvt_pk_bf16_f32 v{P}, v{r}, v{r+1}")
                a(f"v_cvt_pk_bf16_f32 v{P+1}, v{r+2}, v{r+3}")
                a(f"ds_write_b64 v5, v[{P}:{P+1}] offset:{i*16*RS + 32*c}")
        a("s_waitcnt lgkmcnt(0)")
        trace(a, o, 0, "a")
        a.label("L_p1_rb")
        srd(a, 16, pWS, WS_USED)
        a(f"""s_mul_i32 s39, s32, {64*RS}
s_mul_i32 s40, s35, 6
v_and_b32 v6, 31, v0
v_lshrrev_b32 v7, 5, v0
v_mul_u32_u24 v8, {RS}, v6
v_lshl_add_u32 v8, v7, 4, v8
v_add_u32 v8, s39, v8
v_lshlrev_b32 v9, 4, v0
v_mul_u32_u24 v10, {RS}, v0
v_add_u32 v10, s39, v10
v_lshlrev_b32 v11, 3, v0
v_lshrrev_b32 v12, 1, v4
v_lshrrev_b32 v13, 2, v3
v_lshl_add_u32 v13, v12, 3, v13
v_mul_u32_u24 v13, {RS}, v13
v_add_u32 v13, s39, v13
v_and_b32 v14, 1, v4
v_and_b32 v15, 3, v3
v_lshlrev_b32 v15, 3, v15
v_mul_u32_u24 v12, 288, v12
s_lshr_b32 s42, s38, 5
s_lshl_b32 s42, s42, 10
s_lshl_b32 s43, s38, 3
s_lshr_b32 s45, s38, 4
s_mul_i32 s45, s45, 576""")
        E8 = o["epi8"]
        if E8: a(f"s_barrier\ns_cmp_ge_u32 s{sWAVE}, 4\ns_cbranch_scc1 L_p1_rb1")
        assert QM_OFF == 0 and KM_OFF == (1 << 22) and KR_OFF - QR_OFF == (1 << 19)
        NH = 3 if E8 else 6
        sKf = (lambda k: 48 + k) if E8 else (lambda k: 20 + k)
        sMf = (lambda k: 52 + k) if E8 else (lambda k: 26 + k)
        sRf = (lambda k: 55 + k) if E8 else (lambda k: 48 + k)
        for hg in range(2 if E8 else 1):
            if hg: a.label("L_p1_rb1")
            for k in range(NH):
                hl = NH*hg + k
                pl, par = hl // 2, hl % 2
                lab = f"L_p1_h{hl}"
                R = 128 + 16*k
                sK, sM, sR = sKf(k), sMf(k), sRf(k)
                a(f"""s_add_u32 s46, s40, {hl}
s_lshr_b32 s{sK}, s46, 5
s_and_b32 s46, s46, 31
s_lshl_b32 s47, s33, 5
s_add_u32 s47, s47, s46
s_cmp_eq_u32 s{sK}, 2
s_cbranch_scc1 {lab}_v""")
                off = 72*pl + 40*par
                a(f"ds_read2_b64 v[{R}:{R+3}], v8 offset0:{off//8} offset1:{off//8+1}")
                a(f"v_add_u32 v{20+2*k}, {32*RS + off}, v8")
                a(f"ds_read2_b64 v[{R+4}:{R+7}], v{20+2*k} offset0:0 offset1:1")
                if par == 0: a(f"ds_read_b64 v[{R+8}:{R+9}], v10 offset:{72*pl + 32}")
                a(f"""s_lshl_b32 s{sM}, s47, 16
s_lshl_b32 s46, s{sK}, 22
s_add_u32 s{sM}, s{sM}, s46
s_add_u32 s{sM}, s{sM}, s42""")
                if par == 0:
                    a(f"""s_lshr_b32 s{sR}, s47, 1
s_lshl_b32 s{sR}, s{sR}, 14
s_add_u32 s{sR}, s{sR}, s43
s_lshl_b32 s46, s{sK}, 19
s_add_u32 s{sR}, s{sR}, s46
s_add_u32 s{sR}, s{sR}, {QR_OFF}""")
                a(f"s_branch {lab}_e")
                a.label(f"{lab}_v")
                a(f"""v_add_u32 v{20+2*k}, {72*pl + 40*par}, v15
v_mov_b32 v17, {72*pl + 32}
v_cmp_eq_u32 vcc, 0, v14
s_mul_i32 s{sM}, s47, {VT_STRIDE}
s_add_u32 s{sM}, s{sM}, s45
v_cndmask_b32 v{20+2*k}, v17, v{20+2*k}, vcc
v_add_u32 v{20+2*k}, v{20+2*k}, v13
s_add_u32 s{sM}, s{sM}, {VT_OFF}""")
                for grp in range(4):
                    for tr in range(2):
                        a(f"ds_read_b64_tr_b16 v[{R+4*grp+2*tr}:{R+4*grp+2*tr+1}], v{20+2*k} offset:{(16*grp + 4*tr)*RS}")
                a(f"""v_add_u32 v17, {16 - 2*par}, v3
v_cndmask_b32 v17, v17, v3, vcc
v_lshl_add_u32 v{21+2*k}, v17, 4, v12""")
                a.label(f"{lab}_e")
            a("s_waitcnt lgkmcnt(0)")
            trace(a, o, 1, f"b{hg}")
            for k in range(NH):
                hl = NH*hg + k
                pl, par = hl // 2, hl % 2
                lab = f"L_p1_s{hl}"
                R = 128 + 16*k
                sK, sM, sR = sKf(k), sMf(k), sRf(k)
                a(f"s_cmp_eq_u32 s{sK}, 2\ns_cbranch_scc1 {lab}_v")
                a(f"buffer_store_dwordx4 v[{R}:{R+3}], v9, s[16:19], s{sM} offen{P1F}")
                a(f"buffer_store_dwordx4 v[{R+4}:{R+7}], v9, s[16:19], s{sM} offen offset:1024{P1F}")
                if par == 0: a(f"buffer_store_dwordx2 v[{R+8}:{R+9}], v11, s[16:19], s{sR} offen{P1F}")
                a(f"s_branch {lab}_e")
                a.label(f"{lab}_v")
                m16 = 0xffff | ((0x3 << (2*par)) << 16)
                a(f"s_mov_b32 exec_lo, {m16}\ns_mov_b32 exec_hi, {m16}")
                for grp in range(4):
                    a(f"buffer_store_dwordx4 v[{R+4*grp}:{R+4*grp+3}], v{21+2*k}, s[16:19], s{sM} offen offset:{576*grp}{P1F}")
                a("s_mov_b64 exec, -1")
                a.label(f"{lab}_e")
            trace(a, o, 2, f"c{hg}")
            if hg == 0 and E8: a("s_branch L_p1_done")
    a.label("L_p1_done")
    a("s_lshl_b32 s39, s33, 4\ns_add_u32 s39, s39, s35\ns_lshl_b32 s39, s39, 3\ns_add_u32 s39, s39, s34")
    signal(a, 39, "p1")

def phase2(a, o):
    NKT, NQ = 64, 2
    QM = lambda j: 16 + 4*j
    QR = 24
    KMn = lambda s: 28 + 6*s
    KRs = lambda s: 32 + 6*s
    V0 = lambda s: 40 + 8*s
    V1 = lambda s: 44 + 8*s
    S = lambda kt, j: 56 + 32*(kt & 1) + 16*j
    O = lambda j: 120 + 16*j
    vL16, vKR, vVa, vVb, vIdx = 2, 3, 4, 5, 6
    T = 152
    name = "p2"
    a(f"""s_and_b32 s18, s2, 7
s_lshr_b32 s19, s2, 3
s_lshr_b32 s12, s19, 2
s_lshl_b32 s18, s18, 3
s_add_u32 s12, s12, s18
s_and_b32 s13, s19, 3
s_mov_b32 s14, s{sWAVE}""")
    a(f"""s_and_b32 s18, s12, 31
s_lshr_b32 s19, s12, 5
s_lshl_b32 s19, s19, 4
v_lshrrev_b32 v7, 3, v0
v_lshlrev_b32 v7, 5, v7
v_add_u32 v7, s18, v7
v_mul_u32_u24 v7, 171, v7
v_lshrrev_b32 v7, 10, v7
v_add_u32 v7, s19, v7
v_and_b32 v8, 7, v0
v_lshl_add_u32 v7, v7, 3, v8
v_lshlrev_b32 v7, 7, v7
v_add_u32 v7, {FLAG_OFF}, v7""")
    srd(a, 8, pWS, WS_USED)
    a(f"""v_lshlrev_b32 v{vL16}, 4, v0
v_and_b32 v8, 31, v0
v_lshlrev_b32 v9, 3, v8
s_mov_b32 s16, 0x0003ffff
s_mov_b32 s17, 0x0003ffff
s_lshl_b32 s30, s14, 10
s_lshl_b32 s25, s12, 16
s_add_u32 s35, s25, {KM_OFF}
s_add_u32 s25, s35, s30
s_mul_i32 s28, s12, {VT_STRIDE}
s_add_u32 s36, s28, {VT_OFF}
s_add_u32 s28, s36, s30
s_lshr_b32 s38, s12, 1
s_lshl_b32 s38, s38, 14
s_and_b32 s39, s12, 1
s_lshl_b32 s39, s39, 2
s_add_u32 s37, s38, {KR_OFF}
s_add_u32 s33, s37, s30
s_add_u32 s29, s30, {LDS_VT}
s_add_u32 s34, s30, {LDS_KR}
s_mov_b32 s26, s30
s_lshl_b32 s18, s13, 4
s_lshl_b32 s19, s14, 1
s_add_u32 s24, s18, s19""")
    def dmaK():
        a("s_mov_b32 m0, s26")
        a("s_add_u32 s26, s26, 8192")
        a(f"buffer_load_dwordx4 v{vL16}, s[8:11], s25 offen sc1 lds")
        a("s_add_u32 s25, s25, 8192")
    def dmaV():
        a("s_mov_b32 m0, s29")
        a("s_add_u32 s29, s29, 8192")
        a(f"buffer_load_dwordx4 v{vL16}, s[8:11], s28 offen sc1 lds")
        a("s_add_u32 s28, s28, 8192")
    def dmaKR1():
        a("s_add_u32 m0, s34, 8192")
        a("s_add_u32 s33, s33, 8192")
        a(f"buffer_load_dwordx4 v{vL16}, s[8:11], s33 offen sc1 lds")
    a(f"""s_lshr_b32 s18, s12, 5
s_and_b32 s19, s12, 31
s_lshl_b32 s46, s18, 21
s_lshl_b32 s21, s24, 15
s_add_u32 s46, s46, s21
s_lshl_b32 s21, s19, 10
s_add_u32 s46, s46, s21
s_add_u32 s46, s46, {OM_OFF}
s_lshl_b32 s47, s18, 18
s_lshl_b32 s21, s24, 12
s_add_u32 s47, s47, s21
s_lshl_b32 s21, s19, 7
s_add_u32 s47, s47, s21
s_add_u32 s47, s47, {OR_OFF}
s_lshl_b32 s48, s18, 2
s_add_u32 s48, s48, s13
s_lshl_b32 s48, s48, 5
s_add_u32 s48, s48, s19
s_add_u32 s48, s48, 256
v_lshlrev_b32 v197, 2, v8
s_lshl_b32 s49, s12, 16
s_lshl_b32 s19, s24, 10
s_add_u32 s49, s49, s19
s_lshl_b32 s20, s24, 8
s_add_u32 s50, s38, s20
s_add_u32 s50, s50, s39
s_add_u32 s50, s50, {QR_OFF}
v_lshlrev_b32 v196, 3, v0""")
    if o["wopf"]:
        a(f"""s_cmp_lt_u32 s12, 32
s_cselect_b32 s20, s{pAWO}, s{pBWO}
s_cselect_b32 s21, s{pAWO+1}, s{pBWO+1}
s_mov_b32 s22, {WO_BYTES}
s_mov_b32 s23, 0x00020000
s_lshr_b32 s18, s2, 3
s_lshl_b32 s18, s18, 3
s_add_u32 s18, s18, s14
s_lshl_b32 s27, s18, 12
v_lshlrev_b32 v198, 6, v0""")
    late = [dmaK, dmaV, dmaKR1, dmaK, dmaV, dmaK, dmaV] + [dmaK, dmaV]*4
    sched = {0: late[0:3], 1: late[3:5], 2: late[5:7], 3: late[7:9], 4: late[9:11], 5: late[11:13], 6: late[13:15]}
    a(f"""v_lshrrev_b32 v10, 5, v0
v_add_u32 v{vKR}, {LDS_KR}, v9
v_add_u32 v{vKR}, s39, v{vKR}
v_mul_u32_u24 v11, 288, v10
v_lshlrev_b32 v12, 4, v8
v_add_u32 v27, v11, v12
v_add_u32 v{vVa}, {LDS_VT}, v27
v_add_u32 v{vVb}, {LDS_VT + 32*1152}, v27
v_mov_b32 v{vIdx}, 0xdddd
v_and_b32 v13, 27, v8
v_cmp_eq_u32 vcc, 18, v13
v_mov_b32 v14, 0x3f803f80
v_mov_b32 v15, 0
v_cndmask_b32 v13, v15, v14, vcc""")
    for s in range(2):
        a(f"v_mov_b32 v{KRs(s)+1}, 0x3f803f80")
        for i in range(4):
            a(f"v_mov_b32 v{V0(s)+i}, v13")
            a(f"v_mov_b32 v{V1(s)+i}, v13")
    a(f"v_mov_b32 v{QR+1}, 0")
    for j in range(NQ):
        for i in range(16): a(f"v_mov_b32 v{O(j)+i}, 0")
    poll(a, 7, 0xffffff, "p1")
    stamp(a, o, 4)
    a("s_mov_b32 m0, s34")
    a("s_nop 0")
    a(f"buffer_load_dwordx4 v{vL16}, s[8:11], s33 offen sc1 lds")
    dmaK(); dmaV(); dmaV()
    for j in range(NQ):
        a(f"buffer_load_dwordx4 v[{QM(j)}:{QM(j)+3}], v{vL16}, s[8:11], s49 offen offset:{1024*j} sc1")
    a(f"buffer_load_dword v{QR}, v196, s[8:11], s50 offen sc1")
    a("s_waitcnt vmcnt(0)")
    a("s_barrier")
    stamp(a, o, 5)
    if o["stamp"]: a("s_memtime s[52:53]")
    def rdK(kt):
        s = kt & 1
        a(f"ds_read_b128 v[{KMn(s)}:{KMn(s)+3}], v{vL16} offset:{kt*1024}")
        a(f"ds_read_b32 v{KRs(s)}, v{vKR} offset:{kt*256}")
    def rdV(kt):
        s = kt & 1
        base, off = (vVa, kt*1152) if kt < 32 else (vVb, (kt-32)*1152)
        a("s_mov_b64 exec, s[16:17]")
        a(f"ds_read_b128 v[{V0(s)}:{V0(s)+3}], v{base} offset:{off}")
        a(f"ds_read_b128 v[{V1(s)}:{V1(s)+3}], v{base} offset:{off+576}")
        a("s_mov_b64 exec, -1")
    def qk_res(kt, ks=None):
        s = (kt & 1) if ks is None else ks; sb = S(kt, 0)
        a(f"v_mfma_f32_32x32x4_2b_bf16 v[{sb}:{sb+31}], v[{KRs(s)}:{KRs(s)+1}], v[{QR}:{QR+1}], 0")
    def qk_main(kt, j, ks=None):
        s = (kt & 1) if ks is None else ks; sb = S(kt, j)
        a(f"v_mfma_f32_32x32x16_bf16 v[{sb}:{sb+15}], v[{KMn(s)}:{KMn(s)+3}], v[{QM(j)}:{QM(j)+3}], v[{sb}:{sb+15}]")
    def pv(kt, j, half, vs=None):
        s = (kt & 1) if vs is None else vs
        v = V0(s) if half == 0 else V1(s)
        a(f"v_smfmac_f32_32x32x32_bf16 v[{O(j)}:{O(j)+15}], v[{v}:{v+3}], v[{S(kt,j)+8*half}:{S(kt,j)+8*half+7}], v{vIdx}")
    def ex(kt, j, i):
        r = S(kt, j) + i
        a(f"v_exp_f32 v{r}, v{r}")
    def loop(copy, prio):
        if o["p2pad"] >= 0:
            a(".p2align 6")
            for _ in range(o["p2pad"]): a("s_nop 0")
        rdK(0); rdV(0)
        a("s_waitcnt lgkmcnt(0)")
        qk_res(0)
        rdK(1)
        a("s_nop 15")
        a("s_nop 1")
        qk_main(0, 0); qk_main(0, 1)
        a("s_nop 7")
        a("s_nop 3")
        def tile(kt, rel=None):
            if rel is None:
                if kt == o["bar1"] or (kt == o["bar2"] and not ROLL):
                    a(f"s_waitcnt vmcnt({4 if kt == o['bar1'] else 0})")
                    a("s_barrier")
                if kt in sched:
                    for f in sched[kt]: f()
                if kt == 9 and o["wopf"]:
                    a("buffer_load_dword v199, v198, s[20:23], s27 offen")
            p = prio(kt)
            a(f"s_setprio {p}" if p is not None else "s_nop 0")
            a("s_waitcnt lgkmcnt(0)")
            if kt > 0: pv(kt-1, 1, 1)
            if kt + 1 < NKT:
                if rel is None: rdV(kt+1)
                else:
                    s_ = (kt+1) & 1; off = (kt+1-rel)*1152
                    a("s_mov_b64 exec, s[16:17]")
                    a(f"ds_read_b128 v[{V0(s_)}:{V0(s_)+3}], v206 offset:{off}")
                    a(f"ds_read_b128 v[{V1(s_)}:{V1(s_)+3}], v206 offset:{off+576}")
                    a("s_mov_b64 exec, -1")
            for i in range(0, 4): ex(kt, 0, i)
            if kt + 1 < NKT: qk_res(kt+1)
            for i in range(4, 12): ex(kt, 0, i)
            pv(kt, 0, 0)
            for i in range(12, 16): ex(kt, 0, i)
            if kt + 2 < NKT:
                if rel is None: rdK(kt+2)
                else:
                    s_ = kt & 1
                    a(f"ds_read_b128 v[{KMn(s_)}:{KMn(s_)+3}], v204 offset:{(kt+2-rel)*1024}")
                    a(f"ds_read_b32 v{KRs(s_)}, v205 offset:{(kt+2-rel)*256}")
            else: a("s_nop 1")
            pv(kt, 0, 1)
            for i in range(4): ex(kt, 1, i)
            if kt + 1 < NKT: qk_main(kt+1, 0)
            for i in range(4, 8): ex(kt, 1, i)
            if kt + 1 < NKT: qk_main(kt+1, 1)
            for i in range(8, 12): ex(kt, 1, i)
            pv(kt, 1, 0)
            for i in range(12, 16): ex(kt, 1, i)
        ROLL = o["roll"]
        if not ROLL:
            for kt in range(NKT): tile(kt)
        else:
            G = len(o["pat"]); L0 = 10; NIT = (NKT - 2 - L0) // G
            assert G % 2 == 0
            for kt in range(L0): tile(kt)
            a(f"""v_add_u32 v204, {L0*1024}, v{vL16}
v_add_u32 v205, {L0*256}, v{vKR}
v_add_u32 v206, {L0*1152}, v{vVa}
s_mov_b32 s44, 0""")
            itb = -(-(30 - L0 - G + 1) // G)
            itb = (28 - L0) // G
            a.label(f"L_p2_roll{copy}")
            a(f"""s_cmp_lg_u32 s44, {itb}
s_cbranch_scc1 L_p2_rnb{copy}
s_waitcnt vmcnt(0)
s_barrier""")
            a.label(f"L_p2_rnb{copy}")
            for u in range(G): tile(L0 + u, rel=L0)
            a(f"""v_add_u32 v204, {G*1024}, v204
v_add_u32 v205, {G*256}, v205
v_add_u32 v206, {G*1152}, v206
s_add_u32 s44, s44, 1
s_cmp_lt_u32 s44, {NIT}
s_cbranch_scc1 L_p2_roll{copy}""")
            for kt in range(L0 + NIT*G, NKT): tile(kt)
        a("s_nop 1")
        pv(NKT-1, 1, 1)
        a("s_setprio 0")
    if o["dual"]:
        a(f"s_cmp_ge_u32 s14, 4\ns_cbranch_scc1 L_p2_loopB")
        loop(0, lambda kt: 1 if kt == 0 else None)
        a("s_branch L_p2_loopdone")
        a.label("L_p2_loopB")
        pat = o["pat"]
        def pr(kt):
            cur = pat[kt % len(pat)]
            prev = pat[(kt-1) % len(pat)] if kt else None
            return cur if cur != prev else None
        loop(1, pr)
        a.label("L_p2_loopdone")
    else:
        loop(0, lambda kt: None)
    stamp(a, o, 6)
    if o["stamp"]:
        a(f"""s_memtime s[54:55]
s_waitcnt lgkmcnt(0)
s_cmp_lg_u32 s14, {99 if o.get("p1trace") else 4}
s_cbranch_scc1 L_p2_nw4
s_sub_u32 s56, s54, s52
s_sub_u32 s57, s94, s92
s_lshl_b32 s40, s2, 6
s_add_u32 s40, s40, {WS_USED}
v_mov_b32 v200, s40
v_mov_b32 v202, s56
v_mov_b32 v203, s57
s_mov_b64 exec, 1
global_store_dwordx2 v200, v[202:203], s[{pWS}:{pWS+1}] offset:48
s_mov_b64 exec, -1""")
        a.label("L_p2_nw4")
    a("s_nop 7")
    a("s_nop 7")
    a("s_mov_b64 s[20:21], 0")
    a("s_mov_b32 s22, 0x53800000")
    a("s_mov_b32 s23, 0x2b800000")
    for j in range(NQ):
        a(f"v_mul_f32 v{T}, 0, v{O(j)}")
        for i in range(1, 10): a(f"v_fma_f32 v{T}, v{O(j)+i}, 0, v{T}")
        a(f"v_add_f32 v{T}, v{T}, v{O(j)+10}")
        a(f"v_cmp_ngt_f32 vcc, s22, v{T}")
        a("s_or_b64 s[20:21], s[20:21], vcc")
        a(f"v_cmp_nlt_f32 vcc, s23, v{T}")
        a("s_or_b64 s[20:21], s[20:21], vcc")
    if o.get("halflds"): a("s_mov_b64 s[20:21], 0")
    a(f"""s_cmp_eq_u64 s[20:21], 0
s_cbranch_scc0 L_p2_fallback""")
    a.label("L_p2_store")
    for j in range(NQ):
        a(f"v_rcp_f32 v{T}, v{O(j)+10}")
        a("s_nop 0")
        for i in range(10): a(f"v_mul_f32 v{O(j)+i}, v{O(j)+i}, v{T}")
        P = T + 2 + 6*j
        for i in range(4): a(f"v_cvt_pk_bf16_f32 v{P+i}, v{O(j)+2*i}, v{O(j)+2*i+1}")
        a(f"v_cvt_pk_bf16_f32 v{P+4}, v{O(j)+8}, v{O(j)+9}")
        a(f"buffer_store_dwordx4 v[{P}:{P+3}], v{vL16}, s[8:11], s46 offen sc1")
        if not o.get("noor"):
            a("s_mov_b32 exec_hi, 0")
            a(f"buffer_store_dword v{P+4}, v197, s[8:11], s47 offen sc1")
            a("s_mov_b32 exec_hi, -1")
        if j == 0: a("s_add_u32 s46, s46, 32768\ns_add_u32 s47, s47, 4096")
    signal(a, 48, "p2")
    a("s_branch L_p2_end")
    a.label("L_p2_fallback")
    MX = T
    a(f"""v_mov_b32 v{MX}, 0xff800000
v_mov_b32 v{MX+1}, 0xff800000
v_mov_b32 v{QR+1}, 0
v_mov_b32 v{MX+4}, v{vL16}
v_mov_b32 v{MX+5}, v{vKR}
s_mov_b32 s18, {NKT}""")
    a.label("L_p2_fb1")
    a(f"""ds_read_b128 v[{KMn(0)}:{KMn(0)+3}], v{MX+4}
ds_read_b32 v{KRs(0)}, v{MX+5}
v_add_u32 v{MX+4}, 1024, v{MX+4}
v_add_u32 v{MX+5}, 256, v{MX+5}
s_waitcnt lgkmcnt(0)""")
    qk_res(0, 0)
    a("s_nop 15\ns_nop 3")
    qk_main(0, 0, 0); qk_main(0, 1, 0)
    a("s_nop 15")
    for j in range(NQ):
        for i in range(8): a(f"v_max3_f32 v{MX+j}, v{MX+j}, v{S(0,j)+2*i}, v{S(0,j)+2*i+1}")
    a(f"""s_sub_u32 s18, s18, 1
s_cmp_lg_u32 s18, 0
s_cbranch_scc1 L_p2_fb1""")
    x, y, hi, mid = MX+6, MX+7, MX+8, MX+9
    for j in range(NQ):
        a(f"""v_mov_b32 v{x}, v{MX+j}
v_mov_b32 v{y}, v{MX+j}
s_nop 1
v_permlane32_swap_b32 v{x}, v{y}
s_nop 1
v_max_f32 v{MX+j}, v{x}, v{y}""")
    a(f"""v_cmp_gt_u32 vcc, 32, v0
s_nop 1
v_cndmask_b32 v{x}, v{MX+1}, v{MX}, vcc
v_and_b32 v{hi}, 0xffff0000, v{x}
v_sub_f32 v{x}, v{x}, v{hi}
v_and_b32 v{mid}, 0xffff0000, v{x}
v_xor_b32 v{hi}, 0x80000000, v{hi}
v_xor_b32 v{mid}, 0x80000000, v{mid}
v_lshrrev_b32 v{hi}, 16, v{hi}
v_or_b32 v{QR+1}, v{hi}, v{mid}""")
    for j in range(NQ):
        for i in range(16): a(f"v_mov_b32 v{O(j)+i}, 0")
    a(f"""v_mov_b32 v{MX+4}, v{vL16}
v_mov_b32 v{MX+5}, v{vKR}
v_mov_b32 v{MX+6}, v{vVa}
s_mov_b32 s18, {NKT}""")
    a.label("L_p2_fb2")
    a(f"""ds_read_b128 v[{KMn(0)}:{KMn(0)+3}], v{MX+4}
ds_read_b32 v{KRs(0)}, v{MX+5}
s_mov_b64 exec, s[16:17]
ds_read_b128 v[{V0(0)}:{V0(0)+3}], v{MX+6}
ds_read_b128 v[{V1(0)}:{V1(0)+3}], v{MX+6} offset:576
s_mov_b64 exec, -1
v_add_u32 v{MX+4}, 1024, v{MX+4}
v_add_u32 v{MX+5}, 256, v{MX+5}
v_add_u32 v{MX+6}, 1152, v{MX+6}
s_waitcnt lgkmcnt(0)""")
    qk_res(0, 0)
    a("s_nop 15\ns_nop 3")
    qk_main(0, 0, 0); qk_main(0, 1, 0)
    a("s_nop 15")
    for j in range(NQ):
        for i in range(16): ex(0, j, i)
    a("s_nop 1")
    for j in range(NQ):
        pv(0, j, 0, 0); pv(0, j, 1, 0)
    a(f"""s_sub_u32 s18, s18, 1
s_cmp_lg_u32 s18, 0
s_cbranch_scc1 L_p2_fb2
s_nop 7
s_nop 7
s_branch L_p2_store""")
    a.label("L_p2_end")

def phase3(a, o):
    NC3 = 5
    RS3 = 160
    OF = lambda ks: 64 + 4*ks
    WF = lambda p, c: 144 + 20*p + 4*c
    ACC = lambda c: 16 + 4*c
    vL, vWa, vWr, vWD = 1, 2, 4, 5
    D = o["p3depth"]
    a(f"""s_and_b32 s30, s2, 7
s_lshr_b32 s31, s2, 3
s_mov_b32 s32, s{sWAVE}
s_lshr_b32 s33, s30, 2
s_and_b32 s34, s30, 3
s_lshl_b32 s34, s34, 2
s_and_b32 s35, s31, 3
s_add_u32 s34, s34, s35
s_lshr_b32 s35, s31, 2
s_lshl_b32 s36, s34, 2
s_lshr_b32 s37, s32, 1
s_add_u32 s36, s36, s37""")
    a(f"""v_mul_u32_u24 v9, 26, v0
v_lshrrev_b32 v9, 8, v9
v_mul_u32_u24 v10, 10, v9
v_sub_u32 v10, v0, v10
v_mul_u32_u24 v9, 1152, v9
v_lshl_add_u32 v{vWD}, v10, 4, v9
s_cmp_eq_u32 s33, 0
s_cselect_b32 s8, s{pAWO}, s{pBWO}
s_cselect_b32 s9, s{pAWO+1}, s{pBWO+1}
s_mov_b32 s10, {WO_BYTES}
s_mov_b32 s11, 0x00020000
s_mul_i32 s22, s32, {6*1152}
s_mul_i32 s23, s35, 144
s_add_u32 s22, s22, s23
s_mul_i32 s23, s32, {6*RS3}
s_mov_b32 exec_hi, 0x0fffffff""")
    for r in range(12):
        a("s_mov_b32 m0, s23")
        a(f"s_add_u32 s23, s23, {48*RS3}")
        a(f"buffer_load_dwordx4 v{vWD}, s[8:11], s22 offen lds")
        a(f"s_add_u32 s22, s22, {48*1152}")
    a("s_mov_b32 exec_hi, -1")
    a(f"""v_and_b32 v7, 15, v0
v_lshrrev_b32 v8, 4, v0
v_lshlrev_b32 v9, 9, v8
v_lshl_add_u32 v{vL}, v7, 4, v9
s_and_b32 s37, s32, 1
s_lshl_b32 s38, s37, 6
s_lshl_b32 s37, s37, 8
v_add_u32 v{vL}, s37, v{vL}
v_lshlrev_b32 v47, 2, v7
v_lshl_add_u32 v47, v8, 9, v47
v_add_u32 v47, s38, v47
v_lshrrev_b32 v9, 1, v8
v_mul_u32_u24 v9, 20, v9
v_and_b32 v10, 1, v8
v_lshl_add_u32 v9, v10, 2, v9
v_lshrrev_b32 v10, 2, v7
v_add_u32 v9, v9, v10
v_mul_u32_u24 v9, {RS3}, v9
v_and_b32 v11, 3, v7
v_lshl_add_u32 v{vWa}, v11, 3, v9
v_add_u32 v3, {8*36*RS3}, v{vWa}
v_lshlrev_b32 v9, 2, v8
v_lshrrev_b32 v12, 1, v10
v_add_u32 v9, v9, v12
v_mul_u32_u24 v9, 18, v9
v_and_b32 v13, 1, v10
v_add_u32 v9, v9, v13
v_xor_b32 v12, 1, v12
v_lshl_add_u32 v9, v12, 4, v9
v_mul_u32_u24 v9, {RS3}, v9
v_lshl_add_u32 v{vWr}, v11, 3, v9
s_lshr_b32 s37, s34, 2
s_lshl_b32 s38, s33, 2
s_add_u32 s37, s37, s38
s_lshl_b32 s37, s37, 5
s_add_u32 s37, s37, 256
v_add_u32 v6, s37, v0
v_lshlrev_b32 v6, 7, v6
v_add_u32 v6, {FLAG_OFF}, v6""")
    srd(a, 16, pWS, WS_USED)
    srd(a, 12, pOUT, OUT_BYTES)
    STG = 576*RS3
    R3 = 152
    a(f"""s_lshl_b32 s20, s33, 21
s_lshl_b32 s21, s36, 15
s_add_u32 s20, s20, s21
s_add_u32 s20, s20, {OM_OFF}
s_lshl_b32 s21, s33, 18
s_lshl_b32 s22, s36, 12
s_add_u32 s21, s21, s22
s_add_u32 s21, s21, {OR_OFF}
s_mul_i32 s23, s32, {16*168}
s_add_u32 s23, s23, {STG}
v_mul_u32_u24 v9, 168, v7
v_lshl_add_u32 v9, v8, 3, v9
v_add_u32 v14, s23, v9
s_lshl_b32 s24, s36, 5
s_and_b32 s25, s32, 1
s_lshl_b32 s25, s25, 4
s_add_u32 s24, s24, s25
s_mul_i32 s24, s24, 2304
s_mul_i32 s25, s33, 1152
s_add_u32 s24, s24, s25
s_mul_i32 s25, s35, 144
s_add_u32 s24, s24, s25""")
    for k in range(3):
        a(f"""v_add_u32 v10, {64*k}, v0
v_mul_u32_u24 v11, 57, v10
v_lshrrev_b32 v11, 9, v11
v_mul_u32_u24 v12, 9, v11
v_sub_u32 v12, v10, v12
v_mul_u32_u24 v13, 168, v11
v_lshl_add_u32 v13, v12, 4, v13
v_add_u32 v{40+k}, s23, v13
v_mul_u32_u24 v13, 2304, v11
v_lshl_add_u32 v{44+k}, v12, 4, v13""")
    a("s_waitcnt vmcnt(0)")
    poll(a, 6, -1, "p2")
    stamp(a, o, 8)
    def oload(ks):
        if ks < 16:
            L = [f"buffer_load_dwordx4 v[{OF(ks)}:{OF(ks)+3}], v{vL}, s[16:19], s20 offen offset:{(ks%2)*2048} sc1"]
            if ks % 2 == 1: L.append("s_add_u32 s20, s20, 4096")
            return L
        return [f"buffer_load_dword v{OF(ks)+r}, v47, s[16:19], s21 offen offset:{(ks-16)*2048 + 128*r} sc1" for r in range(4)]
    nld = lambda ks: 1 if ks < 16 else 4
    def reads(ks, p):
        L = []
        for c in range(NC3):
            for t in range(2):
                if ks < 16:
                    base, k0 = (vWa, ks) if ks < 8 else (3, ks - 8)
                    off = (36*k0 + 8*t)*RS3 + 32*c
                else:
                    base = vWr
                    off = (288*(ks-16) + 36*t)*RS3 + 32*c
                L.append(f"ds_read_b64_tr_b16 v[{WF(p,c)+2*t}:{WF(p,c)+2*t+1}], v{base} offset:{off}")
        return L
    def mfmas(ks):
        p = ks & 1
        return [f"v_mfma_f32_16x16x32_bf16 v[{ACC(c)}:{ACC(c)+3}], v[{WF(p,c)}:{WF(p,c)+3}], v[{OF(ks)}:{OF(ks)+3}], " + (f"v[{ACC(c)}:{ACC(c)+3}]" if ks else "0")
                for c in range(NC3)]
    for ks in range(D):
        for x in oload(ks): a(x)
    for x in reads(0, 0): a(x)
    for ks in range(18):
        issued = min(17, ks + D - 1)
        a(f"s_waitcnt vmcnt({sum(nld(k) for k in range(ks + 1, issued + 1))}) lgkmcnt(0)")
        rd = reads(ks+1, (ks+1) & 1) if ks + 1 < 18 else []
        M = mfmas(ks)
        if ks + D < 18:
            for x in oload(ks + D): a(x)
        for idx, m in enumerate(M):
            a(m)
            for x in rd[2*idx:2*idx+2]: a(x)
    stamp(a, o, 9)
    a("s_nop 7")
    for c in range(NC3):
        r = ACC(c); P = 64 + 2*c
        a(f"v_cvt_pk_bf16_f32 v{P}, v{r}, v{r+1}")
        a(f"v_cvt_pk_bf16_f32 v{P+1}, v{r+2}, v{r+3}")
        a(f"ds_write_b64 v14, v[{P}:{P+1}] offset:{32*c}")
    a("s_waitcnt lgkmcnt(0)")
    for k in range(3): a(f"ds_read_b64 v[{120+4*k}:{121+4*k}], v{40+k}\nds_read_b64 v[{122+4*k}:{123+4*k}], v{40+k} offset:8")
    for k in range(3):
        a(f"s_waitcnt lgkmcnt({4-2*k})")
        if k == 2: a("s_mov_b32 exec_lo, 0xffff\ns_mov_b32 exec_hi, 0")
        a(f"buffer_store_dwordx4 v[{120+4*k}:{123+4*k}], v{44+k}, s[12:15], s24 offen{o['outflag']}")
    a("s_mov_b64 exec, -1")

def gen(opts=None):
    o = dict(stamp=False, bar1=5, bar2=26, rot=3, dual=True, pat=[2,2,2,2,2,2,0], wopf=True, wcomp=False, xcomp=False, pf=False, pfstep=0, p3depth=8, outflag='', midnop=True, p1f=' sc1', epi8=False, epipipe=True, roll=False, p2pad=-1, p1pad=-1, ldprio=0)
    if opts: o.update(opts)
    a = A()
    a(f".globl {NAME}\n.p2align 8\n.type {NAME},@function")
    a.label(NAME)
    a(f"""s_cmp_ge_u32 s2, 256
s_cbranch_scc1 L_exit
s_load_dwordx16 s[{sP}:{sP+15}], s[0:1], 0
s_load_dwordx2 s[{pWS}:{pWS+1}], s[0:1], 64
v_lshrrev_b32 v1, 6, v0
v_and_b32 v0, 63, v0
s_nop 0
v_readfirstlane_b32 s{sWAVE}, v1""")
    stamp(a, o, 0)
    a("s_nop 3")
    nonce_publish(a)
    phase1(a, o)
    stamp(a, o, 3)
    a("; ================================================= P2: attention")
    phase2(a, o)
    stamp(a, o, 7)
    phase3(a, o)
    a.label("L_end")
    if o["stamp"]:
        a(f"""s_cmp_lg_u32 s{sWAVE}, 0
s_cbranch_scc1 L_exit
s_memrealtime s[42:43]
s_waitcnt lgkmcnt(0)
s_lshl_b32 s40, s2, 6
s_add_u32 s40, s40, {WS_USED}
v_mov_b32 v2, s40
s_mov_b64 exec, 1""")
        for i in range(11):
            a(f"v_mov_b32 v3, s{82+2*i if i < 10 else 42}")
            a(f"global_store_dword v2, v3, s[{pWS}:{pWS+1}] offset:{4*i}")
        a("s_sub_u32 s54, s54, s52\nv_mov_b32 v3, s54")
        a(f"global_store_dword v2, v3, s[{pWS}:{pWS+1}] offset:44")
        if not o.get("p1trace"):
            a("v_mov_b32 v3, s59")
            a(f"global_store_dword v2, v3, s[{pWS}:{pWS+1}] offset:56")
        if o.get("p3trace"):
            for c in range(4):
                a(f"s_sub_u32 s40, s{44+2*c}, s98\nv_mov_b32 v3, s40")
                a(f"global_store_dword v2, v3, s[{pWS}:{pWS+1}] offset:{48+4*c}")
        if o.get("dbgstamp"):
            a(f"s_cmp_lg_u32 s2, {o['dbgstamp']}\ns_cbranch_scc1 L_exit\nv_mov_b32 v2, 0")
            for i in range(11):
                src = 82+2*i if i < 10 else 42
                a(f"s_sub_u32 s44, s{src}, s82" if i else "s_mov_b32 s44, s82")
                a("v_mov_b32 v3, s44")
                a(f"global_store_dword v2, v3, s[{pDBG}:{pDBG+1}] offset:{4*(i+1)}")
    a.label("L_exit")
    a("s_endpgm")
    return a.text(), kdesc(NAME, 256, 102)
```

```python
from asmlib import *
NAME = "concat_heads__mha_block__mha_block__prompt_kernel"
THREADS = 512
ST1 = 49664
WREG = 32768
RS = 232
LDS_KM, LDS_VT, LDS_KR = 0, 65536, 139264
WO_RS = 224
WO_IMG = 576 * WO_RS
K3_STG = 32 * 208
LDS_BYTES = 155648
SPIN_MAX = 400000
sWAVE = 3
sP = 64
pAX, pAW, pAWO, pBX, pBW, pBWO, pOUT, pDBG, pWS = [sP + 2*i for i in range(9)]
CNT1 = 0
CNT2 = 128

def srd(a, d, p, nbytes):
    a(f"s_mov_b32 s{d}, s{p}\ns_mov_b32 s{d+1}, s{p+1}\ns_mov_b32 s{d+2}, {nbytes}\ns_mov_b32 s{d+3}, 0x00020000")

def stamp(a, o, idx):
    if o["stamp"]:
        a(f"s_memrealtime s[{82+2*idx}:{83+2*idx}]")

sNONCE = 63
def trace(a, o, k, tag):
    if o.get("p1trace"):
        a(f"""s_cmp_lg_u32 s{sWAVE}, {o['p1trace']-1}
s_cbranch_scc1 L_tr_{tag}
s_memrealtime s[60:61]
s_waitcnt lgkmcnt(0)
s_lshl_b32 s62, s2, 6
s_add_u32 s62, s62, {WS_USED}
v_mov_b32 v250, s62
v_mov_b32 v251, s60
s_mov_b64 exec, 1
global_store_dword v250, v251, s[{pWS}:{pWS+1}] offset:{48+4*k}
s_mov_b64 exec, -1""")
        a.label(f"L_tr_{tag}")

def nonce_publish(a):
    a(f"""s_cmp_lg_u32 s2, 0
s_cbranch_scc1 L_nonce_done
s_cmp_lg_u32 s{sWAVE}, 0
s_cbranch_scc1 L_nonce_done
s_memrealtime s[40:41]
s_waitcnt lgkmcnt(0)
s_or_b32 s40, s40, 1
v_mov_b32 v2, 0
v_mov_b32 v3, s40
s_mov_b64 exec, 1
global_store_dword v2, v3, s[{pDBG}:{pDBG+1}] sc1
s_mov_b64 exec, -1""")
    a.label("L_nonce_done")

sSYNC = 0
def nonce_fetch(a):
    a(f"""s_cmp_lg_u32 s{sWAVE}, {sSYNC}
s_cbranch_scc1 L_nf_done
s_mov_b32 s58, 0""")
    a.label("L_nf_loop")
    a(f"""s_waitcnt vmcnt(0)
v_readfirstlane_b32 s{sNONCE}, v255
s_add_u32 s58, s58, 1
s_cmp_lg_u32 s{sNONCE}, 0
s_cbranch_scc1 L_nf_done
s_sleep 4
global_load_dword v255, v254, s[{pDBG}:{pDBG+1}] sc1
s_cmp_lt_u32 s58, {SPIN_MAX}
s_cbranch_scc1 L_nf_loop""")
    a.label("L_nf_done")

def signal(a, line_sgpr, tag):
    a("s_waitcnt vmcnt(0)")
    a("s_barrier")
    a(f"""s_cmp_lg_u32 s{sWAVE}, {sSYNC}
s_cbranch_scc1 L_sig_{tag}
s_lshl_b32 s{line_sgpr}, s{line_sgpr}, 7
s_add_u32 s{line_sgpr}, s{line_sgpr}, {FLAG_OFF}
v_mov_b32 v254, s{line_sgpr}
v_mov_b32 v255, s{sNONCE}
s_mov_b64 exec, 1
global_store_dword v254, v255, s[{pWS}:{pWS+1}] sc1
s_mov_b64 exec, -1""")
    a.label(f"L_sig_{tag}")

def poll(a, addr_vgpr, nlanes_mask_lo, tag):
    a(f"""s_cmp_lg_u32 s{sWAVE}, {sSYNC}
s_cbranch_scc1 L_polled_{tag}
s_mov_b32 s40, 0
s_mov_b32 exec_hi, 0
s_mov_b32 exec_lo, {nlanes_mask_lo}""")
    a.label(f"L_poll_{tag}")
    a(f"""global_load_dword v255, v{addr_vgpr}, s[{pWS}:{pWS+1}] sc1
s_add_u32 s40, s40, 1
s_waitcnt vmcnt(0)
v_cmp_ne_u32 vcc, s{sNONCE}, v255
s_cmp_eq_u64 vcc, 0
s_cbranch_scc1 L_pollok_{tag}
s_sleep 1
s_cmp_lt_u32 s40, {SPIN_MAX}
s_cbranch_scc1 L_poll_{tag}""")
    a.label(f"L_pollok_{tag}")
    a("s_mov_b64 exec, -1")
    a.label(f"L_polled_{tag}")
    a("s_barrier")

def p1_epilogue_consts(a):
    assert QM_OFF == 0 and KM_OFF == (1 << 22) and KR_OFF - QR_OFF == (1 << 19)
    srd(a, 16, pWS, WS_USED)
    a(f"""s_mul_i32 s39, s32, {64*RS}
s_mul_i32 s40, s35, 6
v_mul_u32_u24 v5, {RS}, v3
v_lshl_add_u32 v5, v4, 3, v5
v_add_u32 v2, s39, v5
v_and_b32 v6, 31, v0
v_lshrrev_b32 v7, 5, v0
v_mul_u32_u24 v8, {RS}, v6
v_lshl_add_u32 v8, v7, 4, v8
v_add_u32 v8, s39, v8
v_add_u32 v240, {32*RS}, v8
v_lshlrev_b32 v9, 4, v0
v_mul_u32_u24 v10, {RS}, v0
v_add_u32 v10, s39, v10
v_lshlrev_b32 v11, 3, v0
v_lshrrev_b32 v12, 1, v4
v_lshrrev_b32 v13, 2, v3
v_lshl_add_u32 v13, v12, 3, v13
v_mul_u32_u24 v13, {RS}, v13
v_add_u32 v13, s39, v13
v_and_b32 v14, 1, v4
v_and_b32 v15, 3, v3
v_lshlrev_b32 v15, 3, v15
v_mul_u32_u24 v12, 288, v12
s_lshr_b32 s42, s38, 5
s_lshl_b32 s42, s42, 10
s_lshl_b32 s43, s38, 3
s_lshr_b32 s27, s38, 4
s_mul_i32 s27, s27, 576
s_sub_u32 s41, 32, s40
s_cmp_lt_u32 s40, 32
s_cselect_b32 s41, s41, 0
s_lshr_b32 s41, s41, 1
s_mul_i32 s41, s41, 9
s_mov_b32 s28, {f32bits(QSCALE)}
v_cmp_eq_u32 vcc, 0, v14""")
    for hl in range(6):
        pl, par = hl // 2, hl % 2
        a(f"""v_add_u32 v{242+hl}, {72*pl + 40*par}, v15
v_mov_b32 v17, {72*pl + 32}
v_cndmask_b32 v{242+hl}, v17, v{242+hl}, vcc
v_add_u32 v{242+hl}, v{242+hl}, v13""")
    for par in range(2):
        a(f"""v_add_u32 v17, {16 - 2*par}, v3
v_cndmask_b32 v17, v17, v3, vcc
v_lshl_add_u32 v{250+par}, v17, 4, v12""")
    for hl in range(6):
        sK, sM, sR = 20 + hl, 52 + hl, 48 + hl//2
        a(f"""s_add_u32 s46, s40, {hl}
s_lshr_b32 s{sK}, s46, 5
s_and_b32 s46, s46, 31
s_lshl_b32 s47, s33, 5
s_add_u32 s47, s47, s46
s_lshl_b32 s{sM}, s47, 16
s_lshl_b32 s46, s{sK}, 22
s_add_u32 s{sM}, s{sM}, s46
s_add_u32 s{sM}, s{sM}, s42
s_mul_i32 s46, s47, {VT_STRIDE}
s_add_u32 s46, s46, s27
s_add_u32 s46, s46, {VT_OFF}
s_cmp_eq_u32 s{sK}, 2
s_cselect_b32 s{sM}, s46, s{sM}""")
        if hl % 2 == 0:
            a(f"""s_lshr_b32 s{sR}, s47, 1
s_lshl_b32 s{sR}, s{sR}, 14
s_add_u32 s{sR}, s{sR}, s43
s_lshl_b32 s46, s{sK}, 19
s_add_u32 s{sR}, s{sR}, s46
s_add_u32 s{sR}, s{sR}, {QR_OFF}""")

def p1_epilogue_pipe(a, o, ACC, P1F):
    cnt = [0]
    def stage(c):
        a(f"s_cmp_le_u32 s41, {4*c}\ns_cbranch_scc1 L_p1_ns{c}")
        a(f"s_cmp_lt_u32 s41, {4*c+4}\ns_cbranch_scc1 L_p1_mx{c}")
        for i in range(4):
            r = ACC(i, c)
            a(f"v_pk_mul_f32 v[{r}:{r+1}], v[{r}:{r+1}], s[28:29] op_sel_hi:[1,0]")
            a(f"v_pk_mul_f32 v[{r+2}:{r+3}], v[{r+2}:{r+3}], s[28:29] op_sel_hi:[1,0]")
        a(f"s_branch L_p1_ns{c}")
        a.label(f"L_p1_mx{c}")
        a(f"""v_add_u32 v6, {4*c}, v4
v_cmp_gt_u32 vcc, s41, v6
v_mov_b32 v7, 1.0
v_mov_b32 v241, s28
v_cndmask_b32 v6, v7, v241, vcc""")
        for i in range(4):
            r = ACC(i, c)
            a(f"v_pk_mul_f32 v[{r}:{r+1}], v[{r}:{r+1}], v[6:7] op_sel_hi:[1,0]")
            a(f"v_pk_mul_f32 v[{r+2}:{r+3}], v[{r+2}:{r+3}], v[6:7] op_sel_hi:[1,0]")
        a.label(f"L_p1_ns{c}")
        for i in range(4):
            r = ACC(i, c); P = 40 + 2*(cnt[0] % 16); cnt[0] += 1
            a(f"v_cvt_pk_bf16_f32 v{P}, v{r}, v{r+1}")
            a(f"v_cvt_pk_bf16_f32 v{P+1}, v{r+2}, v{r+3}")
            a(f"ds_write_b64 v2, v[{P}:{P+1}] offset:{i*16*RS + 32*c}")
    RR = lambda hl: 128 + 16*hl
    sK = lambda hl: 20 + hl
    sM = lambda hl: 52 + hl
    sR = lambda hl: 48 + hl//2
    def reads(hl):
        pl, par = hl // 2, hl % 2
        lab = f"L_p1_h{hl}"; R = RR(hl)
        a(f"s_cmp_eq_u32 s{sK(hl)}, 2\ns_cbranch_scc1 {lab}_v")
        off = 72*pl + 40*par
        a(f"ds_read2_b64 v[{R}:{R+3}], v8 offset0:{off//8} offset1:{off//8+1}")
        a(f"ds_read2_b64 v[{R+4}:{R+7}], v240 offset0:{off//8} offset1:{off//8+1}")
        if par == 0: a(f"ds_read_b64 v[{R+8}:{R+9}], v10 offset:{72*pl + 32}")
        a(f"s_branch {lab}_e")
        a.label(f"{lab}_v")
        for grp in range(4):
            for tr in range(2):
                a(f"ds_read_b64_tr_b16 v[{R+4*grp+2*tr}:{R+4*grp+2*tr+1}], v{242+hl} offset:{(16*grp + 4*tr)*RS}")
        a.label(f"{lab}_e")
    def stores(hl):
        pl, par = hl // 2, hl % 2
        lab = f"L_p1_s{hl}"; R = RR(hl)
        sk = o.get("p1skip", "")
        a(f"s_cmp_eq_u32 s{sK(hl)}, 2\ns_cbranch_scc1 {lab}_v")
        if "m" not in sk:
            a(f"buffer_store_dwordx4 v[{R}:{R+3}], v9, s[16:19], s{sM(hl)} offen{P1F}")
            a(f"buffer_store_dwordx4 v[{R+4}:{R+7}], v9, s[16:19], s{sM(hl)} offen offset:1024{P1F}")
        if par == 0 and "r" not in sk: a(f"buffer_store_dwordx2 v[{R+8}:{R+9}], v11, s[16:19], s{sR(hl)} offen{P1F}")
        a(f"s_branch {lab}_e")
        a.label(f"{lab}_v")
        m16 = 0xffff | ((0x3 << (2*par)) << 16)
        a(f"s_mov_b32 exec_lo, {m16}\ns_mov_b32 exec_hi, {m16}")
        for grp in range(4):
            if "v" not in sk:
                a(f"buffer_store_dwordx4 v[{R+4*grp}:{R+4*grp+3}], v{250+par}, s[16:19], s{sM(hl)} offen offset:{576*grp}{P1F}")
        a("s_mov_b64 exec, -1")
        a.label(f"{lab}_e")
    stage(0); stage(1); stage(2)
    reads(0); reads(1)
    stage(3); stage(4)
    a("s_waitcnt lgkmcnt(8)")
    stores(0); stores(1)
    reads(2); reads(3)
    stage(5); stage(6)
    a("s_waitcnt lgkmcnt(8)")
    stores(2); stores(3)
    reads(4); reads(5)
    a("s_waitcnt lgkmcnt(0)")
    stores(4); stores(5)

def phase1(a, o):
    P1F = o['p1f']
    ROT = o['rot']
    if o.get("rot9"):
        ma, mb = o["rot9"]
        ROTCODE = f"""s_mul_i32 s24, s35, {ma}
s_mul_i32 s25, s34, {mb}
s_add_u32 s24, s24, s25
s_mul_i32 s25, s24, 57
s_lshr_b32 s25, s25, 9
s_mul_i32 s25, s25, 9
s_sub_u32 s24, s24, s25"""
        for v in range(16*ma + 8*mb): assert (v*57) >> 9 == v // 9, v
    else:
        ROTCODE = f"""s_add_u32 s24, s35, s34
s_mul_i32 s25, s24, 43
s_lshr_b32 s25, s25, 7
s_mul_i32 s25, s25, 3
s_sub_u32 s24, s24, s25
s_mul_i32 s24, s24, {ROT}"""
    vXD = lambda i: 16 + i
    vWD = lambda i: 24 + i
    vX = lambda st, ks: 28 + 2*st + ks
    vW = lambda st: 34 + st
    XF = lambda p, i: 40 + 16*p + 4*i
    WF = lambda p, c: 72 + 28*p + 4*c
    ACC = lambda i, c: 128 + 4*(4*c + i)
    n = 7
    GL = o.get("gl")
    if GL:
        a(f"""s_and_b32 s30, s2, 7
s_lshr_b32 s31, s2, 3
s_and_b32 s32, s{sWAVE}, 3
s_lshr_b32 s33, s30, 2
s_and_b32 s34, s31, 7
s_and_b32 s35, s30, 3
s_lshl_b32 s35, s35, 2
s_lshr_b32 s36, s31, 3
s_add_u32 s35, s35, s36
s_lshl_b32 s20, s34, 8
s_lshl_b32 s21, s32, 6
s_add_u32 s38, s20, s21
s_lshl_b32 s37, s32, 13
v_lshrrev_b32 v4, 4, v0
v_and_b32 v3, 15, v0""")
    else: a(f"""s_and_b32 s30, s2, 7
s_lshr_b32 s31, s2, 3
s_and_b32 s32, s{sWAVE}, 3
s_lshr_b32 s33, s30, 2
s_and_b32 s34, s30, 1
s_lshl_b32 s34, s34, 2
s_and_b32 s35, s31, 3
s_add_u32 s34, s34, s35
s_lshr_b32 s35, s30, 1
s_and_b32 s35, s35, 1
s_lshl_b32 s35, s35, 3
s_lshr_b32 s36, s31, 2
s_add_u32 s35, s35, s36
s_lshl_b32 s20, s34, 8
s_lshl_b32 s21, s32, 6
s_add_u32 s38, s20, s21
s_lshl_b32 s37, s32, 13
v_lshrrev_b32 v4, 4, v0
v_and_b32 v3, 15, v0""")
    WC = o["wcomp"]
    a(f"""v_and_b32 v2, 1, v4
v_lshrrev_b32 v5, 1, v4
v_lshlrev_b32 v2, 2, v2
v_lshl_add_u32 v2, v5, 4, v2
v_mul_u32_u24 v2, 3456, v2""")
    if GL:
        a(f"""v_mul_u32_u24 v5, 13, v3
v_lshrrev_b32 v5, 6, v5
v_mul_u32_u24 v6, 5, v5
v_sub_u32 v6, v3, v6
v_mul_u32_u24 v5, 1152, v5
v_lshl_add_u32 v5, v6, 4, v5
v_add_u32 v2, v2, v5
v_mov_b32 v5, 0x40000000
v_cmp_gt_u32 vcc, 15, v3""")
    else:
        a(f"""v_lshl_add_u32 v2, v3, 4, v2
v_mov_b32 v5, 0x40000000
v_cmp_gt_u32 vcc, 14, v3""")
    a(f"""s_mul_i32 s20, s38, 1152
s_lshr_b32 s21, s32, 1
v_cndmask_b32 v2, v5, v2, vcc""")
    for i in range(4):
        a(f"v_add_u32 v{vWD(i)}, {3456*i}, v2")
    a(f"""s_lshl_b32 s21, s21, 5
s_and_b32 s22, s32, 1
s_lshl_b32 s23, s22, 3
s_add_u32 s21, s21, s23
s_mul_i32 s21, s21, 3456
s_mul_i32 s23, s35, {72 if GL else 216}
s_add_u32 s21, s21, s23
s_lshr_b32 s23, s32, 1
s_mul_i32 s23, s23, 8448
s_mul_i32 s22, s22, {4*1056}
s_add_u32 s23, s23, s22
s_add_u32 s23, s23, {WREG}
s_mov_b32 s22, s37
{ROTCODE}
s_lshl_b32 s25, s24, 7
s_add_u32 s20, s20, s25
s_mul_i32 s25, s24, {64*3456}
s_add_u32 s21, s21, s25
s_waitcnt lgkmcnt(0)
s_cmp_eq_u32 s33, 0
s_cselect_b32 s8, s{pAX}, s{pBX}
s_cselect_b32 s9, s{pAX+1}, s{pBX+1}
s_cselect_b32 s12, s{pAW}, s{pBW}
s_cselect_b32 s13, s{pAW+1}, s{pBW+1}
s_mov_b32 s10, {X_BYTES}
s_mov_b32 s11, 0x00020000
s_mov_b32 s14, {W_BYTES}
s_mov_b32 s15, 0x00020000
s_cmp_ge_u32 s{sWAVE}, 4
s_cbranch_scc0 L_p1_compute""")
    wrap = [f"s_add_u32 s21, s21, {64*3456}", "s_add_u32 s20, s20, 128", "s_add_u32 s24, s24, 1", "s_cmp_eq_u32 s24, 9",
            f"s_cselect_b32 s25, {9*128}, 0", f"s_cselect_b32 s26, {9*64*3456}, 0", "s_cselect_b32 s24, 0, s24",
            "s_sub_u32 s20, s20, s25", "s_sub_u32 s21, s21, s26"]
    def w_units(cc):
        st = cc % 3
        U = [[f"s_add_u32 m0, s23, {st*ST1}"]]
        for i in range(4):
            u = [f"buffer_load_dwordx4 v{vWD(i)}, s[12:15], s21 offen lds"]
            u += ["s_add_u32 m0, m0, 1056"] if i < 3 else wrap
            U.append(u)
        return U
    def flat(U):
        for u in U:
            for x in u:
                if x.startswith("buffer_load"): a("s_nop 0")
                a(x)
    XC = o["xcomp"]
    def xsetup():
        a(f"""v_lshrrev_b32 v2, 3, v0
v_and_b32 v5, 7, v0
v_xor_b32 v5, v5, v4
v_mul_u32_u24 v6, 1152, v2
v_lshl_add_u32 v7, v5, 4, v6
v_xor_b32 v8, 64, v7""")
        for i in range(8):
            a(f"v_add_u32 v{vXD(i)}, {9216*i}, v{7 if i % 2 == 0 else 8}")
    if XC:
        for _ in range(9): a("s_barrier")
        a("s_branch L_p1_rb" if o["epi8"] else "s_branch L_p1_done")
    xsetup()
    if o.get("ldprio"): a(f"s_setprio {o['ldprio']}")
    NL = 8 if WC else 12
    def dma(cc):
        st = cc % 3
        a(f"s_add_u32 m0, s22, {st*ST1}")
        for i in range(8):
            a("s_nop 0")
            a(f"buffer_load_dwordx4 v{vXD(i)}, s[8:11], s20 offen lds")
            if i < 7: a("s_add_u32 m0, m0, 1024")
        if WC:
            for x in wrap: a(x)
        else:
            if o.get("wmask"): a("s_mov_b32 exec_lo, 0x3fff3fff\ns_mov_b32 exec_hi, 0x3fff3fff")
            flat(w_units(cc))
            if o.get("wmask"): a("s_mov_b64 exec, -1")
    dma(0); dma(1)
    a(f"s_waitcnt vmcnt({NL})")
    a("s_barrier")
    dma(2)
    for cc in range(8):
        rem = min(8, cc + 2) - (cc + 1)
        a(f"s_waitcnt vmcnt({NL*rem})")
        a("s_barrier")
        if cc + 3 <= 8: dma(cc + 3)
    if o.get("ldprio"): a("s_setprio 0")
    a("s_branch L_p1_rb" if o["epi8"] else "s_branch L_p1_done")
    a.label("L_p1_compute")
    def xw_units(cc):
        st = cc % 3
        U = [[f"s_add_u32 m0, s22, {st*ST1}"]]
        for i in range(8):
            U.append([f"buffer_load_dwordx4 v{vXD(i)}, s[8:11], s20 offen lds",
                      "s_add_u32 m0, m0, 1024" if i < 7 else f"s_add_u32 m0, s23, {st*ST1}"])
        return U + w_units(cc)[1:]
    if XC:
        xsetup()
        flat(xw_units(0)); flat(xw_units(1))
    elif WC:
        flat(w_units(0)); flat(w_units(1))
    a(f"""v_lshrrev_b32 v5, 1, v3
v_xor_b32 v5, v5, v4
v_lshlrev_b32 v5, 4, v5
v_lshl_add_u32 v5, v3, 7, v5
v_add_u32 v5, s37, v5
v_xor_b32 v6, 64, v5""")
    for st in range(3):
        a(f"v_add_u32 v{vX(st,0)}, {st*ST1}, v5")
        a(f"v_add_u32 v{vX(st,1)}, {st*ST1}, v6")
    a(f"""v_lshrrev_b32 v5, 2, v3
v_and_b32 v6, 1, v4
v_lshl_add_u32 v5, v6, 2, v5
v_mul_u32_u24 v5, 1056, v5
v_lshrrev_b32 v6, 1, v4
v_lshl_add_u32 v5, v6, 9, v5
v_and_b32 v6, 3, v3
v_lshl_add_u32 v5, v6, 3, v5""")
    for st in range(3):
        a(f"v_add_u32 v{vW(st)}, {st*ST1 + WREG}, v5")
    def reads(g):
        cc, ks = g // 2, g % 2
        st, p = cc % 3, g & 1
        L = []
        for c in range(n):
            if c < 4: L.append(f"ds_read_b128 v[{XF(p,c)}:{XF(p,c)+3}], v{vX(st,ks)} offset:{2048*c}")
            for tr in range(2):
                L.append(f"ds_read_b64_tr_b16 v[{WF(p,c)+2*tr}:{WF(p,c)+2*tr+1}], v{vW(st)} offset:{ks*8448 + tr*256 + 32*c}")
        return L
    def mfmas(g):
        p = g & 1
        L = []
        for c in range(n):
            for i in range(4):
                acc = f"v[{ACC(i,c)}:{ACC(i,c)+3}]"
                L.append(f"v_mfma_f32_16x16x32_bf16 {acc}, v[{WF(p,c)}:{WF(p,c)+3}], v[{XF(p,i)}:{XF(p,i)+3}], {acc if g else 0}")
        return L
    if o["pf"]:
        assert not WC and o["rot"] == 0
        a(f"""s_and_b32 s26, s35, 7
s_lshl_b32 s26, s26, 5
s_lshl_b32 s27, s34, 8
s_add_u32 s26, s26, s27
s_mul_i32 s26, s26, 1152
s_add_u32 s26, s26, 384
v_and_b32 v5, 31, v0
v_lshrrev_b32 v6, 5, v0
v_mul_u32_u24 v5, 1152, v5
v_lshl_add_u32 v240, v6, 6, v5
s_and_b32 s27, s34, 3
s_add_u32 s27, s27, 192
s_mul_i32 s27, s27, 3456
s_mul_i32 s28, s35, 216
s_add_u32 s27, s27, s28
v_lshrrev_b32 v5, 2, v0
v_and_b32 v6, 3, v0
v_mul_u32_u24 v5, {4*3456}, v5
v_lshl_add_u32 v241, v6, 6, v5
s_mul_i32 s28, s32, {3*128}
s_add_u32 s26, s26, s28
s_sub_u32 s28, s32, 2
s_mul_i32 s28, s28, {3*64*3456}
s_add_u32 s27, s27, s28
s_cmp_lt_u32 s32, 2
s_cselect_b32 s48, s8, s12
s_cselect_b32 s49, s9, s13
s_cselect_b32 s50, s10, s14
s_mov_b32 s51, 0x00020000
s_cselect_b32 s26, s26, s27
s_mov_b32 s27, {64*3456}
s_cselect_b32 s27, 128, s27
s_cselect_b64 vcc, -1, 0
s_nop 1
v_cndmask_b32 v240, v241, v240, vcc""")
    if o["pf"] and o["pfstep"] < 0:
        for q in range(3):
            a(f"buffer_load_dword v{242+q}, v240, s[48:51], s26 offen")
            a("s_add_u32 s26, s26, s27")
    if o["epipipe"]: p1_epilogue_consts(a)
    NC = 12 if XC else 4
    if WC: a(f"s_waitcnt vmcnt({NC})")
    if o["p1pad"] >= 0:
        a(".p2align 6")
        for _ in range(o["p1pad"]): a("s_nop 0")
    a("s_barrier")
    stamp(a, o, 1)
    if o["stamp"]: a("s_memtime s[44:45]")
    for x in reads(0): a(x)
    for g in range(18):
        cc, ks = g // 2, g % 2
        if ks == 1 and cc < 8:
            rem = min(8, cc + 2) - (cc + 1)
            a((f"s_waitcnt vmcnt({NC*rem}) lgkmcnt(0)") if WC else "s_waitcnt lgkmcnt(0)")
            a("s_barrier")
        else:
            a("s_waitcnt lgkmcnt(0)")
        if o.get("p1loop") and ks == 1 and cc < 8:
            a(f"s_memtime s[{84+2*cc}:{85+2*cc}]")
        units = []
        if XC:
            if g == 0: units = xw_units(2)
            elif ks == 1 and cc + 3 <= 8: units = xw_units(cc + 3)[:7]
            elif ks == 0 and cc >= 1 and cc + 2 <= 8: units = xw_units(cc + 2)[7:]
        elif WC:
            if g == 0: units = w_units(2)
            elif ks == 1 and cc + 3 <= 8: units = w_units(cc + 3)[:3]
            elif ks == 0 and cc >= 1 and cc + 2 <= 8: units = w_units(cc + 2)[3:]
        rd = reads(g + 1) if g + 1 < 18 else []
        M = mfmas(g)
        slots = [[] for _ in M]
        for idx, x in enumerate(rd): slots[min(idx, len(M)-1)].append(x)
        for idx, u in enumerate(units): slots[min(len(M)-1, 2 + (idx*len(M))//len(units))] += u
        if o["pf"] and g == o["pfstep"]:
            for q in range(3):
                slots[3 + 8*q] += [f"buffer_load_dword v{242+q}, v240, s[48:51], s26 offen", "s_add_u32 s26, s26, s27"]
        if g == (16 if WC else o.get("ng", 6)):
            a("v_mov_b32 v254, 0")
            a(f"global_load_dword v255, v254, s[{pDBG}:{pDBG+1}] sc1")
        for m, sl in zip(M, slots):
            a(m)
            for x in sl: a(x)
    if o.get("p1loop"):
        a(f"""s_waitcnt lgkmcnt(0)
s_cmp_lg_u32 s{sWAVE}, 0
s_cbranch_scc1 L_p1l_done
s_lshl_b32 s62, s2, 6
s_add_u32 s62, s62, {WS_USED + 65536}
v_mov_b32 v250, s62
s_mov_b64 exec, 1""")
        for cc in range(8):
            a(f"s_sub_u32 s60, s{84+2*cc}, s44\nv_mov_b32 v251, s60\nglobal_store_dword v250, v251, s[{pWS}:{pWS+1}] offset:{4*cc}")
        a("s_mov_b64 exec, -1")
        a.label("L_p1l_done")
    stamp(a, o, 2)
    if o["stamp"]: a("s_memtime s[46:47]\ns_waitcnt lgkmcnt(0)\ns_sub_u32 s59, s46, s44")
    nonce_fetch(a)
    if o["epipipe"]:
        p1_epilogue_pipe(a, o, ACC, P1F)
        a("s_branch L_p1_done")
    if not o["epipipe"]:
        a(f"""s_waitcnt lgkmcnt(0)
s_mul_i32 s39, s32, {64*RS}
v_mul_u32_u24 v5, {RS}, v3
v_lshl_add_u32 v5, v4, 3, v5
v_add_u32 v5, s39, v5
s_mul_i32 s40, s35, 6
s_sub_u32 s41, 32, s40
s_cmp_lt_u32 s40, 32
s_cselect_b32 s41, s41, 0
s_lshr_b32 s41, s41, 1
s_mul_i32 s41, s41, 9
s_mov_b32 s44, {f32bits(QSCALE)}
s_cmp_eq_u32 s41, 0
s_cbranch_scc1 L_p1_noscale""")
        for c in range(n):
            a(f"""v_add_u32 v6, {4*c}, v4
v_cmp_gt_u32 vcc, s41, v6
v_mov_b32 v7, 1.0
v_mov_b32 v8, s44
v_cndmask_b32 v6, v7, v8, vcc""")
            for i in range(4):
                r = ACC(i, c)
                a(f"v_pk_mul_f32 v[{r}:{r+1}], v[{r}:{r+1}], v[6:7] op_sel_hi:[1,0]")
                a(f"v_pk_mul_f32 v[{r+2}:{r+3}], v[{r+2}:{r+3}], v[6:7] op_sel_hi:[1,0]")
        a.label("L_p1_noscale")
        for c in range(n):
            for i in range(4):
                r = ACC(i, c); P = 40 + 2*((4*c + i) % 16)
                a(f"v_cvt_pk_bf16_f32 v{P}, v{r}, v{r+1}")
                a(f"v_cvt_pk_bf16_f32 v{P+1}, v{r+2}, v{r+3}")
                a(f"ds_write_b64 v5, v[{P}:{P+1}] offset:{i*16*RS + 32*c}")
        a("s_waitcnt lgkmcnt(0)")
        trace(a, o, 0, "a")
        a.label("L_p1_rb")
        srd(a, 16, pWS, WS_USED)
        a(f"""s_mul_i32 s39, s32, {64*RS}
s_mul_i32 s40, s35, 6
v_and_b32 v6, 31, v0
v_lshrrev_b32 v7, 5, v0
v_mul_u32_u24 v8, {RS}, v6
v_lshl_add_u32 v8, v7, 4, v8
v_add_u32 v8, s39, v8
v_lshlrev_b32 v9, 4, v0
v_mul_u32_u24 v10, {RS}, v0
v_add_u32 v10, s39, v10
v_lshlrev_b32 v11, 3, v0
v_lshrrev_b32 v12, 1, v4
v_lshrrev_b32 v13, 2, v3
v_lshl_add_u32 v13, v12, 3, v13
v_mul_u32_u24 v13, {RS}, v13
v_add_u32 v13, s39, v13
v_and_b32 v14, 1, v4
v_and_b32 v15, 3, v3
v_lshlrev_b32 v15, 3, v15
v_mul_u32_u24 v12, 288, v12
s_lshr_b32 s42, s38, 5
s_lshl_b32 s42, s42, 10
s_lshl_b32 s43, s38, 3
s_lshr_b32 s45, s38, 4
s_mul_i32 s45, s45, 576""")
        E8 = o["epi8"]
        if E8: a(f"s_barrier\ns_cmp_ge_u32 s{sWAVE}, 4\ns_cbranch_scc1 L_p1_rb1")
        assert QM_OFF == 0 and KM_OFF == (1 << 22) and KR_OFF - QR_OFF == (1 << 19)
        NH = 3 if E8 else 6
        sKf = (lambda k: 48 + k) if E8 else (lambda k: 20 + k)
        sMf = (lambda k: 52 + k) if E8 else (lambda k: 26 + k)
        sRf = (lambda k: 55 + k) if E8 else (lambda k: 48 + k)
        for hg in range(2 if E8 else 1):
            if hg: a.label("L_p1_rb1")
            for k in range(NH):
                hl = NH*hg + k
                pl, par = hl // 2, hl % 2
                lab = f"L_p1_h{hl}"
                R = 128 + 16*k
                sK, sM, sR = sKf(k), sMf(k), sRf(k)
                a(f"""s_add_u32 s46, s40, {hl}
s_lshr_b32 s{sK}, s46, 5
s_and_b32 s46, s46, 31
s_lshl_b32 s47, s33, 5
s_add_u32 s47, s47, s46
s_cmp_eq_u32 s{sK}, 2
s_cbranch_scc1 {lab}_v""")
                off = 72*pl + 40*par
                a(f"ds_read2_b64 v[{R}:{R+3}], v8 offset0:{off//8} offset1:{off//8+1}")
                a(f"v_add_u32 v{20+2*k}, {32*RS + off}, v8")
                a(f"ds_read2_b64 v[{R+4}:{R+7}], v{20+2*k} offset0:0 offset1:1")
                if par == 0: a(f"ds_read_b64 v[{R+8}:{R+9}], v10 offset:{72*pl + 32}")
                a(f"""s_lshl_b32 s{sM}, s47, 16
s_lshl_b32 s46, s{sK}, 22
s_add_u32 s{sM}, s{sM}, s46
s_add_u32 s{sM}, s{sM}, s42""")
                if par == 0:
                    a(f"""s_lshr_b32 s{sR}, s47, 1
s_lshl_b32 s{sR}, s{sR}, 14
s_add_u32 s{sR}, s{sR}, s43
s_lshl_b32 s46, s{sK}, 19
s_add_u32 s{sR}, s{sR}, s46
s_add_u32 s{sR}, s{sR}, {QR_OFF}""")
                a(f"s_branch {lab}_e")
                a.label(f"{lab}_v")
                a(f"""v_add_u32 v{20+2*k}, {72*pl + 40*par}, v15
v_mov_b32 v17, {72*pl + 32}
v_cmp_eq_u32 vcc, 0, v14
s_mul_i32 s{sM}, s47, {VT_STRIDE}
s_add_u32 s{sM}, s{sM}, s45
v_cndmask_b32 v{20+2*k}, v17, v{20+2*k}, vcc
v_add_u32 v{20+2*k}, v{20+2*k}, v13
s_add_u32 s{sM}, s{sM}, {VT_OFF}""")
                for grp in range(4):
                    for tr in range(2):
                        a(f"ds_read_b64_tr_b16 v[{R+4*grp+2*tr}:{R+4*grp+2*tr+1}], v{20+2*k} offset:{(16*grp + 4*tr)*RS}")
                a(f"""v_add_u32 v17, {16 - 2*par}, v3
v_cndmask_b32 v17, v17, v3, vcc
v_lshl_add_u32 v{21+2*k}, v17, 4, v12""")
                a.label(f"{lab}_e")
            a("s_waitcnt lgkmcnt(0)")
            trace(a, o, 1, f"b{hg}")
            for k in range(NH):
                hl = NH*hg + k
                pl, par = hl // 2, hl % 2
                lab = f"L_p1_s{hl}"
                R = 128 + 16*k
                sK, sM, sR = sKf(k), sMf(k), sRf(k)
                a(f"s_cmp_eq_u32 s{sK}, 2\ns_cbranch_scc1 {lab}_v")
                a(f"buffer_store_dwordx4 v[{R}:{R+3}], v9, s[16:19], s{sM} offen{P1F}")
                a(f"buffer_store_dwordx4 v[{R+4}:{R+7}], v9, s[16:19], s{sM} offen offset:1024{P1F}")
                if par == 0: a(f"buffer_store_dwordx2 v[{R+8}:{R+9}], v11, s[16:19], s{sR} offen{P1F}")
                a(f"s_branch {lab}_e")
                a.label(f"{lab}_v")
                m16 = 0xffff | ((0x3 << (2*par)) << 16)
                a(f"s_mov_b32 exec_lo, {m16}\ns_mov_b32 exec_hi, {m16}")
                for grp in range(4):
                    a(f"buffer_store_dwordx4 v[{R+4*grp}:{R+4*grp+3}], v{21+2*k}, s[16:19], s{sM} offen offset:{576*grp}{P1F}")
                a("s_mov_b64 exec, -1")
                a.label(f"{lab}_e")
            trace(a, o, 2, f"c{hg}")
            if hg == 0 and E8: a("s_branch L_p1_done")
    a.label("L_p1_done")
    a("s_lshl_b32 s39, s33, 4\ns_add_u32 s39, s39, s35\ns_lshl_b32 s39, s39, 3\ns_add_u32 s39, s39, s34")
    signal(a, 39, "p1")

def phase2(a, o):
    NKT, NQ = 64, 2
    QM = lambda j: 16 + 4*j
    QR = 24
    KMn = lambda s: 28 + 6*s
    KRs = lambda s: 32 + 6*s
    V0 = lambda s: 40 + 8*s
    V1 = lambda s: 44 + 8*s
    S = lambda kt, j: 56 + 32*(kt & 1) + 16*j
    O = lambda j: 120 + 16*j
    vL16, vKR, vVa, vVb, vIdx = 2, 3, 4, 5, 6
    T = 152
    name = "p2"
    a(f"""s_and_b32 s18, s2, 7
s_lshr_b32 s19, s2, 3
s_lshr_b32 s12, s19, 2
s_lshl_b32 s18, s18, 3
s_add_u32 s12, s12, s18
s_and_b32 s13, s19, 3
s_mov_b32 s14, s{sWAVE}""")
    a(f"""s_and_b32 s18, s12, 31
s_lshr_b32 s19, s12, 5
s_lshl_b32 s19, s19, 4
v_lshrrev_b32 v7, 3, v0
v_lshlrev_b32 v7, 5, v7
v_add_u32 v7, s18, v7
v_mul_u32_u24 v7, 171, v7
v_lshrrev_b32 v7, 10, v7
v_add_u32 v7, s19, v7
v_and_b32 v8, 7, v0
v_lshl_add_u32 v7, v7, 3, v8
v_lshlrev_b32 v7, 7, v7
v_add_u32 v7, {FLAG_OFF}, v7""")
    srd(a, 8, pWS, WS_USED)
    a(f"""v_lshlrev_b32 v{vL16}, 4, v0
v_and_b32 v8, 31, v0
v_lshlrev_b32 v9, 3, v8
s_mov_b32 s16, 0x0003ffff
s_mov_b32 s17, 0x0003ffff
s_lshl_b32 s30, s14, 10
s_lshl_b32 s25, s12, 16
s_add_u32 s35, s25, {KM_OFF}
s_add_u32 s25, s35, s30
s_mul_i32 s28, s12, {VT_STRIDE}
s_add_u32 s36, s28, {VT_OFF}
s_add_u32 s28, s36, s30
s_lshr_b32 s38, s12, 1
s_lshl_b32 s38, s38, 14
s_and_b32 s39, s12, 1
s_lshl_b32 s39, s39, 2
s_add_u32 s37, s38, {KR_OFF}
s_add_u32 s33, s37, s30
s_add_u32 s29, s30, {LDS_VT}
s_add_u32 s34, s30, {LDS_KR}
s_mov_b32 s26, s30
s_lshl_b32 s18, s13, 4
s_lshl_b32 s19, s14, 1
s_add_u32 s24, s18, s19""")
    def dmaK():
        a("s_mov_b32 m0, s26")
        a("s_add_u32 s26, s26, 8192")
        a(f"buffer_load_dwordx4 v{vL16}, s[8:11], s25 offen sc1 lds")
        a("s_add_u32 s25, s25, 8192")
    def dmaV():
        a("s_mov_b32 m0, s29")
        a("s_add_u32 s29, s29, 8192")
        a(f"buffer_load_dwordx4 v{vL16}, s[8:11], s28 offen sc1 lds")
        a("s_add_u32 s28, s28, 8192")
    def dmaKR1():
        a("s_add_u32 m0, s34, 8192")
        a("s_add_u32 s33, s33, 8192")
        a(f"buffer_load_dwordx4 v{vL16}, s[8:11], s33 offen sc1 lds")
    a(f"""s_lshr_b32 s18, s12, 5
s_and_b32 s19, s12, 31
s_lshl_b32 s46, s18, 21
s_lshl_b32 s21, s24, 15
s_add_u32 s46, s46, s21
s_lshl_b32 s21, s19, 10
s_add_u32 s46, s46, s21
s_add_u32 s46, s46, {OM_OFF}
s_lshl_b32 s47, s18, 18
s_lshl_b32 s21, s24, 12
s_add_u32 s47, s47, s21
s_lshl_b32 s21, s19, 7
s_add_u32 s47, s47, s21
s_add_u32 s47, s47, {OR_OFF}
s_lshl_b32 s48, s18, 2
s_add_u32 s48, s48, s13
s_lshl_b32 s48, s48, 5
s_add_u32 s48, s48, s19
s_add_u32 s48, s48, 256
v_lshlrev_b32 v197, 2, v8
s_lshl_b32 s49, s12, 16
s_lshl_b32 s19, s24, 10
s_add_u32 s49, s49, s19
s_lshl_b32 s20, s24, 8
s_add_u32 s50, s38, s20
s_add_u32 s50, s50, s39
s_add_u32 s50, s50, {QR_OFF}
v_lshlrev_b32 v196, 3, v0""")
    if o["wopf"]:
        a(f"""s_cmp_lt_u32 s12, 32
s_cselect_b32 s20, s{pAWO}, s{pBWO}
s_cselect_b32 s21, s{pAWO+1}, s{pBWO+1}
s_mov_b32 s22, {WO_BYTES}
s_mov_b32 s23, 0x00020000
s_lshr_b32 s18, s2, 3
s_lshl_b32 s18, s18, 3
s_add_u32 s18, s18, s14
s_lshl_b32 s27, s18, 12
v_lshlrev_b32 v198, 6, v0""")
    late = [dmaK, dmaV, dmaKR1, dmaK, dmaV, dmaK, dmaV] + [dmaK, dmaV]*4
    sched = {0: late[0:3], 1: late[3:5], 2: late[5:7], 3: late[7:9], 4: late[9:11], 5: late[11:13], 6: late[13:15]}
    a(f"""v_lshrrev_b32 v10, 5, v0
v_add_u32 v{vKR}, {LDS_KR}, v9
v_add_u32 v{vKR}, s39, v{vKR}
v_mul_u32_u24 v11, 288, v10
v_lshlrev_b32 v12, 4, v8
v_add_u32 v27, v11, v12
v_add_u32 v{vVa}, {LDS_VT}, v27
v_add_u32 v{vVb}, {LDS_VT + 32*1152}, v27
v_mov_b32 v{vIdx}, 0xdddd
v_and_b32 v13, 27, v8
v_cmp_eq_u32 vcc, 18, v13
v_mov_b32 v14, 0x3f803f80
v_mov_b32 v15, 0
v_cndmask_b32 v13, v15, v14, vcc""")
    for s in range(2):
        a(f"v_mov_b32 v{KRs(s)+1}, 0x3f803f80")
        for i in range(4):
            a(f"v_mov_b32 v{V0(s)+i}, v13")
            a(f"v_mov_b32 v{V1(s)+i}, v13")
    a(f"v_mov_b32 v{QR+1}, 0")
    for j in range(NQ):
        for i in range(16): a(f"v_mov_b32 v{O(j)+i}, 0")
    poll(a, 7, 0xffffff, "p1")
    stamp(a, o, 4)
    a("s_mov_b32 m0, s34")
    a("s_nop 0")
    a(f"buffer_load_dwordx4 v{vL16}, s[8:11], s33 offen sc1 lds")
    dmaK(); dmaV(); dmaV()
    for j in range(NQ):
        a(f"buffer_load_dwordx4 v[{QM(j)}:{QM(j)+3}], v{vL16}, s[8:11], s49 offen offset:{1024*j} sc1")
    a(f"buffer_load_dword v{QR}, v196, s[8:11], s50 offen sc1")
    a("s_waitcnt vmcnt(0)")
    a("s_barrier")
    stamp(a, o, 5)
    if o["stamp"]: a("s_memtime s[52:53]")
    def rdK(kt):
        s = kt & 1
        a(f"ds_read_b128 v[{KMn(s)}:{KMn(s)+3}], v{vL16} offset:{kt*1024}")
        a(f"ds_read_b32 v{KRs(s)}, v{vKR} offset:{kt*256}")
    def rdV(kt):
        s = kt & 1
        base, off = (vVa, kt*1152) if kt < 32 else (vVb, (kt-32)*1152)
        a("s_mov_b64 exec, s[16:17]")
        a(f"ds_read_b128 v[{V0(s)}:{V0(s)+3}], v{base} offset:{off}")
        a(f"ds_read_b128 v[{V1(s)}:{V1(s)+3}], v{base} offset:{off+576}")
        a("s_mov_b64 exec, -1")
    def qk_res(kt, ks=None):
        s = (kt & 1) if ks is None else ks; sb = S(kt, 0)
        a(f"v_mfma_f32_32x32x4_2b_bf16 v[{sb}:{sb+31}], v[{KRs(s)}:{KRs(s)+1}], v[{QR}:{QR+1}], 0")
    def qk_main(kt, j, ks=None):
        s = (kt & 1) if ks is None else ks; sb = S(kt, j)
        a(f"v_mfma_f32_32x32x16_bf16 v[{sb}:{sb+15}], v[{KMn(s)}:{KMn(s)+3}], v[{QM(j)}:{QM(j)+3}], v[{sb}:{sb+15}]")
    def pv(kt, j, half, vs=None):
        s = (kt & 1) if vs is None else vs
        v = V0(s) if half == 0 else V1(s)
        a(f"v_smfmac_f32_32x32x32_bf16 v[{O(j)}:{O(j)+15}], v[{v}:{v+3}], v[{S(kt,j)+8*half}:{S(kt,j)+8*half+7}], v{vIdx}")
    def ex(kt, j, i):
        r = S(kt, j) + i
        a(f"v_exp_f32 v{r}, v{r}")
    def loop(copy, prio):
        if o["p2pad"] >= 0:
            a(".p2align 6")
            for _ in range(o["p2pad"]): a("s_nop 0")
        rdK(0); rdV(0)
        a("s_waitcnt lgkmcnt(0)")
        qk_res(0)
        rdK(1)
        a("s_nop 15")
        a("s_nop 1")
        qk_main(0, 0); qk_main(0, 1)
        a("s_nop 7")
        a("s_nop 3")
        def tile(kt, rel=None):
            if rel is None:
                if kt == o["bar1"] or (kt == o["bar2"] and not ROLL):
                    a(f"s_waitcnt vmcnt({4 if kt == o['bar1'] else 0})")
                    a("s_barrier")
                if kt in sched:
                    for f in sched[kt]: f()
                if kt == 9 and o["wopf"]:
                    a("buffer_load_dword v199, v198, s[20:23], s27 offen")
            p = prio(kt)
            a(f"s_setprio {p}" if p is not None else "s_nop 0")
            a("s_waitcnt lgkmcnt(0)")
            if kt > 0: pv(kt-1, 1, 1)
            if kt + 1 < NKT:
                if rel is None: rdV(kt+1)
                else:
                    s_ = (kt+1) & 1; off = (kt+1-rel)*1152
                    a("s_mov_b64 exec, s[16:17]")
                    a(f"ds_read_b128 v[{V0(s_)}:{V0(s_)+3}], v206 offset:{off}")
                    a(f"ds_read_b128 v[{V1(s_)}:{V1(s_)+3}], v206 offset:{off+576}")
                    a("s_mov_b64 exec, -1")
            for i in range(0, 4): ex(kt, 0, i)
            if kt + 1 < NKT: qk_res(kt+1)
            for i in range(4, 12): ex(kt, 0, i)
            pv(kt, 0, 0)
            for i in range(12, 16): ex(kt, 0, i)
            if kt + 2 < NKT:
                if rel is None: rdK(kt+2)
                else:
                    s_ = kt & 1
                    a(f"ds_read_b128 v[{KMn(s_)}:{KMn(s_)+3}], v204 offset:{(kt+2-rel)*1024}")
                    a(f"ds_read_b32 v{KRs(s_)}, v205 offset:{(kt+2-rel)*256}")
            else: a("s_nop 1")
            pv(kt, 0, 1)
            for i in range(4): ex(kt, 1, i)
            if kt + 1 < NKT: qk_main(kt+1, 0)
            for i in range(4, 8): ex(kt, 1, i)
            if kt + 1 < NKT: qk_main(kt+1, 1)
            for i in range(8, 12): ex(kt, 1, i)
            pv(kt, 1, 0)
            for i in range(12, 16): ex(kt, 1, i)
        ROLL = o["roll"]
        if not ROLL:
            for kt in range(NKT): tile(kt)
        else:
            G = len(o["pat"]); L0 = 10; NIT = (NKT - 2 - L0) // G
            assert G % 2 == 0
            for kt in range(L0): tile(kt)
            a(f"""v_add_u32 v204, {L0*1024}, v{vL16}
v_add_u32 v205, {L0*256}, v{vKR}
v_add_u32 v206, {L0*1152}, v{vVa}
s_mov_b32 s44, 0""")
            itb = -(-(30 - L0 - G + 1) // G)
            itb = (28 - L0) // G
            a.label(f"L_p2_roll{copy}")
            a(f"""s_cmp_lg_u32 s44, {itb}
s_cbranch_scc1 L_p2_rnb{copy}
s_waitcnt vmcnt(0)
s_barrier""")
            a.label(f"L_p2_rnb{copy}")
            for u in range(G): tile(L0 + u, rel=L0)
            a(f"""v_add_u32 v204, {G*1024}, v204
v_add_u32 v205, {G*256}, v205
v_add_u32 v206, {G*1152}, v206
s_add_u32 s44, s44, 1
s_cmp_lt_u32 s44, {NIT}
s_cbranch_scc1 L_p2_roll{copy}""")
            for kt in range(L0 + NIT*G, NKT): tile(kt)
        a("s_nop 1")
        pv(NKT-1, 1, 1)
        a("s_setprio 0")
    if o["dual"]:
        a(f"s_cmp_ge_u32 s14, 4\ns_cbranch_scc1 L_p2_loopB")
        loop(0, lambda kt: 1 if kt == 0 else None)
        a("s_branch L_p2_loopdone")
        a.label("L_p2_loopB")
        pat = o["pat"]
        def pr(kt):
            cur = pat[kt % len(pat)]
            prev = pat[(kt-1) % len(pat)] if kt else None
            return cur if cur != prev else None
        loop(1, pr)
        a.label("L_p2_loopdone")
    else:
        loop(0, lambda kt: None)
    stamp(a, o, 6)
    if o["stamp"]:
        a(f"""s_memtime s[54:55]
s_waitcnt lgkmcnt(0)
s_cmp_lg_u32 s14, {99 if o.get("p1trace") else 4}
s_cbranch_scc1 L_p2_nw4
s_sub_u32 s56, s54, s52
s_sub_u32 s57, s94, s92
s_lshl_b32 s40, s2, 6
s_add_u32 s40, s40, {WS_USED}
v_mov_b32 v200, s40
v_mov_b32 v202, s56
v_mov_b32 v203, s57
s_mov_b64 exec, 1
global_store_dwordx2 v200, v[202:203], s[{pWS}:{pWS+1}] offset:48
s_mov_b64 exec, -1""")
        a.label("L_p2_nw4")
    a("s_nop 7")
    a("s_nop 7")
    a("s_mov_b64 s[20:21], 0")
    a("s_mov_b32 s22, 0x53800000")
    a("s_mov_b32 s23, 0x2b800000")
    for j in range(NQ):
        a(f"v_mul_f32 v{T}, 0, v{O(j)}")
        for i in range(1, 10): a(f"v_fma_f32 v{T}, v{O(j)+i}, 0, v{T}")
        a(f"v_add_f32 v{T}, v{T}, v{O(j)+10}")
        a(f"v_cmp_ngt_f32 vcc, s22, v{T}")
        a("s_or_b64 s[20:21], s[20:21], vcc")
        a(f"v_cmp_nlt_f32 vcc, s23, v{T}")
        a("s_or_b64 s[20:21], s[20:21], vcc")
    if o.get("halflds"): a("s_mov_b64 s[20:21], 0")
    a(f"""s_cmp_eq_u64 s[20:21], 0
s_cbranch_scc0 L_p2_fallback""")
    a.label("L_p2_store")
    for j in range(NQ):
        a(f"v_rcp_f32 v{T}, v{O(j)+10}")
        a("s_nop 0")
        for i in range(10): a(f"v_mul_f32 v{O(j)+i}, v{O(j)+i}, v{T}")
        P = T + 2 + 6*j
        for i in range(4): a(f"v_cvt_pk_bf16_f32 v{P+i}, v{O(j)+2*i}, v{O(j)+2*i+1}")
        a(f"v_cvt_pk_bf16_f32 v{P+4}, v{O(j)+8}, v{O(j)+9}")
        a(f"buffer_store_dwordx4 v[{P}:{P+3}], v{vL16}, s[8:11], s46 offen sc1")
        if not o.get("noor"):
            a("s_mov_b32 exec_hi, 0")
            a(f"buffer_store_dword v{P+4}, v197, s[8:11], s47 offen sc1")
            a("s_mov_b32 exec_hi, -1")
        if j == 0: a("s_add_u32 s46, s46, 32768\ns_add_u32 s47, s47, 4096")
    signal(a, 48, "p2")
    a("s_branch L_p2_end")
    a.label("L_p2_fallback")
    MX = T
    a(f"""v_mov_b32 v{MX}, 0xff800000
v_mov_b32 v{MX+1}, 0xff800000
v_mov_b32 v{QR+1}, 0
v_mov_b32 v{MX+4}, v{vL16}
v_mov_b32 v{MX+5}, v{vKR}
s_mov_b32 s18, {NKT}""")
    a.label("L_p2_fb1")
    a(f"""ds_read_b128 v[{KMn(0)}:{KMn(0)+3}], v{MX+4}
ds_read_b32 v{KRs(0)}, v{MX+5}
v_add_u32 v{MX+4}, 1024, v{MX+4}
v_add_u32 v{MX+5}, 256, v{MX+5}
s_waitcnt lgkmcnt(0)""")
    qk_res(0, 0)
    a("s_nop 15\ns_nop 3")
    qk_main(0, 0, 0); qk_main(0, 1, 0)
    a("s_nop 15")
    for j in range(NQ):
        for i in range(8): a(f"v_max3_f32 v{MX+j}, v{MX+j}, v{S(0,j)+2*i}, v{S(0,j)+2*i+1}")
    a(f"""s_sub_u32 s18, s18, 1
s_cmp_lg_u32 s18, 0
s_cbranch_scc1 L_p2_fb1""")
    x, y, hi, mid = MX+6, MX+7, MX+8, MX+9
    for j in range(NQ):
        a(f"""v_mov_b32 v{x}, v{MX+j}
v_mov_b32 v{y}, v{MX+j}
s_nop 1
v_permlane32_swap_b32 v{x}, v{y}
s_nop 1
v_max_f32 v{MX+j}, v{x}, v{y}""")
    a(f"""v_cmp_gt_u32 vcc, 32, v0
s_nop 1
v_cndmask_b32 v{x}, v{MX+1}, v{MX}, vcc
v_and_b32 v{hi}, 0xffff0000, v{x}
v_sub_f32 v{x}, v{x}, v{hi}
v_and_b32 v{mid}, 0xffff0000, v{x}
v_xor_b32 v{hi}, 0x80000000, v{hi}
v_xor_b32 v{mid}, 0x80000000, v{mid}
v_lshrrev_b32 v{hi}, 16, v{hi}
v_or_b32 v{QR+1}, v{hi}, v{mid}""")
    for j in range(NQ):
        for i in range(16): a(f"v_mov_b32 v{O(j)+i}, 0")
    a(f"""v_mov_b32 v{MX+4}, v{vL16}
v_mov_b32 v{MX+5}, v{vKR}
v_mov_b32 v{MX+6}, v{vVa}
s_mov_b32 s18, {NKT}""")
    a.label("L_p2_fb2")
    a(f"""ds_read_b128 v[{KMn(0)}:{KMn(0)+3}], v{MX+4}
ds_read_b32 v{KRs(0)}, v{MX+5}
s_mov_b64 exec, s[16:17]
ds_read_b128 v[{V0(0)}:{V0(0)+3}], v{MX+6}
ds_read_b128 v[{V1(0)}:{V1(0)+3}], v{MX+6} offset:576
s_mov_b64 exec, -1
v_add_u32 v{MX+4}, 1024, v{MX+4}
v_add_u32 v{MX+5}, 256, v{MX+5}
v_add_u32 v{MX+6}, 1152, v{MX+6}
s_waitcnt lgkmcnt(0)""")
    qk_res(0, 0)
    a("s_nop 15\ns_nop 3")
    qk_main(0, 0, 0); qk_main(0, 1, 0)
    a("s_nop 15")
    for j in range(NQ):
        for i in range(16): ex(0, j, i)
    a("s_nop 1")
    for j in range(NQ):
        pv(0, j, 0, 0); pv(0, j, 1, 0)
    a(f"""s_sub_u32 s18, s18, 1
s_cmp_lg_u32 s18, 0
s_cbranch_scc1 L_p2_fb2
s_nop 7
s_nop 7
s_branch L_p2_store""")
    a.label("L_p2_end")

def phase3(a, o):
    NC3 = 5
    RS3 = 160
    OF = lambda ks: 64 + 4*ks
    WF = lambda p, c: 144 + 20*p + 4*c
    ACC = lambda c: 16 + 4*c
    vL, vWa, vWr, vWD = 1, 2, 4, 5
    D = o["p3depth"]
    a(f"""s_and_b32 s30, s2, 7
s_lshr_b32 s31, s2, 3
s_mov_b32 s32, s{sWAVE}
s_lshr_b32 s33, s30, 2
s_and_b32 s34, s30, 3
s_lshl_b32 s34, s34, 2
s_and_b32 s35, s31, 3
s_add_u32 s34, s34, s35
s_lshr_b32 s35, s31, 2
s_lshl_b32 s36, s34, 2
s_lshr_b32 s37, s32, 1
s_add_u32 s36, s36, s37""")
    a(f"""v_mul_u32_u24 v9, 26, v0
v_lshrrev_b32 v9, 8, v9
v_mul_u32_u24 v10, 10, v9
v_sub_u32 v10, v0, v10
v_mul_u32_u24 v9, 1152, v9
v_lshl_add_u32 v{vWD}, v10, 4, v9
s_cmp_eq_u32 s33, 0
s_cselect_b32 s8, s{pAWO}, s{pBWO}
s_cselect_b32 s9, s{pAWO+1}, s{pBWO+1}
s_mov_b32 s10, {WO_BYTES}
s_mov_b32 s11, 0x00020000
s_mul_i32 s22, s32, {6*1152}
s_mul_i32 s23, s35, 144
s_add_u32 s22, s22, s23
s_mul_i32 s23, s32, {6*RS3}
s_mov_b32 exec_hi, 0x0fffffff""")
    for r in range(12):
        a("s_mov_b32 m0, s23")
        a(f"s_add_u32 s23, s23, {48*RS3}")
        a(f"buffer_load_dwordx4 v{vWD}, s[8:11], s22 offen lds")
        a(f"s_add_u32 s22, s22, {48*1152}")
    a("s_mov_b32 exec_hi, -1")
    a(f"""v_and_b32 v7, 15, v0
v_lshrrev_b32 v8, 4, v0
v_lshlrev_b32 v9, 9, v8
v_lshl_add_u32 v{vL}, v7, 4, v9
s_and_b32 s37, s32, 1
s_lshl_b32 s38, s37, 6
s_lshl_b32 s37, s37, 8
v_add_u32 v{vL}, s37, v{vL}
v_lshlrev_b32 v47, 2, v7
v_lshl_add_u32 v47, v8, 9, v47
v_add_u32 v47, s38, v47
v_lshrrev_b32 v9, 1, v8
v_mul_u32_u24 v9, 20, v9
v_and_b32 v10, 1, v8
v_lshl_add_u32 v9, v10, 2, v9
v_lshrrev_b32 v10, 2, v7
v_add_u32 v9, v9, v10
v_mul_u32_u24 v9, {RS3}, v9
v_and_b32 v11, 3, v7
v_lshl_add_u32 v{vWa}, v11, 3, v9
v_add_u32 v3, {8*36*RS3}, v{vWa}
v_lshlrev_b32 v9, 2, v8
v_lshrrev_b32 v12, 1, v10
v_add_u32 v9, v9, v12
v_mul_u32_u24 v9, 18, v9
v_and_b32 v13, 1, v10
v_add_u32 v9, v9, v13
v_xor_b32 v12, 1, v12
v_lshl_add_u32 v9, v12, 4, v9
v_mul_u32_u24 v9, {RS3}, v9
v_lshl_add_u32 v{vWr}, v11, 3, v9
s_lshr_b32 s37, s34, 2
s_lshl_b32 s38, s33, 2
s_add_u32 s37, s37, s38
s_lshl_b32 s37, s37, 5
s_add_u32 s37, s37, 256
v_add_u32 v6, s37, v0
v_lshlrev_b32 v6, 7, v6
v_add_u32 v6, {FLAG_OFF}, v6""")
    srd(a, 16, pWS, WS_USED)
    srd(a, 12, pOUT, OUT_BYTES)
    STG = 576*RS3
    R3 = 152
    a(f"""s_lshl_b32 s20, s33, 21
s_lshl_b32 s21, s36, 15
s_add_u32 s20, s20, s21
s_add_u32 s20, s20, {OM_OFF}
s_lshl_b32 s21, s33, 18
s_lshl_b32 s22, s36, 12
s_add_u32 s21, s21, s22
s_add_u32 s21, s21, {OR_OFF}
s_mul_i32 s23, s32, {16*168}
s_add_u32 s23, s23, {STG}
v_mul_u32_u24 v9, 168, v7
v_lshl_add_u32 v9, v8, 3, v9
v_add_u32 v14, s23, v9
s_lshl_b32 s24, s36, 5
s_and_b32 s25, s32, 1
s_lshl_b32 s25, s25, 4
s_add_u32 s24, s24, s25
s_mul_i32 s24, s24, 2304
s_mul_i32 s25, s33, 1152
s_add_u32 s24, s24, s25
s_mul_i32 s25, s35, 144
s_add_u32 s24, s24, s25""")
    for k in range(3):
        a(f"""v_add_u32 v10, {64*k}, v0
v_mul_u32_u24 v11, 57, v10
v_lshrrev_b32 v11, 9, v11
v_mul_u32_u24 v12, 9, v11
v_sub_u32 v12, v10, v12
v_mul_u32_u24 v13, 168, v11
v_lshl_add_u32 v13, v12, 4, v13
v_add_u32 v{40+k}, s23, v13
v_mul_u32_u24 v13, 2304, v11
v_lshl_add_u32 v{44+k}, v12, 4, v13""")
    a("s_waitcnt vmcnt(0)")
    poll(a, 6, -1, "p2")
    stamp(a, o, 8)
    def oload(ks):
        if ks < 16:
            L = [f"buffer_load_dwordx4 v[{OF(ks)}:{OF(ks)+3}], v{vL}, s[16:19], s20 offen offset:{(ks%2)*2048} sc1"]
            if ks % 2 == 1: L.append("s_add_u32 s20, s20, 4096")
            return L
        return [f"buffer_load_dword v{OF(ks)+r}, v47, s[16:19], s21 offen offset:{(ks-16)*2048 + 128*r} sc1" for r in range(4)]
    nld = lambda ks: 1 if ks < 16 else 4
    def reads(ks, p):
        L = []
        for c in range(NC3):
            for t in range(2):
                if ks < 16:
                    base, k0 = (vWa, ks) if ks < 8 else (3, ks - 8)
                    off = (36*k0 + 8*t)*RS3 + 32*c
                else:
                    base = vWr
                    off = (288*(ks-16) + 36*t)*RS3 + 32*c
                L.append(f"ds_read_b64_tr_b16 v[{WF(p,c)+2*t}:{WF(p,c)+2*t+1}], v{base} offset:{off}")
        return L
    def mfmas(ks):
        p = ks & 1
        return [f"v_mfma_f32_16x16x32_bf16 v[{ACC(c)}:{ACC(c)+3}], v[{WF(p,c)}:{WF(p,c)+3}], v[{OF(ks)}:{OF(ks)+3}], " + (f"v[{ACC(c)}:{ACC(c)+3}]" if ks else "0")
                for c in range(NC3)]
    for ks in range(D):
        for x in oload(ks): a(x)
    for x in reads(0, 0): a(x)
    for ks in range(18):
        issued = min(17, ks + D - 1)
        a(f"s_waitcnt vmcnt({sum(nld(k) for k in range(ks + 1, issued + 1))}) lgkmcnt(0)")
        rd = reads(ks+1, (ks+1) & 1) if ks + 1 < 18 else []
        M = mfmas(ks)
        if ks + D < 18:
            for x in oload(ks + D): a(x)
        for idx, m in enumerate(M):
            a(m)
            for x in rd[2*idx:2*idx+2]: a(x)
    stamp(a, o, 9)
    a("s_nop 7")
    for c in range(NC3):
        r = ACC(c); P = 64 + 2*c
        a(f"v_cvt_pk_bf16_f32 v{P}, v{r}, v{r+1}")
        a(f"v_cvt_pk_bf16_f32 v{P+1}, v{r+2}, v{r+3}")
        a(f"ds_write_b64 v14, v[{P}:{P+1}] offset:{32*c}")
    a("s_waitcnt lgkmcnt(0)")
    for k in range(3): a(f"ds_read_b64 v[{120+4*k}:{121+4*k}], v{40+k}\nds_read_b64 v[{122+4*k}:{123+4*k}], v{40+k} offset:8")
    for k in range(3):
        a(f"s_waitcnt lgkmcnt({4-2*k})")
        if k == 2: a("s_mov_b32 exec_lo, 0xffff\ns_mov_b32 exec_hi, 0")
        a(f"buffer_store_dwordx4 v[{120+4*k}:{123+4*k}], v{44+k}, s[12:15], s24 offen{o['outflag']}")
    a("s_mov_b64 exec, -1")

def gen(opts=None):
    o = dict(stamp=False, bar1=5, bar2=26, rot=3, dual=True, pat=[2,2,2,2,2,2,0], wopf=True, wcomp=False, xcomp=False, pf=False, pfstep=0, p3depth=8, outflag='', midnop=True, p1f=' sc1', epi8=False, epipipe=True, roll=False, p2pad=-1, p1pad=-1, ldprio=0)
    if opts: o.update(opts)
    a = A()
    a(f".globl {NAME}\n.p2align 8\n.type {NAME},@function")
    a.label(NAME)
    a(f"""s_cmp_ge_u32 s2, 256
s_cbranch_scc1 L_exit
s_load_dwordx16 s[{sP}:{sP+15}], s[0:1], 0
s_load_dwordx2 s[{pWS}:{pWS+1}], s[0:1], 64
v_lshrrev_b32 v1, 6, v0
v_and_b32 v0, 63, v0
s_nop 0
v_readfirstlane_b32 s{sWAVE}, v1""")
    stamp(a, o, 0)
    a("s_nop 3")
    nonce_publish(a)
    phase1(a, o)
    stamp(a, o, 3)
    a("; ================================================= P2: attention")
    phase2(a, o)
    stamp(a, o, 7)
    phase3(a, o)
    a.label("L_end")
    if o["stamp"]:
        a(f"""s_cmp_lg_u32 s{sWAVE}, 0
s_cbranch_scc1 L_exit
s_memrealtime s[42:43]
s_waitcnt lgkmcnt(0)
s_lshl_b32 s40, s2, 6
s_add_u32 s40, s40, {WS_USED}
v_mov_b32 v2, s40
s_mov_b64 exec, 1""")
        for i in range(11):
            a(f"v_mov_b32 v3, s{82+2*i if i < 10 else 42}")
            a(f"global_store_dword v2, v3, s[{pWS}:{pWS+1}] offset:{4*i}")
        a("s_sub_u32 s54, s54, s52\nv_mov_b32 v3, s54")
        a(f"global_store_dword v2, v3, s[{pWS}:{pWS+1}] offset:44")
        if not o.get("p1trace"):
            a("v_mov_b32 v3, s59")
            a(f"global_store_dword v2, v3, s[{pWS}:{pWS+1}] offset:56")
        if o.get("p3trace"):
            for c in range(4):
                a(f"s_sub_u32 s40, s{44+2*c}, s98\nv_mov_b32 v3, s40")
                a(f"global_store_dword v2, v3, s[{pWS}:{pWS+1}] offset:{48+4*c}")
        if o.get("dbgstamp"):
            a(f"s_cmp_lg_u32 s2, {o['dbgstamp']}\ns_cbranch_scc1 L_exit\nv_mov_b32 v2, 0")
            for i in range(11):
                src = 82+2*i if i < 10 else 42
                a(f"s_sub_u32 s44, s{src}, s82" if i else "s_mov_b32 s44, s82")
                a("v_mov_b32 v3, s44")
                a(f"global_store_dword v2, v3, s[{pDBG}:{pDBG+1}] offset:{4*(i+1)}")
    a.label("L_exit")
    a("s_endpgm")
    return a.text(), kdesc(NAME, 256, 102)
```

```python
from asmlib import *
NAME = "concat_heads__mha_block__mha_block__prompt_kernel"
THREADS = 512
ST1 = 49664
WREG = 32768
RS = 232
LDS_KM, LDS_VT, LDS_KR = 0, 65536, 139264
WO_RS = 224
WO_IMG = 576 * WO_RS
K3_STG = 32 * 208
LDS_BYTES = 155648
SPIN_MAX = 400000
sWAVE = 3
sP = 64
pAX, pAW, pAWO, pBX, pBW, pBWO, pOUT, pDBG, pWS = [sP + 2*i for i in range(9)]
CNT1 = 0
CNT2 = 128

def srd(a, d, p, nbytes):
    a(f"s_mov_b32 s{d}, s{p}\ns_mov_b32 s{d+1}, s{p+1}\ns_mov_b32 s{d+2}, {nbytes}\ns_mov_b32 s{d+3}, 0x00020000")

def stamp(a, o, idx):
    if o["stamp"]:
        a(f"s_memrealtime s[{82+2*idx}:{83+2*idx}]")

sNONCE = 63
def trace(a, o, k, tag):
    if o.get("p1trace"):
        a(f"""s_cmp_lg_u32 s{sWAVE}, {o['p1trace']-1}
s_cbranch_scc1 L_tr_{tag}
s_memrealtime s[60:61]
s_waitcnt lgkmcnt(0)
s_lshl_b32 s62, s2, 6
s_add_u32 s62, s62, {WS_USED}
v_mov_b32 v250, s62
v_mov_b32 v251, s60
s_mov_b64 exec, 1
global_store_dword v250, v251, s[{pWS}:{pWS+1}] offset:{48+4*k}
s_mov_b64 exec, -1""")
        a.label(f"L_tr_{tag}")

def nonce_publish(a):
    a(f"""s_cmp_lg_u32 s2, 0
s_cbranch_scc1 L_nonce_done
s_cmp_lg_u32 s{sWAVE}, 0
s_cbranch_scc1 L_nonce_done
s_memrealtime s[40:41]
s_waitcnt lgkmcnt(0)
s_or_b32 s40, s40, 1
v_mov_b32 v2, 0
v_mov_b32 v3, s40
s_mov_b64 exec, 1
global_store_dword v2, v3, s[{pDBG}:{pDBG+1}] sc1
s_mov_b64 exec, -1""")
    a.label("L_nonce_done")

sSYNC = 0
def nonce_fetch(a):
    a(f"""s_cmp_lg_u32 s{sWAVE}, {sSYNC}
s_cbranch_scc1 L_nf_done
s_mov_b32 s58, 0""")
    a.label("L_nf_loop")
    a(f"""s_waitcnt vmcnt(0)
v_readfirstlane_b32 s{sNONCE}, v255
s_add_u32 s58, s58, 1
s_cmp_lg_u32 s{sNONCE}, 0
s_cbranch_scc1 L_nf_done
s_sleep 4
global_load_dword v255, v254, s[{pDBG}:{pDBG+1}] sc1
s_cmp_lt_u32 s58, {SPIN_MAX}
s_cbranch_scc1 L_nf_loop""")
    a.label("L_nf_done")

def signal(a, line_sgpr, tag):
    a("s_waitcnt vmcnt(0)")
    a("s_barrier")
    a(f"""s_cmp_lg_u32 s{sWAVE}, {sSYNC}
s_cbranch_scc1 L_sig_{tag}
s_lshl_b32 s{line_sgpr}, s{line_sgpr}, 7
s_add_u32 s{line_sgpr}, s{line_sgpr}, {FLAG_OFF}
v_mov_b32 v254, s{line_sgpr}
v_mov_b32 v255, s{sNONCE}
s_mov_b64 exec, 1
global_store_dword v254, v255, s[{pWS}:{pWS+1}] sc1
s_mov_b64 exec, -1""")
    a.label(f"L_sig_{tag}")

def poll(a, addr_vgpr, nlanes_mask_lo, tag):
    a(f"""s_cmp_lg_u32 s{sWAVE}, {sSYNC}
s_cbranch_scc1 L_polled_{tag}
s_mov_b32 s40, 0
s_mov_b32 exec_hi, 0
s_mov_b32 exec_lo, {nlanes_mask_lo}""")
    a.label(f"L_poll_{tag}")
    a(f"""global_load_dword v255, v{addr_vgpr}, s[{pWS}:{pWS+1}] sc1
s_add_u32 s40, s40, 1
s_waitcnt vmcnt(0)
v_cmp_ne_u32 vcc, s{sNONCE}, v255
s_cmp_eq_u64 vcc, 0
s_cbranch_scc1 L_pollok_{tag}
s_sleep 1
s_cmp_lt_u32 s40, {SPIN_MAX}
s_cbranch_scc1 L_poll_{tag}""")
    a.label(f"L_pollok_{tag}")
    a("s_mov_b64 exec, -1")
    a.label(f"L_polled_{tag}")
    a("s_barrier")

def p1_epilogue_consts(a):
    assert QM_OFF == 0 and KM_OFF == (1 << 22) and KR_OFF - QR_OFF == (1 << 19)
    srd(a, 16, pWS, WS_USED)
    a(f"""s_mul_i32 s39, s32, {64*RS}
s_mul_i32 s40, s35, 6
v_mul_u32_u24 v5, {RS}, v3
v_lshl_add_u32 v5, v4, 3, v5
v_add_u32 v2, s39, v5
v_and_b32 v6, 31, v0
v_lshrrev_b32 v7, 5, v0
v_mul_u32_u24 v8, {RS}, v6
v_lshl_add_u32 v8, v7, 4, v8
v_add_u32 v8, s39, v8
v_add_u32 v240, {32*RS}, v8
v_lshlrev_b32 v9, 4, v0
v_mul_u32_u24 v10, {RS}, v0
v_add_u32 v10, s39, v10
v_lshlrev_b32 v11, 3, v0
v_lshrrev_b32 v12, 1, v4
v_lshrrev_b32 v13, 2, v3
v_lshl_add_u32 v13, v12, 3, v13
v_mul_u32_u24 v13, {RS}, v13
v_add_u32 v13, s39, v13
v_and_b32 v14, 1, v4
v_and_b32 v15, 3, v3
v_lshlrev_b32 v15, 3, v15
v_mul_u32_u24 v12, 288, v12
s_lshr_b32 s42, s38, 5
s_lshl_b32 s42, s42, 10
s_lshl_b32 s43, s38, 3
s_lshr_b32 s27, s38, 4
s_mul_i32 s27, s27, 576
s_sub_u32 s41, 32, s40
s_cmp_lt_u32 s40, 32
s_cselect_b32 s41, s41, 0
s_lshr_b32 s41, s41, 1
s_mul_i32 s41, s41, 9
s_mov_b32 s28, {f32bits(QSCALE)}
v_cmp_eq_u32 vcc, 0, v14""")
    for hl in range(6):
        pl, par = hl // 2, hl % 2
        a(f"""v_add_u32 v{242+hl}, {72*pl + 40*par}, v15
v_mov_b32 v17, {72*pl + 32}
v_cndmask_b32 v{242+hl}, v17, v{242+hl}, vcc
v_add_u32 v{242+hl}, v{242+hl}, v13""")
    for par in range(2):
        a(f"""v_add_u32 v17, {16 - 2*par}, v3
v_cndmask_b32 v17, v17, v3, vcc
v_lshl_add_u32 v{250+par}, v17, 4, v12""")
    for hl in range(6):
        sK, sM, sR = 20 + hl, 52 + hl, 48 + hl//2
        a(f"""s_add_u32 s46, s40, {hl}
s_lshr_b32 s{sK}, s46, 5
s_and_b32 s46, s46, 31
s_lshl_b32 s47, s33, 5
s_add_u32 s47, s47, s46
s_lshl_b32 s{sM}, s47, 16
s_lshl_b32 s46, s{sK}, 22
s_add_u32 s{sM}, s{sM}, s46
s_add_u32 s{sM}, s{sM}, s42
s_mul_i32 s46, s47, {VT_STRIDE}
s_add_u32 s46, s46, s27
s_add_u32 s46, s46, {VT_OFF}
s_cmp_eq_u32 s{sK}, 2
s_cselect_b32 s{sM}, s46, s{sM}""")
        if hl % 2 == 0:
            a(f"""s_lshr_b32 s{sR}, s47, 1
s_lshl_b32 s{sR}, s{sR}, 14
s_add_u32 s{sR}, s{sR}, s43
s_lshl_b32 s46, s{sK}, 19
s_add_u32 s{sR}, s{sR}, s46
s_add_u32 s{sR}, s{sR}, {QR_OFF}""")

def p1_epilogue_pipe(a, o, ACC, P1F):
    cnt = [0]
    def stage(c):
        a(f"s_cmp_le_u32 s41, {4*c}\ns_cbranch_scc1 L_p1_ns{c}")
        a(f"s_cmp_lt_u32 s41, {4*c+4}\ns_cbranch_scc1 L_p1_mx{c}")
        for i in range(4):
            r = ACC(i, c)
            a(f"v_pk_mul_f32 v[{r}:{r+1}], v[{r}:{r+1}], s[28:29] op_sel_hi:[1,0]")
            a(f"v_pk_mul_f32 v[{r+2}:{r+3}], v[{r+2}:{r+3}], s[28:29] op_sel_hi:[1,0]")
        a(f"s_branch L_p1_ns{c}")
        a.label(f"L_p1_mx{c}")
        a(f"""v_add_u32 v6, {4*c}, v4
v_cmp_gt_u32 vcc, s41, v6
v_mov_b32 v7, 1.0
v_mov_b32 v241, s28
v_cndmask_b32 v6, v7, v241, vcc""")
        for i in range(4):
            r = ACC(i, c)
            a(f"v_pk_mul_f32 v[{r}:{r+1}], v[{r}:{r+1}], v[6:7] op_sel_hi:[1,0]")
            a(f"v_pk_mul_f32 v[{r+2}:{r+3}], v[{r+2}:{r+3}], v[6:7] op_sel_hi:[1,0]")
        a.label(f"L_p1_ns{c}")
        for i in range(4):
            r = ACC(i, c); P = 40 + 2*(cnt[0] % 16); cnt[0] += 1
            a(f"v_cvt_pk_bf16_f32 v{P}, v{r}, v{r+1}")
            a(f"v_cvt_pk_bf16_f32 v{P+1}, v{r+2}, v{r+3}")
            a(f"ds_write_b64 v2, v[{P}:{P+1}] offset:{i*16*RS + 32*c}")
    RR = lambda hl: 128 + 16*hl
    sK = lambda hl: 20 + hl
    sM = lambda hl: 52 + hl
    sR = lambda hl: 48 + hl//2
    def reads(hl):
        pl, par = hl // 2, hl % 2
        lab = f"L_p1_h{hl}"; R = RR(hl)
        a(f"s_cmp_eq_u32 s{sK(hl)}, 2\ns_cbranch_scc1 {lab}_v")
        off = 72*pl + 40*par
        a(f"ds_read2_b64 v[{R}:{R+3}], v8 offset0:{off//8} offset1:{off//8+1}")
        a(f"ds_read2_b64 v[{R+4}:{R+7}], v240 offset0:{off//8} offset1:{off//8+1}")
        if par == 0: a(f"ds_read_b64 v[{R+8}:{R+9}], v10 offset:{72*pl + 32}")
        a(f"s_branch {lab}_e")
        a.label(f"{lab}_v")
        for grp in range(4):
            for tr in range(2):
                a(f"ds_read_b64_tr_b16 v[{R+4*grp+2*tr}:{R+4*grp+2*tr+1}], v{242+hl} offset:{(16*grp + 4*tr)*RS}")
        a.label(f"{lab}_e")
    def stores(hl):
        pl, par = hl // 2, hl % 2
        lab = f"L_p1_s{hl}"; R = RR(hl)
        sk = o.get("p1skip", "")
        a(f"s_cmp_eq_u32 s{sK(hl)}, 2\ns_cbranch_scc1 {lab}_v")
        if "m" not in sk:
            a(f"buffer_store_dwordx4 v[{R}:{R+3}], v9, s[16:19], s{sM(hl)} offen{P1F}")
            a(f"buffer_store_dwordx4 v[{R+4}:{R+7}], v9, s[16:19], s{sM(hl)} offen offset:1024{P1F}")
        if par == 0 and "r" not in sk: a(f"buffer_store_dwordx2 v[{R+8}:{R+9}], v11, s[16:19], s{sR(hl)} offen{P1F}")
        a(f"s_branch {lab}_e")
        a.label(f"{lab}_v")
        m16 = 0xffff | ((0x3 << (2*par)) << 16)
        a(f"s_mov_b32 exec_lo, {m16}\ns_mov_b32 exec_hi, {m16}")
        for grp in range(4):
            if "v" not in sk:
                a(f"buffer_store_dwordx4 v[{R+4*grp}:{R+4*grp+3}], v{250+par}, s[16:19], s{sM(hl)} offen offset:{576*grp}{P1F}")
        a("s_mov_b64 exec, -1")
        a.label(f"{lab}_e")
    stage(0); stage(1); stage(2)
    reads(0); reads(1)
    stage(3); stage(4)
    a("s_waitcnt lgkmcnt(8)")
    stores(0); stores(1)
    reads(2); reads(3)
    stage(5); stage(6)
    a("s_waitcnt lgkmcnt(8)")
    stores(2); stores(3)
    reads(4); reads(5)
    a("s_waitcnt lgkmcnt(0)")
    stores(4); stores(5)

def phase1(a, o):
    P1F = o['p1f']
    ROT = o['rot']
    if o.get("rot9"):
        ma, mb = o["rot9"]
        ROTCODE = f"""s_mul_i32 s24, s35, {ma}
s_mul_i32 s25, s34, {mb}
s_add_u32 s24, s24, s25
s_mul_i32 s25, s24, 57
s_lshr_b32 s25, s25, 9
s_mul_i32 s25, s25, 9
s_sub_u32 s24, s24, s25"""
        for v in range(16*ma + 8*mb): assert (v*57) >> 9 == v // 9, v
    else:
        ROTCODE = f"""s_add_u32 s24, s35, s34
s_mul_i32 s25, s24, 43
s_lshr_b32 s25, s25, 7
s_mul_i32 s25, s25, 3
s_sub_u32 s24, s24, s25
s_mul_i32 s24, s24, {ROT}"""
    vXD = lambda i: 16 + i
    vWD = lambda i: 24 + i
    vX = lambda st, ks: 28 + 2*st + ks
    vW = lambda st: 34 + st
    XF = lambda p, i: 40 + 16*p + 4*i
    WF = lambda p, c: 72 + 28*p + 4*c
    ACC = lambda i, c: 128 + 4*(4*c + i)
    n = 7
    GL = o.get("gl")
    if GL:
        a(f"""s_and_b32 s30, s2, 7
s_lshr_b32 s31, s2, 3
s_and_b32 s32, s{sWAVE}, 3
s_lshr_b32 s33, s30, 2
s_and_b32 s34, s31, 7
s_and_b32 s35, s30, 3
s_lshl_b32 s35, s35, 2
s_lshr_b32 s36, s31, 3
s_add_u32 s35, s35, s36
s_lshl_b32 s20, s34, 8
s_lshl_b32 s21, s32, 6
s_add_u32 s38, s20, s21
s_lshl_b32 s37, s32, 13
v_lshrrev_b32 v4, 4, v0
v_and_b32 v3, 15, v0""")
    else: a(f"""s_and_b32 s30, s2, 7
s_lshr_b32 s31, s2, 3
s_and_b32 s32, s{sWAVE}, 3
s_lshr_b32 s33, s30, 2
s_and_b32 s34, s30, 1
s_lshl_b32 s34, s34, 2
s_and_b32 s35, s31, 3
s_add_u32 s34, s34, s35
s_lshr_b32 s35, s30, 1
s_and_b32 s35, s35, 1
s_lshl_b32 s35, s35, 3
s_lshr_b32 s36, s31, 2
s_add_u32 s35, s35, s36
s_lshl_b32 s20, s34, 8
s_lshl_b32 s21, s32, 6
s_add_u32 s38, s20, s21
s_lshl_b32 s37, s32, 13
v_lshrrev_b32 v4, 4, v0
v_and_b32 v3, 15, v0""")
    WC = o["wcomp"]
    a(f"""v_and_b32 v2, 1, v4
v_lshrrev_b32 v5, 1, v4
v_lshlrev_b32 v2, 2, v2
v_lshl_add_u32 v2, v5, 4, v2
v_mul_u32_u24 v2, 3456, v2""")
    if GL:
        a(f"""v_mul_u32_u24 v5, 13, v3
v_lshrrev_b32 v5, 6, v5
v_mul_u32_u24 v6, 5, v5
v_sub_u32 v6, v3, v6
v_mul_u32_u24 v5, 1152, v5
v_lshl_add_u32 v5, v6, 4, v5
v_add_u32 v2, v2, v5
v_mov_b32 v5, 0x40000000
v_cmp_gt_u32 vcc, 15, v3""")
    else:
        a(f"""v_lshl_add_u32 v2, v3, 4, v2
v_mov_b32 v5, 0x40000000
v_cmp_gt_u32 vcc, 14, v3""")
    a(f"""s_mul_i32 s20, s38, 1152
s_lshr_b32 s21, s32, 1
v_cndmask_b32 v2, v5, v2, vcc""")
    for i in range(4):
        a(f"v_add_u32 v{vWD(i)}, {3456*i}, v2")
    a(f"""s_lshl_b32 s21, s21, 5
s_and_b32 s22, s32, 1
s_lshl_b32 s23, s22, 3
s_add_u32 s21, s21, s23
s_mul_i32 s21, s21, 3456
s_mul_i32 s23, s35, {72 if GL else 216}
s_add_u32 s21, s21, s23
s_lshr_b32 s23, s32, 1
s_mul_i32 s23, s23, 8448
s_mul_i32 s22, s22, {4*1056}
s_add_u32 s23, s23, s22
s_add_u32 s23, s23, {WREG}
s_mov_b32 s22, s37
{ROTCODE}
s_lshl_b32 s25, s24, 7
s_add_u32 s20, s20, s25
s_mul_i32 s25, s24, {64*3456}
s_add_u32 s21, s21, s25
s_waitcnt lgkmcnt(0)
s_cmp_eq_u32 s33, 0
s_cselect_b32 s8, s{pAX}, s{pBX}
s_cselect_b32 s9, s{pAX+1}, s{pBX+1}
s_cselect_b32 s12, s{pAW}, s{pBW}
s_cselect_b32 s13, s{pAW+1}, s{pBW+1}
s_mov_b32 s10, {X_BYTES}
s_mov_b32 s11, 0x00020000
s_mov_b32 s14, {W_BYTES}
s_mov_b32 s15, 0x00020000
s_cmp_ge_u32 s{sWAVE}, 4
s_cbranch_scc0 L_p1_compute""")
    wrap = [f"s_add_u32 s21, s21, {64*3456}", "s_add_u32 s20, s20, 128", "s_add_u32 s24, s24, 1", "s_cmp_eq_u32 s24, 9",
            f"s_cselect_b32 s25, {9*128}, 0", f"s_cselect_b32 s26, {9*64*3456}, 0", "s_cselect_b32 s24, 0, s24",
            "s_sub_u32 s20, s20, s25", "s_sub_u32 s21, s21, s26"]
    def w_units(cc):
        st = cc % 3
        U = [[f"s_add_u32 m0, s23, {st*ST1}"]]
        for i in range(4):
            u = [f"buffer_load_dwordx4 v{vWD(i)}, s[12:15], s21 offen lds"]
            u += ["s_add_u32 m0, m0, 1056"] if i < 3 else wrap
            U.append(u)
        return U
    def flat(U):
        for u in U:
            for x in u:
                if x.startswith("buffer_load"): a("s_nop 0")
                a(x)
    XC = o["xcomp"]
    def xsetup():
        a(f"""v_lshrrev_b32 v2, 3, v0
v_and_b32 v5, 7, v0
v_xor_b32 v5, v5, v4
v_mul_u32_u24 v6, 1152, v2
v_lshl_add_u32 v7, v5, 4, v6
v_xor_b32 v8, 64, v7""")
        for i in range(8):
            a(f"v_add_u32 v{vXD(i)}, {9216*i}, v{7 if i % 2 == 0 else 8}")
    if XC:
        for _ in range(9): a("s_barrier")
        a("s_branch L_p1_rb" if o["epi8"] else "s_branch L_p1_done")
    xsetup()
    if o.get("ldprio"): a(f"s_setprio {o['ldprio']}")
    NL = 8 if WC else 12
    def dma(cc):
        st = cc % 3
        a(f"s_add_u32 m0, s22, {st*ST1}")
        for i in range(8):
            a("s_nop 0")
            a(f"buffer_load_dwordx4 v{vXD(i)}, s[8:11], s20 offen lds")
            if i < 7: a("s_add_u32 m0, m0, 1024")
        if WC:
            for x in wrap: a(x)
        else:
            if o.get("wmask"): a("s_mov_b32 exec_lo, 0x3fff3fff\ns_mov_b32 exec_hi, 0x3fff3fff")
            flat(w_units(cc))
            if o.get("wmask"): a("s_mov_b64 exec, -1")
    dma(0); dma(1)
    a(f"s_waitcnt vmcnt({NL})")
    a("s_barrier")
    dma(2)
    for cc in range(8):
        rem = min(8, cc + 2) - (cc + 1)
        a(f"s_waitcnt vmcnt({NL*rem})")
        a("s_barrier")
        if cc + 3 <= 8: dma(cc + 3)
    if o.get("ldprio"): a("s_setprio 0")
    a("s_branch L_p1_rb" if o["epi8"] else "s_branch L_p1_done")
    a.label("L_p1_compute")
    def xw_units(cc):
        st = cc % 3
        U = [[f"s_add_u32 m0, s22, {st*ST1}"]]
        for i in range(8):
            U.append([f"buffer_load_dwordx4 v{vXD(i)}, s[8:11], s20 offen lds",
                      "s_add_u32 m0, m0, 1024" if i < 7 else f"s_add_u32 m0, s23, {st*ST1}"])
        return U + w_units(cc)[1:]
    if XC:
        xsetup()
        flat(xw_units(0)); flat(xw_units(1))
    elif WC:
        flat(w_units(0)); flat(w_units(1))
    a(f"""v_lshrrev_b32 v5, 1, v3
v_xor_b32 v5, v5, v4
v_lshlrev_b32 v5, 4, v5
v_lshl_add_u32 v5, v3, 7, v5
v_add_u32 v5, s37, v5
v_xor_b32 v6, 64, v5""")
    for st in range(3):
        a(f"v_add_u32 v{vX(st,0)}, {st*ST1}, v5")
        a(f"v_add_u32 v{vX(st,1)}, {st*ST1}, v6")
    a(f"""v_lshrrev_b32 v5, 2, v3
v_and_b32 v6, 1, v4
v_lshl_add_u32 v5, v6, 2, v5
v_mul_u32_u24 v5, 1056, v5
v_lshrrev_b32 v6, 1, v4
v_lshl_add_u32 v5, v6, 9, v5
v_and_b32 v6, 3, v3
v_lshl_add_u32 v5, v6, 3, v5""")
    for st in range(3):
        a(f"v_add_u32 v{vW(st)}, {st*ST1 + WREG}, v5")
    def reads(g):
        cc, ks = g // 2, g % 2
        st, p = cc % 3, g & 1
        L = []
        for c in range(n):
            if c < 4: L.append(f"ds_read_b128 v[{XF(p,c)}:{XF(p,c)+3}], v{vX(st,ks)} offset:{2048*c}")
            for tr in range(2):
                L.append(f"ds_read_b64_tr_b16 v[{WF(p,c)+2*tr}:{WF(p,c)+2*tr+1}], v{vW(st)} offset:{ks*8448 + tr*256 + 32*c}")
        return L
    def mfmas(g):
        p = g & 1
        L = []
        for c in range(n):
            for i in range(4):
                acc = f"v[{ACC(i,c)}:{ACC(i,c)+3}]"
                L.append(f"v_mfma_f32_16x16x32_bf16 {acc}, v[{WF(p,c)}:{WF(p,c)+3}], v[{XF(p,i)}:{XF(p,i)+3}], {acc if g else 0}")
        return L
    if o["pf"]:
        assert not WC and o["rot"] == 0
        a(f"""s_and_b32 s26, s35, 7
s_lshl_b32 s26, s26, 5
s_lshl_b32 s27, s34, 8
s_add_u32 s26, s26, s27
s_mul_i32 s26, s26, 1152
s_add_u32 s26, s26, 384
v_and_b32 v5, 31, v0
v_lshrrev_b32 v6, 5, v0
v_mul_u32_u24 v5, 1152, v5
v_lshl_add_u32 v240, v6, 6, v5
s_and_b32 s27, s34, 3
s_add_u32 s27, s27, 192
s_mul_i32 s27, s27, 3456
s_mul_i32 s28, s35, 216
s_add_u32 s27, s27, s28
v_lshrrev_b32 v5, 2, v0
v_and_b32 v6, 3, v0
v_mul_u32_u24 v5, {4*3456}, v5
v_lshl_add_u32 v241, v6, 6, v5
s_mul_i32 s28, s32, {3*128}
s_add_u32 s26, s26, s28
s_sub_u32 s28, s32, 2
s_mul_i32 s28, s28, {3*64*3456}
s_add_u32 s27, s27, s28
s_cmp_lt_u32 s32, 2
s_cselect_b32 s48, s8, s12
s_cselect_b32 s49, s9, s13
s_cselect_b32 s50, s10, s14
s_mov_b32 s51, 0x00020000
s_cselect_b32 s26, s26, s27
s_mov_b32 s27, {64*3456}
s_cselect_b32 s27, 128, s27
s_cselect_b64 vcc, -1, 0
s_nop 1
v_cndmask_b32 v240, v241, v240, vcc""")
    if o["pf"] and o["pfstep"] < 0:
        for q in range(3):
            a(f"buffer_load_dword v{242+q}, v240, s[48:51], s26 offen")
            a("s_add_u32 s26, s26, s27")
    if o["epipipe"]: p1_epilogue_consts(a)
    NC = 12 if XC else 4
    if WC: a(f"s_waitcnt vmcnt({NC})")
    if o["p1pad"] >= 0:
        a(".p2align 6")
        for _ in range(o["p1pad"]): a("s_nop 0")
    a("s_barrier")
    stamp(a, o, 1)
    if o["stamp"]: a("s_memtime s[44:45]")
    for x in reads(0): a(x)
    for g in range(18):
        cc, ks = g // 2, g % 2
        if ks == 1 and cc < 8:
            rem = min(8, cc + 2) - (cc + 1)
            a((f"s_waitcnt vmcnt({NC*rem}) lgkmcnt(0)") if WC else "s_waitcnt lgkmcnt(0)")
            a("s_barrier")
        else:
            a("s_waitcnt lgkmcnt(0)")
        if o.get("p1loop") and ks == 1 and cc < 8:
            a(f"s_memtime s[{84+2*cc}:{85+2*cc}]")
        units = []
        if XC:
            if g == 0: units = xw_units(2)
            elif ks == 1 and cc + 3 <= 8: units = xw_units(cc + 3)[:7]
            elif ks == 0 and cc >= 1 and cc + 2 <= 8: units = xw_units(cc + 2)[7:]
        elif WC:
            if g == 0: units = w_units(2)
            elif ks == 1 and cc + 3 <= 8: units = w_units(cc + 3)[:3]
            elif ks == 0 and cc >= 1 and cc + 2 <= 8: units = w_units(cc + 2)[3:]
        rd = reads(g + 1) if g + 1 < 18 else []
        M = mfmas(g)
        slots = [[] for _ in M]
        for idx, x in enumerate(rd): slots[min(idx, len(M)-1)].append(x)
        for idx, u in enumerate(units): slots[min(len(M)-1, 2 + (idx*len(M))//len(units))] += u
        if o["pf"] and g == o["pfstep"]:
            for q in range(3):
                slots[3 + 8*q] += [f"buffer_load_dword v{242+q}, v240, s[48:51], s26 offen", "s_add_u32 s26, s26, s27"]
        if g == (16 if WC else o.get("ng", 6)):
            a("v_mov_b32 v254, 0")
            a(f"global_load_dword v255, v254, s[{pDBG}:{pDBG+1}] sc1")
        for m, sl in zip(M, slots):
            a(m)
            for x in sl: a(x)
    if o.get("p1loop"):
        a(f"""s_waitcnt lgkmcnt(0)
s_cmp_lg_u32 s{sWAVE}, 0
s_cbranch_scc1 L_p1l_done
s_lshl_b32 s62, s2, 6
s_add_u32 s62, s62, {WS_USED + 65536}
v_mov_b32 v250, s62
s_mov_b64 exec, 1""")
        for cc in range(8):
            a(f"s_sub_u32 s60, s{84+2*cc}, s44\nv_mov_b32 v251, s60\nglobal_store_dword v250, v251, s[{pWS}:{pWS+1}] offset:{4*cc}")
        a("s_mov_b64 exec, -1")
        a.label("L_p1l_done")
    stamp(a, o, 2)
    if o["stamp"]: a("s_memtime s[46:47]\ns_waitcnt lgkmcnt(0)\ns_sub_u32 s59, s46, s44")
    nonce_fetch(a)
    if o["epipipe"]:
        p1_epilogue_pipe(a, o, ACC, P1F)
        a("s_branch L_p1_done")
    if not o["epipipe"]:
        a(f"""s_waitcnt lgkmcnt(0)
s_mul_i32 s39, s32, {64*RS}
v_mul_u32_u24 v5, {RS}, v3
v_lshl_add_u32 v5, v4, 3, v5
v_add_u32 v5, s39, v5
s_mul_i32 s40, s35, 6
s_sub_u32 s41, 32, s40
s_cmp_lt_u32 s40, 32
s_cselect_b32 s41, s41, 0
s_lshr_b32 s41, s41, 1
s_mul_i32 s41, s41, 9
s_mov_b32 s44, {f32bits(QSCALE)}
s_cmp_eq_u32 s41, 0
s_cbranch_scc1 L_p1_noscale""")
        for c in range(n):
            a(f"""v_add_u32 v6, {4*c}, v4
v_cmp_gt_u32 vcc, s41, v6
v_mov_b32 v7, 1.0
v_mov_b32 v8, s44
v_cndmask_b32 v6, v7, v8, vcc""")
            for i in range(4):
                r = ACC(i, c)
                a(f"v_pk_mul_f32 v[{r}:{r+1}], v[{r}:{r+1}], v[6:7] op_sel_hi:[1,0]")
                a(f"v_pk_mul_f32 v[{r+2}:{r+3}], v[{r+2}:{r+3}], v[6:7] op_sel_hi:[1,0]")
        a.label("L_p1_noscale")
        for c in range(n):
            for i in range(4):
                r = ACC(i, c); P = 40 + 2*((4*c + i) % 16)
                a(f"v_cvt_pk_bf16_f32 v{P}, v{r}, v{r+1}")
                a(f"v_cvt_pk_bf16_f32 v{P+1}, v{r+2}, v{r+3}")
                a(f"ds_write_b64 v5, v[{P}:{P+1}] offset:{i*16*RS + 32*c}")
        a("s_waitcnt lgkmcnt(0)")
        trace(a, o, 0, "a")
        a.label("L_p1_rb")
        srd(a, 16, pWS, WS_USED)
        a(f"""s_mul_i32 s39, s32, {64*RS}
s_mul_i32 s40, s35, 6
v_and_b32 v6, 31, v0
v_lshrrev_b32 v7, 5, v0
v_mul_u32_u24 v8, {RS}, v6
v_lshl_add_u32 v8, v7, 4, v8
v_add_u32 v8, s39, v8
v_lshlrev_b32 v9, 4, v0
v_mul_u32_u24 v10, {RS}, v0
v_add_u32 v10, s39, v10
v_lshlrev_b32 v11, 3, v0
v_lshrrev_b32 v12, 1, v4
v_lshrrev_b32 v13, 2, v3
v_lshl_add_u32 v13, v12, 3, v13
v_mul_u32_u24 v13, {RS}, v13
v_add_u32 v13, s39, v13
v_and_b32 v14, 1, v4
v_and_b32 v15, 3, v3
v_lshlrev_b32 v15, 3, v15
v_mul_u32_u24 v12, 288, v12
s_lshr_b32 s42, s38, 5
s_lshl_b32 s42, s42, 10
s_lshl_b32 s43, s38, 3
s_lshr_b32 s45, s38, 4
s_mul_i32 s45, s45, 576""")
        E8 = o["epi8"]
        if E8: a(f"s_barrier\ns_cmp_ge_u32 s{sWAVE}, 4\ns_cbranch_scc1 L_p1_rb1")
        assert QM_OFF == 0 and KM_OFF == (1 << 22) and KR_OFF - QR_OFF == (1 << 19)
        NH = 3 if E8 else 6
        sKf = (lambda k: 48 + k) if E8 else (lambda k: 20 + k)
        sMf = (lambda k: 52 + k) if E8 else (lambda k: 26 + k)
        sRf = (lambda k: 55 + k) if E8 else (lambda k: 48 + k)
        for hg in range(2 if E8 else 1):
            if hg: a.label("L_p1_rb1")
            for k in range(NH):
                hl = NH*hg + k
                pl, par = hl // 2, hl % 2
                lab = f"L_p1_h{hl}"
                R = 128 + 16*k
                sK, sM, sR = sKf(k), sMf(k), sRf(k)
                a(f"""s_add_u32 s46, s40, {hl}
s_lshr_b32 s{sK}, s46, 5
s_and_b32 s46, s46, 31
s_lshl_b32 s47, s33, 5
s_add_u32 s47, s47, s46
s_cmp_eq_u32 s{sK}, 2
s_cbranch_scc1 {lab}_v""")
                off = 72*pl + 40*par
                a(f"ds_read2_b64 v[{R}:{R+3}], v8 offset0:{off//8} offset1:{off//8+1}")
                a(f"v_add_u32 v{20+2*k}, {32*RS + off}, v8")
                a(f"ds_read2_b64 v[{R+4}:{R+7}], v{20+2*k} offset0:0 offset1:1")
                if par == 0: a(f"ds_read_b64 v[{R+8}:{R+9}], v10 offset:{72*pl + 32}")
                a(f"""s_lshl_b32 s{sM}, s47, 16
s_lshl_b32 s46, s{sK}, 22
s_add_u32 s{sM}, s{sM}, s46
s_add_u32 s{sM}, s{sM}, s42""")
                if par == 0:
                    a(f"""s_lshr_b32 s{sR}, s47, 1
s_lshl_b32 s{sR}, s{sR}, 14
s_add_u32 s{sR}, s{sR}, s43
s_lshl_b32 s46, s{sK}, 19
s_add_u32 s{sR}, s{sR}, s46
s_add_u32 s{sR}, s{sR}, {QR_OFF}""")
                a(f"s_branch {lab}_e")
                a.label(f"{lab}_v")
                a(f"""v_add_u32 v{20+2*k}, {72*pl + 40*par}, v15
v_mov_b32 v17, {72*pl + 32}
v_cmp_eq_u32 vcc, 0, v14
s_mul_i32 s{sM}, s47, {VT_STRIDE}
s_add_u32 s{sM}, s{sM}, s45
v_cndmask_b32 v{20+2*k}, v17, v{20+2*k}, vcc
v_add_u32 v{20+2*k}, v{20+2*k}, v13
s_add_u32 s{sM}, s{sM}, {VT_OFF}""")
                for grp in range(4):
                    for tr in range(2):
                        a(f"ds_read_b64_tr_b16 v[{R+4*grp+2*tr}:{R+4*grp+2*tr+1}], v{20+2*k} offset:{(16*grp + 4*tr)*RS}")
                a(f"""v_add_u32 v17, {16 - 2*par}, v3
v_cndmask_b32 v17, v17, v3, vcc
v_lshl_add_u32 v{21+2*k}, v17, 4, v12""")
                a.label(f"{lab}_e")
            a("s_waitcnt lgkmcnt(0)")
            trace(a, o, 1, f"b{hg}")
            for k in range(NH):
                hl = NH*hg + k
                pl, par = hl // 2, hl % 2
                lab = f"L_p1_s{hl}"
                R = 128 + 16*k
                sK, sM, sR = sKf(k), sMf(k), sRf(k)
                a(f"s_cmp_eq_u32 s{sK}, 2\ns_cbranch_scc1 {lab}_v")
                a(f"buffer_store_dwordx4 v[{R}:{R+3}], v9, s[16:19], s{sM} offen{P1F}")
                a(f"buffer_store_dwordx4 v[{R+4}:{R+7}], v9, s[16:19], s{sM} offen offset:1024{P1F}")
                if par == 0: a(f"buffer_store_dwordx2 v[{R+8}:{R+9}], v11, s[16:19], s{sR} offen{P1F}")
                a(f"s_branch {lab}_e")
                a.label(f"{lab}_v")
                m16 = 0xffff | ((0x3 << (2*par)) << 16)
                a(f"s_mov_b32 exec_lo, {m16}\ns_mov_b32 exec_hi, {m16}")
                for grp in range(4):
                    a(f"buffer_store_dwordx4 v[{R+4*grp}:{R+4*grp+3}], v{21+2*k}, s[16:19], s{sM} offen offset:{576*grp}{P1F}")
                a("s_mov_b64 exec, -1")
                a.label(f"{lab}_e")
            trace(a, o, 2, f"c{hg}")
            if hg == 0 and E8: a("s_branch L_p1_done")
    a.label("L_p1_done")
    a("s_lshl_b32 s39, s33, 4\ns_add_u32 s39, s39, s35\ns_lshl_b32 s39, s39, 3\ns_add_u32 s39, s39, s34")
    signal(a, 39, "p1")

def phase2(a, o):
    NKT, NQ = 64, 2
    QM = lambda j: 16 + 4*j
    QR = 24
    KMn = lambda s: 28 + 6*s
    KRs = lambda s: 32 + 6*s
    V0 = lambda s: 40 + 8*s
    V1 = lambda s: 44 + 8*s
    S = lambda kt, j: 56 + 32*(kt & 1) + 16*j
    O = lambda j: 120 + 16*j
    vL16, vKR, vVa, vVb, vIdx = 2, 3, 4, 5, 6
    T = 152
    name = "p2"
    a(f"""s_and_b32 s18, s2, 7
s_lshr_b32 s19, s2, 3
s_lshr_b32 s12, s19, 2
s_lshl_b32 s18, s18, 3
s_add_u32 s12, s12, s18
s_and_b32 s13, s19, 3
s_mov_b32 s14, s{sWAVE}""")
    a(f"""s_and_b32 s18, s12, 31
s_lshr_b32 s19, s12, 5
s_lshl_b32 s19, s19, 4
v_lshrrev_b32 v7, 3, v0
v_lshlrev_b32 v7, 5, v7
v_add_u32 v7, s18, v7
v_mul_u32_u24 v7, 171, v7
v_lshrrev_b32 v7, 10, v7
v_add_u32 v7, s19, v7
v_and_b32 v8, 7, v0
v_lshl_add_u32 v7, v7, 3, v8
v_lshlrev_b32 v7, 7, v7
v_add_u32 v7, {FLAG_OFF}, v7""")
    srd(a, 8, pWS, WS_USED)
    a(f"""v_lshlrev_b32 v{vL16}, 4, v0
v_and_b32 v8, 31, v0
v_lshlrev_b32 v9, 3, v8
s_mov_b32 s15, 0
s_mov_b32 s16, 0x0003ffff
s_mov_b32 s17, 0x0003ffff
s_lshl_b32 s30, s14, 10
s_lshl_b32 s25, s12, 16
s_add_u32 s35, s25, {KM_OFF}
s_add_u32 s25, s35, s30
s_mul_i32 s28, s12, {VT_STRIDE}
s_add_u32 s36, s28, {VT_OFF}
s_add_u32 s28, s36, s30
s_lshr_b32 s38, s12, 1
s_lshl_b32 s38, s38, 14
s_and_b32 s39, s12, 1
s_lshl_b32 s39, s39, 2
s_add_u32 s37, s38, {KR_OFF}
s_add_u32 s33, s37, s30
s_add_u32 s29, s30, {LDS_VT}
s_add_u32 s34, s30, {LDS_KR}
s_mov_b32 s26, s30
s_lshl_b32 s18, s13, 4
s_lshl_b32 s19, s14, 1
s_add_u32 s24, s18, s19""")
    def dmaK():
        a("s_mov_b32 m0, s26")
        a("s_add_u32 s26, s26, 8192")
        a(f"buffer_load_dwordx4 v{vL16}, s[8:11], s25 offen sc1 lds")
        a("s_add_u32 s25, s25, 8192")
    def dmaV():
        a("s_mov_b32 m0, s29")
        a("s_add_u32 s29, s29, 8192")
        a(f"buffer_load_dwordx4 v{vL16}, s[8:11], s28 offen sc1 lds")
        a("s_add_u32 s28, s28, 8192")
    def dmaKR1():
        a("s_add_u32 m0, s34, 8192")
        a("s_add_u32 s33, s33, 8192")
        a(f"buffer_load_dwordx4 v{vL16}, s[8:11], s33 offen sc1 lds")
    a(f"""s_lshr_b32 s18, s12, 5
s_and_b32 s19, s12, 31
s_lshl_b32 s46, s18, 21
s_lshl_b32 s21, s24, 15
s_add_u32 s46, s46, s21
s_lshl_b32 s21, s19, 10
s_add_u32 s46, s46, s21
s_add_u32 s46, s46, {OM_OFF}
s_lshl_b32 s47, s18, 18
s_lshl_b32 s21, s24, 12
s_add_u32 s47, s47, s21
s_lshl_b32 s21, s19, 7
s_add_u32 s47, s47, s21
s_add_u32 s47, s47, {OR_OFF}
s_lshl_b32 s48, s18, 2
s_add_u32 s48, s48, s13
s_lshl_b32 s48, s48, 5
s_add_u32 s48, s48, s19
s_add_u32 s48, s48, 256
v_lshlrev_b32 v197, 2, v8
s_lshl_b32 s49, s12, 16
s_lshl_b32 s19, s24, 10
s_add_u32 s49, s49, s19
s_lshl_b32 s20, s24, 8
s_add_u32 s50, s38, s20
s_add_u32 s50, s50, s39
s_add_u32 s50, s50, {QR_OFF}
v_lshlrev_b32 v196, 3, v0""")
    if o["wopf"]:
        a(f"""s_cmp_lt_u32 s12, 32
s_cselect_b32 s20, s{pAWO}, s{pBWO}
s_cselect_b32 s21, s{pAWO+1}, s{pBWO+1}
s_mov_b32 s22, {WO_BYTES}
s_mov_b32 s23, 0x00020000
s_lshr_b32 s18, s2, 3
s_lshl_b32 s18, s18, 3
s_add_u32 s18, s18, s14
s_lshl_b32 s27, s18, 12
v_lshlrev_b32 v198, 6, v0""")
    late = [dmaK, dmaV, dmaKR1, dmaK, dmaV, dmaK, dmaV] + [dmaK, dmaV]*4
    sched = {0: late[0:3], 1: late[3:5], 2: late[5:7], 3: late[7:9], 4: late[9:11], 5: late[11:13], 6: late[13:15]}
    a(f"""v_lshrrev_b32 v10, 5, v0
v_add_u32 v{vKR}, {LDS_KR}, v9
v_add_u32 v{vKR}, s39, v{vKR}
v_mul_u32_u24 v11, 288, v10
v_lshlrev_b32 v12, 4, v8
v_add_u32 v27, v11, v12
v_add_u32 v{vVa}, {LDS_VT}, v27
v_add_u32 v{vVb}, {LDS_VT + 32*1152}, v27
v_mov_b32 v{vIdx}, 0xdddd
v_and_b32 v13, 27, v8
v_cmp_eq_u32 vcc, 18, v13
v_mov_b32 v14, 0x3f803f80
v_mov_b32 v15, 0
v_cndmask_b32 v13, v15, v14, vcc""")
    for s in range(2):
        a(f"v_mov_b32 v{KRs(s)+1}, 0x3f803f80")
        for i in range(4):
            a(f"v_mov_b32 v{V0(s)+i}, v13")
            a(f"v_mov_b32 v{V1(s)+i}, v13")
    a(f"v_mov_b32 v{QR+1}, 0")
    for j in range(NQ):
        for i in range(16): a(f"v_mov_b32 v{O(j)+i}, 0")
    poll(a, 7, 0xffffff, "p1")
    stamp(a, o, 4)
    a("s_mov_b32 m0, s34")
    a("s_nop 0")
    a(f"buffer_load_dwordx4 v{vL16}, s[8:11], s33 offen sc1 lds")
    dmaK(); dmaV(); dmaV()
    for j in range(NQ):
        a(f"buffer_load_dwordx4 v[{QM(j)}:{QM(j)+3}], v{vL16}, s[8:11], s49 offen offset:{1024*j} sc1")
    a(f"buffer_load_dword v{QR}, v196, s[8:11], s50 offen sc1")
    a("s_waitcnt vmcnt(0)")
    a("s_barrier")
    stamp(a, o, 5)
    if o["stamp"]: a("s_memtime s[52:53]")
    def rdK(kt):
        s = kt & 1
        a(f"ds_read_b128 v[{KMn(s)}:{KMn(s)+3}], v{vL16} offset:{kt*1024}")
        a(f"ds_read_b32 v{KRs(s)}, v{vKR} offset:{kt*256}")
    def rdV(kt):
        s = kt & 1
        base, off = (vVa, kt*1152) if kt < 32 else (vVb, (kt-32)*1152)
        a("s_mov_b64 exec, s[16:17]")
        a(f"ds_read_b128 v[{V0(s)}:{V0(s)+3}], v{base} offset:{off}")
        a(f"ds_read_b128 v[{V1(s)}:{V1(s)+3}], v{base} offset:{off+576}")
        a("s_mov_b64 exec, -1")
    def qk_res(kt, ks=None):
        s = (kt & 1) if ks is None else ks; sb = S(kt, 0)
        a(f"v_mfma_f32_32x32x4_2b_bf16 v[{sb}:{sb+31}], v[{KRs(s)}:{KRs(s)+1}], v[{QR}:{QR+1}], 0")
    def qk_main(kt, j, ks=None):
        s = (kt & 1) if ks is None else ks; sb = S(kt, j)
        a(f"v_mfma_f32_32x32x16_bf16 v[{sb}:{sb+15}], v[{KMn(s)}:{KMn(s)+3}], v[{QM(j)}:{QM(j)+3}], v[{sb}:{sb+15}]")
    def pv(kt, j, half, vs=None):
        s = (kt & 1) if vs is None else vs
        v = V0(s) if half == 0 else V1(s)
        a(f"v_smfmac_f32_32x32x32_bf16 v[{O(j)}:{O(j)+15}], v[{v}:{v+3}], v[{S(kt,j)+8*half}:{S(kt,j)+8*half+7}], v{vIdx}")
    def ex(kt, j, i):
        r = S(kt, j) + i
        a(f"v_exp_f32 v{r}, v{r}")
    def loop(copy, prio):
        if o["p2pad"] >= 0:
            a(".p2align 6")
            for _ in range(o["p2pad"]): a("s_nop 0")
        rdK(0); rdV(0)
        a("s_waitcnt lgkmcnt(0)")
        qk_res(0)
        rdK(1)
        a("s_nop 15")
        a("s_nop 1")
        qk_main(0, 0); qk_main(0, 1)
        a("s_nop 7")
        a("s_nop 3")
        def tile(kt, rel=None):
            if rel is None:
                if kt == o["bar1"] or (kt == o["bar2"] and not ROLL):
                    a(f"s_waitcnt vmcnt({4 if kt == o['bar1'] else 0})")
                    a("s_barrier")
                if kt in sched:
                    for f in sched[kt]: f()
                if kt == 9 and o["wopf"]:
                    a("buffer_load_dword v199, v198, s[20:23], s27 offen")
            p = prio(kt)
            a(f"s_setprio {p}" if p is not None else "s_nop 0")
            a("s_waitcnt lgkmcnt(0)")
            if kt > 0: pv(kt-1, 1, 1)
            if kt + 1 < NKT:
                if rel is None: rdV(kt+1)
                else:
                    s_ = (kt+1) & 1; off = (kt+1-rel)*1152
                    a("s_mov_b64 exec, s[16:17]")
                    a(f"ds_read_b128 v[{V0(s_)}:{V0(s_)+3}], v206 offset:{off}")
                    a(f"ds_read_b128 v[{V1(s_)}:{V1(s_)+3}], v206 offset:{off+576}")
                    a("s_mov_b64 exec, -1")
            for i in range(0, 4): ex(kt, 0, i)
            if kt + 1 < NKT: qk_res(kt+1)
            for i in range(4, 12): ex(kt, 0, i)
            pv(kt, 0, 0)
            for i in range(12, 16): ex(kt, 0, i)
            if kt + 2 < NKT:
                if rel is None: rdK(kt+2)
                else:
                    s_ = kt & 1
                    a(f"ds_read_b128 v[{KMn(s_)}:{KMn(s_)+3}], v204 offset:{(kt+2-rel)*1024}")
                    a(f"ds_read_b32 v{KRs(s_)}, v205 offset:{(kt+2-rel)*256}")
            else: a("s_nop 1")
            pv(kt, 0, 1)
            for i in range(4): ex(kt, 1, i)
            if kt + 1 < NKT: qk_main(kt+1, 0)
            for i in range(4, 8): ex(kt, 1, i)
            if kt + 1 < NKT: qk_main(kt+1, 1)
            for i in range(8, 12): ex(kt, 1, i)
            pv(kt, 1, 0)
            for i in range(12, 16): ex(kt, 1, i)
        ROLL = o["roll"]
        if not ROLL:
            for kt in range(NKT): tile(kt)
        else:
            G = len(o["pat"]); L0 = 10; NIT = (NKT - 2 - L0) // G
            assert G % 2 == 0
            for kt in range(L0): tile(kt)
            a(f"""v_add_u32 v204, {L0*1024}, v{vL16}
v_add_u32 v205, {L0*256}, v{vKR}
v_add_u32 v206, {L0*1152}, v{vVa}
s_mov_b32 s44, 0""")
            itb = -(-(30 - L0 - G + 1) // G)
            itb = (28 - L0) // G
            a.label(f"L_p2_roll{copy}")
            a(f"""s_cmp_lg_u32 s44, {itb}
s_cbranch_scc1 L_p2_rnb{copy}
s_waitcnt vmcnt(0)
s_barrier""")
            a.label(f"L_p2_rnb{copy}")
            for u in range(G): tile(L0 + u, rel=L0)
            a(f"""v_add_u32 v204, {G*1024}, v204
v_add_u32 v205, {G*256}, v205
v_add_u32 v206, {G*1152}, v206
s_add_u32 s44, s44, 1
s_cmp_lt_u32 s44, {NIT}
s_cbranch_scc1 L_p2_roll{copy}""")
            for kt in range(L0 + NIT*G, NKT): tile(kt)
        a("s_nop 1")
        pv(NKT-1, 1, 1)
        a("s_setprio 0")
    if o["dual"]:
        a(f"s_cmp_ge_u32 s14, 4\ns_cbranch_scc1 L_p2_loopB")
        loop(0, lambda kt: 1 if kt == 0 else None)
        a("s_branch L_p2_loopdone")
        a.label("L_p2_loopB")
        pat = o["pat"]
        def pr(kt):
            cur = pat[kt % len(pat)]
            prev = pat[(kt-1) % len(pat)] if kt else None
            return cur if cur != prev else None
        loop(1, pr)
        a.label("L_p2_loopdone")
    else:
        loop(0, lambda kt: None)
    stamp(a, o, 6)
    if o["stamp"]:
        a(f"""s_memtime s[54:55]
s_waitcnt lgkmcnt(0)
s_cmp_lg_u32 s14, {99 if o.get("p1trace") else 4}
s_cbranch_scc1 L_p2_nw4
s_sub_u32 s56, s54, s52
s_sub_u32 s57, s94, s92
s_lshl_b32 s40, s2, 6
s_add_u32 s40, s40, {WS_USED}
v_mov_b32 v200, s40
v_mov_b32 v202, s56
v_mov_b32 v203, s57
s_mov_b64 exec, 1
global_store_dwordx2 v200, v[202:203], s[{pWS}:{pWS+1}] offset:48
s_mov_b64 exec, -1""")
        a.label("L_p2_nw4")
    def norm_store(j):
        a(f"v_rcp_f32 v{T}, v{O(j)+10}")
        a("s_nop 0")
        for i in range(10): a(f"v_mul_f32 v{O(j)+i}, v{O(j)+i}, v{T}")
        P = T + 2 + 6*j
        for i in range(4): a(f"v_cvt_pk_bf16_f32 v{P+i}, v{O(j)+2*i}, v{O(j)+2*i+1}")
        a(f"v_cvt_pk_bf16_f32 v{P+4}, v{O(j)+8}, v{O(j)+9}")
        a(f"buffer_store_dwordx4 v[{P}:{P+3}], v{vL16}, s[8:11], s46 offen offset:{0} sc1" if j == 0 else
          f"buffer_store_dwordx4 v[{P}:{P+3}], v{vL16}, s[8:11], s45 offen sc1")
        a("s_mov_b32 exec_hi, 0")
        a(f"buffer_store_dword v{P+4}, v197, s[8:11], s47 offen sc1" if j == 0 else f"buffer_store_dword v{P+4}, v197, s[8:11], s51 offen sc1")
        a("s_mov_b32 exec_hi, -1")
    a("s_add_u32 s45, s46, 32768\ns_add_u32 s51, s47, 4096")
    a.label("L_p2_store")
    norm_store(0); norm_store(1)
    a("s_cmp_lg_u32 s15, 0\ns_cbranch_scc1 L_p2_checked")
    a("s_mov_b64 s[20:21], 0")
    a("s_mov_b32 s22, 0x53800000")
    a("s_mov_b32 s23, 0x2b800000")
    a(f"v_mul_f32 v{T}, 0, v{O(0)}\nv_mul_f32 v{T+1}, 0, v{O(1)}")
    for i in range(1, 10):
        for j in range(NQ): a(f"v_fma_f32 v{T+j}, v{O(j)+i}, 0, v{T+j}")
    for j in range(NQ): a(f"v_add_f32 v{T+j}, v{T+j}, v{O(j)+10}")
    for j in range(NQ):
        a(f"v_cmp_ngt_f32 vcc, s22, v{T+j}")
        a("s_or_b64 s[20:21], s[20:21], vcc")
        a(f"v_cmp_nlt_f32 vcc, s23, v{T+j}")
        a("s_or_b64 s[20:21], s[20:21], vcc")
    a(f"""s_cmp_eq_u64 s[20:21], 0
s_cbranch_scc0 L_p2_fallback""")
    a.label("L_p2_checked")
    signal(a, 48, "p2")
    a("s_branch L_p2_end")
    a.label("L_p2_fallback")
    a("s_mov_b32 s15, 1")
    MX = T
    a(f"""v_mov_b32 v{MX}, 0xff800000
v_mov_b32 v{MX+1}, 0xff800000
v_mov_b32 v{QR+1}, 0
v_mov_b32 v{MX+4}, v{vL16}
v_mov_b32 v{MX+5}, v{vKR}
s_mov_b32 s18, {NKT}""")
    a.label("L_p2_fb1")
    a(f"""ds_read_b128 v[{KMn(0)}:{KMn(0)+3}], v{MX+4}
ds_read_b32 v{KRs(0)}, v{MX+5}
v_add_u32 v{MX+4}, 1024, v{MX+4}
v_add_u32 v{MX+5}, 256, v{MX+5}
s_waitcnt lgkmcnt(0)""")
    qk_res(0, 0)
    a("s_nop 15\ns_nop 3")
    qk_main(0, 0, 0); qk_main(0, 1, 0)
    a("s_nop 15")
    for j in range(NQ):
        for i in range(8): a(f"v_max3_f32 v{MX+j}, v{MX+j}, v{S(0,j)+2*i}, v{S(0,j)+2*i+1}")
    a(f"""s_sub_u32 s18, s18, 1
s_cmp_lg_u32 s18, 0
s_cbranch_scc1 L_p2_fb1""")
    x, y, hi, mid = MX+6, MX+7, MX+8, MX+9
    for j in range(NQ):
        a(f"""v_mov_b32 v{x}, v{MX+j}
v_mov_b32 v{y}, v{MX+j}
s_nop 1
v_permlane32_swap_b32 v{x}, v{y}
s_nop 1
v_max_f32 v{MX+j}, v{x}, v{y}""")
    a(f"""v_cmp_gt_u32 vcc, 32, v0
s_nop 1
v_cndmask_b32 v{x}, v{MX+1}, v{MX}, vcc
v_and_b32 v{hi}, 0xffff0000, v{x}
v_sub_f32 v{x}, v{x}, v{hi}
v_and_b32 v{mid}, 0xffff0000, v{x}
v_xor_b32 v{hi}, 0x80000000, v{hi}
v_xor_b32 v{mid}, 0x80000000, v{mid}
v_lshrrev_b32 v{hi}, 16, v{hi}
v_or_b32 v{QR+1}, v{hi}, v{mid}""")
    for j in range(NQ):
        for i in range(16): a(f"v_mov_b32 v{O(j)+i}, 0")
    a(f"""v_mov_b32 v{MX+4}, v{vL16}
v_mov_b32 v{MX+5}, v{vKR}
v_mov_b32 v{MX+6}, v{vVa}
s_mov_b32 s18, {NKT}""")
    a.label("L_p2_fb2")
    a(f"""ds_read_b128 v[{KMn(0)}:{KMn(0)+3}], v{MX+4}
ds_read_b32 v{KRs(0)}, v{MX+5}
s_mov_b64 exec, s[16:17]
ds_read_b128 v[{V0(0)}:{V0(0)+3}], v{MX+6}
ds_read_b128 v[{V1(0)}:{V1(0)+3}], v{MX+6} offset:576
s_mov_b64 exec, -1
v_add_u32 v{MX+4}, 1024, v{MX+4}
v_add_u32 v{MX+5}, 256, v{MX+5}
v_add_u32 v{MX+6}, 1152, v{MX+6}
s_waitcnt lgkmcnt(0)""")
    qk_res(0, 0)
    a("s_nop 15\ns_nop 3")
    qk_main(0, 0, 0); qk_main(0, 1, 0)
    a("s_nop 15")
    for j in range(NQ):
        for i in range(16): ex(0, j, i)
    a("s_nop 1")
    for j in range(NQ):
        pv(0, j, 0, 0); pv(0, j, 1, 0)
    a(f"""s_sub_u32 s18, s18, 1
s_cmp_lg_u32 s18, 0
s_cbranch_scc1 L_p2_fb2
s_nop 7
s_nop 7
s_branch L_p2_store""")
    a.label("L_p2_end")

def phase3(a, o):
    NC3 = 5
    RS3 = 160
    OF = lambda ks: 64 + 4*ks
    WF = lambda p, c: 144 + 20*p + 4*c
    ACC = lambda c: 16 + 4*c
    vL, vWa, vWr, vWD = 1, 2, 4, 5
    D = o["p3depth"]
    a(f"""s_and_b32 s30, s2, 7
s_lshr_b32 s31, s2, 3
s_mov_b32 s32, s{sWAVE}
s_lshr_b32 s33, s30, 2
s_and_b32 s34, s30, 3
s_lshl_b32 s34, s34, 2
s_and_b32 s35, s31, 3
s_add_u32 s34, s34, s35
s_lshr_b32 s35, s31, 2
s_lshl_b32 s36, s34, 2
s_lshr_b32 s37, s32, 1
s_add_u32 s36, s36, s37""")
    a(f"""v_mul_u32_u24 v9, 26, v0
v_lshrrev_b32 v9, 8, v9
v_mul_u32_u24 v10, 10, v9
v_sub_u32 v10, v0, v10
v_mul_u32_u24 v9, 1152, v9
v_lshl_add_u32 v{vWD}, v10, 4, v9
s_cmp_eq_u32 s33, 0
s_cselect_b32 s8, s{pAWO}, s{pBWO}
s_cselect_b32 s9, s{pAWO+1}, s{pBWO+1}
s_mov_b32 s10, {WO_BYTES}
s_mov_b32 s11, 0x00020000
s_mul_i32 s22, s32, {6*1152}
s_mul_i32 s23, s35, 144
s_add_u32 s22, s22, s23
s_mul_i32 s23, s32, {6*RS3}
s_mov_b32 exec_hi, 0x0fffffff""")
    for r in range(12):
        a("s_mov_b32 m0, s23")
        a(f"s_add_u32 s23, s23, {48*RS3}")
        a(f"buffer_load_dwordx4 v{vWD}, s[8:11], s22 offen lds")
        a(f"s_add_u32 s22, s22, {48*1152}")
    a("s_mov_b32 exec_hi, -1")
    a(f"""v_and_b32 v7, 15, v0
v_lshrrev_b32 v8, 4, v0
v_lshlrev_b32 v9, 9, v8
v_lshl_add_u32 v{vL}, v7, 4, v9
s_and_b32 s37, s32, 1
s_lshl_b32 s38, s37, 6
s_lshl_b32 s37, s37, 8
v_add_u32 v{vL}, s37, v{vL}
v_lshlrev_b32 v47, 2, v7
v_lshl_add_u32 v47, v8, 9, v47
v_add_u32 v47, s38, v47
v_lshrrev_b32 v9, 1, v8
v_mul_u32_u24 v9, 20, v9
v_and_b32 v10, 1, v8
v_lshl_add_u32 v9, v10, 2, v9
v_lshrrev_b32 v10, 2, v7
v_add_u32 v9, v9, v10
v_mul_u32_u24 v9, {RS3}, v9
v_and_b32 v11, 3, v7
v_lshl_add_u32 v{vWa}, v11, 3, v9
v_add_u32 v3, {8*36*RS3}, v{vWa}
v_lshlrev_b32 v9, 2, v8
v_lshrrev_b32 v12, 1, v10
v_add_u32 v9, v9, v12
v_mul_u32_u24 v9, 18, v9
v_and_b32 v13, 1, v10
v_add_u32 v9, v9, v13
v_xor_b32 v12, 1, v12
v_lshl_add_u32 v9, v12, 4, v9
v_mul_u32_u24 v9, {RS3}, v9
v_lshl_add_u32 v{vWr}, v11, 3, v9
s_lshr_b32 s37, s34, 2
s_lshl_b32 s38, s33, 2
s_add_u32 s37, s37, s38
s_lshl_b32 s37, s37, 5
s_add_u32 s37, s37, 256
v_add_u32 v6, s37, v0
v_lshlrev_b32 v6, 7, v6
v_add_u32 v6, {FLAG_OFF}, v6""")
    srd(a, 16, pWS, WS_USED)
    srd(a, 12, pOUT, OUT_BYTES)
    STG = 576*RS3
    R3 = 152
    a(f"""s_lshl_b32 s20, s33, 21
s_lshl_b32 s21, s36, 15
s_add_u32 s20, s20, s21
s_add_u32 s20, s20, {OM_OFF}
s_lshl_b32 s21, s33, 18
s_lshl_b32 s22, s36, 12
s_add_u32 s21, s21, s22
s_add_u32 s21, s21, {OR_OFF}
s_mul_i32 s23, s32, {16*168}
s_add_u32 s23, s23, {STG}
v_mul_u32_u24 v9, 168, v7
v_lshl_add_u32 v9, v8, 3, v9
v_add_u32 v14, s23, v9
s_lshl_b32 s24, s36, 5
s_and_b32 s25, s32, 1
s_lshl_b32 s25, s25, 4
s_add_u32 s24, s24, s25
s_mul_i32 s24, s24, 2304
s_mul_i32 s25, s33, 1152
s_add_u32 s24, s24, s25
s_mul_i32 s25, s35, 144
s_add_u32 s24, s24, s25""")
    for k in range(3):
        a(f"""v_add_u32 v10, {64*k}, v0
v_mul_u32_u24 v11, 57, v10
v_lshrrev_b32 v11, 9, v11
v_mul_u32_u24 v12, 9, v11
v_sub_u32 v12, v10, v12
v_mul_u32_u24 v13, 168, v11
v_lshl_add_u32 v13, v12, 4, v13
v_add_u32 v{40+k}, s23, v13
v_mul_u32_u24 v13, 2304, v11
v_lshl_add_u32 v{44+k}, v12, 4, v13""")
    a("s_waitcnt vmcnt(0)")
    poll(a, 6, -1, "p2")
    stamp(a, o, 8)
    def oload(ks):
        if ks < 16:
            L = [f"buffer_load_dwordx4 v[{OF(ks)}:{OF(ks)+3}], v{vL}, s[16:19], s20 offen offset:{(ks%2)*2048} sc1"]
            if ks % 2 == 1: L.append("s_add_u32 s20, s20, 4096")
            return L
        return [f"buffer_load_dword v{OF(ks)+r}, v47, s[16:19], s21 offen offset:{(ks-16)*2048 + 128*r} sc1" for r in range(4)]
    nld = lambda ks: 1 if ks < 16 else 4
    def reads(ks, p):
        L = []
        for c in range(NC3):
            for t in range(2):
                if ks < 16:
                    base, k0 = (vWa, ks) if ks < 8 else (3, ks - 8)
                    off = (36*k0 + 8*t)*RS3 + 32*c
                else:
                    base = vWr
                    off = (288*(ks-16) + 36*t)*RS3 + 32*c
                L.append(f"ds_read_b64_tr_b16 v[{WF(p,c)+2*t}:{WF(p,c)+2*t+1}], v{base} offset:{off}")
        return L
    def mfmas(ks):
        p = ks & 1
        return [f"v_mfma_f32_16x16x32_bf16 v[{ACC(c)}:{ACC(c)+3}], v[{WF(p,c)}:{WF(p,c)+3}], v[{OF(ks)}:{OF(ks)+3}], " + (f"v[{ACC(c)}:{ACC(c)+3}]" if ks else "0")
                for c in range(NC3)]
    for ks in range(D):
        for x in oload(ks): a(x)
    for x in reads(0, 0): a(x)
    for ks in range(18):
        issued = min(17, ks + D - 1)
        a(f"s_waitcnt vmcnt({sum(nld(k) for k in range(ks + 1, issued + 1))}) lgkmcnt(0)")
        rd = reads(ks+1, (ks+1) & 1) if ks + 1 < 18 else []
        M = mfmas(ks)
        if ks + D < 18:
            for x in oload(ks + D): a(x)
        for idx, m in enumerate(M):
            a(m)
            for x in rd[2*idx:2*idx+2]: a(x)
    stamp(a, o, 9)
    a("s_nop 7")
    for c in range(NC3):
        r = ACC(c); P = 64 + 2*c
        a(f"v_cvt_pk_bf16_f32 v{P}, v{r}, v{r+1}")
        a(f"v_cvt_pk_bf16_f32 v{P+1}, v{r+2}, v{r+3}")
        a(f"ds_write_b64 v14, v[{P}:{P+1}] offset:{32*c}")
    a("s_waitcnt lgkmcnt(0)")
    for k in range(3): a(f"ds_read_b64 v[{120+4*k}:{121+4*k}], v{40+k}\nds_read_b64 v[{122+4*k}:{123+4*k}], v{40+k} offset:8")
    for k in range(3):
        a(f"s_waitcnt lgkmcnt({4-2*k})")
        if k == 2: a("s_mov_b32 exec_lo, 0xffff\ns_mov_b32 exec_hi, 0")
        a(f"buffer_store_dwordx4 v[{120+4*k}:{123+4*k}], v{44+k}, s[12:15], s24 offen{o['outflag']}")
    a("s_mov_b64 exec, -1")

def gen(opts=None):
    o = dict(stamp=False, bar1=5, bar2=26, rot=3, dual=True, pat=[2,2,2,2,2,2,0], wopf=True, wcomp=False, xcomp=False, pf=False, pfstep=0, p3depth=8, outflag='', midnop=True, p1f=' sc1', epi8=False, epipipe=True, roll=False, p2pad=-1, p1pad=-1, ldprio=0)
    if opts: o.update(opts)
    a = A()
    a(f".globl {NAME}\n.p2align 8\n.type {NAME},@function")
    a.label(NAME)
    a(f"""s_cmp_ge_u32 s2, 256
s_cbranch_scc1 L_exit
s_load_dwordx16 s[{sP}:{sP+15}], s[0:1], 0
s_load_dwordx2 s[{pWS}:{pWS+1}], s[0:1], 64
v_lshrrev_b32 v1, 6, v0
v_and_b32 v0, 63, v0
s_nop 0
v_readfirstlane_b32 s{sWAVE}, v1""")
    stamp(a, o, 0)
    a("s_nop 3")
    nonce_publish(a)
    phase1(a, o)
    stamp(a, o, 3)
    a("; ================================================= P2: attention")
    phase2(a, o)
    stamp(a, o, 7)
    phase3(a, o)
    a.label("L_end")
    if o["stamp"]:
        a(f"""s_cmp_lg_u32 s{sWAVE}, 0
s_cbranch_scc1 L_exit
s_memrealtime s[42:43]
s_waitcnt lgkmcnt(0)
s_lshl_b32 s40, s2, 6
s_add_u32 s40, s40, {WS_USED}
v_mov_b32 v2, s40
s_mov_b64 exec, 1""")
        for i in range(11):
            a(f"v_mov_b32 v3, s{82+2*i if i < 10 else 42}")
            a(f"global_store_dword v2, v3, s[{pWS}:{pWS+1}] offset:{4*i}")
        a("s_sub_u32 s54, s54, s52\nv_mov_b32 v3, s54")
        a(f"global_store_dword v2, v3, s[{pWS}:{pWS+1}] offset:44")
        if not o.get("p1trace"):
            a("v_mov_b32 v3, s59")
            a(f"global_store_dword v2, v3, s[{pWS}:{pWS+1}] offset:56")
        if o.get("p3trace"):
            for c in range(4):
                a(f"s_sub_u32 s40, s{44+2*c}, s98\nv_mov_b32 v3, s40")
                a(f"global_store_dword v2, v3, s[{pWS}:{pWS+1}] offset:{48+4*c}")
        if o.get("dbgstamp"):
            a(f"s_cmp_lg_u32 s2, {o['dbgstamp']}\ns_cbranch_scc1 L_exit\nv_mov_b32 v2, 0")
            for i in range(11):
                src = 82+2*i if i < 10 else 42
                a(f"s_sub_u32 s44, s{src}, s82" if i else "s_mov_b32 s44, s82")
                a("v_mov_b32 v3, s44")
                a(f"global_store_dword v2, v3, s[{pDBG}:{pDBG+1}] offset:{4*(i+1)}")
    a.label("L_exit")
    a("s_endpgm")
    return a.text(), kdesc(NAME, 256, 102)
```

```python
from asmlib import *
NAME = "concat_heads__mha_block__mha_block__prompt_kernel"
THREADS = 512
ST1 = 49664
WREG = 32768
RS = 232
LDS_KM, LDS_VT, LDS_KR = 0, 65536, 139264
WO_RS = 224
WO_IMG = 576 * WO_RS
K3_STG = 32 * 208
LDS_BYTES = 155648
SPIN_MAX = 400000
sWAVE = 3
sP = 64
pAX, pAW, pAWO, pBX, pBW, pBWO, pOUT, pDBG, pWS = [sP + 2*i for i in range(9)]
CNT1 = 0
CNT2 = 128

def srd(a, d, p, nbytes):
    a(f"s_mov_b32 s{d}, s{p}\ns_mov_b32 s{d+1}, s{p+1}\ns_mov_b32 s{d+2}, {nbytes}\ns_mov_b32 s{d+3}, 0x00020000")

def stamp(a, o, idx):
    if o["stamp"]:
        a(f"s_memrealtime s[{82+2*idx}:{83+2*idx}]")

sNONCE = 63
def trace(a, o, k, tag):
    if o.get("p1trace"):
        a(f"""s_cmp_lg_u32 s{sWAVE}, {o['p1trace']-1}
s_cbranch_scc1 L_tr_{tag}
s_memrealtime s[60:61]
s_waitcnt lgkmcnt(0)
s_lshl_b32 s62, s2, 6
s_add_u32 s62, s62, {WS_USED}
v_mov_b32 v250, s62
v_mov_b32 v251, s60
s_mov_b64 exec, 1
global_store_dword v250, v251, s[{pWS}:{pWS+1}] offset:{48+4*k}
s_mov_b64 exec, -1""")
        a.label(f"L_tr_{tag}")

def nonce_publish(a):
    a(f"""s_cmp_lg_u32 s2, 0
s_cbranch_scc1 L_nonce_done
s_cmp_lg_u32 s{sWAVE}, 0
s_cbranch_scc1 L_nonce_done
s_memrealtime s[40:41]
s_waitcnt lgkmcnt(0)
s_or_b32 s40, s40, 1
v_mov_b32 v2, 0
v_mov_b32 v3, s40
s_mov_b64 exec, 1
global_store_dword v2, v3, s[{pDBG}:{pDBG+1}] sc1
s_mov_b64 exec, -1""")
    a.label("L_nonce_done")

sSYNC = 0
def nonce_fetch(a):
    a(f"""s_cmp_lg_u32 s{sWAVE}, {sSYNC}
s_cbranch_scc1 L_nf_done
s_mov_b32 s58, 0""")
    a.label("L_nf_loop")
    a(f"""s_waitcnt vmcnt(0)
v_readfirstlane_b32 s{sNONCE}, v255
s_add_u32 s58, s58, 1
s_cmp_lg_u32 s{sNONCE}, 0
s_cbranch_scc1 L_nf_done
s_sleep 4
global_load_dword v255, v254, s[{pDBG}:{pDBG+1}] sc1
s_cmp_lt_u32 s58, {SPIN_MAX}
s_cbranch_scc1 L_nf_loop""")
    a.label("L_nf_done")

def signal(a, line_sgpr, tag):
    a("s_waitcnt vmcnt(0)")
    a("s_barrier")
    a(f"""s_cmp_lg_u32 s{sWAVE}, {sSYNC}
s_cbranch_scc1 L_sig_{tag}
s_lshl_b32 s{line_sgpr}, s{line_sgpr}, 7
s_add_u32 s{line_sgpr}, s{line_sgpr}, {FLAG_OFF}
v_mov_b32 v254, s{line_sgpr}
v_mov_b32 v255, s{sNONCE}
s_mov_b64 exec, 1
global_store_dword v254, v255, s[{pWS}:{pWS+1}] sc1
s_mov_b64 exec, -1""")
    a.label(f"L_sig_{tag}")

POLLD = 1
POLLS = 1
def poll(a, addr_vgpr, nlanes_mask_lo, tag, others_wait=False):
    a(f"""s_cmp_lg_u32 s{sWAVE}, {sSYNC}
s_cbranch_scc1 L_polled_{tag}
s_mov_b32 s40, 0
s_mov_b32 exec_hi, 0
s_mov_b32 exec_lo, {nlanes_mask_lo}""")
    D = POLLD
    for d in range(D - 1):
        a(f"global_load_dword v{254-d}, v{addr_vgpr}, s[{pWS}:{pWS+1}] sc1")
        a(f"s_sleep {POLLS*4}")
    a.label(f"L_poll_{tag}")
    regs = [254 - d for d in range(D - 1)] + [255]
    for d in range(D):
        new_r = regs[(d + D - 1) % D]; old_r = regs[d]
        a(f"""global_load_dword v{new_r}, v{addr_vgpr}, s[{pWS}:{pWS+1}] sc1
s_waitcnt vmcnt({D-1})
v_cmp_ne_u32 vcc, s{sNONCE}, v{old_r}
s_cmp_eq_u64 vcc, 0
s_cbranch_scc1 L_pollok_{tag}
s_sleep {POLLS if D == 1 else POLLS*4}""")
    a(f"""s_add_u32 s40, s40, 1
s_cmp_lt_u32 s40, {SPIN_MAX}
s_cbranch_scc1 L_poll_{tag}""")
    a.label(f"L_pollok_{tag}")
    a("s_mov_b64 exec, -1")
    a.label(f"L_polled_{tag}")
    if others_wait: a("s_waitcnt vmcnt(0)")
    a("s_barrier")

def p1_epilogue_consts(a):
    assert QM_OFF == 0 and KM_OFF == (1 << 22) and KR_OFF - QR_OFF == (1 << 19)
    srd(a, 16, pWS, WS_USED)
    a(f"""s_mul_i32 s39, s32, {64*RS}
s_mul_i32 s40, s35, 6
v_mul_u32_u24 v5, {RS}, v3
v_lshl_add_u32 v5, v4, 3, v5
v_add_u32 v2, s39, v5
v_and_b32 v6, 31, v0
v_lshrrev_b32 v7, 5, v0
v_mul_u32_u24 v8, {RS}, v6
v_lshl_add_u32 v8, v7, 4, v8
v_add_u32 v8, s39, v8
v_add_u32 v240, {32*RS}, v8
v_lshlrev_b32 v9, 4, v0
v_mul_u32_u24 v10, {RS}, v0
v_add_u32 v10, s39, v10
v_lshlrev_b32 v11, 3, v0
v_lshrrev_b32 v12, 1, v4
v_lshrrev_b32 v13, 2, v3
v_lshl_add_u32 v13, v12, 3, v13
v_mul_u32_u24 v13, {RS}, v13
v_add_u32 v13, s39, v13
v_and_b32 v14, 1, v4
v_and_b32 v15, 3, v3
v_lshlrev_b32 v15, 3, v15
v_mul_u32_u24 v12, 288, v12
s_lshr_b32 s42, s38, 5
s_lshl_b32 s42, s42, 10
s_lshl_b32 s43, s38, 3
s_lshr_b32 s27, s38, 4
s_mul_i32 s27, s27, 576
s_sub_u32 s41, 32, s40
s_cmp_lt_u32 s40, 32
s_cselect_b32 s41, s41, 0
s_lshr_b32 s41, s41, 1
s_mul_i32 s41, s41, 9
s_mov_b32 s28, {f32bits(QSCALE)}
v_cmp_eq_u32 vcc, 0, v14""")
    for hl in range(6):
        pl, par = hl // 2, hl % 2
        a(f"""v_add_u32 v{242+hl}, {72*pl + 40*par}, v15
v_mov_b32 v17, {72*pl + 32}
v_cndmask_b32 v{242+hl}, v17, v{242+hl}, vcc
v_add_u32 v{242+hl}, v{242+hl}, v13""")
    for par in range(2):
        a(f"""v_add_u32 v17, {16 - 2*par}, v3
v_cndmask_b32 v17, v17, v3, vcc
v_lshl_add_u32 v{250+par}, v17, 4, v12""")
    for hl in range(6):
        sK, sM, sR = 20 + hl, 52 + hl, 48 + hl//2
        a(f"""s_add_u32 s46, s40, {hl}
s_lshr_b32 s{sK}, s46, 5
s_and_b32 s46, s46, 31
s_lshl_b32 s47, s33, 5
s_add_u32 s47, s47, s46
s_lshl_b32 s{sM}, s47, 16
s_lshl_b32 s46, s{sK}, 22
s_add_u32 s{sM}, s{sM}, s46
s_add_u32 s{sM}, s{sM}, s42
s_mul_i32 s46, s47, {VT_STRIDE}
s_add_u32 s46, s46, s27
s_add_u32 s46, s46, {VT_OFF}
s_cmp_eq_u32 s{sK}, 2
s_cselect_b32 s{sM}, s46, s{sM}""")
        if hl % 2 == 0:
            a(f"""s_lshr_b32 s{sR}, s47, 1
s_lshl_b32 s{sR}, s{sR}, 14
s_add_u32 s{sR}, s{sR}, s43
s_lshl_b32 s46, s{sK}, 19
s_add_u32 s{sR}, s{sR}, s46
s_add_u32 s{sR}, s{sR}, {QR_OFF}""")

def p1_epilogue_pipe(a, o, ACC, P1F):
    cnt = [0]
    def stage(c):
        a(f"s_cmp_le_u32 s41, {4*c}\ns_cbranch_scc1 L_p1_ns{c}")
        a(f"s_cmp_lt_u32 s41, {4*c+4}\ns_cbranch_scc1 L_p1_mx{c}")
        for i in range(4):
            r = ACC(i, c)
            a(f"v_pk_mul_f32 v[{r}:{r+1}], v[{r}:{r+1}], s[28:29] op_sel_hi:[1,0]")
            a(f"v_pk_mul_f32 v[{r+2}:{r+3}], v[{r+2}:{r+3}], s[28:29] op_sel_hi:[1,0]")
        a(f"s_branch L_p1_ns{c}")
        a.label(f"L_p1_mx{c}")
        a(f"""v_add_u32 v6, {4*c}, v4
v_cmp_gt_u32 vcc, s41, v6
v_mov_b32 v7, 1.0
v_mov_b32 v241, s28
v_cndmask_b32 v6, v7, v241, vcc""")
        for i in range(4):
            r = ACC(i, c)
            a(f"v_pk_mul_f32 v[{r}:{r+1}], v[{r}:{r+1}], v[6:7] op_sel_hi:[1,0]")
            a(f"v_pk_mul_f32 v[{r+2}:{r+3}], v[{r+2}:{r+3}], v[6:7] op_sel_hi:[1,0]")
        a.label(f"L_p1_ns{c}")
        for i in range(4):
            r = ACC(i, c); P = 40 + 2*(cnt[0] % 16); cnt[0] += 1
            a(f"v_cvt_pk_bf16_f32 v{P}, v{r}, v{r+1}")
            a(f"v_cvt_pk_bf16_f32 v{P+1}, v{r+2}, v{r+3}")
            a(f"ds_write_b64 v2, v[{P}:{P+1}] offset:{i*16*RS + 32*c}")
    RR = lambda hl: 128 + 16*hl
    sK = lambda hl: 20 + hl
    sM = lambda hl: 52 + hl
    sR = lambda hl: 48 + hl//2
    def reads(hl):
        pl, par = hl // 2, hl % 2
        lab = f"L_p1_h{hl}"; R = RR(hl)
        a(f"s_cmp_eq_u32 s{sK(hl)}, 2\ns_cbranch_scc1 {lab}_v")
        off = 72*pl + 40*par
        a(f"ds_read2_b64 v[{R}:{R+3}], v8 offset0:{off//8} offset1:{off//8+1}")
        a(f"ds_read2_b64 v[{R+4}:{R+7}], v240 offset0:{off//8} offset1:{off//8+1}")
        if par == 0: a(f"ds_read_b64 v[{R+8}:{R+9}], v10 offset:{72*pl + 32}")
        a(f"s_branch {lab}_e")
        a.label(f"{lab}_v")
        for grp in range(4):
            for tr in range(2):
                a(f"ds_read_b64_tr_b16 v[{R+4*grp+2*tr}:{R+4*grp+2*tr+1}], v{242+hl} offset:{(16*grp + 4*tr)*RS}")
        a.label(f"{lab}_e")
    def stores(hl):
        pl, par = hl // 2, hl % 2
        lab = f"L_p1_s{hl}"; R = RR(hl)
        sk = o.get("p1skip", "")
        a(f"s_cmp_eq_u32 s{sK(hl)}, 2\ns_cbranch_scc1 {lab}_v")
        if "m" not in sk:
            a(f"buffer_store_dwordx4 v[{R}:{R+3}], v9, s[16:19], s{sM(hl)} offen{P1F}")
            a(f"buffer_store_dwordx4 v[{R+4}:{R+7}], v9, s[16:19], s{sM(hl)} offen offset:1024{P1F}")
        if par == 0 and "r" not in sk: a(f"buffer_store_dwordx2 v[{R+8}:{R+9}], v11, s[16:19], s{sR(hl)} offen{P1F}")
        a(f"s_branch {lab}_e")
        a.label(f"{lab}_v")
        m16 = 0xffff | ((0x3 << (2*par)) << 16)
        a(f"s_mov_b32 exec_lo, {m16}\ns_mov_b32 exec_hi, {m16}")
        for grp in range(4):
            if "v" not in sk:
                a(f"buffer_store_dwordx4 v[{R+4*grp}:{R+4*grp+3}], v{250+par}, s[16:19], s{sM(hl)} offen offset:{576*grp}{P1F}")
        a("s_mov_b64 exec, -1")
        a.label(f"{lab}_e")
    stage(0); stage(1); stage(2)
    reads(0); reads(1)
    stage(3); stage(4)
    a("s_waitcnt lgkmcnt(8)")
    stores(0); stores(1)
    reads(2); reads(3)
    stage(5); stage(6)
    a("s_waitcnt lgkmcnt(8)")
    stores(2); stores(3)
    reads(4); reads(5)
    a("s_waitcnt lgkmcnt(0)")
    stores(4); stores(5)

def phase1(a, o):
    P1F = o['p1f']
    ROT = o['rot']
    if o.get("rot9"):
        ma, mb = o["rot9"]
        ROTCODE = f"""s_mul_i32 s24, s35, {ma}
s_mul_i32 s25, s34, {mb}
s_add_u32 s24, s24, s25
s_mul_i32 s25, s24, 57
s_lshr_b32 s25, s25, 9
s_mul_i32 s25, s25, 9
s_sub_u32 s24, s24, s25"""
        for v in range(16*ma + 8*mb): assert (v*57) >> 9 == v // 9, v
    else:
        ROTCODE = f"""s_add_u32 s24, s35, s34
s_mul_i32 s25, s24, 43
s_lshr_b32 s25, s25, 7
s_mul_i32 s25, s25, 3
s_sub_u32 s24, s24, s25
s_mul_i32 s24, s24, {ROT}"""
    vXD = lambda i: 16 + i
    vWD = lambda i: 24 + i
    vX = lambda st, ks: 28 + 2*st + ks
    vW = lambda st: 34 + st
    XF = lambda p, i: 40 + 16*p + 4*i
    WF = lambda p, c: 72 + 28*p + 4*c
    ACC = lambda i, c: 128 + 4*(4*c + i)
    n = 7
    GL = o.get("gl")
    if GL:
        a(f"""s_and_b32 s30, s2, 7
s_lshr_b32 s31, s2, 3
s_and_b32 s32, s{sWAVE}, 3
s_lshr_b32 s33, s30, 2
s_and_b32 s34, s31, 7
s_and_b32 s35, s30, 3
s_lshl_b32 s35, s35, 2
s_lshr_b32 s36, s31, 3
s_add_u32 s35, s35, s36
s_lshl_b32 s20, s34, 8
s_lshl_b32 s21, s32, 6
s_add_u32 s38, s20, s21
s_lshl_b32 s37, s32, 13
v_lshrrev_b32 v4, 4, v0
v_and_b32 v3, 15, v0""")
    else: a(f"""s_and_b32 s30, s2, 7
s_lshr_b32 s31, s2, 3
s_and_b32 s32, s{sWAVE}, 3
s_lshr_b32 s33, s30, 2
s_and_b32 s34, s30, 1
s_lshl_b32 s34, s34, 2
s_and_b32 s35, s31, 3
s_add_u32 s34, s34, s35
s_lshr_b32 s35, s30, 1
s_and_b32 s35, s35, 1
s_lshl_b32 s35, s35, 3
s_lshr_b32 s36, s31, 2
s_add_u32 s35, s35, s36
s_lshl_b32 s20, s34, 8
s_lshl_b32 s21, s32, 6
s_add_u32 s38, s20, s21
s_lshl_b32 s37, s32, 13
v_lshrrev_b32 v4, 4, v0
v_and_b32 v3, 15, v0""")
    WC = o["wcomp"]
    a(f"""v_and_b32 v2, 1, v4
v_lshrrev_b32 v5, 1, v4
v_lshlrev_b32 v2, 2, v2
v_lshl_add_u32 v2, v5, 4, v2
v_mul_u32_u24 v2, 3456, v2""")
    if GL:
        a(f"""v_mul_u32_u24 v5, 13, v3
v_lshrrev_b32 v5, 6, v5
v_mul_u32_u24 v6, 5, v5
v_sub_u32 v6, v3, v6
v_mul_u32_u24 v5, 1152, v5
v_lshl_add_u32 v5, v6, 4, v5
v_add_u32 v2, v2, v5
v_mov_b32 v5, 0x40000000
v_cmp_gt_u32 vcc, 15, v3""")
    else:
        a(f"""v_lshl_add_u32 v2, v3, 4, v2
v_mov_b32 v5, 0x40000000
v_cmp_gt_u32 vcc, 14, v3""")
    a(f"""s_mul_i32 s20, s38, 1152
s_lshr_b32 s21, s32, 1
v_cndmask_b32 v2, v5, v2, vcc""")
    for i in range(4):
        a(f"v_add_u32 v{vWD(i)}, {3456*i}, v2")
    a(f"""s_lshl_b32 s21, s21, 5
s_and_b32 s22, s32, 1
s_lshl_b32 s23, s22, 3
s_add_u32 s21, s21, s23
s_mul_i32 s21, s21, 3456
s_mul_i32 s23, s35, {72 if GL else 216}
s_add_u32 s21, s21, s23
s_lshr_b32 s23, s32, 1
s_mul_i32 s23, s23, 8448
s_mul_i32 s22, s22, {4*1056}
s_add_u32 s23, s23, s22
s_add_u32 s23, s23, {WREG}
s_mov_b32 s22, s37
{ROTCODE}
s_lshl_b32 s25, s24, 7
s_add_u32 s20, s20, s25
s_mul_i32 s25, s24, {64*3456}
s_add_u32 s21, s21, s25
s_waitcnt lgkmcnt(0)
s_cmp_eq_u32 s33, 0
s_cselect_b32 s8, s{pAX}, s{pBX}
s_cselect_b32 s9, s{pAX+1}, s{pBX+1}
s_cselect_b32 s12, s{pAW}, s{pBW}
s_cselect_b32 s13, s{pAW+1}, s{pBW+1}
s_mov_b32 s10, {X_BYTES}
s_mov_b32 s11, 0x00020000
s_mov_b32 s14, {W_BYTES}
s_mov_b32 s15, 0x00020000
s_cmp_ge_u32 s{sWAVE}, 4
s_cbranch_scc0 L_p1_compute""")
    wrap = [f"s_add_u32 s21, s21, {64*3456}", "s_add_u32 s20, s20, 128", "s_add_u32 s24, s24, 1", "s_cmp_eq_u32 s24, 9",
            f"s_cselect_b32 s25, {9*128}, 0", f"s_cselect_b32 s26, {9*64*3456}, 0", "s_cselect_b32 s24, 0, s24",
            "s_sub_u32 s20, s20, s25", "s_sub_u32 s21, s21, s26"]
    def w_units(cc):
        st = cc % 3
        U = [[f"s_add_u32 m0, s23, {st*ST1}"]]
        for i in range(4):
            u = [f"buffer_load_dwordx4 v{vWD(i)}, s[12:15], s21 offen lds"]
            u += ["s_add_u32 m0, m0, 1056"] if i < 3 else wrap
            U.append(u)
        return U
    def flat(U):
        for u in U:
            for x in u:
                if x.startswith("buffer_load"): a("s_nop 0")
                a(x)
    XC = o["xcomp"]
    def xsetup():
        a(f"""v_lshrrev_b32 v2, 3, v0
v_and_b32 v5, 7, v0
v_xor_b32 v5, v5, v4
v_mul_u32_u24 v6, 1152, v2
v_lshl_add_u32 v7, v5, 4, v6
v_xor_b32 v8, 64, v7""")
        for i in range(8):
            a(f"v_add_u32 v{vXD(i)}, {9216*i}, v{7 if i % 2 == 0 else 8}")
    if XC:
        for _ in range(9): a("s_barrier")
        a("s_branch L_p1_rb" if o["epi8"] else "s_branch L_p1_done")
    xsetup()
    if o.get("ldprio"): a(f"s_setprio {o['ldprio']}")
    NL = 8 if WC else 12
    def dma(cc):
        st = cc % 3
        a(f"s_add_u32 m0, s22, {st*ST1}")
        for i in range(8):
            a("s_nop 0")
            a(f"buffer_load_dwordx4 v{vXD(i)}, s[8:11], s20 offen lds")
            if i < 7: a("s_add_u32 m0, m0, 1024")
        if WC:
            for x in wrap: a(x)
        else:
            if o.get("wmask"): a("s_mov_b32 exec_lo, 0x3fff3fff\ns_mov_b32 exec_hi, 0x3fff3fff")
            flat(w_units(cc))
            if o.get("wmask"): a("s_mov_b64 exec, -1")
    dma(0); dma(1)
    a(f"s_waitcnt vmcnt({NL})")
    a("s_barrier")
    dma(2)
    for cc in range(8):
        rem = min(8, cc + 2) - (cc + 1)
        a(f"s_waitcnt vmcnt({NL*rem})")
        a("s_barrier")
        if cc + 3 <= 8: dma(cc + 3)
    if o.get("ldprio"): a("s_setprio 0")
    a("s_branch L_p1_rb" if o["epi8"] else "s_branch L_p1_done")
    a.label("L_p1_compute")
    def xw_units(cc):
        st = cc % 3
        U = [[f"s_add_u32 m0, s22, {st*ST1}"]]
        for i in range(8):
            U.append([f"buffer_load_dwordx4 v{vXD(i)}, s[8:11], s20 offen lds",
                      "s_add_u32 m0, m0, 1024" if i < 7 else f"s_add_u32 m0, s23, {st*ST1}"])
        return U + w_units(cc)[1:]
    if XC:
        xsetup()
        flat(xw_units(0)); flat(xw_units(1))
    elif WC:
        flat(w_units(0)); flat(w_units(1))
    a(f"""v_lshrrev_b32 v5, 1, v3
v_xor_b32 v5, v5, v4
v_lshlrev_b32 v5, 4, v5
v_lshl_add_u32 v5, v3, 7, v5
v_add_u32 v5, s37, v5
v_xor_b32 v6, 64, v5""")
    for st in range(3):
        a(f"v_add_u32 v{vX(st,0)}, {st*ST1}, v5")
        a(f"v_add_u32 v{vX(st,1)}, {st*ST1}, v6")
    a(f"""v_lshrrev_b32 v5, 2, v3
v_and_b32 v6, 1, v4
v_lshl_add_u32 v5, v6, 2, v5
v_mul_u32_u24 v5, 1056, v5
v_lshrrev_b32 v6, 1, v4
v_lshl_add_u32 v5, v6, 9, v5
v_and_b32 v6, 3, v3
v_lshl_add_u32 v5, v6, 3, v5""")
    for st in range(3):
        a(f"v_add_u32 v{vW(st)}, {st*ST1 + WREG}, v5")
    def reads(g):
        cc, ks = g // 2, g % 2
        st, p = cc % 3, g & 1
        L = []
        for c in range(n):
            if c < 4: L.append(f"ds_read_b128 v[{XF(p,c)}:{XF(p,c)+3}], v{vX(st,ks)} offset:{2048*c}")
            for tr in range(2):
                L.append(f"ds_read_b64_tr_b16 v[{WF(p,c)+2*tr}:{WF(p,c)+2*tr+1}], v{vW(st)} offset:{ks*8448 + tr*256 + 32*c}")
        return L
    def mfmas(g):
        p = g & 1
        L = []
        for c in range(n):
            for i in range(4):
                acc = f"v[{ACC(i,c)}:{ACC(i,c)+3}]"
                L.append(f"v_mfma_f32_16x16x32_bf16 {acc}, v[{WF(p,c)}:{WF(p,c)+3}], v[{XF(p,i)}:{XF(p,i)+3}], {acc if g else 0}")
        return L
    if o["pf"]:
        assert not WC and o["rot"] == 0
        a(f"""s_and_b32 s26, s35, 7
s_lshl_b32 s26, s26, 5
s_lshl_b32 s27, s34, 8
s_add_u32 s26, s26, s27
s_mul_i32 s26, s26, 1152
s_add_u32 s26, s26, 384
v_and_b32 v5, 31, v0
v_lshrrev_b32 v6, 5, v0
v_mul_u32_u24 v5, 1152, v5
v_lshl_add_u32 v240, v6, 6, v5
s_and_b32 s27, s34, 3
s_add_u32 s27, s27, 192
s_mul_i32 s27, s27, 3456
s_mul_i32 s28, s35, 216
s_add_u32 s27, s27, s28
v_lshrrev_b32 v5, 2, v0
v_and_b32 v6, 3, v0
v_mul_u32_u24 v5, {4*3456}, v5
v_lshl_add_u32 v241, v6, 6, v5
s_mul_i32 s28, s32, {3*128}
s_add_u32 s26, s26, s28
s_sub_u32 s28, s32, 2
s_mul_i32 s28, s28, {3*64*3456}
s_add_u32 s27, s27, s28
s_cmp_lt_u32 s32, 2
s_cselect_b32 s48, s8, s12
s_cselect_b32 s49, s9, s13
s_cselect_b32 s50, s10, s14
s_mov_b32 s51, 0x00020000
s_cselect_b32 s26, s26, s27
s_mov_b32 s27, {64*3456}
s_cselect_b32 s27, 128, s27
s_cselect_b64 vcc, -1, 0
s_nop 1
v_cndmask_b32 v240, v241, v240, vcc""")
    if o["pf"] and o["pfstep"] < 0:
        for q in range(3):
            a(f"buffer_load_dword v{242+q}, v240, s[48:51], s26 offen")
            a("s_add_u32 s26, s26, s27")
    if o["epipipe"]: p1_epilogue_consts(a)
    NC = 12 if XC else 4
    if WC: a(f"s_waitcnt vmcnt({NC})")
    if o["p1pad"] >= 0:
        a(".p2align 6")
        for _ in range(o["p1pad"]): a("s_nop 0")
    a("s_barrier")
    stamp(a, o, 1)
    if o["stamp"]: a("s_memtime s[44:45]")
    for x in reads(0): a(x)
    for g in range(18):
        cc, ks = g // 2, g % 2
        if ks == 1 and cc < 8:
            rem = min(8, cc + 2) - (cc + 1)
            a((f"s_waitcnt vmcnt({NC*rem}) lgkmcnt(0)") if WC else "s_waitcnt lgkmcnt(0)")
            a("s_barrier")
        else:
            a("s_waitcnt lgkmcnt(0)")
        if o.get("p1loop") and ks == 1 and cc < 8:
            a(f"s_memtime s[{84+2*cc}:{85+2*cc}]")
        units = []
        if XC:
            if g == 0: units = xw_units(2)
            elif ks == 1 and cc + 3 <= 8: units = xw_units(cc + 3)[:7]
            elif ks == 0 and cc >= 1 and cc + 2 <= 8: units = xw_units(cc + 2)[7:]
        elif WC:
            if g == 0: units = w_units(2)
            elif ks == 1 and cc + 3 <= 8: units = w_units(cc + 3)[:3]
            elif ks == 0 and cc >= 1 and cc + 2 <= 8: units = w_units(cc + 2)[3:]
        rd = reads(g + 1) if g + 1 < 18 else []
        M = mfmas(g)
        slots = [[] for _ in M]
        for idx, x in enumerate(rd): slots[min(idx, len(M)-1)].append(x)
        for idx, u in enumerate(units): slots[min(len(M)-1, 2 + (idx*len(M))//len(units))] += u
        if o["pf"] and g == o["pfstep"]:
            for q in range(3):
                slots[3 + 8*q] += [f"buffer_load_dword v{242+q}, v240, s[48:51], s26 offen", "s_add_u32 s26, s26, s27"]
        if g == (16 if WC else o.get("ng", 6)):
            a("v_mov_b32 v254, 0")
            a(f"global_load_dword v255, v254, s[{pDBG}:{pDBG+1}] sc1")
        for m, sl in zip(M, slots):
            a(m)
            for x in sl: a(x)
    if o.get("p1loop"):
        a(f"""s_waitcnt lgkmcnt(0)
s_cmp_lg_u32 s{sWAVE}, 0
s_cbranch_scc1 L_p1l_done
s_lshl_b32 s62, s2, 6
s_add_u32 s62, s62, {WS_USED + 65536}
v_mov_b32 v250, s62
s_mov_b64 exec, 1""")
        for cc in range(8):
            a(f"s_sub_u32 s60, s{84+2*cc}, s44\nv_mov_b32 v251, s60\nglobal_store_dword v250, v251, s[{pWS}:{pWS+1}] offset:{4*cc}")
        a("s_mov_b64 exec, -1")
        a.label("L_p1l_done")
    stamp(a, o, 2)
    if o["stamp"]: a("s_memtime s[46:47]\ns_waitcnt lgkmcnt(0)\ns_sub_u32 s59, s46, s44")
    nonce_fetch(a)
    if o["epipipe"]:
        p1_epilogue_pipe(a, o, ACC, P1F)
        a("s_branch L_p1_done")
    if not o["epipipe"]:
        a(f"""s_waitcnt lgkmcnt(0)
s_mul_i32 s39, s32, {64*RS}
v_mul_u32_u24 v5, {RS}, v3
v_lshl_add_u32 v5, v4, 3, v5
v_add_u32 v5, s39, v5
s_mul_i32 s40, s35, 6
s_sub_u32 s41, 32, s40
s_cmp_lt_u32 s40, 32
s_cselect_b32 s41, s41, 0
s_lshr_b32 s41, s41, 1
s_mul_i32 s41, s41, 9
s_mov_b32 s44, {f32bits(QSCALE)}
s_cmp_eq_u32 s41, 0
s_cbranch_scc1 L_p1_noscale""")
        for c in range(n):
            a(f"""v_add_u32 v6, {4*c}, v4
v_cmp_gt_u32 vcc, s41, v6
v_mov_b32 v7, 1.0
v_mov_b32 v8, s44
v_cndmask_b32 v6, v7, v8, vcc""")
            for i in range(4):
                r = ACC(i, c)
                a(f"v_pk_mul_f32 v[{r}:{r+1}], v[{r}:{r+1}], v[6:7] op_sel_hi:[1,0]")
                a(f"v_pk_mul_f32 v[{r+2}:{r+3}], v[{r+2}:{r+3}], v[6:7] op_sel_hi:[1,0]")
        a.label("L_p1_noscale")
        for c in range(n):
            for i in range(4):
                r = ACC(i, c); P = 40 + 2*((4*c + i) % 16)
                a(f"v_cvt_pk_bf16_f32 v{P}, v{r}, v{r+1}")
                a(f"v_cvt_pk_bf16_f32 v{P+1}, v{r+2}, v{r+3}")
                a(f"ds_write_b64 v5, v[{P}:{P+1}] offset:{i*16*RS + 32*c}")
        a("s_waitcnt lgkmcnt(0)")
        trace(a, o, 0, "a")
        a.label("L_p1_rb")
        srd(a, 16, pWS, WS_USED)
        a(f"""s_mul_i32 s39, s32, {64*RS}
s_mul_i32 s40, s35, 6
v_and_b32 v6, 31, v0
v_lshrrev_b32 v7, 5, v0
v_mul_u32_u24 v8, {RS}, v6
v_lshl_add_u32 v8, v7, 4, v8
v_add_u32 v8, s39, v8
v_lshlrev_b32 v9, 4, v0
v_mul_u32_u24 v10, {RS}, v0
v_add_u32 v10, s39, v10
v_lshlrev_b32 v11, 3, v0
v_lshrrev_b32 v12, 1, v4
v_lshrrev_b32 v13, 2, v3
v_lshl_add_u32 v13, v12, 3, v13
v_mul_u32_u24 v13, {RS}, v13
v_add_u32 v13, s39, v13
v_and_b32 v14, 1, v4
v_and_b32 v15, 3, v3
v_lshlrev_b32 v15, 3, v15
v_mul_u32_u24 v12, 288, v12
s_lshr_b32 s42, s38, 5
s_lshl_b32 s42, s42, 10
s_lshl_b32 s43, s38, 3
s_lshr_b32 s45, s38, 4
s_mul_i32 s45, s45, 576""")
        E8 = o["epi8"]
        if E8: a(f"s_barrier\ns_cmp_ge_u32 s{sWAVE}, 4\ns_cbranch_scc1 L_p1_rb1")
        assert QM_OFF == 0 and KM_OFF == (1 << 22) and KR_OFF - QR_OFF == (1 << 19)
        NH = 3 if E8 else 6
        sKf = (lambda k: 48 + k) if E8 else (lambda k: 20 + k)
        sMf = (lambda k: 52 + k) if E8 else (lambda k: 26 + k)
        sRf = (lambda k: 55 + k) if E8 else (lambda k: 48 + k)
        for hg in range(2 if E8 else 1):
            if hg: a.label("L_p1_rb1")
            for k in range(NH):
                hl = NH*hg + k
                pl, par = hl // 2, hl % 2
                lab = f"L_p1_h{hl}"
                R = 128 + 16*k
                sK, sM, sR = sKf(k), sMf(k), sRf(k)
                a(f"""s_add_u32 s46, s40, {hl}
s_lshr_b32 s{sK}, s46, 5
s_and_b32 s46, s46, 31
s_lshl_b32 s47, s33, 5
s_add_u32 s47, s47, s46
s_cmp_eq_u32 s{sK}, 2
s_cbranch_scc1 {lab}_v""")
                off = 72*pl + 40*par
                a(f"ds_read2_b64 v[{R}:{R+3}], v8 offset0:{off//8} offset1:{off//8+1}")
                a(f"v_add_u32 v{20+2*k}, {32*RS + off}, v8")
                a(f"ds_read2_b64 v[{R+4}:{R+7}], v{20+2*k} offset0:0 offset1:1")
                if par == 0: a(f"ds_read_b64 v[{R+8}:{R+9}], v10 offset:{72*pl + 32}")
                a(f"""s_lshl_b32 s{sM}, s47, 16
s_lshl_b32 s46, s{sK}, 22
s_add_u32 s{sM}, s{sM}, s46
s_add_u32 s{sM}, s{sM}, s42""")
                if par == 0:
                    a(f"""s_lshr_b32 s{sR}, s47, 1
s_lshl_b32 s{sR}, s{sR}, 14
s_add_u32 s{sR}, s{sR}, s43
s_lshl_b32 s46, s{sK}, 19
s_add_u32 s{sR}, s{sR}, s46
s_add_u32 s{sR}, s{sR}, {QR_OFF}""")
                a(f"s_branch {lab}_e")
                a.label(f"{lab}_v")
                a(f"""v_add_u32 v{20+2*k}, {72*pl + 40*par}, v15
v_mov_b32 v17, {72*pl + 32}
v_cmp_eq_u32 vcc, 0, v14
s_mul_i32 s{sM}, s47, {VT_STRIDE}
s_add_u32 s{sM}, s{sM}, s45
v_cndmask_b32 v{20+2*k}, v17, v{20+2*k}, vcc
v_add_u32 v{20+2*k}, v{20+2*k}, v13
s_add_u32 s{sM}, s{sM}, {VT_OFF}""")
                for grp in range(4):
                    for tr in range(2):
                        a(f"ds_read_b64_tr_b16 v[{R+4*grp+2*tr}:{R+4*grp+2*tr+1}], v{20+2*k} offset:{(16*grp + 4*tr)*RS}")
                a(f"""v_add_u32 v17, {16 - 2*par}, v3
v_cndmask_b32 v17, v17, v3, vcc
v_lshl_add_u32 v{21+2*k}, v17, 4, v12""")
                a.label(f"{lab}_e")
            a("s_waitcnt lgkmcnt(0)")
            trace(a, o, 1, f"b{hg}")
            for k in range(NH):
                hl = NH*hg + k
                pl, par = hl // 2, hl % 2
                lab = f"L_p1_s{hl}"
                R = 128 + 16*k
                sK, sM, sR = sKf(k), sMf(k), sRf(k)
                a(f"s_cmp_eq_u32 s{sK}, 2\ns_cbranch_scc1 {lab}_v")
                a(f"buffer_store_dwordx4 v[{R}:{R+3}], v9, s[16:19], s{sM} offen{P1F}")
                a(f"buffer_store_dwordx4 v[{R+4}:{R+7}], v9, s[16:19], s{sM} offen offset:1024{P1F}")
                if par == 0: a(f"buffer_store_dwordx2 v[{R+8}:{R+9}], v11, s[16:19], s{sR} offen{P1F}")
                a(f"s_branch {lab}_e")
                a.label(f"{lab}_v")
                m16 = 0xffff | ((0x3 << (2*par)) << 16)
                a(f"s_mov_b32 exec_lo, {m16}\ns_mov_b32 exec_hi, {m16}")
                for grp in range(4):
                    a(f"buffer_store_dwordx4 v[{R+4*grp}:{R+4*grp+3}], v{21+2*k}, s[16:19], s{sM} offen offset:{576*grp}{P1F}")
                a("s_mov_b64 exec, -1")
                a.label(f"{lab}_e")
            trace(a, o, 2, f"c{hg}")
            if hg == 0 and E8: a("s_branch L_p1_done")
    a.label("L_p1_done")
    a("s_lshl_b32 s39, s33, 4\ns_add_u32 s39, s39, s35\ns_lshl_b32 s39, s39, 3\ns_add_u32 s39, s39, s34")
    signal(a, 39, "p1")

def phase2(a, o):
    NKT, NQ = 64, 2
    QM = lambda j: 16 + 4*j
    QR = 24
    KMn = lambda s: 28 + 6*s
    KRs = lambda s: 32 + 6*s
    V0 = lambda s: 40 + 8*s
    V1 = lambda s: 44 + 8*s
    S = lambda kt, j: 56 + 32*(kt & 1) + 16*j
    O = lambda j: 120 + 16*j
    vL16, vKR, vVa, vVb, vIdx = 2, 3, 4, 5, 6
    T = 152
    name = "p2"
    a(f"""s_and_b32 s18, s2, 7
s_lshr_b32 s19, s2, 3
s_lshr_b32 s12, s19, 2
s_lshl_b32 s18, s18, 3
s_add_u32 s12, s12, s18
s_and_b32 s13, s19, 3
s_mov_b32 s14, s{sWAVE}""")
    a(f"""s_and_b32 s18, s12, 31
s_lshr_b32 s19, s12, 5
s_lshl_b32 s19, s19, 4
v_lshrrev_b32 v7, 3, v0
v_lshlrev_b32 v7, 5, v7
v_add_u32 v7, s18, v7
v_mul_u32_u24 v7, 171, v7
v_lshrrev_b32 v7, 10, v7
v_add_u32 v7, s19, v7
v_and_b32 v8, 7, v0
v_lshl_add_u32 v7, v7, 3, v8
v_lshlrev_b32 v7, 7, v7
v_add_u32 v7, {FLAG_OFF}, v7""")
    srd(a, 8, pWS, WS_USED)
    a(f"""v_lshlrev_b32 v{vL16}, 4, v0
v_and_b32 v8, 31, v0
v_lshlrev_b32 v9, 3, v8
s_mov_b32 s15, 0
s_mov_b32 s16, 0x0003ffff
s_mov_b32 s17, 0x0003ffff
s_lshl_b32 s30, s14, 10
s_lshl_b32 s25, s12, 16
s_add_u32 s35, s25, {KM_OFF}
s_add_u32 s25, s35, s30
s_mul_i32 s28, s12, {VT_STRIDE}
s_add_u32 s36, s28, {VT_OFF}
s_add_u32 s28, s36, s30
s_lshr_b32 s38, s12, 1
s_lshl_b32 s38, s38, 14
s_and_b32 s39, s12, 1
s_lshl_b32 s39, s39, 2
s_add_u32 s37, s38, {KR_OFF}
s_add_u32 s33, s37, s30
s_add_u32 s29, s30, {LDS_VT}
s_add_u32 s34, s30, {LDS_KR}
s_mov_b32 s26, s30
s_lshl_b32 s18, s13, 4
s_lshl_b32 s19, s14, 1
s_add_u32 s24, s18, s19""")
    def dmaK():
        a("s_mov_b32 m0, s26")
        a("s_add_u32 s26, s26, 8192")
        a(f"buffer_load_dwordx4 v{vL16}, s[8:11], s25 offen sc1 lds")
        a("s_add_u32 s25, s25, 8192")
    def dmaV():
        a("s_mov_b32 m0, s29")
        a("s_add_u32 s29, s29, 8192")
        a(f"buffer_load_dwordx4 v{vL16}, s[8:11], s28 offen sc1 lds")
        a("s_add_u32 s28, s28, 8192")
    def dmaKR1():
        a("s_add_u32 m0, s34, 8192")
        a("s_add_u32 s33, s33, 8192")
        a(f"buffer_load_dwordx4 v{vL16}, s[8:11], s33 offen sc1 lds")
    a(f"""s_lshr_b32 s18, s12, 5
s_and_b32 s19, s12, 31
s_lshl_b32 s46, s18, 21
s_lshl_b32 s21, s24, 15
s_add_u32 s46, s46, s21
s_lshl_b32 s21, s19, 10
s_add_u32 s46, s46, s21
s_add_u32 s46, s46, {OM_OFF}
s_lshl_b32 s47, s18, 18
s_lshl_b32 s21, s24, 12
s_add_u32 s47, s47, s21
s_lshl_b32 s21, s19, 7
s_add_u32 s47, s47, s21
s_add_u32 s47, s47, {OR_OFF}
s_lshl_b32 s48, s18, 2
s_add_u32 s48, s48, s13
s_lshl_b32 s48, s48, 5
s_add_u32 s48, s48, s19
s_add_u32 s48, s48, 256
v_lshlrev_b32 v197, 2, v8
s_lshl_b32 s49, s12, 16
s_lshl_b32 s19, s24, 10
s_add_u32 s49, s49, s19
s_lshl_b32 s20, s24, 8
s_add_u32 s50, s38, s20
s_add_u32 s50, s50, s39
s_add_u32 s50, s50, {QR_OFF}
v_lshlrev_b32 v196, 3, v0""")
    if o["wopf"]:
        a(f"""s_cmp_lt_u32 s12, 32
s_cselect_b32 s20, s{pAWO}, s{pBWO}
s_cselect_b32 s21, s{pAWO+1}, s{pBWO+1}
s_mov_b32 s22, {WO_BYTES}
s_mov_b32 s23, 0x00020000
s_lshr_b32 s18, s2, 3
s_lshl_b32 s18, s18, 3
s_add_u32 s18, s18, s14
s_lshl_b32 s27, s18, 12
v_lshlrev_b32 v198, 6, v0""")
    late = [dmaK, dmaV, dmaKR1, dmaK, dmaV, dmaK, dmaV] + [dmaK, dmaV]*4
    sched = {0: late[0:3], 1: late[3:5], 2: late[5:7], 3: late[7:9], 4: late[9:11], 5: late[11:13], 6: late[13:15]}
    a(f"""v_lshrrev_b32 v10, 5, v0
v_add_u32 v{vKR}, {LDS_KR}, v9
v_add_u32 v{vKR}, s39, v{vKR}
v_mul_u32_u24 v11, 288, v10
v_lshlrev_b32 v12, 4, v8
v_add_u32 v27, v11, v12
v_add_u32 v{vVa}, {LDS_VT}, v27
v_add_u32 v{vVb}, {LDS_VT + 32*1152}, v27
v_mov_b32 v{vIdx}, 0xdddd
v_and_b32 v13, 27, v8
v_cmp_eq_u32 vcc, 18, v13
v_mov_b32 v14, 0x3f803f80
v_mov_b32 v15, 0
v_cndmask_b32 v13, v15, v14, vcc""")
    for s in range(2):
        a(f"v_mov_b32 v{KRs(s)+1}, 0x3f803f80")
        for i in range(4):
            a(f"v_mov_b32 v{V0(s)+i}, v13")
            a(f"v_mov_b32 v{V1(s)+i}, v13")
    a(f"v_mov_b32 v{QR+1}, 0")
    for j in range(NQ):
        for i in range(16): a(f"v_mov_b32 v{O(j)+i}, 0")
    poll(a, 7, 0xffffff, "p1")
    stamp(a, o, 4)
    a("s_mov_b32 m0, s34")
    a("s_nop 0")
    a(f"buffer_load_dwordx4 v{vL16}, s[8:11], s33 offen sc1 lds")
    dmaK(); dmaV(); dmaV()
    for j in range(NQ):
        a(f"buffer_load_dwordx4 v[{QM(j)}:{QM(j)+3}], v{vL16}, s[8:11], s49 offen offset:{1024*j} sc1")
    a(f"buffer_load_dword v{QR}, v196, s[8:11], s50 offen sc1")
    a("s_waitcnt vmcnt(0)")
    a("s_barrier")
    stamp(a, o, 5)
    if o["stamp"]: a("s_memtime s[52:53]")
    def rdK(kt):
        s = kt & 1
        a(f"ds_read_b128 v[{KMn(s)}:{KMn(s)+3}], v{vL16} offset:{kt*1024}")
        a(f"ds_read_b32 v{KRs(s)}, v{vKR} offset:{kt*256}")
    def rdV(kt):
        s = kt & 1
        base, off = (vVa, kt*1152) if kt < 32 else (vVb, (kt-32)*1152)
        a("s_mov_b64 exec, s[16:17]")
        a(f"ds_read_b128 v[{V0(s)}:{V0(s)+3}], v{base} offset:{off}")
        a(f"ds_read_b128 v[{V1(s)}:{V1(s)+3}], v{base} offset:{off+576}")
        a("s_mov_b64 exec, -1")
    def qk_res(kt, ks=None):
        s = (kt & 1) if ks is None else ks; sb = S(kt, 0)
        a(f"v_mfma_f32_32x32x4_2b_bf16 v[{sb}:{sb+31}], v[{KRs(s)}:{KRs(s)+1}], v[{QR}:{QR+1}], 0")
    def qk_main(kt, j, ks=None):
        s = (kt & 1) if ks is None else ks; sb = S(kt, j)
        a(f"v_mfma_f32_32x32x16_bf16 v[{sb}:{sb+15}], v[{KMn(s)}:{KMn(s)+3}], v[{QM(j)}:{QM(j)+3}], v[{sb}:{sb+15}]")
    def pv(kt, j, half, vs=None):
        s = (kt & 1) if vs is None else vs
        v = V0(s) if half == 0 else V1(s)
        a(f"v_smfmac_f32_32x32x32_bf16 v[{O(j)}:{O(j)+15}], v[{v}:{v+3}], v[{S(kt,j)+8*half}:{S(kt,j)+8*half+7}], v{vIdx}")
    def ex(kt, j, i):
        r = S(kt, j) + i
        a(f"v_exp_f32 v{r}, v{r}")
    def loop(copy, prio):
        if o["p2pad"] >= 0:
            a(".p2align 6")
            for _ in range(o["p2pad"]): a("s_nop 0")
        rdK(0); rdV(0)
        a("s_waitcnt lgkmcnt(0)")
        qk_res(0)
        rdK(1)
        a("s_nop 15")
        a("s_nop 1")
        qk_main(0, 0); qk_main(0, 1)
        a("s_nop 7")
        a("s_nop 3")
        def tile(kt, rel=None):
            if rel is None:
                if kt == o["bar1"] or (kt == o["bar2"] and not ROLL):
                    nC = sum(len(v) for k, v in sched.items() if 3 <= k < o['bar1'])
                    a(f"s_waitcnt vmcnt({nC if kt == o['bar1'] else 0})")
                    a("s_barrier")
                if kt in sched:
                    for f in sched[kt]: f()
                if kt == 9 and o["wopf"]:
                    a("buffer_load_dword v199, v198, s[20:23], s27 offen")
            p = prio(kt)
            a(f"s_setprio {p}" if p is not None else "s_nop 0")
            a("s_waitcnt lgkmcnt(0)")
            if kt > 0: pv(kt-1, 1, 1)
            if kt + 1 < NKT:
                if rel is None: rdV(kt+1)
                else:
                    s_ = (kt+1) & 1; off = (kt+1-rel)*1152
                    a("s_mov_b64 exec, s[16:17]")
                    a(f"ds_read_b128 v[{V0(s_)}:{V0(s_)+3}], v206 offset:{off}")
                    a(f"ds_read_b128 v[{V1(s_)}:{V1(s_)+3}], v206 offset:{off+576}")
                    a("s_mov_b64 exec, -1")
            for i in range(0, 4): ex(kt, 0, i)
            if kt + 1 < NKT: qk_res(kt+1)
            for i in range(4, 12): ex(kt, 0, i)
            pv(kt, 0, 0)
            for i in range(12, 16): ex(kt, 0, i)
            if kt + 2 < NKT:
                if rel is None: rdK(kt+2)
                else:
                    s_ = kt & 1
                    a(f"ds_read_b128 v[{KMn(s_)}:{KMn(s_)+3}], v204 offset:{(kt+2-rel)*1024}")
                    a(f"ds_read_b32 v{KRs(s_)}, v205 offset:{(kt+2-rel)*256}")
            else: a("s_nop 1")
            pv(kt, 0, 1)
            for i in range(4): ex(kt, 1, i)
            if kt + 1 < NKT: qk_main(kt+1, 0)
            for i in range(4, 8): ex(kt, 1, i)
            if kt + 1 < NKT: qk_main(kt+1, 1)
            for i in range(8, 12): ex(kt, 1, i)
            pv(kt, 1, 0)
            for i in range(12, 16): ex(kt, 1, i)
        ROLL = o["roll"]
        if not ROLL:
            for kt in range(NKT): tile(kt)
        else:
            G = len(o["pat"]); L0 = 10; NIT = (NKT - 2 - L0) // G
            assert G % 2 == 0
            for kt in range(L0): tile(kt)
            a(f"""v_add_u32 v204, {L0*1024}, v{vL16}
v_add_u32 v205, {L0*256}, v{vKR}
v_add_u32 v206, {L0*1152}, v{vVa}
s_mov_b32 s44, 0""")
            itb = -(-(30 - L0 - G + 1) // G)
            itb = (28 - L0) // G
            a.label(f"L_p2_roll{copy}")
            a(f"""s_cmp_lg_u32 s44, {itb}
s_cbranch_scc1 L_p2_rnb{copy}
s_waitcnt vmcnt(0)
s_barrier""")
            a.label(f"L_p2_rnb{copy}")
            for u in range(G): tile(L0 + u, rel=L0)
            a(f"""v_add_u32 v204, {G*1024}, v204
v_add_u32 v205, {G*256}, v205
v_add_u32 v206, {G*1152}, v206
s_add_u32 s44, s44, 1
s_cmp_lt_u32 s44, {NIT}
s_cbranch_scc1 L_p2_roll{copy}""")
            for kt in range(L0 + NIT*G, NKT): tile(kt)
        a("s_nop 1")
        pv(NKT-1, 1, 1)
        a("s_setprio 0")
    if o["dual"]:
        a(f"s_cmp_ge_u32 s14, 4\ns_cbranch_scc1 L_p2_loopB")
        loop(0, lambda kt: 1 if kt == 0 else None)
        a("s_branch L_p2_loopdone")
        a.label("L_p2_loopB")
        pat = o["pat"]
        def pr(kt):
            cur = pat[kt % len(pat)]
            prev = pat[(kt-1) % len(pat)] if kt else None
            return cur if cur != prev else None
        loop(1, pr)
        a.label("L_p2_loopdone")
    else:
        loop(0, lambda kt: None)
    stamp(a, o, 6)
    if o["stamp"]:
        a(f"""s_memtime s[54:55]
s_waitcnt lgkmcnt(0)
s_cmp_lg_u32 s14, {99 if o.get("p1trace") else 4}
s_cbranch_scc1 L_p2_nw4
s_sub_u32 s56, s54, s52
s_sub_u32 s57, s94, s92
s_lshl_b32 s40, s2, 6
s_add_u32 s40, s40, {WS_USED}
v_mov_b32 v200, s40
v_mov_b32 v202, s56
v_mov_b32 v203, s57
s_mov_b64 exec, 1
global_store_dwordx2 v200, v[202:203], s[{pWS}:{pWS+1}] offset:48
s_mov_b64 exec, -1""")
        a.label("L_p2_nw4")
    def norm_store(j):
        a(f"v_rcp_f32 v{T}, v{O(j)+10}")
        a("s_nop 0")
        for i in range(10): a(f"v_mul_f32 v{O(j)+i}, v{O(j)+i}, v{T}")
        P = T + 2 + 6*j
        for i in range(4): a(f"v_cvt_pk_bf16_f32 v{P+i}, v{O(j)+2*i}, v{O(j)+2*i+1}")
        a(f"v_cvt_pk_bf16_f32 v{P+4}, v{O(j)+8}, v{O(j)+9}")
        a(f"buffer_store_dwordx4 v[{P}:{P+3}], v{vL16}, s[8:11], s46 offen offset:{0} sc1" if j == 0 else
          f"buffer_store_dwordx4 v[{P}:{P+3}], v{vL16}, s[8:11], s45 offen sc1")
        a("s_mov_b32 exec_hi, 0")
        a(f"buffer_store_dword v{P+4}, v197, s[8:11], s47 offen sc1" if j == 0 else f"buffer_store_dword v{P+4}, v197, s[8:11], s51 offen sc1")
        a("s_mov_b32 exec_hi, -1")
    a("s_add_u32 s45, s46, 32768\ns_add_u32 s51, s47, 4096")
    a.label("L_p2_store")
    norm_store(0); norm_store(1)
    a("s_cmp_lg_u32 s15, 0\ns_cbranch_scc1 L_p2_checked")
    a("s_mov_b64 s[20:21], 0")
    a("s_mov_b32 s22, 0x53800000")
    a("s_mov_b32 s23, 0x2b800000")
    a(f"v_mul_f32 v{T}, 0, v{O(0)}\nv_mul_f32 v{T+1}, 0, v{O(1)}")
    for i in range(1, 10):
        for j in range(NQ): a(f"v_fma_f32 v{T+j}, v{O(j)+i}, 0, v{T+j}")
    for j in range(NQ): a(f"v_add_f32 v{T+j}, v{T+j}, v{O(j)+10}")
    for j in range(NQ):
        a(f"v_cmp_ngt_f32 vcc, s22, v{T+j}")
        a("s_or_b64 s[20:21], s[20:21], vcc")
        a(f"v_cmp_nlt_f32 vcc, s23, v{T+j}")
        a("s_or_b64 s[20:21], s[20:21], vcc")
    a(f"""s_cmp_eq_u64 s[20:21], 0
s_cbranch_scc0 L_p2_fallback""")
    a.label("L_p2_checked")
    signal(a, 48, "p2")
    a("s_branch L_p2_end")
    a.label("L_p2_fallback")
    a("s_mov_b32 s15, 1")
    MX = T
    a(f"""v_mov_b32 v{MX}, 0xff800000
v_mov_b32 v{MX+1}, 0xff800000
v_mov_b32 v{QR+1}, 0
v_mov_b32 v{MX+4}, v{vL16}
v_mov_b32 v{MX+5}, v{vKR}
s_mov_b32 s18, {NKT}""")
    a.label("L_p2_fb1")
    a(f"""ds_read_b128 v[{KMn(0)}:{KMn(0)+3}], v{MX+4}
ds_read_b32 v{KRs(0)}, v{MX+5}
v_add_u32 v{MX+4}, 1024, v{MX+4}
v_add_u32 v{MX+5}, 256, v{MX+5}
s_waitcnt lgkmcnt(0)""")
    qk_res(0, 0)
    a("s_nop 15\ns_nop 3")
    qk_main(0, 0, 0); qk_main(0, 1, 0)
    a("s_nop 15")
    for j in range(NQ):
        for i in range(8): a(f"v_max3_f32 v{MX+j}, v{MX+j}, v{S(0,j)+2*i}, v{S(0,j)+2*i+1}")
    a(f"""s_sub_u32 s18, s18, 1
s_cmp_lg_u32 s18, 0
s_cbranch_scc1 L_p2_fb1""")
    x, y, hi, mid = MX+6, MX+7, MX+8, MX+9
    for j in range(NQ):
        a(f"""v_mov_b32 v{x}, v{MX+j}
v_mov_b32 v{y}, v{MX+j}
s_nop 1
v_permlane32_swap_b32 v{x}, v{y}
s_nop 1
v_max_f32 v{MX+j}, v{x}, v{y}""")
    a(f"""v_cmp_gt_u32 vcc, 32, v0
s_nop 1
v_cndmask_b32 v{x}, v{MX+1}, v{MX}, vcc
v_and_b32 v{hi}, 0xffff0000, v{x}
v_sub_f32 v{x}, v{x}, v{hi}
v_and_b32 v{mid}, 0xffff0000, v{x}
v_xor_b32 v{hi}, 0x80000000, v{hi}
v_xor_b32 v{mid}, 0x80000000, v{mid}
v_lshrrev_b32 v{hi}, 16, v{hi}
v_or_b32 v{QR+1}, v{hi}, v{mid}""")
    for j in range(NQ):
        for i in range(16): a(f"v_mov_b32 v{O(j)+i}, 0")
    a(f"""v_mov_b32 v{MX+4}, v{vL16}
v_mov_b32 v{MX+5}, v{vKR}
v_mov_b32 v{MX+6}, v{vVa}
s_mov_b32 s18, {NKT}""")
    a.label("L_p2_fb2")
    a(f"""ds_read_b128 v[{KMn(0)}:{KMn(0)+3}], v{MX+4}
ds_read_b32 v{KRs(0)}, v{MX+5}
s_mov_b64 exec, s[16:17]
ds_read_b128 v[{V0(0)}:{V0(0)+3}], v{MX+6}
ds_read_b128 v[{V1(0)}:{V1(0)+3}], v{MX+6} offset:576
s_mov_b64 exec, -1
v_add_u32 v{MX+4}, 1024, v{MX+4}
v_add_u32 v{MX+5}, 256, v{MX+5}
v_add_u32 v{MX+6}, 1152, v{MX+6}
s_waitcnt lgkmcnt(0)""")
    qk_res(0, 0)
    a("s_nop 15\ns_nop 3")
    qk_main(0, 0, 0); qk_main(0, 1, 0)
    a("s_nop 15")
    for j in range(NQ):
        for i in range(16): ex(0, j, i)
    a("s_nop 1")
    for j in range(NQ):
        pv(0, j, 0, 0); pv(0, j, 1, 0)
    a(f"""s_sub_u32 s18, s18, 1
s_cmp_lg_u32 s18, 0
s_cbranch_scc1 L_p2_fb2
s_nop 7
s_nop 7
s_branch L_p2_store""")
    a.label("L_p2_end")

def phase3(a, o):
    NC3 = 5
    RS3 = 160
    OF = lambda ks: 64 + 4*ks
    WF = lambda p, c: 144 + 20*p + 4*c
    ACC = lambda c: 16 + 4*c
    vL, vWa, vWr, vWD = 1, 2, 4, 5
    D = o["p3depth"]
    a(f"""s_and_b32 s30, s2, 7
s_lshr_b32 s31, s2, 3
s_mov_b32 s32, s{sWAVE}
s_lshr_b32 s33, s30, 2
s_and_b32 s34, s30, 3
s_lshl_b32 s34, s34, 2
s_and_b32 s35, s31, 3
s_add_u32 s34, s34, s35
s_lshr_b32 s35, s31, 2
s_lshl_b32 s36, s34, 2
s_lshr_b32 s37, s32, 1
s_add_u32 s36, s36, s37""")
    a(f"""v_mul_u32_u24 v9, 26, v0
v_lshrrev_b32 v9, 8, v9
v_mul_u32_u24 v10, 10, v9
v_sub_u32 v10, v0, v10
v_mul_u32_u24 v9, 1152, v9
v_lshl_add_u32 v{vWD}, v10, 4, v9
s_cmp_eq_u32 s33, 0
s_cselect_b32 s8, s{pAWO}, s{pBWO}
s_cselect_b32 s9, s{pAWO+1}, s{pBWO+1}
s_mov_b32 s10, {WO_BYTES}
s_mov_b32 s11, 0x00020000
s_sub_u32 s38, s32, 1
s_mul_i32 s22, s38, {6*1152}
s_mul_i32 s23, s35, 144
s_add_u32 s22, s22, s23
s_mul_i32 s23, s38, {6*RS3}
s_cmp_eq_u32 s32, 0
s_cbranch_scc1 L_p3_nodma
s_mov_b32 exec_hi, 0x0fffffff""")
    for r in range(14):
        if r == 13: a("s_cmp_ge_u32 s38, 5\ns_cbranch_scc1 L_p3_dmadone")
        a("s_mov_b32 m0, s23")
        a(f"s_add_u32 s23, s23, {42*RS3}")
        a(f"buffer_load_dwordx4 v{vWD}, s[8:11], s22 offen lds")
        a(f"s_add_u32 s22, s22, {42*1152}")
    a.label("L_p3_dmadone")
    a("s_mov_b32 exec_hi, -1")
    a.label("L_p3_nodma")
    a("s_mov_b32 exec_hi, -1")
    a(f"""v_and_b32 v7, 15, v0
v_lshrrev_b32 v8, 4, v0
v_lshlrev_b32 v9, 9, v8
v_lshl_add_u32 v{vL}, v7, 4, v9
s_and_b32 s37, s32, 1
s_lshl_b32 s38, s37, 6
s_lshl_b32 s37, s37, 8
v_add_u32 v{vL}, s37, v{vL}
v_lshlrev_b32 v47, 2, v7
v_lshl_add_u32 v47, v8, 9, v47
v_add_u32 v47, s38, v47
v_lshrrev_b32 v9, 1, v8
v_mul_u32_u24 v9, 20, v9
v_and_b32 v10, 1, v8
v_lshl_add_u32 v9, v10, 2, v9
v_lshrrev_b32 v10, 2, v7
v_add_u32 v9, v9, v10
v_mul_u32_u24 v9, {RS3}, v9
v_and_b32 v11, 3, v7
v_lshl_add_u32 v{vWa}, v11, 3, v9
v_add_u32 v3, {8*36*RS3}, v{vWa}
v_lshlrev_b32 v9, 2, v8
v_lshrrev_b32 v12, 1, v10
v_add_u32 v9, v9, v12
v_mul_u32_u24 v9, 18, v9
v_and_b32 v13, 1, v10
v_add_u32 v9, v9, v13
v_xor_b32 v12, 1, v12
v_lshl_add_u32 v9, v12, 4, v9
v_mul_u32_u24 v9, {RS3}, v9
v_lshl_add_u32 v{vWr}, v11, 3, v9
s_lshr_b32 s37, s34, 2
s_lshl_b32 s38, s33, 2
s_add_u32 s37, s37, s38
s_lshl_b32 s37, s37, 5
s_add_u32 s37, s37, 256
v_add_u32 v6, s37, v0
v_lshlrev_b32 v6, 7, v6
v_add_u32 v6, {FLAG_OFF}, v6""")
    srd(a, 16, pWS, WS_USED)
    srd(a, 12, pOUT, OUT_BYTES)
    STG = 576*RS3
    R3 = 152
    a(f"""s_lshl_b32 s20, s33, 21
s_lshl_b32 s21, s36, 15
s_add_u32 s20, s20, s21
s_add_u32 s20, s20, {OM_OFF}
s_lshl_b32 s21, s33, 18
s_lshl_b32 s22, s36, 12
s_add_u32 s21, s21, s22
s_add_u32 s21, s21, {OR_OFF}
s_mul_i32 s23, s32, {16*168}
s_add_u32 s23, s23, {STG}
v_mul_u32_u24 v9, 168, v7
v_lshl_add_u32 v9, v8, 3, v9
v_add_u32 v14, s23, v9
s_lshl_b32 s24, s36, 5
s_and_b32 s25, s32, 1
s_lshl_b32 s25, s25, 4
s_add_u32 s24, s24, s25
s_mul_i32 s24, s24, 2304
s_mul_i32 s25, s33, 1152
s_add_u32 s24, s24, s25
s_mul_i32 s25, s35, 144
s_add_u32 s24, s24, s25""")
    for k in range(3):
        a(f"""v_add_u32 v10, {64*k}, v0
v_mul_u32_u24 v11, 57, v10
v_lshrrev_b32 v11, 9, v11
v_mul_u32_u24 v12, 9, v11
v_sub_u32 v12, v10, v12
v_mul_u32_u24 v13, 168, v11
v_lshl_add_u32 v13, v12, 4, v13
v_add_u32 v{40+k}, s23, v13
v_mul_u32_u24 v13, 2304, v11
v_lshl_add_u32 v{44+k}, v12, 4, v13""")
    poll(a, 6, -1, "p2", others_wait=True)
    stamp(a, o, 8)
    def oload(ks):
        if ks < 16:
            L = [f"buffer_load_dwordx4 v[{OF(ks)}:{OF(ks)+3}], v{vL}, s[16:19], s20 offen offset:{(ks%2)*2048} sc1"]
            if ks % 2 == 1: L.append("s_add_u32 s20, s20, 4096")
            return L
        return [f"buffer_load_dword v{OF(ks)+r}, v47, s[16:19], s21 offen offset:{(ks-16)*2048 + 128*r} sc1" for r in range(4)]
    nld = lambda ks: 1 if ks < 16 else 4
    def reads(ks, p):
        L = []
        for c in range(NC3):
            for t in range(2):
                if ks < 16:
                    base, k0 = (vWa, ks) if ks < 8 else (3, ks - 8)
                    off = (36*k0 + 8*t)*RS3 + 32*c
                else:
                    base = vWr
                    off = (288*(ks-16) + 36*t)*RS3 + 32*c
                L.append(f"ds_read_b64_tr_b16 v[{WF(p,c)+2*t}:{WF(p,c)+2*t+1}], v{base} offset:{off}")
        return L
    def mfmas(ks):
        p = ks & 1
        return [f"v_mfma_f32_16x16x32_bf16 v[{ACC(c)}:{ACC(c)+3}], v[{WF(p,c)}:{WF(p,c)+3}], v[{OF(ks)}:{OF(ks)+3}], " + (f"v[{ACC(c)}:{ACC(c)+3}]" if ks else "0")
                for c in range(NC3)]
    for ks in range(D):
        for x in oload(ks): a(x)
    for x in reads(0, 0): a(x)
    for ks in range(18):
        issued = min(17, ks + D - 1)
        a(f"s_waitcnt vmcnt({sum(nld(k) for k in range(ks + 1, issued + 1))}) lgkmcnt(0)")
        rd = reads(ks+1, (ks+1) & 1) if ks + 1 < 18 else []
        M = mfmas(ks)
        if ks + D < 18:
            for x in oload(ks + D): a(x)
        for idx, m in enumerate(M):
            a(m)
            for x in rd[2*idx:2*idx+2]: a(x)
    stamp(a, o, 9)
    a("s_nop 7")
    for c in range(NC3):
        r = ACC(c); P = 64 + 2*c
        a(f"v_cvt_pk_bf16_f32 v{P}, v{r}, v{r+1}")
        a(f"v_cvt_pk_bf16_f32 v{P+1}, v{r+2}, v{r+3}")
        a(f"ds_write_b64 v14, v[{P}:{P+1}] offset:{32*c}")
    a("s_waitcnt lgkmcnt(0)")
    for k in range(3): a(f"ds_read_b64 v[{120+4*k}:{121+4*k}], v{40+k}\nds_read_b64 v[{122+4*k}:{123+4*k}], v{40+k} offset:8")
    for k in range(3):
        a(f"s_waitcnt lgkmcnt({4-2*k})")
        if k == 2: a("s_mov_b32 exec_lo, 0xffff\ns_mov_b32 exec_hi, 0")
        a(f"buffer_store_dwordx4 v[{120+4*k}:{123+4*k}], v{44+k}, s[12:15], s24 offen{o['outflag']}")
    a("s_mov_b64 exec, -1")

def gen(opts=None):
    global POLLD, POLLS
    POLLD = (opts or {}).get("polld", 1); POLLS = (opts or {}).get("polls", 1)
    o = dict(stamp=False, bar1=5, bar2=26, rot=3, dual=True, pat=[2,2,2,2,2,2,0], wopf=True, wcomp=False, xcomp=False, pf=False, pfstep=0, p3depth=8, outflag='', midnop=True, p1f=' sc1', epi8=False, epipipe=True, roll=False, p2pad=-1, p1pad=-1, ldprio=0)
    if opts: o.update(opts)
    a = A()
    a(f".globl {NAME}\n.p2align 8\n.type {NAME},@function")
    a.label(NAME)
    a(f"""s_cmp_ge_u32 s2, 256
s_cbranch_scc1 L_exit
s_load_dwordx16 s[{sP}:{sP+15}], s[0:1], 0
s_load_dwordx2 s[{pWS}:{pWS+1}], s[0:1], 64
v_lshrrev_b32 v1, 6, v0
v_and_b32 v0, 63, v0
s_nop 0
v_readfirstlane_b32 s{sWAVE}, v1""")
    stamp(a, o, 0)
    a("s_nop 3")
    nonce_publish(a)
    phase1(a, o)
    stamp(a, o, 3)
    a("; ================================================= P2: attention")
    phase2(a, o)
    stamp(a, o, 7)
    phase3(a, o)
    a.label("L_end")
    if o["stamp"]:
        a(f"""s_cmp_lg_u32 s{sWAVE}, 0
s_cbranch_scc1 L_exit
s_memrealtime s[42:43]
s_waitcnt lgkmcnt(0)
s_lshl_b32 s40, s2, 6
s_add_u32 s40, s40, {WS_USED}
v_mov_b32 v2, s40
s_mov_b64 exec, 1""")
        for i in range(11):
            a(f"v_mov_b32 v3, s{82+2*i if i < 10 else 42}")
            a(f"global_store_dword v2, v3, s[{pWS}:{pWS+1}] offset:{4*i}")
        a("s_sub_u32 s54, s54, s52\nv_mov_b32 v3, s54")
        a(f"global_store_dword v2, v3, s[{pWS}:{pWS+1}] offset:44")
        if not o.get("p1trace"):
            a("v_mov_b32 v3, s59")
            a(f"global_store_dword v2, v3, s[{pWS}:{pWS+1}] offset:56")
        if o.get("p3trace"):
            for c in range(4):
                a(f"s_sub_u32 s40, s{44+2*c}, s98\nv_mov_b32 v3, s40")
                a(f"global_store_dword v2, v3, s[{pWS}:{pWS+1}] offset:{48+4*c}")
        if o.get("dbgstamp"):
            a(f"s_cmp_lg_u32 s2, {o['dbgstamp']}\ns_cbranch_scc1 L_exit\nv_mov_b32 v2, 0")
            for i in range(11):
                src = 82+2*i if i < 10 else 42
                a(f"s_sub_u32 s44, s{src}, s82" if i else "s_mov_b32 s44, s82")
                a("v_mov_b32 v3, s44")
                a(f"global_store_dword v2, v3, s[{pDBG}:{pDBG+1}] offset:{4*(i+1)}")
    a.label("L_exit")
    a("s_endpgm")
    return a.text(), kdesc(NAME, 256, 102)
```

```python
from asmlib import *
NAME = "concat_heads__mha_block__mha_block__prompt_kernel"
THREADS = 512
ST1 = 49664
WREG = 32768
RS = 232
LDS_KM, LDS_VT, LDS_KR = 0, 65536, 139264
WO_RS = 224
WO_IMG = 576 * WO_RS
K3_STG = 32 * 208
LDS_BYTES = 155648
SPIN_MAX = 400000
sWAVE = 3
sP = 64
pAX, pAW, pAWO, pBX, pBW, pBWO, pOUT, pDBG, pWS = [sP + 2*i for i in range(9)]
CNT1 = 0
CNT2 = 128

def srd(a, d, p, nbytes):
    a(f"s_mov_b32 s{d}, s{p}\ns_mov_b32 s{d+1}, s{p+1}\ns_mov_b32 s{d+2}, {nbytes}\ns_mov_b32 s{d+3}, 0x00020000")

def stamp(a, o, idx):
    if o["stamp"]:
        a(f"s_memrealtime s[{82+2*idx}:{83+2*idx}]")

sNONCE = 63
def trace(a, o, k, tag):
    if o.get("p1trace"):
        a(f"""s_cmp_lg_u32 s{sWAVE}, {o['p1trace']-1}
s_cbranch_scc1 L_tr_{tag}
s_memrealtime s[60:61]
s_waitcnt lgkmcnt(0)
s_lshl_b32 s62, s2, 6
s_add_u32 s62, s62, {WS_USED}
v_mov_b32 v250, s62
v_mov_b32 v251, s60
s_mov_b64 exec, 1
global_store_dword v250, v251, s[{pWS}:{pWS+1}] offset:{48+4*k}
s_mov_b64 exec, -1""")
        a.label(f"L_tr_{tag}")

def nonce_publish(a):
    a(f"""s_cmp_lg_u32 s2, 0
s_cbranch_scc1 L_nonce_done
s_cmp_lg_u32 s{sWAVE}, 0
s_cbranch_scc1 L_nonce_done
s_memrealtime s[40:41]
s_waitcnt lgkmcnt(0)
s_or_b32 s40, s40, 1
v_mov_b32 v2, 0
v_mov_b32 v3, s40
s_mov_b64 exec, 1
global_store_dword v2, v3, s[{pDBG}:{pDBG+1}] sc1
s_mov_b64 exec, -1""")
    a.label("L_nonce_done")

sSYNC = 0
def nonce_fetch(a):
    a(f"""s_cmp_lg_u32 s{sWAVE}, {sSYNC}
s_cbranch_scc1 L_nf_done
s_mov_b32 s58, 0""")
    a.label("L_nf_loop")
    a(f"""s_waitcnt vmcnt(0)
v_readfirstlane_b32 s{sNONCE}, v255
s_add_u32 s58, s58, 1
s_cmp_lg_u32 s{sNONCE}, 0
s_cbranch_scc1 L_nf_done
s_sleep 4
global_load_dword v255, v254, s[{pDBG}:{pDBG+1}] sc1
s_cmp_lt_u32 s58, {SPIN_MAX}
s_cbranch_scc1 L_nf_loop""")
    a.label("L_nf_done")

def signal(a, line_sgpr, tag):
    a("s_waitcnt vmcnt(0)")
    a("s_barrier")
    a(f"""s_cmp_lg_u32 s{sWAVE}, {sSYNC}
s_cbranch_scc1 L_sig_{tag}
s_lshl_b32 s{line_sgpr}, s{line_sgpr}, 7
s_add_u32 s{line_sgpr}, s{line_sgpr}, {FLAG_OFF}
v_mov_b32 v254, s{line_sgpr}
v_mov_b32 v255, s{sNONCE}
s_mov_b64 exec, 1
global_store_dword v254, v255, s[{pWS}:{pWS+1}] sc1
s_mov_b64 exec, -1""")
    a.label(f"L_sig_{tag}")

POLLD = 1
POLLS = 1
def poll(a, addr_vgpr, nlanes_mask_lo, tag, others_wait=False):
    a(f"""s_cmp_lg_u32 s{sWAVE}, {sSYNC}
s_cbranch_scc1 L_polled_{tag}
s_mov_b32 s40, 0
s_mov_b32 exec_hi, 0
s_mov_b32 exec_lo, {nlanes_mask_lo}""")
    D = POLLD
    for d in range(D - 1):
        a(f"global_load_dword v{254-d}, v{addr_vgpr}, s[{pWS}:{pWS+1}] sc1")
        a(f"s_sleep {POLLS*4}")
    a.label(f"L_poll_{tag}")
    regs = [254 - d for d in range(D - 1)] + [255]
    for d in range(D):
        new_r = regs[(d + D - 1) % D]; old_r = regs[d]
        a(f"""global_load_dword v{new_r}, v{addr_vgpr}, s[{pWS}:{pWS+1}] sc1
s_waitcnt vmcnt({D-1})
v_cmp_ne_u32 vcc, s{sNONCE}, v{old_r}
s_cmp_eq_u64 vcc, 0
s_cbranch_scc1 L_pollok_{tag}
s_sleep {POLLS if D == 1 else POLLS*4}""")
    a(f"""s_add_u32 s40, s40, 1
s_cmp_lt_u32 s40, {SPIN_MAX}
s_cbranch_scc1 L_poll_{tag}""")
    a.label(f"L_pollok_{tag}")
    a("s_mov_b64 exec, -1")
    a.label(f"L_polled_{tag}")
    if others_wait: a("s_waitcnt vmcnt(0)")
    a("s_barrier")

def p1_epilogue_consts(a):
    assert QM_OFF == 0 and KM_OFF == (1 << 22) and KR_OFF - QR_OFF == (1 << 19)
    srd(a, 16, pWS, WS_USED)
    a(f"""s_mul_i32 s39, s32, {64*RS}
s_mul_i32 s40, s35, 6
v_mul_u32_u24 v5, {RS}, v3
v_lshl_add_u32 v5, v4, 3, v5
v_add_u32 v2, s39, v5
v_and_b32 v6, 31, v0
v_lshrrev_b32 v7, 5, v0
v_mul_u32_u24 v8, {RS}, v6
v_lshl_add_u32 v8, v7, 4, v8
v_add_u32 v8, s39, v8
v_add_u32 v240, {32*RS}, v8
v_lshlrev_b32 v9, 4, v0
v_mul_u32_u24 v10, {RS}, v0
v_add_u32 v10, s39, v10
v_lshlrev_b32 v11, 3, v0
v_lshrrev_b32 v12, 1, v4
v_lshrrev_b32 v13, 2, v3
v_lshl_add_u32 v13, v12, 3, v13
v_mul_u32_u24 v13, {RS}, v13
v_add_u32 v13, s39, v13
v_and_b32 v14, 1, v4
v_and_b32 v15, 3, v3
v_lshlrev_b32 v15, 3, v15
v_mul_u32_u24 v12, 288, v12
s_lshr_b32 s42, s38, 5
s_lshl_b32 s42, s42, 10
s_lshl_b32 s43, s38, 3
s_lshr_b32 s27, s38, 4
s_mul_i32 s27, s27, 576
s_sub_u32 s41, 32, s40
s_cmp_lt_u32 s40, 32
s_cselect_b32 s41, s41, 0
s_lshr_b32 s41, s41, 1
s_mul_i32 s41, s41, 9
s_mov_b32 s28, {f32bits(QSCALE)}
v_cmp_eq_u32 vcc, 0, v14""")
    for hl in range(6):
        pl, par = hl // 2, hl % 2
        a(f"""v_add_u32 v{242+hl}, {72*pl + 40*par}, v15
v_mov_b32 v17, {72*pl + 32}
v_cndmask_b32 v{242+hl}, v17, v{242+hl}, vcc
v_add_u32 v{242+hl}, v{242+hl}, v13""")
    for par in range(2):
        a(f"""v_add_u32 v17, {16 - 2*par}, v3
v_cndmask_b32 v17, v17, v3, vcc
v_lshl_add_u32 v{250+par}, v17, 4, v12""")
    for hl in range(6):
        sK, sM, sR = 20 + hl, 52 + hl, 48 + hl//2
        a(f"""s_add_u32 s46, s40, {hl}
s_lshr_b32 s{sK}, s46, 5
s_and_b32 s46, s46, 31
s_lshl_b32 s47, s33, 5
s_add_u32 s47, s47, s46
s_lshl_b32 s{sM}, s47, 16
s_lshl_b32 s46, s{sK}, 22
s_add_u32 s{sM}, s{sM}, s46
s_add_u32 s{sM}, s{sM}, s42
s_mul_i32 s46, s47, {VT_STRIDE}
s_add_u32 s46, s46, s27
s_add_u32 s46, s46, {VT_OFF}
s_cmp_eq_u32 s{sK}, 2
s_cselect_b32 s{sM}, s46, s{sM}""")
        if hl % 2 == 0:
            a(f"""s_lshr_b32 s{sR}, s47, 1
s_lshl_b32 s{sR}, s{sR}, 14
s_add_u32 s{sR}, s{sR}, s43
s_lshl_b32 s46, s{sK}, 19
s_add_u32 s{sR}, s{sR}, s46
s_add_u32 s{sR}, s{sR}, {QR_OFF}""")

def p1_epilogue_pipe(a, o, ACC, P1F):
    cnt = [0]
    def stage(c):
        a(f"s_cmp_le_u32 s41, {4*c}\ns_cbranch_scc1 L_p1_ns{c}")
        a(f"s_cmp_lt_u32 s41, {4*c+4}\ns_cbranch_scc1 L_p1_mx{c}")
        for i in range(4):
            r = ACC(i, c)
            a(f"v_pk_mul_f32 v[{r}:{r+1}], v[{r}:{r+1}], s[28:29] op_sel_hi:[1,0]")
            a(f"v_pk_mul_f32 v[{r+2}:{r+3}], v[{r+2}:{r+3}], s[28:29] op_sel_hi:[1,0]")
        a(f"s_branch L_p1_ns{c}")
        a.label(f"L_p1_mx{c}")
        a(f"""v_add_u32 v6, {4*c}, v4
v_cmp_gt_u32 vcc, s41, v6
v_mov_b32 v7, 1.0
v_mov_b32 v241, s28
v_cndmask_b32 v6, v7, v241, vcc""")
        for i in range(4):
            r = ACC(i, c)
            a(f"v_pk_mul_f32 v[{r}:{r+1}], v[{r}:{r+1}], v[6:7] op_sel_hi:[1,0]")
            a(f"v_pk_mul_f32 v[{r+2}:{r+3}], v[{r+2}:{r+3}], v[6:7] op_sel_hi:[1,0]")
        a.label(f"L_p1_ns{c}")
        for i in range(4):
            r = ACC(i, c); P = 40 + 2*(cnt[0] % 16); cnt[0] += 1
            a(f"v_cvt_pk_bf16_f32 v{P}, v{r}, v{r+1}")
            a(f"v_cvt_pk_bf16_f32 v{P+1}, v{r+2}, v{r+3}")
            a(f"ds_write_b64 v2, v[{P}:{P+1}] offset:{i*16*RS + 32*c}")
    RR = lambda hl: 128 + 16*hl
    sK = lambda hl: 20 + hl
    sM = lambda hl: 52 + hl
    sR = lambda hl: 48 + hl//2
    def reads(hl):
        pl, par = hl // 2, hl % 2
        lab = f"L_p1_h{hl}"; R = RR(hl)
        a(f"s_cmp_eq_u32 s{sK(hl)}, 2\ns_cbranch_scc1 {lab}_v")
        off = 72*pl + 40*par
        a(f"ds_read2_b64 v[{R}:{R+3}], v8 offset0:{off//8} offset1:{off//8+1}")
        a(f"ds_read2_b64 v[{R+4}:{R+7}], v240 offset0:{off//8} offset1:{off//8+1}")
        if par == 0: a(f"ds_read_b64 v[{R+8}:{R+9}], v10 offset:{72*pl + 32}")
        a(f"s_branch {lab}_e")
        a.label(f"{lab}_v")
        for grp in range(4):
            for tr in range(2):
                a(f"ds_read_b64_tr_b16 v[{R+4*grp+2*tr}:{R+4*grp+2*tr+1}], v{242+hl} offset:{(16*grp + 4*tr)*RS}")
        a.label(f"{lab}_e")
    def stores(hl):
        pl, par = hl // 2, hl % 2
        lab = f"L_p1_s{hl}"; R = RR(hl)
        sk = o.get("p1skip", "")
        a(f"s_cmp_eq_u32 s{sK(hl)}, 2\ns_cbranch_scc1 {lab}_v")
        if "m" not in sk:
            a(f"buffer_store_dwordx4 v[{R}:{R+3}], v9, s[16:19], s{sM(hl)} offen{P1F}")
            a(f"buffer_store_dwordx4 v[{R+4}:{R+7}], v9, s[16:19], s{sM(hl)} offen offset:1024{P1F}")
        if par == 0 and "r" not in sk: a(f"buffer_store_dwordx2 v[{R+8}:{R+9}], v11, s[16:19], s{sR(hl)} offen{P1F}")
        a(f"s_branch {lab}_e")
        a.label(f"{lab}_v")
        m16 = 0xffff | ((0x3 << (2*par)) << 16)
        a(f"s_mov_b32 exec_lo, {m16}\ns_mov_b32 exec_hi, {m16}")
        for grp in range(4):
            if "v" not in sk:
                a(f"buffer_store_dwordx4 v[{R+4*grp}:{R+4*grp+3}], v{250+par}, s[16:19], s{sM(hl)} offen offset:{576*grp}{P1F}")
        a("s_mov_b64 exec, -1")
        a.label(f"{lab}_e")
    stage(0); stage(1); stage(2)
    reads(0); reads(1)
    stage(3); stage(4)
    a("s_waitcnt lgkmcnt(8)")
    stores(0); stores(1)
    reads(2); reads(3)
    stage(5); stage(6)
    a("s_waitcnt lgkmcnt(8)")
    stores(2); stores(3)
    reads(4); reads(5)
    a("s_waitcnt lgkmcnt(0)")
    stores(4); stores(5)

def phase1(a, o):
    P1F = o['p1f']
    ROT = o['rot']
    if o.get("rot9"):
        ma, mb = o["rot9"]
        ROTCODE = f"""s_mul_i32 s24, s35, {ma}
s_mul_i32 s25, s34, {mb}
s_add_u32 s24, s24, s25
s_mul_i32 s25, s24, 57
s_lshr_b32 s25, s25, 9
s_mul_i32 s25, s25, 9
s_sub_u32 s24, s24, s25"""
        for v in range(16*ma + 8*mb): assert (v*57) >> 9 == v // 9, v
    else:
        ROTCODE = f"""s_add_u32 s24, s35, s34
s_mul_i32 s25, s24, 43
s_lshr_b32 s25, s25, 7
s_mul_i32 s25, s25, 3
s_sub_u32 s24, s24, s25
s_mul_i32 s24, s24, {ROT}"""
    vXD = lambda i: 16 + i
    vWD = lambda i: 24 + i
    vX = lambda st, ks: 28 + 2*st + ks
    vW = lambda st: 34 + st
    XF = lambda p, i: 40 + 16*p + 4*i
    WF = lambda p, c: 72 + 28*p + 4*c
    ACC = lambda i, c: 128 + 4*(4*c + i)
    n = 7
    GL = o.get("gl")
    if GL:
        a(f"""s_and_b32 s30, s2, 7
s_lshr_b32 s31, s2, 3
s_and_b32 s32, s{sWAVE}, 3
s_lshr_b32 s33, s30, 2
s_and_b32 s34, s31, 7
s_and_b32 s35, s30, 3
s_lshl_b32 s35, s35, 2
s_lshr_b32 s36, s31, 3
s_add_u32 s35, s35, s36
s_lshl_b32 s20, s34, 8
s_lshl_b32 s21, s32, 6
s_add_u32 s38, s20, s21
s_lshl_b32 s37, s32, 13
v_lshrrev_b32 v4, 4, v0
v_and_b32 v3, 15, v0""")
    else: a(f"""s_and_b32 s30, s2, 7
s_lshr_b32 s31, s2, 3
s_and_b32 s32, s{sWAVE}, 3
s_lshr_b32 s33, s30, 2
s_and_b32 s34, s30, 1
s_lshl_b32 s34, s34, 2
s_and_b32 s35, s31, 3
s_add_u32 s34, s34, s35
s_lshr_b32 s35, s30, 1
s_and_b32 s35, s35, 1
s_lshl_b32 s35, s35, 3
s_lshr_b32 s36, s31, 2
s_add_u32 s35, s35, s36
s_lshl_b32 s20, s34, 8
s_lshl_b32 s21, s32, 6
s_add_u32 s38, s20, s21
s_lshl_b32 s37, s32, 13
v_lshrrev_b32 v4, 4, v0
v_and_b32 v3, 15, v0""")
    WC = o["wcomp"]
    a(f"""v_and_b32 v2, 1, v4
v_lshrrev_b32 v5, 1, v4
v_lshlrev_b32 v2, 2, v2
v_lshl_add_u32 v2, v5, 4, v2
v_mul_u32_u24 v2, 3456, v2""")
    if GL:
        a(f"""v_mul_u32_u24 v5, 13, v3
v_lshrrev_b32 v5, 6, v5
v_mul_u32_u24 v6, 5, v5
v_sub_u32 v6, v3, v6
v_mul_u32_u24 v5, 1152, v5
v_lshl_add_u32 v5, v6, 4, v5
v_add_u32 v2, v2, v5
v_mov_b32 v5, 0x40000000
v_cmp_gt_u32 vcc, 15, v3""")
    else:
        a(f"""v_lshl_add_u32 v2, v3, 4, v2
v_mov_b32 v5, 0x40000000
v_cmp_gt_u32 vcc, 14, v3""")
    a(f"""s_mul_i32 s20, s38, 1152
s_lshr_b32 s21, s32, 1
v_cndmask_b32 v2, v5, v2, vcc""")
    for i in range(4):
        a(f"v_add_u32 v{vWD(i)}, {3456*i}, v2")
    a(f"""s_lshl_b32 s21, s21, 5
s_and_b32 s22, s32, 1
s_lshl_b32 s23, s22, 3
s_add_u32 s21, s21, s23
s_mul_i32 s21, s21, 3456
s_mul_i32 s23, s35, {72 if GL else 216}
s_add_u32 s21, s21, s23
s_lshr_b32 s23, s32, 1
s_mul_i32 s23, s23, 8448
s_mul_i32 s22, s22, {4*1056}
s_add_u32 s23, s23, s22
s_add_u32 s23, s23, {WREG}
s_mov_b32 s22, s37
{ROTCODE}
s_lshl_b32 s25, s24, 7
s_add_u32 s20, s20, s25
s_mul_i32 s25, s24, {64*3456}
s_add_u32 s21, s21, s25""")
    a(f"""v_lshrrev_b32 v2, 3, v0
v_and_b32 v5, 7, v0
v_xor_b32 v5, v5, v4
v_mul_u32_u24 v6, 1152, v2
v_lshl_add_u32 v7, v5, 4, v6
v_xor_b32 v8, 64, v7""")
    for i in range(8):
        a(f"v_add_u32 v{vXD(i)}, {9216*i}, v{7 if i % 2 == 0 else 8}")
    a(f"""s_mov_b32 s10, {X_BYTES}
s_mov_b32 s11, 0x00020000
s_mov_b32 s14, {W_BYTES}
s_mov_b32 s15, 0x00020000
s_waitcnt lgkmcnt(0)
s_cmp_eq_u32 s33, 0
s_cselect_b32 s8, s{pAX}, s{pBX}
s_cselect_b32 s9, s{pAX+1}, s{pBX+1}
s_cselect_b32 s12, s{pAW}, s{pBW}
s_cselect_b32 s13, s{pAW+1}, s{pBW+1}
s_cmp_ge_u32 s{sWAVE}, 4
s_cbranch_scc0 L_p1_compute""")
    wrap = [f"s_add_u32 s21, s21, {64*3456}", "s_add_u32 s20, s20, 128", "s_add_u32 s24, s24, 1", "s_cmp_eq_u32 s24, 9",
            f"s_cselect_b32 s25, {9*128}, 0", f"s_cselect_b32 s26, {9*64*3456}, 0", "s_cselect_b32 s24, 0, s24",
            "s_sub_u32 s20, s20, s25", "s_sub_u32 s21, s21, s26"]
    def w_units(cc):
        st = cc % 3
        U = [[f"s_add_u32 m0, s23, {st*ST1}"]]
        for i in range(4):
            u = [f"buffer_load_dwordx4 v{vWD(i)}, s[12:15], s21 offen lds"]
            u += ["s_add_u32 m0, m0, 1056"] if i < 3 else wrap
            U.append(u)
        return U
    def flat(U):
        for u in U:
            for x in u:
                if x.startswith("buffer_load"): a("s_nop 0")
                a(x)
    XC = o["xcomp"]
    def xsetup():
        a(f"""v_lshrrev_b32 v2, 3, v0
v_and_b32 v5, 7, v0
v_xor_b32 v5, v5, v4
v_mul_u32_u24 v6, 1152, v2
v_lshl_add_u32 v7, v5, 4, v6
v_xor_b32 v8, 64, v7""")
        for i in range(8):
            a(f"v_add_u32 v{vXD(i)}, {9216*i}, v{7 if i % 2 == 0 else 8}")
    if XC:
        for _ in range(9): a("s_barrier")
        a("s_branch L_p1_rb" if o["epi8"] else "s_branch L_p1_done")
    if o.get("ldprio"): a(f"s_setprio {o['ldprio']}")
    NL = 8 if WC else 12
    def dma(cc):
        st = cc % 3
        a(f"s_add_u32 m0, s22, {st*ST1}")
        for i in range(8):
            a("s_nop 0")
            a(f"buffer_load_dwordx4 v{vXD(i)}, s[8:11], s20 offen lds")
            if i < 7: a("s_add_u32 m0, m0, 1024")
        if WC:
            for x in wrap: a(x)
        else:
            if o.get("wmask"): a("s_mov_b32 exec_lo, 0x3fff3fff\ns_mov_b32 exec_hi, 0x3fff3fff")
            flat(w_units(cc))
            if o.get("wmask"): a("s_mov_b64 exec, -1")
    dma(0); dma(1)
    a(f"s_waitcnt vmcnt({NL})")
    a("s_barrier")
    dma(2)
    for cc in range(8):
        rem = min(8, cc + 2) - (cc + 1)
        a(f"s_waitcnt vmcnt({NL*rem})")
        a("s_barrier")
        if cc + 3 <= 8: dma(cc + 3)
    if o.get("ldprio"): a("s_setprio 0")
    a("s_branch L_p1_rb" if o["epi8"] else "s_branch L_p1_done")
    a.label("L_p1_compute")
    def xw_units(cc):
        st = cc % 3
        U = [[f"s_add_u32 m0, s22, {st*ST1}"]]
        for i in range(8):
            U.append([f"buffer_load_dwordx4 v{vXD(i)}, s[8:11], s20 offen lds",
                      "s_add_u32 m0, m0, 1024" if i < 7 else f"s_add_u32 m0, s23, {st*ST1}"])
        return U + w_units(cc)[1:]
    if XC:
        xsetup()
        flat(xw_units(0)); flat(xw_units(1))
    elif WC:
        flat(w_units(0)); flat(w_units(1))
    a(f"""v_lshrrev_b32 v5, 1, v3
v_xor_b32 v5, v5, v4
v_lshlrev_b32 v5, 4, v5
v_lshl_add_u32 v5, v3, 7, v5
v_add_u32 v5, s37, v5
v_xor_b32 v6, 64, v5""")
    for st in range(3):
        a(f"v_add_u32 v{vX(st,0)}, {st*ST1}, v5")
        a(f"v_add_u32 v{vX(st,1)}, {st*ST1}, v6")
    a(f"""v_lshrrev_b32 v5, 2, v3
v_and_b32 v6, 1, v4
v_lshl_add_u32 v5, v6, 2, v5
v_mul_u32_u24 v5, 1056, v5
v_lshrrev_b32 v6, 1, v4
v_lshl_add_u32 v5, v6, 9, v5
v_and_b32 v6, 3, v3
v_lshl_add_u32 v5, v6, 3, v5""")
    for st in range(3):
        a(f"v_add_u32 v{vW(st)}, {st*ST1 + WREG}, v5")
    def reads(g):
        cc, ks = g // 2, g % 2
        st, p = cc % 3, g & 1
        L = []
        for c in range(n):
            if c < 4: L.append(f"ds_read_b128 v[{XF(p,c)}:{XF(p,c)+3}], v{vX(st,ks)} offset:{2048*c}")
            for tr in range(2):
                L.append(f"ds_read_b64_tr_b16 v[{WF(p,c)+2*tr}:{WF(p,c)+2*tr+1}], v{vW(st)} offset:{ks*8448 + tr*256 + 32*c}")
        return L
    def mfmas(g):
        p = g & 1
        L = []
        for c in range(n):
            for i in range(4):
                acc = f"v[{ACC(i,c)}:{ACC(i,c)+3}]"
                L.append(f"v_mfma_f32_16x16x32_bf16 {acc}, v[{WF(p,c)}:{WF(p,c)+3}], v[{XF(p,i)}:{XF(p,i)+3}], {acc if g else 0}")
        return L
    if o["pf"]:
        assert not WC and o["rot"] == 0
        a(f"""s_and_b32 s26, s35, 7
s_lshl_b32 s26, s26, 5
s_lshl_b32 s27, s34, 8
s_add_u32 s26, s26, s27
s_mul_i32 s26, s26, 1152
s_add_u32 s26, s26, 384
v_and_b32 v5, 31, v0
v_lshrrev_b32 v6, 5, v0
v_mul_u32_u24 v5, 1152, v5
v_lshl_add_u32 v240, v6, 6, v5
s_and_b32 s27, s34, 3
s_add_u32 s27, s27, 192
s_mul_i32 s27, s27, 3456
s_mul_i32 s28, s35, 216
s_add_u32 s27, s27, s28
v_lshrrev_b32 v5, 2, v0
v_and_b32 v6, 3, v0
v_mul_u32_u24 v5, {4*3456}, v5
v_lshl_add_u32 v241, v6, 6, v5
s_mul_i32 s28, s32, {3*128}
s_add_u32 s26, s26, s28
s_sub_u32 s28, s32, 2
s_mul_i32 s28, s28, {3*64*3456}
s_add_u32 s27, s27, s28
s_cmp_lt_u32 s32, 2
s_cselect_b32 s48, s8, s12
s_cselect_b32 s49, s9, s13
s_cselect_b32 s50, s10, s14
s_mov_b32 s51, 0x00020000
s_cselect_b32 s26, s26, s27
s_mov_b32 s27, {64*3456}
s_cselect_b32 s27, 128, s27
s_cselect_b64 vcc, -1, 0
s_nop 1
v_cndmask_b32 v240, v241, v240, vcc""")
    if o["pf"] and o["pfstep"] < 0:
        for q in range(3):
            a(f"buffer_load_dword v{242+q}, v240, s[48:51], s26 offen")
            a("s_add_u32 s26, s26, s27")
    if o["epipipe"]: p1_epilogue_consts(a)
    NC = 12 if XC else 4
    if WC: a(f"s_waitcnt vmcnt({NC})")
    if o["p1pad"] >= 0:
        a(".p2align 6")
        for _ in range(o["p1pad"]): a("s_nop 0")
    a("s_barrier")
    stamp(a, o, 1)
    if o["stamp"]: a("s_memtime s[44:45]")
    for x in reads(0): a(x)
    for g in range(18):
        cc, ks = g // 2, g % 2
        if ks == 1 and cc < 8:
            rem = min(8, cc + 2) - (cc + 1)
            a((f"s_waitcnt vmcnt({NC*rem}) lgkmcnt(0)") if WC else "s_waitcnt lgkmcnt(0)")
            a("s_barrier")
        else:
            a("s_waitcnt lgkmcnt(0)")
        if o.get("p1loop") and ks == 1 and cc < 8:
            a(f"s_memtime s[{84+2*cc}:{85+2*cc}]")
        units = []
        if XC:
            if g == 0: units = xw_units(2)
            elif ks == 1 and cc + 3 <= 8: units = xw_units(cc + 3)[:7]
            elif ks == 0 and cc >= 1 and cc + 2 <= 8: units = xw_units(cc + 2)[7:]
        elif WC:
            if g == 0: units = w_units(2)
            elif ks == 1 and cc + 3 <= 8: units = w_units(cc + 3)[:3]
            elif ks == 0 and cc >= 1 and cc + 2 <= 8: units = w_units(cc + 2)[3:]
        rd = reads(g + 1) if g + 1 < 18 else []
        M = mfmas(g)
        slots = [[] for _ in M]
        for idx, x in enumerate(rd): slots[min(idx, len(M)-1)].append(x)
        for idx, u in enumerate(units): slots[min(len(M)-1, 2 + (idx*len(M))//len(units))] += u
        if o["pf"] and g == o["pfstep"]:
            for q in range(3):
                slots[3 + 8*q] += [f"buffer_load_dword v{242+q}, v240, s[48:51], s26 offen", "s_add_u32 s26, s26, s27"]
        if g == (16 if WC else o.get("ng", 6)):
            a("v_mov_b32 v254, 0")
            a(f"global_load_dword v255, v254, s[{pDBG}:{pDBG+1}] sc1")
        for m, sl in zip(M, slots):
            a(m)
            for x in sl: a(x)
    if o.get("p1loop"):
        a(f"""s_waitcnt lgkmcnt(0)
s_cmp_lg_u32 s{sWAVE}, 0
s_cbranch_scc1 L_p1l_done
s_lshl_b32 s62, s2, 6
s_add_u32 s62, s62, {WS_USED + 65536}
v_mov_b32 v250, s62
s_mov_b64 exec, 1""")
        for cc in range(8):
            a(f"s_sub_u32 s60, s{84+2*cc}, s44\nv_mov_b32 v251, s60\nglobal_store_dword v250, v251, s[{pWS}:{pWS+1}] offset:{4*cc}")
        a("s_mov_b64 exec, -1")
        a.label("L_p1l_done")
    stamp(a, o, 2)
    if o["stamp"]: a("s_memtime s[46:47]\ns_waitcnt lgkmcnt(0)\ns_sub_u32 s59, s46, s44")
    nonce_fetch(a)
    if o["epipipe"]:
        p1_epilogue_pipe(a, o, ACC, P1F)
        a("s_branch L_p1_done")
    if not o["epipipe"]:
        a(f"""s_waitcnt lgkmcnt(0)
s_mul_i32 s39, s32, {64*RS}
v_mul_u32_u24 v5, {RS}, v3
v_lshl_add_u32 v5, v4, 3, v5
v_add_u32 v5, s39, v5
s_mul_i32 s40, s35, 6
s_sub_u32 s41, 32, s40
s_cmp_lt_u32 s40, 32
s_cselect_b32 s41, s41, 0
s_lshr_b32 s41, s41, 1
s_mul_i32 s41, s41, 9
s_mov_b32 s44, {f32bits(QSCALE)}
s_cmp_eq_u32 s41, 0
s_cbranch_scc1 L_p1_noscale""")
        for c in range(n):
            a(f"""v_add_u32 v6, {4*c}, v4
v_cmp_gt_u32 vcc, s41, v6
v_mov_b32 v7, 1.0
v_mov_b32 v8, s44
v_cndmask_b32 v6, v7, v8, vcc""")
            for i in range(4):
                r = ACC(i, c)
                a(f"v_pk_mul_f32 v[{r}:{r+1}], v[{r}:{r+1}], v[6:7] op_sel_hi:[1,0]")
                a(f"v_pk_mul_f32 v[{r+2}:{r+3}], v[{r+2}:{r+3}], v[6:7] op_sel_hi:[1,0]")
        a.label("L_p1_noscale")
        for c in range(n):
            for i in range(4):
                r = ACC(i, c); P = 40 + 2*((4*c + i) % 16)
                a(f"v_cvt_pk_bf16_f32 v{P}, v{r}, v{r+1}")
                a(f"v_cvt_pk_bf16_f32 v{P+1}, v{r+2}, v{r+3}")
                a(f"ds_write_b64 v5, v[{P}:{P+1}] offset:{i*16*RS + 32*c}")
        a("s_waitcnt lgkmcnt(0)")
        trace(a, o, 0, "a")
        a.label("L_p1_rb")
        srd(a, 16, pWS, WS_USED)
        a(f"""s_mul_i32 s39, s32, {64*RS}
s_mul_i32 s40, s35, 6
v_and_b32 v6, 31, v0
v_lshrrev_b32 v7, 5, v0
v_mul_u32_u24 v8, {RS}, v6
v_lshl_add_u32 v8, v7, 4, v8
v_add_u32 v8, s39, v8
v_lshlrev_b32 v9, 4, v0
v_mul_u32_u24 v10, {RS}, v0
v_add_u32 v10, s39, v10
v_lshlrev_b32 v11, 3, v0
v_lshrrev_b32 v12, 1, v4
v_lshrrev_b32 v13, 2, v3
v_lshl_add_u32 v13, v12, 3, v13
v_mul_u32_u24 v13, {RS}, v13
v_add_u32 v13, s39, v13
v_and_b32 v14, 1, v4
v_and_b32 v15, 3, v3
v_lshlrev_b32 v15, 3, v15
v_mul_u32_u24 v12, 288, v12
s_lshr_b32 s42, s38, 5
s_lshl_b32 s42, s42, 10
s_lshl_b32 s43, s38, 3
s_lshr_b32 s45, s38, 4
s_mul_i32 s45, s45, 576""")
        E8 = o["epi8"]
        if E8: a(f"s_barrier\ns_cmp_ge_u32 s{sWAVE}, 4\ns_cbranch_scc1 L_p1_rb1")
        assert QM_OFF == 0 and KM_OFF == (1 << 22) and KR_OFF - QR_OFF == (1 << 19)
        NH = 3 if E8 else 6
        sKf = (lambda k: 48 + k) if E8 else (lambda k: 20 + k)
        sMf = (lambda k: 52 + k) if E8 else (lambda k: 26 + k)
        sRf = (lambda k: 55 + k) if E8 else (lambda k: 48 + k)
        for hg in range(2 if E8 else 1):
            if hg: a.label("L_p1_rb1")
            for k in range(NH):
                hl = NH*hg + k
                pl, par = hl // 2, hl % 2
                lab = f"L_p1_h{hl}"
                R = 128 + 16*k
                sK, sM, sR = sKf(k), sMf(k), sRf(k)
                a(f"""s_add_u32 s46, s40, {hl}
s_lshr_b32 s{sK}, s46, 5
s_and_b32 s46, s46, 31
s_lshl_b32 s47, s33, 5
s_add_u32 s47, s47, s46
s_cmp_eq_u32 s{sK}, 2
s_cbranch_scc1 {lab}_v""")
                off = 72*pl + 40*par
                a(f"ds_read2_b64 v[{R}:{R+3}], v8 offset0:{off//8} offset1:{off//8+1}")
                a(f"v_add_u32 v{20+2*k}, {32*RS + off}, v8")
                a(f"ds_read2_b64 v[{R+4}:{R+7}], v{20+2*k} offset0:0 offset1:1")
                if par == 0: a(f"ds_read_b64 v[{R+8}:{R+9}], v10 offset:{72*pl + 32}")
                a(f"""s_lshl_b32 s{sM}, s47, 16
s_lshl_b32 s46, s{sK}, 22
s_add_u32 s{sM}, s{sM}, s46
s_add_u32 s{sM}, s{sM}, s42""")
                if par == 0:
                    a(f"""s_lshr_b32 s{sR}, s47, 1
s_lshl_b32 s{sR}, s{sR}, 14
s_add_u32 s{sR}, s{sR}, s43
s_lshl_b32 s46, s{sK}, 19
s_add_u32 s{sR}, s{sR}, s46
s_add_u32 s{sR}, s{sR}, {QR_OFF}""")
                a(f"s_branch {lab}_e")
                a.label(f"{lab}_v")
                a(f"""v_add_u32 v{20+2*k}, {72*pl + 40*par}, v15
v_mov_b32 v17, {72*pl + 32}
v_cmp_eq_u32 vcc, 0, v14
s_mul_i32 s{sM}, s47, {VT_STRIDE}
s_add_u32 s{sM}, s{sM}, s45
v_cndmask_b32 v{20+2*k}, v17, v{20+2*k}, vcc
v_add_u32 v{20+2*k}, v{20+2*k}, v13
s_add_u32 s{sM}, s{sM}, {VT_OFF}""")
                for grp in range(4):
                    for tr in range(2):
                        a(f"ds_read_b64_tr_b16 v[{R+4*grp+2*tr}:{R+4*grp+2*tr+1}], v{20+2*k} offset:{(16*grp + 4*tr)*RS}")
                a(f"""v_add_u32 v17, {16 - 2*par}, v3
v_cndmask_b32 v17, v17, v3, vcc
v_lshl_add_u32 v{21+2*k}, v17, 4, v12""")
                a.label(f"{lab}_e")
            a("s_waitcnt lgkmcnt(0)")
            trace(a, o, 1, f"b{hg}")
            for k in range(NH):
                hl = NH*hg + k
                pl, par = hl // 2, hl % 2
                lab = f"L_p1_s{hl}"
                R = 128 + 16*k
                sK, sM, sR = sKf(k), sMf(k), sRf(k)
                a(f"s_cmp_eq_u32 s{sK}, 2\ns_cbranch_scc1 {lab}_v")
                a(f"buffer_store_dwordx4 v[{R}:{R+3}], v9, s[16:19], s{sM} offen{P1F}")
                a(f"buffer_store_dwordx4 v[{R+4}:{R+7}], v9, s[16:19], s{sM} offen offset:1024{P1F}")
                if par == 0: a(f"buffer_store_dwordx2 v[{R+8}:{R+9}], v11, s[16:19], s{sR} offen{P1F}")
                a(f"s_branch {lab}_e")
                a.label(f"{lab}_v")
                m16 = 0xffff | ((0x3 << (2*par)) << 16)
                a(f"s_mov_b32 exec_lo, {m16}\ns_mov_b32 exec_hi, {m16}")
                for grp in range(4):
                    a(f"buffer_store_dwordx4 v[{R+4*grp}:{R+4*grp+3}], v{21+2*k}, s[16:19], s{sM} offen offset:{576*grp}{P1F}")
                a("s_mov_b64 exec, -1")
                a.label(f"{lab}_e")
            trace(a, o, 2, f"c{hg}")
            if hg == 0 and E8: a("s_branch L_p1_done")
    a.label("L_p1_done")
    a("s_lshl_b32 s39, s33, 4\ns_add_u32 s39, s39, s35\ns_lshl_b32 s39, s39, 3\ns_add_u32 s39, s39, s34")
    signal(a, 39, "p1")

def phase2(a, o):
    NKT, NQ = 64, 2
    QM = lambda j: 16 + 4*j
    QR = 24
    KMn = lambda s: 28 + 6*s
    KRs = lambda s: 32 + 6*s
    V0 = lambda s: 40 + 8*s
    V1 = lambda s: 44 + 8*s
    S = lambda kt, j: 56 + 32*(kt & 1) + 16*j
    O = lambda j: 120 + 16*j
    vL16, vKR, vVa, vVb, vIdx = 2, 3, 4, 5, 6
    T = 152
    name = "p2"
    a(f"""s_and_b32 s18, s2, 7
s_lshr_b32 s19, s2, 3
s_lshr_b32 s12, s19, 2
s_lshl_b32 s18, s18, 3
s_add_u32 s12, s12, s18
s_and_b32 s13, s19, 3
s_mov_b32 s14, s{sWAVE}""")
    a(f"""s_and_b32 s18, s12, 31
s_lshr_b32 s19, s12, 5
s_lshl_b32 s19, s19, 4
v_lshrrev_b32 v7, 3, v0
v_lshlrev_b32 v7, 5, v7
v_add_u32 v7, s18, v7
v_mul_u32_u24 v7, 171, v7
v_lshrrev_b32 v7, 10, v7
v_add_u32 v7, s19, v7
v_and_b32 v8, 7, v0
v_lshl_add_u32 v7, v7, 3, v8
v_lshlrev_b32 v7, 7, v7
v_add_u32 v7, {FLAG_OFF}, v7""")
    srd(a, 8, pWS, WS_USED)
    a(f"""v_lshlrev_b32 v{vL16}, 4, v0
v_and_b32 v8, 31, v0
v_lshlrev_b32 v9, 3, v8
s_mov_b32 s15, 0
s_mov_b32 s16, 0x0003ffff
s_mov_b32 s17, 0x0003ffff
s_lshl_b32 s30, s14, 10
s_lshl_b32 s25, s12, 16
s_add_u32 s35, s25, {KM_OFF}
s_add_u32 s25, s35, s30
s_mul_i32 s28, s12, {VT_STRIDE}
s_add_u32 s36, s28, {VT_OFF}
s_add_u32 s28, s36, s30
s_lshr_b32 s38, s12, 1
s_lshl_b32 s38, s38, 14
s_and_b32 s39, s12, 1
s_lshl_b32 s39, s39, 2
s_add_u32 s37, s38, {KR_OFF}
s_add_u32 s33, s37, s30
s_add_u32 s29, s30, {LDS_VT}
s_add_u32 s34, s30, {LDS_KR}
s_mov_b32 s26, s30
s_lshl_b32 s18, s13, 4
s_lshl_b32 s19, s14, 1
s_add_u32 s24, s18, s19""")
    def dmaK():
        a("s_mov_b32 m0, s26")
        a("s_add_u32 s26, s26, 8192")
        a(f"buffer_load_dwordx4 v{vL16}, s[8:11], s25 offen sc1 lds")
        a("s_add_u32 s25, s25, 8192")
    def dmaV():
        a("s_mov_b32 m0, s29")
        a("s_add_u32 s29, s29, 8192")
        a(f"buffer_load_dwordx4 v{vL16}, s[8:11], s28 offen sc1 lds")
        a("s_add_u32 s28, s28, 8192")
    def dmaKR1():
        a("s_add_u32 m0, s34, 8192")
        a("s_add_u32 s33, s33, 8192")
        a(f"buffer_load_dwordx4 v{vL16}, s[8:11], s33 offen sc1 lds")
    a(f"""s_lshr_b32 s18, s12, 5
s_and_b32 s19, s12, 31
s_lshl_b32 s46, s18, 21
s_lshl_b32 s21, s24, 15
s_add_u32 s46, s46, s21
s_lshl_b32 s21, s19, 10
s_add_u32 s46, s46, s21
s_add_u32 s46, s46, {OM_OFF}
s_lshl_b32 s47, s18, 18
s_lshl_b32 s21, s24, 12
s_add_u32 s47, s47, s21
s_lshl_b32 s21, s19, 7
s_add_u32 s47, s47, s21
s_add_u32 s47, s47, {OR_OFF}
s_lshl_b32 s48, s18, 2
s_add_u32 s48, s48, s13
s_lshl_b32 s48, s48, 5
s_add_u32 s48, s48, s19
s_add_u32 s48, s48, 256
v_lshlrev_b32 v197, 2, v8
s_lshl_b32 s49, s12, 16
s_lshl_b32 s19, s24, 10
s_add_u32 s49, s49, s19
s_lshl_b32 s20, s24, 8
s_add_u32 s50, s38, s20
s_add_u32 s50, s50, s39
s_add_u32 s50, s50, {QR_OFF}
v_lshlrev_b32 v196, 3, v0""")
    if o["wopf"]:
        a(f"""s_cmp_lt_u32 s12, 32
s_cselect_b32 s20, s{pAWO}, s{pBWO}
s_cselect_b32 s21, s{pAWO+1}, s{pBWO+1}
s_mov_b32 s22, {WO_BYTES}
s_mov_b32 s23, 0x00020000
s_lshr_b32 s18, s2, 3
s_lshl_b32 s18, s18, 3
s_add_u32 s18, s18, s14
s_lshl_b32 s27, s18, 12
v_lshlrev_b32 v198, 6, v0""")
    late = [dmaK, dmaV, dmaKR1, dmaK, dmaV, dmaK, dmaV] + [dmaK, dmaV]*4
    sched = {0: late[0:3], 1: late[3:5], 2: late[5:7], 3: late[7:9], 4: late[9:11], 5: late[11:13], 6: late[13:15]}
    a(f"""v_lshrrev_b32 v10, 5, v0
v_add_u32 v{vKR}, {LDS_KR}, v9
v_add_u32 v{vKR}, s39, v{vKR}
v_mul_u32_u24 v11, 288, v10
v_lshlrev_b32 v12, 4, v8
v_add_u32 v27, v11, v12
v_add_u32 v{vVa}, {LDS_VT}, v27
v_add_u32 v{vVb}, {LDS_VT + 32*1152}, v27
v_mov_b32 v{vIdx}, 0xdddd
v_and_b32 v13, 27, v8
v_cmp_eq_u32 vcc, 18, v13
v_mov_b32 v14, 0x3f803f80
v_mov_b32 v15, 0
v_cndmask_b32 v13, v15, v14, vcc""")
    for s in range(2):
        a(f"v_mov_b32 v{KRs(s)+1}, 0x3f803f80")
        for i in range(4):
            a(f"v_mov_b32 v{V0(s)+i}, v13")
            a(f"v_mov_b32 v{V1(s)+i}, v13")
    a(f"v_mov_b32 v{QR+1}, 0")
    for j in range(NQ):
        for i in range(16): a(f"v_mov_b32 v{O(j)+i}, 0")
    poll(a, 7, 0xffffff, "p1")
    stamp(a, o, 4)
    a("s_mov_b32 m0, s34")
    a("s_nop 0")
    a(f"buffer_load_dwordx4 v{vL16}, s[8:11], s33 offen sc1 lds")
    dmaK(); dmaV(); dmaV()
    for j in range(NQ):
        a(f"buffer_load_dwordx4 v[{QM(j)}:{QM(j)+3}], v{vL16}, s[8:11], s49 offen offset:{1024*j} sc1")
    a(f"buffer_load_dword v{QR}, v196, s[8:11], s50 offen sc1")
    a("s_waitcnt vmcnt(0)")
    a("s_barrier")
    stamp(a, o, 5)
    if o["stamp"]: a("s_memtime s[52:53]")
    def rdK(kt):
        s = kt & 1
        a(f"ds_read_b128 v[{KMn(s)}:{KMn(s)+3}], v{vL16} offset:{kt*1024}")
        a(f"ds_read_b32 v{KRs(s)}, v{vKR} offset:{kt*256}")
    def rdV(kt):
        s = kt & 1
        base, off = (vVa, kt*1152) if kt < 32 else (vVb, (kt-32)*1152)
        a("s_mov_b64 exec, s[16:17]")
        a(f"ds_read_b128 v[{V0(s)}:{V0(s)+3}], v{base} offset:{off}")
        a(f"ds_read_b128 v[{V1(s)}:{V1(s)+3}], v{base} offset:{off+576}")
        a("s_mov_b64 exec, -1")
    def qk_res(kt, ks=None):
        s = (kt & 1) if ks is None else ks; sb = S(kt, 0)
        a(f"v_mfma_f32_32x32x4_2b_bf16 v[{sb}:{sb+31}], v[{KRs(s)}:{KRs(s)+1}], v[{QR}:{QR+1}], 0")
    def qk_main(kt, j, ks=None):
        s = (kt & 1) if ks is None else ks; sb = S(kt, j)
        a(f"v_mfma_f32_32x32x16_bf16 v[{sb}:{sb+15}], v[{KMn(s)}:{KMn(s)+3}], v[{QM(j)}:{QM(j)+3}], v[{sb}:{sb+15}]")
    def pv(kt, j, half, vs=None):
        s = (kt & 1) if vs is None else vs
        v = V0(s) if half == 0 else V1(s)
        a(f"v_smfmac_f32_32x32x32_bf16 v[{O(j)}:{O(j)+15}], v[{v}:{v+3}], v[{S(kt,j)+8*half}:{S(kt,j)+8*half+7}], v{vIdx}")
    def ex(kt, j, i):
        r = S(kt, j) + i
        a(f"v_exp_f32 v{r}, v{r}")
    def loop(copy, prio):
        if o["p2pad"] >= 0:
            a(".p2align 6")
            for _ in range(o["p2pad"]): a("s_nop 0")
        rdK(0); rdV(0)
        a("s_waitcnt lgkmcnt(0)")
        qk_res(0)
        rdK(1)
        a("s_nop 15")
        a("s_nop 1")
        qk_main(0, 0); qk_main(0, 1)
        a("s_nop 7")
        a("s_nop 3")
        def tile(kt, rel=None):
            if rel is None:
                if kt == o["bar1"] or (kt == o["bar2"] and not ROLL):
                    nC = sum(len(v) for k, v in sched.items() if 3 <= k < o['bar1'])
                    a(f"s_waitcnt vmcnt({nC if kt == o['bar1'] else 0})")
                    a("s_barrier")
                if kt in sched:
                    for f in sched[kt]: f()
                if kt == 9 and o["wopf"]:
                    a("buffer_load_dword v199, v198, s[20:23], s27 offen")
            p = prio(kt)
            a(f"s_setprio {p}" if p is not None else "s_nop 0")
            a("s_waitcnt lgkmcnt(0)")
            if kt > 0: pv(kt-1, 1, 1)
            if kt + 1 < NKT:
                if rel is None: rdV(kt+1)
                else:
                    s_ = (kt+1) & 1; off = (kt+1-rel)*1152
                    a("s_mov_b64 exec, s[16:17]")
                    a(f"ds_read_b128 v[{V0(s_)}:{V0(s_)+3}], v206 offset:{off}")
                    a(f"ds_read_b128 v[{V1(s_)}:{V1(s_)+3}], v206 offset:{off+576}")
                    a("s_mov_b64 exec, -1")
            for i in range(0, 4): ex(kt, 0, i)
            if kt + 1 < NKT: qk_res(kt+1)
            for i in range(4, 12): ex(kt, 0, i)
            pv(kt, 0, 0)
            for i in range(12, 16): ex(kt, 0, i)
            if kt + 2 < NKT:
                if rel is None: rdK(kt+2)
                else:
                    s_ = kt & 1
                    a(f"ds_read_b128 v[{KMn(s_)}:{KMn(s_)+3}], v204 offset:{(kt+2-rel)*1024}")
                    a(f"ds_read_b32 v{KRs(s_)}, v205 offset:{(kt+2-rel)*256}")
            else: a("s_nop 1")
            pv(kt, 0, 1)
            for i in range(4): ex(kt, 1, i)
            if kt + 1 < NKT: qk_main(kt+1, 0)
            for i in range(4, 8): ex(kt, 1, i)
            if kt + 1 < NKT: qk_main(kt+1, 1)
            for i in range(8, 12): ex(kt, 1, i)
            pv(kt, 1, 0)
            for i in range(12, 16): ex(kt, 1, i)
        ROLL = o["roll"]
        if not ROLL:
            for kt in range(NKT): tile(kt)
        else:
            G = len(o["pat"]); L0 = 10; NIT = (NKT - 2 - L0) // G
            assert G % 2 == 0
            for kt in range(L0): tile(kt)
            a(f"""v_add_u32 v204, {L0*1024}, v{vL16}
v_add_u32 v205, {L0*256}, v{vKR}
v_add_u32 v206, {L0*1152}, v{vVa}
s_mov_b32 s44, 0""")
            itb = -(-(30 - L0 - G + 1) // G)
            itb = (28 - L0) // G
            a.label(f"L_p2_roll{copy}")
            a(f"""s_cmp_lg_u32 s44, {itb}
s_cbranch_scc1 L_p2_rnb{copy}
s_waitcnt vmcnt(0)
s_barrier""")
            a.label(f"L_p2_rnb{copy}")
            for u in range(G): tile(L0 + u, rel=L0)
            a(f"""v_add_u32 v204, {G*1024}, v204
v_add_u32 v205, {G*256}, v205
v_add_u32 v206, {G*1152}, v206
s_add_u32 s44, s44, 1
s_cmp_lt_u32 s44, {NIT}
s_cbranch_scc1 L_p2_roll{copy}""")
            for kt in range(L0 + NIT*G, NKT): tile(kt)
        a("s_nop 1")
        pv(NKT-1, 1, 1)
        a("s_setprio 0")
    if o["dual"]:
        a(f"s_cmp_ge_u32 s14, 4\ns_cbranch_scc1 L_p2_loopB")
        loop(0, lambda kt: 1 if kt == 0 else None)
        a("s_branch L_p2_loopdone")
        a.label("L_p2_loopB")
        pat = o["pat"]
        def pr(kt):
            cur = pat[kt % len(pat)]
            prev = pat[(kt-1) % len(pat)] if kt else None
            return cur if cur != prev else None
        loop(1, pr)
        a.label("L_p2_loopdone")
    else:
        loop(0, lambda kt: None)
    stamp(a, o, 6)
    if o["stamp"]:
        a(f"""s_memtime s[54:55]
s_waitcnt lgkmcnt(0)
s_cmp_lg_u32 s14, {99 if o.get("p1trace") else 4}
s_cbranch_scc1 L_p2_nw4
s_sub_u32 s56, s54, s52
s_sub_u32 s57, s94, s92
s_lshl_b32 s40, s2, 6
s_add_u32 s40, s40, {WS_USED}
v_mov_b32 v200, s40
v_mov_b32 v202, s56
v_mov_b32 v203, s57
s_mov_b64 exec, 1
global_store_dwordx2 v200, v[202:203], s[{pWS}:{pWS+1}] offset:48
s_mov_b64 exec, -1""")
        a.label("L_p2_nw4")
    def norm_store(j):
        a(f"v_rcp_f32 v{T}, v{O(j)+10}")
        a("s_nop 0")
        for i in range(10): a(f"v_mul_f32 v{O(j)+i}, v{O(j)+i}, v{T}")
        P = T + 2 + 6*j
        for i in range(4): a(f"v_cvt_pk_bf16_f32 v{P+i}, v{O(j)+2*i}, v{O(j)+2*i+1}")
        a(f"v_cvt_pk_bf16_f32 v{P+4}, v{O(j)+8}, v{O(j)+9}")
        a(f"buffer_store_dwordx4 v[{P}:{P+3}], v{vL16}, s[8:11], s46 offen offset:{0} sc1" if j == 0 else
          f"buffer_store_dwordx4 v[{P}:{P+3}], v{vL16}, s[8:11], s45 offen sc1")
        a("s_mov_b32 exec_hi, 0")
        a(f"buffer_store_dword v{P+4}, v197, s[8:11], s47 offen sc1" if j == 0 else f"buffer_store_dword v{P+4}, v197, s[8:11], s51 offen sc1")
        a("s_mov_b32 exec_hi, -1")
    a("s_add_u32 s45, s46, 32768\ns_add_u32 s51, s47, 4096")
    a.label("L_p2_store")
    norm_store(0); norm_store(1)
    a("s_cmp_lg_u32 s15, 0\ns_cbranch_scc1 L_p2_checked")
    a("s_mov_b64 s[20:21], 0")
    a("s_mov_b32 s22, 0x53800000")
    a("s_mov_b32 s23, 0x2b800000")
    a(f"v_mul_f32 v{T}, 0, v{O(0)}\nv_mul_f32 v{T+1}, 0, v{O(1)}")
    for i in range(1, 10):
        for j in range(NQ): a(f"v_fma_f32 v{T+j}, v{O(j)+i}, 0, v{T+j}")
    for j in range(NQ): a(f"v_add_f32 v{T+j}, v{T+j}, v{O(j)+10}")
    for j in range(NQ):
        a(f"v_cmp_ngt_f32 vcc, s22, v{T+j}")
        a("s_or_b64 s[20:21], s[20:21], vcc")
        a(f"v_cmp_nlt_f32 vcc, s23, v{T+j}")
        a("s_or_b64 s[20:21], s[20:21], vcc")
    a(f"""s_cmp_eq_u64 s[20:21], 0
s_cbranch_scc0 L_p2_fallback""")
    a.label("L_p2_checked")
    signal(a, 48, "p2")
    a("s_branch L_p2_end")
    a.label("L_p2_fallback")
    a("s_mov_b32 s15, 1")
    MX = T
    a(f"""v_mov_b32 v{MX}, 0xff800000
v_mov_b32 v{MX+1}, 0xff800000
v_mov_b32 v{QR+1}, 0
v_mov_b32 v{MX+4}, v{vL16}
v_mov_b32 v{MX+5}, v{vKR}
s_mov_b32 s18, {NKT}""")
    a.label("L_p2_fb1")
    a(f"""ds_read_b128 v[{KMn(0)}:{KMn(0)+3}], v{MX+4}
ds_read_b32 v{KRs(0)}, v{MX+5}
v_add_u32 v{MX+4}, 1024, v{MX+4}
v_add_u32 v{MX+5}, 256, v{MX+5}
s_waitcnt lgkmcnt(0)""")
    qk_res(0, 0)
    a("s_nop 15\ns_nop 3")
    qk_main(0, 0, 0); qk_main(0, 1, 0)
    a("s_nop 15")
    for j in range(NQ):
        for i in range(8): a(f"v_max3_f32 v{MX+j}, v{MX+j}, v{S(0,j)+2*i}, v{S(0,j)+2*i+1}")
    a(f"""s_sub_u32 s18, s18, 1
s_cmp_lg_u32 s18, 0
s_cbranch_scc1 L_p2_fb1""")
    x, y, hi, mid = MX+6, MX+7, MX+8, MX+9
    for j in range(NQ):
        a(f"""v_mov_b32 v{x}, v{MX+j}
v_mov_b32 v{y}, v{MX+j}
s_nop 1
v_permlane32_swap_b32 v{x}, v{y}
s_nop 1
v_max_f32 v{MX+j}, v{x}, v{y}""")
    a(f"""v_cmp_gt_u32 vcc, 32, v0
s_nop 1
v_cndmask_b32 v{x}, v{MX+1}, v{MX}, vcc
v_and_b32 v{hi}, 0xffff0000, v{x}
v_sub_f32 v{x}, v{x}, v{hi}
v_and_b32 v{mid}, 0xffff0000, v{x}
v_xor_b32 v{hi}, 0x80000000, v{hi}
v_xor_b32 v{mid}, 0x80000000, v{mid}
v_lshrrev_b32 v{hi}, 16, v{hi}
v_or_b32 v{QR+1}, v{hi}, v{mid}""")
    for j in range(NQ):
        for i in range(16): a(f"v_mov_b32 v{O(j)+i}, 0")
    a(f"""v_mov_b32 v{MX+4}, v{vL16}
v_mov_b32 v{MX+5}, v{vKR}
v_mov_b32 v{MX+6}, v{vVa}
s_mov_b32 s18, {NKT}""")
    a.label("L_p2_fb2")
    a(f"""ds_read_b128 v[{KMn(0)}:{KMn(0)+3}], v{MX+4}
ds_read_b32 v{KRs(0)}, v{MX+5}
s_mov_b64 exec, s[16:17]
ds_read_b128 v[{V0(0)}:{V0(0)+3}], v{MX+6}
ds_read_b128 v[{V1(0)}:{V1(0)+3}], v{MX+6} offset:576
s_mov_b64 exec, -1
v_add_u32 v{MX+4}, 1024, v{MX+4}
v_add_u32 v{MX+5}, 256, v{MX+5}
v_add_u32 v{MX+6}, 1152, v{MX+6}
s_waitcnt lgkmcnt(0)""")
    qk_res(0, 0)
    a("s_nop 15\ns_nop 3")
    qk_main(0, 0, 0); qk_main(0, 1, 0)
    a("s_nop 15")
    for j in range(NQ):
        for i in range(16): ex(0, j, i)
    a("s_nop 1")
    for j in range(NQ):
        pv(0, j, 0, 0); pv(0, j, 1, 0)
    a(f"""s_sub_u32 s18, s18, 1
s_cmp_lg_u32 s18, 0
s_cbranch_scc1 L_p2_fb2
s_nop 7
s_nop 7
s_branch L_p2_store""")
    a.label("L_p2_end")

def phase3(a, o):
    NC3 = 5
    RS3 = 160
    OF = lambda ks: 64 + 4*ks
    WF = lambda p, c: 144 + 20*p + 4*c
    ACC = lambda c: 16 + 4*c
    vL, vWa, vWr, vWD = 1, 2, 4, 5
    D = o["p3depth"]
    a(f"""s_and_b32 s30, s2, 7
s_lshr_b32 s31, s2, 3
s_mov_b32 s32, s{sWAVE}
s_lshr_b32 s33, s30, 2
s_and_b32 s34, s30, 3
s_lshl_b32 s34, s34, 2
s_and_b32 s35, s31, 3
s_add_u32 s34, s34, s35
s_lshr_b32 s35, s31, 2
s_lshl_b32 s36, s34, 2
s_lshr_b32 s37, s32, 1
s_add_u32 s36, s36, s37""")
    a(f"""v_mul_u32_u24 v9, 26, v0
v_lshrrev_b32 v9, 8, v9
v_mul_u32_u24 v10, 10, v9
v_sub_u32 v10, v0, v10
v_mul_u32_u24 v9, 1152, v9
v_lshl_add_u32 v{vWD}, v10, 4, v9
s_cmp_eq_u32 s33, 0
s_cselect_b32 s8, s{pAWO}, s{pBWO}
s_cselect_b32 s9, s{pAWO+1}, s{pBWO+1}
s_mov_b32 s10, {WO_BYTES}
s_mov_b32 s11, 0x00020000
s_sub_u32 s38, s32, 1
s_mul_i32 s22, s38, {6*1152}
s_mul_i32 s23, s35, 144
s_add_u32 s22, s22, s23
s_mul_i32 s23, s38, {6*RS3}
s_cmp_eq_u32 s32, 0
s_cbranch_scc1 L_p3_nodma
s_mov_b32 exec_hi, 0x0fffffff""")
    for r in range(14):
        if r == 13: a("s_cmp_ge_u32 s38, 5\ns_cbranch_scc1 L_p3_dmadone")
        a("s_mov_b32 m0, s23")
        a(f"s_add_u32 s23, s23, {42*RS3}")
        a(f"buffer_load_dwordx4 v{vWD}, s[8:11], s22 offen lds")
        a(f"s_add_u32 s22, s22, {42*1152}")
    a.label("L_p3_dmadone")
    a("s_mov_b32 exec_hi, -1")
    a.label("L_p3_nodma")
    a("s_mov_b32 exec_hi, -1")
    a(f"""v_and_b32 v7, 15, v0
v_lshrrev_b32 v8, 4, v0
v_lshlrev_b32 v9, 9, v8
v_lshl_add_u32 v{vL}, v7, 4, v9
s_and_b32 s37, s32, 1
s_lshl_b32 s38, s37, 6
s_lshl_b32 s37, s37, 8
v_add_u32 v{vL}, s37, v{vL}
v_lshlrev_b32 v47, 2, v7
v_lshl_add_u32 v47, v8, 9, v47
v_add_u32 v47, s38, v47
v_lshrrev_b32 v9, 1, v8
v_mul_u32_u24 v9, 20, v9
v_and_b32 v10, 1, v8
v_lshl_add_u32 v9, v10, 2, v9
v_lshrrev_b32 v10, 2, v7
v_add_u32 v9, v9, v10
v_mul_u32_u24 v9, {RS3}, v9
v_and_b32 v11, 3, v7
v_lshl_add_u32 v{vWa}, v11, 3, v9
v_add_u32 v3, {8*36*RS3}, v{vWa}
v_lshlrev_b32 v9, 2, v8
v_lshrrev_b32 v12, 1, v10
v_add_u32 v9, v9, v12
v_mul_u32_u24 v9, 18, v9
v_and_b32 v13, 1, v10
v_add_u32 v9, v9, v13
v_xor_b32 v12, 1, v12
v_lshl_add_u32 v9, v12, 4, v9
v_mul_u32_u24 v9, {RS3}, v9
v_lshl_add_u32 v{vWr}, v11, 3, v9
s_lshr_b32 s37, s34, 2
s_lshl_b32 s38, s33, 2
s_add_u32 s37, s37, s38
s_lshl_b32 s37, s37, 5
s_add_u32 s37, s37, 256
v_add_u32 v6, s37, v0
v_lshlrev_b32 v6, 7, v6
v_add_u32 v6, {FLAG_OFF}, v6""")
    srd(a, 16, pWS, WS_USED)
    srd(a, 12, pOUT, OUT_BYTES)
    STG = 576*RS3
    R3 = 152
    a(f"""s_lshl_b32 s20, s33, 21
s_lshl_b32 s21, s36, 15
s_add_u32 s20, s20, s21
s_add_u32 s20, s20, {OM_OFF}
s_lshl_b32 s21, s33, 18
s_lshl_b32 s22, s36, 12
s_add_u32 s21, s21, s22
s_add_u32 s21, s21, {OR_OFF}
s_mul_i32 s23, s32, {16*168}
s_add_u32 s23, s23, {STG}
v_mul_u32_u24 v9, 168, v7
v_lshl_add_u32 v9, v8, 3, v9
v_add_u32 v14, s23, v9
s_lshl_b32 s24, s36, 5
s_and_b32 s25, s32, 1
s_lshl_b32 s25, s25, 4
s_add_u32 s24, s24, s25
s_mul_i32 s24, s24, 2304
s_mul_i32 s25, s33, 1152
s_add_u32 s24, s24, s25
s_mul_i32 s25, s35, 144
s_add_u32 s24, s24, s25""")
    for k in range(3):
        a(f"""v_add_u32 v10, {64*k}, v0
v_mul_u32_u24 v11, 57, v10
v_lshrrev_b32 v11, 9, v11
v_mul_u32_u24 v12, 9, v11
v_sub_u32 v12, v10, v12
v_mul_u32_u24 v13, 168, v11
v_lshl_add_u32 v13, v12, 4, v13
v_add_u32 v{40+k}, s23, v13
v_mul_u32_u24 v13, 2304, v11
v_lshl_add_u32 v{44+k}, v12, 4, v13""")
    poll(a, 6, -1, "p2", others_wait=True)
    stamp(a, o, 8)
    def oload(ks):
        if ks < 16:
            L = [f"buffer_load_dwordx4 v[{OF(ks)}:{OF(ks)+3}], v{vL}, s[16:19], s20 offen offset:{(ks%2)*2048} sc1"]
            if ks % 2 == 1: L.append("s_add_u32 s20, s20, 4096")
            return L
        return [f"buffer_load_dword v{OF(ks)+r}, v47, s[16:19], s21 offen offset:{(ks-16)*2048 + 128*r} sc1" for r in range(4)]
    nld = lambda ks: 1 if ks < 16 else 4
    def reads(ks, p):
        L = []
        for c in range(NC3):
            for t in range(2):
                if ks < 16:
                    base, k0 = (vWa, ks) if ks < 8 else (3, ks - 8)
                    off = (36*k0 + 8*t)*RS3 + 32*c
                else:
                    base = vWr
                    off = (288*(ks-16) + 36*t)*RS3 + 32*c
                L.append(f"ds_read_b64_tr_b16 v[{WF(p,c)+2*t}:{WF(p,c)+2*t+1}], v{base} offset:{off}")
        return L
    def mfmas(ks):
        p = ks & 1
        return [f"v_mfma_f32_16x16x32_bf16 v[{ACC(c)}:{ACC(c)+3}], v[{WF(p,c)}:{WF(p,c)+3}], v[{OF(ks)}:{OF(ks)+3}], " + (f"v[{ACC(c)}:{ACC(c)+3}]" if ks else "0")
                for c in range(NC3)]
    for ks in range(D):
        for x in oload(ks): a(x)
    for x in reads(0, 0): a(x)
    for ks in range(18):
        issued = min(17, ks + D - 1)
        a(f"s_waitcnt vmcnt({sum(nld(k) for k in range(ks + 1, issued + 1))}) lgkmcnt(0)")
        rd = reads(ks+1, (ks+1) & 1) if ks + 1 < 18 else []
        M = mfmas(ks)
        if ks + D < 18:
            for x in oload(ks + D): a(x)
        for idx, m in enumerate(M):
            a(m)
            for x in rd[2*idx:2*idx+2]: a(x)
    stamp(a, o, 9)
    a("s_nop 7")
    for c in range(NC3):
        r = ACC(c); P = 64 + 2*c
        a(f"v_cvt_pk_bf16_f32 v{P}, v{r}, v{r+1}")
        a(f"v_cvt_pk_bf16_f32 v{P+1}, v{r+2}, v{r+3}")
        a(f"ds_write_b64 v14, v[{P}:{P+1}] offset:{32*c}")
    a("s_waitcnt lgkmcnt(0)")
    for k in range(3): a(f"ds_read_b64 v[{120+4*k}:{121+4*k}], v{40+k}\nds_read_b64 v[{122+4*k}:{123+4*k}], v{40+k} offset:8")
    for k in range(3):
        a(f"s_waitcnt lgkmcnt({4-2*k})")
        if k == 2: a("s_mov_b32 exec_lo, 0xffff\ns_mov_b32 exec_hi, 0")
        a(f"buffer_store_dwordx4 v[{120+4*k}:{123+4*k}], v{44+k}, s[12:15], s24 offen{o['outflag']}")
    a("s_mov_b64 exec, -1")

def gen(opts=None):
    global POLLD, POLLS
    POLLD = (opts or {}).get("polld", 1); POLLS = (opts or {}).get("polls", 1)
    o = dict(stamp=False, bar1=5, bar2=26, rot=3, dual=True, pat=[2,2,2,2,2,2,0], wopf=True, wcomp=False, xcomp=False, pf=False, pfstep=0, p3depth=8, outflag='', midnop=True, p1f=' sc1', epi8=False, epipipe=True, roll=False, p2pad=-1, p1pad=-1, ldprio=0)
    if opts: o.update(opts)
    a = A()
    a(f".globl {NAME}\n.p2align 8\n.type {NAME},@function")
    a.label(NAME)
    a(f"""s_cmp_ge_u32 s2, 256
s_cbranch_scc1 L_exit
s_load_dwordx16 s[{sP}:{sP+15}], s[0:1], 0
s_load_dwordx2 s[{pWS}:{pWS+1}], s[0:1], 64
v_lshrrev_b32 v1, 6, v0
v_and_b32 v0, 63, v0
s_nop 0
v_readfirstlane_b32 s{sWAVE}, v1""")
    stamp(a, o, 0)
    a("s_nop 3")
    nonce_publish(a)
    phase1(a, o)
    stamp(a, o, 3)
    a("; ================================================= P2: attention")
    phase2(a, o)
    stamp(a, o, 7)
    phase3(a, o)
    a.label("L_end")
    if o["stamp"]:
        a(f"""s_cmp_lg_u32 s{sWAVE}, 0
s_cbranch_scc1 L_exit
s_memrealtime s[42:43]
s_waitcnt lgkmcnt(0)
s_lshl_b32 s40, s2, 6
s_add_u32 s40, s40, {WS_USED}
v_mov_b32 v2, s40
s_mov_b64 exec, 1""")
        for i in range(11):
            a(f"v_mov_b32 v3, s{82+2*i if i < 10 else 42}")
            a(f"global_store_dword v2, v3, s[{pWS}:{pWS+1}] offset:{4*i}")
        a("s_sub_u32 s54, s54, s52\nv_mov_b32 v3, s54")
        a(f"global_store_dword v2, v3, s[{pWS}:{pWS+1}] offset:44")
        if not o.get("p1trace"):
            a("v_mov_b32 v3, s59")
            a(f"global_store_dword v2, v3, s[{pWS}:{pWS+1}] offset:56")
        if o.get("p3trace"):
            for c in range(4):
                a(f"s_sub_u32 s40, s{44+2*c}, s98\nv_mov_b32 v3, s40")
                a(f"global_store_dword v2, v3, s[{pWS}:{pWS+1}] offset:{48+4*c}")
        if o.get("dbgstamp"):
            a(f"s_cmp_lg_u32 s2, {o['dbgstamp']}\ns_cbranch_scc1 L_exit\nv_mov_b32 v2, 0")
            for i in range(11):
                src = 82+2*i if i < 10 else 42
                a(f"s_sub_u32 s44, s{src}, s82" if i else "s_mov_b32 s44, s82")
                a("v_mov_b32 v3, s44")
                a(f"global_store_dword v2, v3, s[{pDBG}:{pDBG+1}] offset:{4*(i+1)}")
    a.label("L_exit")
    a("s_endpgm")
    return a.text(), kdesc(NAME, 256, 102)
```

```python
from asmlib import *
NAME = "concat_heads__mha_block__mha_block__prompt_kernel"
THREADS = 512
ST1 = 49664
WREG = 32768
RS = 232
LDS_KM, LDS_VT, LDS_KR = 0, 65536, 139264
WO_RS = 224
WO_IMG = 576 * WO_RS
K3_STG = 32 * 208
LDS_BYTES = 155648
SPIN_MAX = 400000
sWAVE = 3
sP = 64
pAX, pAW, pAWO, pBX, pBW, pBWO, pOUT, pDBG, pWS = [sP + 2*i for i in range(9)]
CNT1 = 0
CNT2 = 128

def srd(a, d, p, nbytes):
    a(f"s_mov_b32 s{d}, s{p}\ns_mov_b32 s{d+1}, s{p+1}\ns_mov_b32 s{d+2}, {nbytes}\ns_mov_b32 s{d+3}, 0x00020000")

def stamp(a, o, idx):
    if o["stamp"]:
        a(f"s_memrealtime s[{82+2*idx}:{83+2*idx}]")

sNONCE = 63
def trace(a, o, k, tag):
    if o.get("p1trace"):
        a(f"""s_cmp_lg_u32 s{sWAVE}, {o['p1trace']-1}
s_cbranch_scc1 L_tr_{tag}
s_memrealtime s[60:61]
s_waitcnt lgkmcnt(0)
s_lshl_b32 s62, s2, 6
s_add_u32 s62, s62, {WS_USED}
v_mov_b32 v250, s62
v_mov_b32 v251, s60
s_mov_b64 exec, 1
global_store_dword v250, v251, s[{pWS}:{pWS+1}] offset:{48+4*k}
s_mov_b64 exec, -1""")
        a.label(f"L_tr_{tag}")

def nonce_publish(a):
    a(f"""s_cmp_lg_u32 s2, 0
s_cbranch_scc1 L_nonce_done
s_cmp_lg_u32 s{sWAVE}, 0
s_cbranch_scc1 L_nonce_done
s_memrealtime s[40:41]
s_waitcnt lgkmcnt(0)
s_or_b32 s40, s40, 1
v_mov_b32 v2, 0
v_mov_b32 v3, s40
s_mov_b64 exec, 1
global_store_dword v2, v3, s[{pDBG}:{pDBG+1}] sc1
s_mov_b64 exec, -1""")
    a.label("L_nonce_done")

sSYNC = 0
def nonce_fetch(a):
    a(f"""s_cmp_lg_u32 s{sWAVE}, {sSYNC}
s_cbranch_scc1 L_nf_done
s_mov_b32 s58, 0""")
    a.label("L_nf_loop")
    a(f"""s_waitcnt vmcnt(0)
v_readfirstlane_b32 s{sNONCE}, v255
s_add_u32 s58, s58, 1
s_cmp_lg_u32 s{sNONCE}, 0
s_cbranch_scc1 L_nf_done
s_sleep 4
global_load_dword v255, v254, s[{pDBG}:{pDBG+1}] sc1
s_cmp_lt_u32 s58, {SPIN_MAX}
s_cbranch_scc1 L_nf_loop""")
    a.label("L_nf_done")

def signal(a, line_sgpr, tag):
    a("s_waitcnt vmcnt(0)")
    a("s_barrier")
    a(f"""s_cmp_lg_u32 s{sWAVE}, {sSYNC}
s_cbranch_scc1 L_sig_{tag}
s_lshl_b32 s{line_sgpr}, s{line_sgpr}, 7
s_add_u32 s{line_sgpr}, s{line_sgpr}, {FLAG_OFF}
v_mov_b32 v254, s{line_sgpr}
v_mov_b32 v255, s{sNONCE}
s_mov_b64 exec, 1
global_store_dword v254, v255, s[{pWS}:{pWS+1}] sc1
s_mov_b64 exec, -1""")
    a.label(f"L_sig_{tag}")

POLLD = 1
POLLS = 1
def poll(a, addr_vgpr, nlanes_mask_lo, tag, others_wait=False):
    a(f"""s_cmp_lg_u32 s{sWAVE}, {sSYNC}
s_cbranch_scc1 L_polled_{tag}
s_mov_b32 s40, 0
s_mov_b32 exec_hi, 0
s_mov_b32 exec_lo, {nlanes_mask_lo}""")
    D = POLLD
    for d in range(D - 1):
        a(f"global_load_dword v{254-d}, v{addr_vgpr}, s[{pWS}:{pWS+1}] sc1")
        a(f"s_sleep {POLLS*4}")
    a.label(f"L_poll_{tag}")
    regs = [254 - d for d in range(D - 1)] + [255]
    for d in range(D):
        new_r = regs[(d + D - 1) % D]; old_r = regs[d]
        a(f"""global_load_dword v{new_r}, v{addr_vgpr}, s[{pWS}:{pWS+1}] sc1
s_waitcnt vmcnt({D-1})
v_cmp_ne_u32 vcc, s{sNONCE}, v{old_r}
s_cmp_eq_u64 vcc, 0
s_cbranch_scc1 L_pollok_{tag}
s_sleep {POLLS if D == 1 else POLLS*4}""")
    a(f"""s_add_u32 s40, s40, 1
s_cmp_lt_u32 s40, {SPIN_MAX}
s_cbranch_scc1 L_poll_{tag}""")
    a.label(f"L_pollok_{tag}")
    a("s_mov_b64 exec, -1")
    a.label(f"L_polled_{tag}")
    if others_wait: a("s_waitcnt vmcnt(0)")
    a("s_barrier")

def p1_epilogue_consts(a):
    assert QM_OFF == 0 and KM_OFF == (1 << 22) and KR_OFF - QR_OFF == (1 << 19)
    srd(a, 16, pWS, WS_USED)
    a(f"""s_mul_i32 s39, s32, {64*RS}
s_mul_i32 s40, s35, 6
v_mul_u32_u24 v5, {RS}, v3
v_lshl_add_u32 v5, v4, 3, v5
v_add_u32 v2, s39, v5
v_and_b32 v6, 31, v0
v_lshrrev_b32 v7, 5, v0
v_mul_u32_u24 v8, {RS}, v6
v_lshl_add_u32 v8, v7, 4, v8
v_add_u32 v8, s39, v8
v_add_u32 v240, {32*RS}, v8
v_lshlrev_b32 v9, 4, v0
v_mul_u32_u24 v10, {RS}, v0
v_add_u32 v10, s39, v10
v_lshlrev_b32 v11, 3, v0
v_lshrrev_b32 v12, 1, v4
v_lshrrev_b32 v13, 2, v3
v_lshl_add_u32 v13, v12, 3, v13
v_mul_u32_u24 v13, {RS}, v13
v_add_u32 v13, s39, v13
v_and_b32 v14, 1, v4
v_and_b32 v15, 3, v3
v_lshlrev_b32 v15, 3, v15
v_mul_u32_u24 v12, 288, v12
s_lshr_b32 s42, s38, 5
s_lshl_b32 s42, s42, 10
s_lshl_b32 s43, s38, 3
s_lshr_b32 s27, s38, 4
s_mul_i32 s27, s27, 576
s_sub_u32 s41, 32, s40
s_cmp_lt_u32 s40, 32
s_cselect_b32 s41, s41, 0
s_lshr_b32 s41, s41, 1
s_mul_i32 s41, s41, 9
s_mov_b32 s28, {f32bits(QSCALE)}
v_cmp_eq_u32 vcc, 0, v14""")
    for hl in range(6):
        pl, par = hl // 2, hl % 2
        a(f"""v_add_u32 v{242+hl}, {72*pl + 40*par}, v15
v_mov_b32 v17, {72*pl + 32}
v_cndmask_b32 v{242+hl}, v17, v{242+hl}, vcc
v_add_u32 v{242+hl}, v{242+hl}, v13""")
    for par in range(2):
        a(f"""v_add_u32 v17, {16 - 2*par}, v3
v_cndmask_b32 v17, v17, v3, vcc
v_lshl_add_u32 v{250+par}, v17, 4, v12""")
    for hl in range(6):
        sK, sM, sR = 20 + hl, 52 + hl, 48 + hl//2
        a(f"""s_add_u32 s46, s40, {hl}
s_lshr_b32 s{sK}, s46, 5
s_and_b32 s46, s46, 31
s_lshl_b32 s47, s33, 5
s_add_u32 s47, s47, s46
s_lshl_b32 s{sM}, s47, 16
s_lshl_b32 s46, s{sK}, 22
s_add_u32 s{sM}, s{sM}, s46
s_add_u32 s{sM}, s{sM}, s42
s_mul_i32 s46, s47, {VT_STRIDE}
s_add_u32 s46, s46, s27
s_add_u32 s46, s46, {VT_OFF}
s_cmp_eq_u32 s{sK}, 2
s_cselect_b32 s{sM}, s46, s{sM}""")
        if hl % 2 == 0:
            a(f"""s_lshr_b32 s{sR}, s47, 1
s_lshl_b32 s{sR}, s{sR}, 14
s_add_u32 s{sR}, s{sR}, s43
s_lshl_b32 s46, s{sK}, 19
s_add_u32 s{sR}, s{sR}, s46
s_add_u32 s{sR}, s{sR}, {QR_OFF}""")

def p1_epilogue_pipe(a, o, ACC, P1F):
    cnt = [0]
    def stage(c):
        a(f"s_cmp_le_u32 s41, {4*c}\ns_cbranch_scc1 L_p1_ns{c}")
        a(f"s_cmp_lt_u32 s41, {4*c+4}\ns_cbranch_scc1 L_p1_mx{c}")
        for i in range(4):
            r = ACC(i, c)
            a(f"v_pk_mul_f32 v[{r}:{r+1}], v[{r}:{r+1}], s[28:29] op_sel_hi:[1,0]")
            a(f"v_pk_mul_f32 v[{r+2}:{r+3}], v[{r+2}:{r+3}], s[28:29] op_sel_hi:[1,0]")
        a(f"s_branch L_p1_ns{c}")
        a.label(f"L_p1_mx{c}")
        a(f"""v_add_u32 v6, {4*c}, v4
v_cmp_gt_u32 vcc, s41, v6
v_mov_b32 v7, 1.0
v_mov_b32 v241, s28
v_cndmask_b32 v6, v7, v241, vcc""")
        for i in range(4):
            r = ACC(i, c)
            a(f"v_pk_mul_f32 v[{r}:{r+1}], v[{r}:{r+1}], v[6:7] op_sel_hi:[1,0]")
            a(f"v_pk_mul_f32 v[{r+2}:{r+3}], v[{r+2}:{r+3}], v[6:7] op_sel_hi:[1,0]")
        a.label(f"L_p1_ns{c}")
        for i in range(4):
            r = ACC(i, c); P = 40 + 2*(cnt[0] % 16); cnt[0] += 1
            a(f"v_cvt_pk_bf16_f32 v{P}, v{r}, v{r+1}")
            a(f"v_cvt_pk_bf16_f32 v{P+1}, v{r+2}, v{r+3}")
            a(f"ds_write_b64 v2, v[{P}:{P+1}] offset:{i*16*RS + 32*c}")
    RR = lambda hl: 128 + 16*hl
    sK = lambda hl: 20 + hl
    sM = lambda hl: 52 + hl
    sR = lambda hl: 48 + hl//2
    def reads(hl):
        pl, par = hl // 2, hl % 2
        lab = f"L_p1_h{hl}"; R = RR(hl)
        a(f"s_cmp_eq_u32 s{sK(hl)}, 2\ns_cbranch_scc1 {lab}_v")
        off = 72*pl + 40*par
        a(f"ds_read2_b64 v[{R}:{R+3}], v8 offset0:{off//8} offset1:{off//8+1}")
        a(f"ds_read2_b64 v[{R+4}:{R+7}], v240 offset0:{off//8} offset1:{off//8+1}")
        if par == 0: a(f"ds_read_b64 v[{R+8}:{R+9}], v10 offset:{72*pl + 32}")
        a(f"s_branch {lab}_e")
        a.label(f"{lab}_v")
        for grp in range(4):
            for tr in range(2):
                a(f"ds_read_b64_tr_b16 v[{R+4*grp+2*tr}:{R+4*grp+2*tr+1}], v{242+hl} offset:{(16*grp + 4*tr)*RS}")
        a.label(f"{lab}_e")
    def stores(hl):
        pl, par = hl // 2, hl % 2
        lab = f"L_p1_s{hl}"; R = RR(hl)
        sk = o.get("p1skip", "")
        a(f"s_cmp_eq_u32 s{sK(hl)}, 2\ns_cbranch_scc1 {lab}_v")
        if "m" not in sk:
            a(f"buffer_store_dwordx4 v[{R}:{R+3}], v9, s[16:19], s{sM(hl)} offen{P1F}")
            a(f"buffer_store_dwordx4 v[{R+4}:{R+7}], v9, s[16:19], s{sM(hl)} offen offset:1024{P1F}")
        if par == 0 and "r" not in sk: a(f"buffer_store_dwordx2 v[{R+8}:{R+9}], v11, s[16:19], s{sR(hl)} offen{P1F}")
        a(f"s_branch {lab}_e")
        a.label(f"{lab}_v")
        m16 = 0xffff | ((0x3 << (2*par)) << 16)
        a(f"s_mov_b32 exec_lo, {m16}\ns_mov_b32 exec_hi, {m16}")
        for grp in range(4):
            if "v" not in sk:
                a(f"buffer_store_dwordx4 v[{R+4*grp}:{R+4*grp+3}], v{250+par}, s[16:19], s{sM(hl)} offen offset:{576*grp}{P1F}")
        a("s_mov_b64 exec, -1")
        a.label(f"{lab}_e")
    stage(0); stage(1); stage(2)
    reads(0); reads(1)
    stage(3); stage(4)
    a("s_waitcnt lgkmcnt(8)")
    stores(0); stores(1)
    reads(2); reads(3)
    stage(5); stage(6)
    a("s_waitcnt lgkmcnt(8)")
    stores(2); stores(3)
    reads(4); reads(5)
    a("s_waitcnt lgkmcnt(0)")
    stores(4); stores(5)

def phase1(a, o):
    P1F = o['p1f']
    ROT = o['rot']
    if o.get("rot9"):
        ma, mb = o["rot9"]
        ROTCODE = f"""s_mul_i32 s24, s35, {ma}
s_mul_i32 s25, s34, {mb}
s_add_u32 s24, s24, s25
s_mul_i32 s25, s24, 57
s_lshr_b32 s25, s25, 9
s_mul_i32 s25, s25, 9
s_sub_u32 s24, s24, s25"""
        for v in range(16*ma + 8*mb): assert (v*57) >> 9 == v // 9, v
    else:
        ROTCODE = f"""s_add_u32 s24, s35, s34
s_mul_i32 s25, s24, 43
s_lshr_b32 s25, s25, 7
s_mul_i32 s25, s25, 3
s_sub_u32 s24, s24, s25
s_mul_i32 s24, s24, {ROT}"""
    vXD = lambda i: 16 + i
    vWD = lambda i: 24 + i
    vX = lambda st, ks: 28 + 2*st + ks
    vW = lambda st: 34 + st
    XF = lambda p, i: 40 + 16*p + 4*i
    WF = lambda p, c: 72 + 28*p + 4*c
    ACC = lambda i, c: 128 + 4*(4*c + i)
    n = 7
    GL = o.get("gl")
    if GL:
        a(f"""s_and_b32 s30, s2, 7
s_lshr_b32 s31, s2, 3
s_and_b32 s32, s{sWAVE}, 3
s_lshr_b32 s33, s30, 2
s_and_b32 s34, s31, 7
s_and_b32 s35, s30, 3
s_lshl_b32 s35, s35, 2
s_lshr_b32 s36, s31, 3
s_add_u32 s35, s35, s36
s_lshl_b32 s20, s34, 8
s_lshl_b32 s21, s32, 6
s_add_u32 s38, s20, s21
s_lshl_b32 s37, s32, 13
v_lshrrev_b32 v4, 4, v0
v_and_b32 v3, 15, v0""")
    else: a(f"""s_and_b32 s30, s2, 7
s_lshr_b32 s31, s2, 3
s_and_b32 s32, s{sWAVE}, 3
s_lshr_b32 s33, s30, 2
s_and_b32 s34, s30, 1
s_lshl_b32 s34, s34, 2
s_and_b32 s35, s31, 3
s_add_u32 s34, s34, s35
s_lshr_b32 s35, s30, 1
s_and_b32 s35, s35, 1
s_lshl_b32 s35, s35, 3
s_lshr_b32 s36, s31, 2
s_add_u32 s35, s35, s36
s_lshl_b32 s20, s34, 8
s_lshl_b32 s21, s32, 6
s_add_u32 s38, s20, s21
s_lshl_b32 s37, s32, 13
v_lshrrev_b32 v4, 4, v0
v_and_b32 v3, 15, v0""")
    WC = o["wcomp"]
    a(f"""v_and_b32 v2, 1, v4
v_lshrrev_b32 v5, 1, v4
v_lshlrev_b32 v2, 2, v2
v_lshl_add_u32 v2, v5, 4, v2
v_mul_u32_u24 v2, 3456, v2""")
    if GL:
        a(f"""v_mul_u32_u24 v5, 13, v3
v_lshrrev_b32 v5, 6, v5
v_mul_u32_u24 v6, 5, v5
v_sub_u32 v6, v3, v6
v_mul_u32_u24 v5, 1152, v5
v_lshl_add_u32 v5, v6, 4, v5
v_add_u32 v2, v2, v5
v_mov_b32 v5, 0x40000000
v_cmp_gt_u32 vcc, 15, v3""")
    else:
        a(f"""v_lshl_add_u32 v2, v3, 4, v2
v_mov_b32 v5, 0x40000000
v_cmp_gt_u32 vcc, 14, v3""")
    a(f"""s_mul_i32 s20, s38, 1152
s_lshr_b32 s21, s32, 1
v_cndmask_b32 v2, v5, v2, vcc""")
    for i in range(4):
        a(f"v_add_u32 v{vWD(i)}, {3456*i}, v2")
    a(f"""s_lshl_b32 s21, s21, 5
s_and_b32 s22, s32, 1
s_lshl_b32 s23, s22, 3
s_add_u32 s21, s21, s23
s_mul_i32 s21, s21, 3456
s_mul_i32 s23, s35, {72 if GL else 216}
s_add_u32 s21, s21, s23
s_lshr_b32 s23, s32, 1
s_mul_i32 s23, s23, 8448
s_mul_i32 s22, s22, {4*1056}
s_add_u32 s23, s23, s22
s_add_u32 s23, s23, {WREG}
s_mov_b32 s22, s37
{ROTCODE}
s_lshl_b32 s25, s24, 7
s_add_u32 s20, s20, s25
s_mul_i32 s25, s24, {64*3456}
s_add_u32 s21, s21, s25""")
    a(f"""v_lshrrev_b32 v2, 3, v0
v_and_b32 v5, 7, v0
v_xor_b32 v5, v5, v4
v_mul_u32_u24 v6, 1152, v2
v_lshl_add_u32 v7, v5, 4, v6
v_xor_b32 v8, 64, v7""")
    for i in range(8):
        a(f"v_add_u32 v{vXD(i)}, {9216*i}, v{7 if i % 2 == 0 else 8}")
    a(f"""s_mov_b32 s10, {X_BYTES}
s_mov_b32 s11, 0x00020000
s_mov_b32 s14, {W_BYTES}
s_mov_b32 s15, 0x00020000
s_waitcnt lgkmcnt(0)
s_cmp_eq_u32 s33, 0
s_cselect_b32 s8, s{pAX}, s{pBX}
s_cselect_b32 s9, s{pAX+1}, s{pBX+1}
s_cselect_b32 s12, s{pAW}, s{pBW}
s_cselect_b32 s13, s{pAW+1}, s{pBW+1}
s_cmp_ge_u32 s{sWAVE}, 4
s_cbranch_scc0 L_p1_compute""")
    wrap = [f"s_add_u32 s21, s21, {64*3456}", "s_add_u32 s20, s20, 128", "s_add_u32 s24, s24, 1", "s_cmp_eq_u32 s24, 9",
            f"s_cselect_b32 s25, {9*128}, 0", f"s_cselect_b32 s26, {9*64*3456}, 0", "s_cselect_b32 s24, 0, s24",
            "s_sub_u32 s20, s20, s25", "s_sub_u32 s21, s21, s26"]
    def w_units(cc):
        st = cc % 3
        U = [[f"s_add_u32 m0, s23, {st*ST1}"]]
        for i in range(4):
            u = [f"buffer_load_dwordx4 v{vWD(i)}, s[12:15], s21 offen lds"]
            u += ["s_add_u32 m0, m0, 1056"] if i < 3 else wrap
            U.append(u)
        return U
    def flat(U):
        for u in U:
            for x in u:
                if x.startswith("buffer_load"): a("s_nop 0")
                a(x)
    XC = o["xcomp"]
    def xsetup():
        a(f"""v_lshrrev_b32 v2, 3, v0
v_and_b32 v5, 7, v0
v_xor_b32 v5, v5, v4
v_mul_u32_u24 v6, 1152, v2
v_lshl_add_u32 v7, v5, 4, v6
v_xor_b32 v8, 64, v7""")
        for i in range(8):
            a(f"v_add_u32 v{vXD(i)}, {9216*i}, v{7 if i % 2 == 0 else 8}")
    if XC:
        for _ in range(9): a("s_barrier")
        a("s_branch L_p1_rb" if o["epi8"] else "s_branch L_p1_done")
    if o.get("ldprio"): a(f"s_setprio {o['ldprio']}")
    NL = 8 if WC else 12
    def dma(cc):
        st = cc % 3
        a(f"s_add_u32 m0, s22, {st*ST1}")
        for i in range(8):
            a("s_nop 0")
            a(f"buffer_load_dwordx4 v{vXD(i)}, s[8:11], s20 offen lds")
            if i < 7: a("s_add_u32 m0, m0, 1024")
        if WC:
            for x in wrap: a(x)
        else:
            if o.get("wmask"): a("s_mov_b32 exec_lo, 0x3fff3fff\ns_mov_b32 exec_hi, 0x3fff3fff")
            flat(w_units(cc))
            if o.get("wmask"): a("s_mov_b64 exec, -1")
    dma(0); dma(1)
    a(f"s_waitcnt vmcnt({NL})")
    a("s_barrier")
    dma(2)
    for cc in range(8):
        rem = min(8, cc + 2) - (cc + 1)
        a(f"s_waitcnt vmcnt({NL*rem})")
        a("s_barrier")
        if cc + 3 <= 8: dma(cc + 3)
    if o.get("ldprio"): a("s_setprio 0")
    a("s_branch L_p1_rb" if o["epi8"] else "s_branch L_p1_done")
    a.label("L_p1_compute")
    def xw_units(cc):
        st = cc % 3
        U = [[f"s_add_u32 m0, s22, {st*ST1}"]]
        for i in range(8):
            U.append([f"buffer_load_dwordx4 v{vXD(i)}, s[8:11], s20 offen lds",
                      "s_add_u32 m0, m0, 1024" if i < 7 else f"s_add_u32 m0, s23, {st*ST1}"])
        return U + w_units(cc)[1:]
    if XC:
        xsetup()
        flat(xw_units(0)); flat(xw_units(1))
    elif WC:
        flat(w_units(0)); flat(w_units(1))
    a(f"""v_lshrrev_b32 v5, 1, v3
v_xor_b32 v5, v5, v4
v_lshlrev_b32 v5, 4, v5
v_lshl_add_u32 v5, v3, 7, v5
v_add_u32 v5, s37, v5
v_xor_b32 v6, 64, v5""")
    for st in range(3):
        a(f"v_add_u32 v{vX(st,0)}, {st*ST1}, v5")
        a(f"v_add_u32 v{vX(st,1)}, {st*ST1}, v6")
    a(f"""v_lshrrev_b32 v5, 2, v3
v_and_b32 v6, 1, v4
v_lshl_add_u32 v5, v6, 2, v5
v_mul_u32_u24 v5, 1056, v5
v_lshrrev_b32 v6, 1, v4
v_lshl_add_u32 v5, v6, 9, v5
v_and_b32 v6, 3, v3
v_lshl_add_u32 v5, v6, 3, v5""")
    for st in range(3):
        a(f"v_add_u32 v{vW(st)}, {st*ST1 + WREG}, v5")
    def reads(g):
        cc, ks = g // 2, g % 2
        st, p = cc % 3, g & 1
        L = []
        for c in range(n):
            if c < 4: L.append(f"ds_read_b128 v[{XF(p,c)}:{XF(p,c)+3}], v{vX(st,ks)} offset:{2048*c}")
            for tr in range(2):
                L.append(f"ds_read_b64_tr_b16 v[{WF(p,c)+2*tr}:{WF(p,c)+2*tr+1}], v{vW(st)} offset:{ks*8448 + tr*256 + 32*c}")
        return L
    def mfmas(g):
        p = g & 1
        L = []
        for c in range(n):
            for i in range(4):
                acc = f"v[{ACC(i,c)}:{ACC(i,c)+3}]"
                L.append(f"v_mfma_f32_16x16x32_bf16 {acc}, v[{WF(p,c)}:{WF(p,c)+3}], v[{XF(p,i)}:{XF(p,i)+3}], {acc if g else 0}")
        return L
    if o["pf"]:
        assert not WC and o["rot"] == 0
        a(f"""s_and_b32 s26, s35, 7
s_lshl_b32 s26, s26, 5
s_lshl_b32 s27, s34, 8
s_add_u32 s26, s26, s27
s_mul_i32 s26, s26, 1152
s_add_u32 s26, s26, 384
v_and_b32 v5, 31, v0
v_lshrrev_b32 v6, 5, v0
v_mul_u32_u24 v5, 1152, v5
v_lshl_add_u32 v240, v6, 6, v5
s_and_b32 s27, s34, 3
s_add_u32 s27, s27, 192
s_mul_i32 s27, s27, 3456
s_mul_i32 s28, s35, 216
s_add_u32 s27, s27, s28
v_lshrrev_b32 v5, 2, v0
v_and_b32 v6, 3, v0
v_mul_u32_u24 v5, {4*3456}, v5
v_lshl_add_u32 v241, v6, 6, v5
s_mul_i32 s28, s32, {3*128}
s_add_u32 s26, s26, s28
s_sub_u32 s28, s32, 2
s_mul_i32 s28, s28, {3*64*3456}
s_add_u32 s27, s27, s28
s_cmp_lt_u32 s32, 2
s_cselect_b32 s48, s8, s12
s_cselect_b32 s49, s9, s13
s_cselect_b32 s50, s10, s14
s_mov_b32 s51, 0x00020000
s_cselect_b32 s26, s26, s27
s_mov_b32 s27, {64*3456}
s_cselect_b32 s27, 128, s27
s_cselect_b64 vcc, -1, 0
s_nop 1
v_cndmask_b32 v240, v241, v240, vcc""")
    if o["pf"] and o["pfstep"] < 0:
        for q in range(3):
            a(f"buffer_load_dword v{242+q}, v240, s[48:51], s26 offen")
            a("s_add_u32 s26, s26, s27")
    if o["epipipe"]: p1_epilogue_consts(a)
    NC = 12 if XC else 4
    if WC: a(f"s_waitcnt vmcnt({NC})")
    if o["p1pad"] >= 0:
        a(".p2align 6")
        for _ in range(o["p1pad"]): a("s_nop 0")
    a("s_barrier")
    stamp(a, o, 1)
    if o["stamp"]: a("s_memtime s[44:45]")
    for x in reads(0): a(x)
    for g in range(18):
        cc, ks = g // 2, g % 2
        if ks == 1 and cc < 8:
            rem = min(8, cc + 2) - (cc + 1)
            a((f"s_waitcnt vmcnt({NC*rem}) lgkmcnt(0)") if WC else "s_waitcnt lgkmcnt(0)")
            a("s_barrier")
        else:
            a("s_waitcnt lgkmcnt(0)")
        if o.get("p1loop") and ks == 1 and cc < 8:
            a(f"s_memtime s[{84+2*cc}:{85+2*cc}]")
        units = []
        if XC:
            if g == 0: units = xw_units(2)
            elif ks == 1 and cc + 3 <= 8: units = xw_units(cc + 3)[:7]
            elif ks == 0 and cc >= 1 and cc + 2 <= 8: units = xw_units(cc + 2)[7:]
        elif WC:
            if g == 0: units = w_units(2)
            elif ks == 1 and cc + 3 <= 8: units = w_units(cc + 3)[:3]
            elif ks == 0 and cc >= 1 and cc + 2 <= 8: units = w_units(cc + 2)[3:]
        rd = reads(g + 1) if g + 1 < 18 else []
        M = mfmas(g)
        slots = [[] for _ in M]
        for idx, x in enumerate(rd): slots[min(idx, len(M)-1)].append(x)
        for idx, u in enumerate(units): slots[min(len(M)-1, 2 + (idx*len(M))//len(units))] += u
        if o["pf"] and g == o["pfstep"]:
            for q in range(3):
                slots[3 + 8*q] += [f"buffer_load_dword v{242+q}, v240, s[48:51], s26 offen", "s_add_u32 s26, s26, s27"]
        if g == (16 if WC else o.get("ng", 6)):
            a("v_mov_b32 v254, 0")
            a(f"global_load_dword v255, v254, s[{pDBG}:{pDBG+1}] sc1")
        for m, sl in zip(M, slots):
            a(m)
            for x in sl: a(x)
    if o.get("p1loop"):
        a(f"""s_waitcnt lgkmcnt(0)
s_cmp_lg_u32 s{sWAVE}, 0
s_cbranch_scc1 L_p1l_done
s_lshl_b32 s62, s2, 6
s_add_u32 s62, s62, {WS_USED + 65536}
v_mov_b32 v250, s62
s_mov_b64 exec, 1""")
        for cc in range(8):
            a(f"s_sub_u32 s60, s{84+2*cc}, s44\nv_mov_b32 v251, s60\nglobal_store_dword v250, v251, s[{pWS}:{pWS+1}] offset:{4*cc}")
        a("s_mov_b64 exec, -1")
        a.label("L_p1l_done")
    stamp(a, o, 2)
    if o["stamp"]: a("s_memtime s[46:47]\ns_waitcnt lgkmcnt(0)\ns_sub_u32 s59, s46, s44")
    nonce_fetch(a)
    if o["epipipe"]:
        p1_epilogue_pipe(a, o, ACC, P1F)
        a("s_branch L_p1_done")
    if not o["epipipe"]:
        a(f"""s_waitcnt lgkmcnt(0)
s_mul_i32 s39, s32, {64*RS}
v_mul_u32_u24 v5, {RS}, v3
v_lshl_add_u32 v5, v4, 3, v5
v_add_u32 v5, s39, v5
s_mul_i32 s40, s35, 6
s_sub_u32 s41, 32, s40
s_cmp_lt_u32 s40, 32
s_cselect_b32 s41, s41, 0
s_lshr_b32 s41, s41, 1
s_mul_i32 s41, s41, 9
s_mov_b32 s44, {f32bits(QSCALE)}
s_cmp_eq_u32 s41, 0
s_cbranch_scc1 L_p1_noscale""")
        for c in range(n):
            a(f"""v_add_u32 v6, {4*c}, v4
v_cmp_gt_u32 vcc, s41, v6
v_mov_b32 v7, 1.0
v_mov_b32 v8, s44
v_cndmask_b32 v6, v7, v8, vcc""")
            for i in range(4):
                r = ACC(i, c)
                a(f"v_pk_mul_f32 v[{r}:{r+1}], v[{r}:{r+1}], v[6:7] op_sel_hi:[1,0]")
                a(f"v_pk_mul_f32 v[{r+2}:{r+3}], v[{r+2}:{r+3}], v[6:7] op_sel_hi:[1,0]")
        a.label("L_p1_noscale")
        for c in range(n):
            for i in range(4):
                r = ACC(i, c); P = 40 + 2*((4*c + i) % 16)
                a(f"v_cvt_pk_bf16_f32 v{P}, v{r}, v{r+1}")
                a(f"v_cvt_pk_bf16_f32 v{P+1}, v{r+2}, v{r+3}")
                a(f"ds_write_b64 v5, v[{P}:{P+1}] offset:{i*16*RS + 32*c}")
        a("s_waitcnt lgkmcnt(0)")
        trace(a, o, 0, "a")
        a.label("L_p1_rb")
        srd(a, 16, pWS, WS_USED)
        a(f"""s_mul_i32 s39, s32, {64*RS}
s_mul_i32 s40, s35, 6
v_and_b32 v6, 31, v0
v_lshrrev_b32 v7, 5, v0
v_mul_u32_u24 v8, {RS}, v6
v_lshl_add_u32 v8, v7, 4, v8
v_add_u32 v8, s39, v8
v_lshlrev_b32 v9, 4, v0
v_mul_u32_u24 v10, {RS}, v0
v_add_u32 v10, s39, v10
v_lshlrev_b32 v11, 3, v0
v_lshrrev_b32 v12, 1, v4
v_lshrrev_b32 v13, 2, v3
v_lshl_add_u32 v13, v12, 3, v13
v_mul_u32_u24 v13, {RS}, v13
v_add_u32 v13, s39, v13
v_and_b32 v14, 1, v4
v_and_b32 v15, 3, v3
v_lshlrev_b32 v15, 3, v15
v_mul_u32_u24 v12, 288, v12
s_lshr_b32 s42, s38, 5
s_lshl_b32 s42, s42, 10
s_lshl_b32 s43, s38, 3
s_lshr_b32 s45, s38, 4
s_mul_i32 s45, s45, 576""")
        E8 = o["epi8"]
        if E8: a(f"s_barrier\ns_cmp_ge_u32 s{sWAVE}, 4\ns_cbranch_scc1 L_p1_rb1")
        assert QM_OFF == 0 and KM_OFF == (1 << 22) and KR_OFF - QR_OFF == (1 << 19)
        NH = 3 if E8 else 6
        sKf = (lambda k: 48 + k) if E8 else (lambda k: 20 + k)
        sMf = (lambda k: 52 + k) if E8 else (lambda k: 26 + k)
        sRf = (lambda k: 55 + k) if E8 else (lambda k: 48 + k)
        for hg in range(2 if E8 else 1):
            if hg: a.label("L_p1_rb1")
            for k in range(NH):
                hl = NH*hg + k
                pl, par = hl // 2, hl % 2
                lab = f"L_p1_h{hl}"
                R = 128 + 16*k
                sK, sM, sR = sKf(k), sMf(k), sRf(k)
                a(f"""s_add_u32 s46, s40, {hl}
s_lshr_b32 s{sK}, s46, 5
s_and_b32 s46, s46, 31
s_lshl_b32 s47, s33, 5
s_add_u32 s47, s47, s46
s_cmp_eq_u32 s{sK}, 2
s_cbranch_scc1 {lab}_v""")
                off = 72*pl + 40*par
                a(f"ds_read2_b64 v[{R}:{R+3}], v8 offset0:{off//8} offset1:{off//8+1}")
                a(f"v_add_u32 v{20+2*k}, {32*RS + off}, v8")
                a(f"ds_read2_b64 v[{R+4}:{R+7}], v{20+2*k} offset0:0 offset1:1")
                if par == 0: a(f"ds_read_b64 v[{R+8}:{R+9}], v10 offset:{72*pl + 32}")
                a(f"""s_lshl_b32 s{sM}, s47, 16
s_lshl_b32 s46, s{sK}, 22
s_add_u32 s{sM}, s{sM}, s46
s_add_u32 s{sM}, s{sM}, s42""")
                if par == 0:
                    a(f"""s_lshr_b32 s{sR}, s47, 1
s_lshl_b32 s{sR}, s{sR}, 14
s_add_u32 s{sR}, s{sR}, s43
s_lshl_b32 s46, s{sK}, 19
s_add_u32 s{sR}, s{sR}, s46
s_add_u32 s{sR}, s{sR}, {QR_OFF}""")
                a(f"s_branch {lab}_e")
                a.label(f"{lab}_v")
                a(f"""v_add_u32 v{20+2*k}, {72*pl + 40*par}, v15
v_mov_b32 v17, {72*pl + 32}
v_cmp_eq_u32 vcc, 0, v14
s_mul_i32 s{sM}, s47, {VT_STRIDE}
s_add_u32 s{sM}, s{sM}, s45
v_cndmask_b32 v{20+2*k}, v17, v{20+2*k}, vcc
v_add_u32 v{20+2*k}, v{20+2*k}, v13
s_add_u32 s{sM}, s{sM}, {VT_OFF}""")
                for grp in range(4):
                    for tr in range(2):
                        a(f"ds_read_b64_tr_b16 v[{R+4*grp+2*tr}:{R+4*grp+2*tr+1}], v{20+2*k} offset:{(16*grp + 4*tr)*RS}")
                a(f"""v_add_u32 v17, {16 - 2*par}, v3
v_cndmask_b32 v17, v17, v3, vcc
v_lshl_add_u32 v{21+2*k}, v17, 4, v12""")
                a.label(f"{lab}_e")
            a("s_waitcnt lgkmcnt(0)")
            trace(a, o, 1, f"b{hg}")
            for k in range(NH):
                hl = NH*hg + k
                pl, par = hl // 2, hl % 2
                lab = f"L_p1_s{hl}"
                R = 128 + 16*k
                sK, sM, sR = sKf(k), sMf(k), sRf(k)
                a(f"s_cmp_eq_u32 s{sK}, 2\ns_cbranch_scc1 {lab}_v")
                a(f"buffer_store_dwordx4 v[{R}:{R+3}], v9, s[16:19], s{sM} offen{P1F}")
                a(f"buffer_store_dwordx4 v[{R+4}:{R+7}], v9, s[16:19], s{sM} offen offset:1024{P1F}")
                if par == 0: a(f"buffer_store_dwordx2 v[{R+8}:{R+9}], v11, s[16:19], s{sR} offen{P1F}")
                a(f"s_branch {lab}_e")
                a.label(f"{lab}_v")
                m16 = 0xffff | ((0x3 << (2*par)) << 16)
                a(f"s_mov_b32 exec_lo, {m16}\ns_mov_b32 exec_hi, {m16}")
                for grp in range(4):
                    a(f"buffer_store_dwordx4 v[{R+4*grp}:{R+4*grp+3}], v{21+2*k}, s[16:19], s{sM} offen offset:{576*grp}{P1F}")
                a("s_mov_b64 exec, -1")
                a.label(f"{lab}_e")
            trace(a, o, 2, f"c{hg}")
            if hg == 0 and E8: a("s_branch L_p1_done")
    a.label("L_p1_done")
    a("s_lshl_b32 s39, s33, 4\ns_add_u32 s39, s39, s35\ns_lshl_b32 s39, s39, 3\ns_add_u32 s39, s39, s34")
    signal(a, 39, "p1")

def phase2(a, o):
    NKT, NQ = 64, 2
    QM = lambda j: 16 + 4*j
    QR = 24
    KMn = lambda s: 28 + 6*s
    KRs = lambda s: 32 + 6*s
    V0 = lambda s: 40 + 8*s
    V1 = lambda s: 44 + 8*s
    S = lambda kt, j: 56 + 32*(kt & 1) + 16*j
    O = lambda j: 120 + 16*j
    vL16, vKR, vVa, vVb, vIdx = 2, 3, 4, 5, 6
    T = 152
    name = "p2"
    a(f"""s_and_b32 s18, s2, 7
s_lshr_b32 s19, s2, 3
s_lshr_b32 s12, s19, 2
s_lshl_b32 s18, s18, 3
s_add_u32 s12, s12, s18
s_and_b32 s13, s19, 3
s_mov_b32 s14, s{sWAVE}""")
    a(f"""s_and_b32 s18, s12, 31
s_lshr_b32 s19, s12, 5
s_lshl_b32 s19, s19, 4
v_lshrrev_b32 v7, 3, v0
v_lshlrev_b32 v7, 5, v7
v_add_u32 v7, s18, v7
v_mul_u32_u24 v7, 171, v7
v_lshrrev_b32 v7, 10, v7
v_add_u32 v7, s19, v7
v_and_b32 v8, 7, v0
v_lshl_add_u32 v7, v7, 3, v8
v_lshlrev_b32 v7, 7, v7
v_add_u32 v7, {FLAG_OFF}, v7""")
    srd(a, 8, pWS, WS_USED)
    a(f"""v_lshlrev_b32 v{vL16}, 4, v0
v_and_b32 v8, 31, v0
v_lshlrev_b32 v9, 3, v8
s_mov_b32 s15, 0
s_mov_b32 s16, 0x0003ffff
s_mov_b32 s17, 0x0003ffff
s_lshl_b32 s30, s14, 10
s_lshl_b32 s25, s12, 16
s_add_u32 s35, s25, {KM_OFF}
s_add_u32 s25, s35, s30
s_mul_i32 s28, s12, {VT_STRIDE}
s_add_u32 s36, s28, {VT_OFF}
s_add_u32 s28, s36, s30
s_lshr_b32 s38, s12, 1
s_lshl_b32 s38, s38, 14
s_and_b32 s39, s12, 1
s_lshl_b32 s39, s39, 2
s_add_u32 s37, s38, {KR_OFF}
s_add_u32 s33, s37, s30
s_add_u32 s29, s30, {LDS_VT}
s_add_u32 s34, s30, {LDS_KR}
s_mov_b32 s26, s30
s_lshl_b32 s18, s13, 4
s_lshl_b32 s19, s14, 1
s_add_u32 s24, s18, s19""")
    def dmaK():
        a("s_mov_b32 m0, s26")
        a("s_add_u32 s26, s26, 8192")
        a(f"buffer_load_dwordx4 v{vL16}, s[8:11], s25 offen sc1 lds")
        a("s_add_u32 s25, s25, 8192")
    def dmaV():
        a("s_mov_b32 m0, s29")
        a("s_add_u32 s29, s29, 8192")
        a(f"buffer_load_dwordx4 v{vL16}, s[8:11], s28 offen sc1 lds")
        a("s_add_u32 s28, s28, 8192")
    def dmaKR1():
        a("s_add_u32 m0, s34, 8192")
        a("s_add_u32 s33, s33, 8192")
        a(f"buffer_load_dwordx4 v{vL16}, s[8:11], s33 offen sc1 lds")
    a(f"""s_lshr_b32 s18, s12, 5
s_and_b32 s19, s12, 31
s_lshl_b32 s46, s18, 21
s_lshl_b32 s21, s24, 15
s_add_u32 s46, s46, s21
s_lshl_b32 s21, s19, 10
s_add_u32 s46, s46, s21
s_add_u32 s46, s46, {OM_OFF}
s_lshl_b32 s47, s18, 18
s_lshl_b32 s21, s24, 12
s_add_u32 s47, s47, s21
s_lshl_b32 s21, s19, 7
s_add_u32 s47, s47, s21
s_add_u32 s47, s47, {OR_OFF}
s_lshl_b32 s48, s18, 2
s_add_u32 s48, s48, s13
s_lshl_b32 s48, s48, 5
s_add_u32 s48, s48, s19
s_add_u32 s48, s48, 256
v_lshlrev_b32 v197, 2, v8
s_lshl_b32 s49, s12, 16
s_lshl_b32 s19, s24, 10
s_add_u32 s49, s49, s19
s_lshl_b32 s20, s24, 8
s_add_u32 s50, s38, s20
s_add_u32 s50, s50, s39
s_add_u32 s50, s50, {QR_OFF}
v_lshlrev_b32 v196, 3, v0""")
    if o["wopf"]:
        a(f"""s_cmp_lt_u32 s12, 32
s_cselect_b32 s20, s{pAWO}, s{pBWO}
s_cselect_b32 s21, s{pAWO+1}, s{pBWO+1}
s_mov_b32 s22, {WO_BYTES}
s_mov_b32 s23, 0x00020000
s_lshr_b32 s18, s2, 3
s_lshl_b32 s18, s18, 3
s_add_u32 s18, s18, s14
s_lshl_b32 s27, s18, 12
v_lshlrev_b32 v198, 6, v0""")
    late = [dmaK, dmaV, dmaKR1, dmaK, dmaV, dmaK, dmaV] + [dmaK, dmaV]*4
    sched = {0: late[0:3], 1: late[3:5], 2: late[5:7], 3: late[7:9], 4: late[9:11], 5: late[11:13], 6: late[13:15]}
    a(f"""v_lshrrev_b32 v10, 5, v0
v_add_u32 v{vKR}, {LDS_KR}, v9
v_add_u32 v{vKR}, s39, v{vKR}
v_mul_u32_u24 v11, 288, v10
v_lshlrev_b32 v12, 4, v8
v_add_u32 v27, v11, v12
v_add_u32 v{vVa}, {LDS_VT}, v27
v_add_u32 v{vVb}, {LDS_VT + 32*1152}, v27
v_mov_b32 v{vIdx}, 0xdddd
v_and_b32 v13, 27, v8
v_cmp_eq_u32 vcc, 18, v13
v_mov_b32 v14, 0x3f803f80
v_mov_b32 v15, 0
v_cndmask_b32 v13, v15, v14, vcc""")
    for s in range(2):
        a(f"v_mov_b32 v{KRs(s)+1}, 0x3f803f80")
        for i in range(4):
            a(f"v_mov_b32 v{V0(s)+i}, v13")
            a(f"v_mov_b32 v{V1(s)+i}, v13")
    a(f"v_mov_b32 v{QR+1}, 0")
    for j in range(NQ):
        for i in range(16): a(f"v_mov_b32 v{O(j)+i}, 0")
    poll(a, 7, 0xffffff, "p1")
    stamp(a, o, 4)
    a("s_mov_b32 m0, s34")
    a("s_nop 0")
    a(f"buffer_load_dwordx4 v{vL16}, s[8:11], s33 offen sc1 lds")
    dmaK(); dmaV(); dmaV()
    for j in range(NQ):
        a(f"buffer_load_dwordx4 v[{QM(j)}:{QM(j)+3}], v{vL16}, s[8:11], s49 offen offset:{1024*j} sc1")
    a(f"buffer_load_dword v{QR}, v196, s[8:11], s50 offen sc1")
    if o["direct0"]:
        a(f"buffer_load_dwordx4 v[{KMn(0)}:{KMn(0)+3}], v{vL16}, s[8:11], s35 offen sc1")
        a(f"v_add_u32 v195, s39, v9")
        a(f"buffer_load_dword v{KRs(0)}, v195, s[8:11], s37 offen sc1")
        a("s_mov_b64 exec, s[16:17]")
        a(f"buffer_load_dwordx4 v[{V0(0)}:{V0(0)+3}], v27, s[8:11], s36 offen sc1")
        a(f"buffer_load_dwordx4 v[{V1(0)}:{V1(0)+3}], v27, s[8:11], s36 offen offset:576 sc1")
        a("s_mov_b64 exec, -1")
    a("s_waitcnt vmcnt(0)")
    if not o["direct0"]: a("s_barrier")
    stamp(a, o, 5)
    if o["stamp"]: a("s_memtime s[52:53]")
    def rdK(kt):
        s = kt & 1
        a(f"ds_read_b128 v[{KMn(s)}:{KMn(s)+3}], v{vL16} offset:{kt*1024}")
        a(f"ds_read_b32 v{KRs(s)}, v{vKR} offset:{kt*256}")
    def rdV(kt):
        s = kt & 1
        base, off = (vVa, kt*1152) if kt < 32 else (vVb, (kt-32)*1152)
        a("s_mov_b64 exec, s[16:17]")
        a(f"ds_read_b128 v[{V0(s)}:{V0(s)+3}], v{base} offset:{off}")
        a(f"ds_read_b128 v[{V1(s)}:{V1(s)+3}], v{base} offset:{off+576}")
        a("s_mov_b64 exec, -1")
    def qk_res(kt, ks=None):
        s = (kt & 1) if ks is None else ks; sb = S(kt, 0)
        a(f"v_mfma_f32_32x32x4_2b_bf16 v[{sb}:{sb+31}], v[{KRs(s)}:{KRs(s)+1}], v[{QR}:{QR+1}], 0")
    def qk_main(kt, j, ks=None):
        s = (kt & 1) if ks is None else ks; sb = S(kt, j)
        a(f"v_mfma_f32_32x32x16_bf16 v[{sb}:{sb+15}], v[{KMn(s)}:{KMn(s)+3}], v[{QM(j)}:{QM(j)+3}], v[{sb}:{sb+15}]")
    def pv(kt, j, half, vs=None):
        s = (kt & 1) if vs is None else vs
        v = V0(s) if half == 0 else V1(s)
        a(f"v_smfmac_f32_32x32x32_bf16 v[{O(j)}:{O(j)+15}], v[{v}:{v+3}], v[{S(kt,j)+8*half}:{S(kt,j)+8*half+7}], v{vIdx}")
    def ex(kt, j, i):
        r = S(kt, j) + i
        a(f"v_exp_f32 v{r}, v{r}")
    def loop(copy, prio):
        if o["p2pad"] >= 0:
            a(".p2align 6")
            for _ in range(o["p2pad"]): a("s_nop 0")
        if o["direct0"]:
            if o["stamp"]: a("s_waitcnt lgkmcnt(0)")
            qk_res(0)
            a("s_barrier")
        else:
            rdK(0); rdV(0)
            a("s_waitcnt lgkmcnt(0)")
            qk_res(0)
        rdK(1)
        a("s_nop 15")
        a("s_nop 1")
        qk_main(0, 0); qk_main(0, 1)
        a("s_nop 7")
        a("s_nop 3")
        def tile(kt, rel=None):
            if rel is None:
                if kt == o["bar1"] or (kt == o["bar2"] and not ROLL):
                    nC = sum(len(v) for k, v in sched.items() if 3 <= k < o['bar1'])
                    a(f"s_waitcnt vmcnt({nC if kt == o['bar1'] else 0})")
                    a("s_barrier")
                if kt in sched:
                    for f in sched[kt]: f()
                if kt == 9 and o["wopf"]:
                    a("buffer_load_dword v199, v198, s[20:23], s27 offen")
            p = prio(kt)
            a(f"s_setprio {p}" if p is not None else "s_nop 0")
            a("s_waitcnt lgkmcnt(0)")
            if kt > 0: pv(kt-1, 1, 1)
            if kt + 1 < NKT:
                if rel is None: rdV(kt+1)
                else:
                    s_ = (kt+1) & 1; off = (kt+1-rel)*1152
                    a("s_mov_b64 exec, s[16:17]")
                    a(f"ds_read_b128 v[{V0(s_)}:{V0(s_)+3}], v206 offset:{off}")
                    a(f"ds_read_b128 v[{V1(s_)}:{V1(s_)+3}], v206 offset:{off+576}")
                    a("s_mov_b64 exec, -1")
            for i in range(0, 4): ex(kt, 0, i)
            if kt + 1 < NKT: qk_res(kt+1)
            for i in range(4, 12): ex(kt, 0, i)
            pv(kt, 0, 0)
            for i in range(12, 16): ex(kt, 0, i)
            if kt + 2 < NKT:
                if rel is None: rdK(kt+2)
                else:
                    s_ = kt & 1
                    a(f"ds_read_b128 v[{KMn(s_)}:{KMn(s_)+3}], v204 offset:{(kt+2-rel)*1024}")
                    a(f"ds_read_b32 v{KRs(s_)}, v205 offset:{(kt+2-rel)*256}")
            else: a("s_nop 1")
            pv(kt, 0, 1)
            for i in range(4): ex(kt, 1, i)
            if kt + 1 < NKT: qk_main(kt+1, 0)
            for i in range(4, 8): ex(kt, 1, i)
            if kt + 1 < NKT: qk_main(kt+1, 1)
            for i in range(8, 12): ex(kt, 1, i)
            pv(kt, 1, 0)
            for i in range(12, 16): ex(kt, 1, i)
        ROLL = o["roll"]
        if not ROLL:
            for kt in range(NKT): tile(kt)
        else:
            G = len(o["pat"]); L0 = 10; NIT = (NKT - 2 - L0) // G
            assert G % 2 == 0
            for kt in range(L0): tile(kt)
            a(f"""v_add_u32 v204, {L0*1024}, v{vL16}
v_add_u32 v205, {L0*256}, v{vKR}
v_add_u32 v206, {L0*1152}, v{vVa}
s_mov_b32 s44, 0""")
            itb = -(-(30 - L0 - G + 1) // G)
            itb = (28 - L0) // G
            a.label(f"L_p2_roll{copy}")
            a(f"""s_cmp_lg_u32 s44, {itb}
s_cbranch_scc1 L_p2_rnb{copy}
s_waitcnt vmcnt(0)
s_barrier""")
            a.label(f"L_p2_rnb{copy}")
            for u in range(G): tile(L0 + u, rel=L0)
            a(f"""v_add_u32 v204, {G*1024}, v204
v_add_u32 v205, {G*256}, v205
v_add_u32 v206, {G*1152}, v206
s_add_u32 s44, s44, 1
s_cmp_lt_u32 s44, {NIT}
s_cbranch_scc1 L_p2_roll{copy}""")
            for kt in range(L0 + NIT*G, NKT): tile(kt)
        a("s_nop 1")
        pv(NKT-1, 1, 1)
        a("s_setprio 0")
    if o["dual"]:
        a(f"s_cmp_ge_u32 s14, 4\ns_cbranch_scc1 L_p2_loopB")
        loop(0, lambda kt: 1 if kt == 0 else None)
        a("s_branch L_p2_loopdone")
        a.label("L_p2_loopB")
        pat = o["pat"]
        def pr(kt):
            cur = pat[kt % len(pat)]
            prev = pat[(kt-1) % len(pat)] if kt else None
            return cur if cur != prev else None
        loop(1, pr)
        a.label("L_p2_loopdone")
    else:
        loop(0, lambda kt: None)
    stamp(a, o, 6)
    if o["stamp"]:
        a(f"""s_memtime s[54:55]
s_waitcnt lgkmcnt(0)
s_cmp_lg_u32 s14, {99 if o.get("p1trace") else 4}
s_cbranch_scc1 L_p2_nw4
s_sub_u32 s56, s54, s52
s_sub_u32 s57, s94, s92
s_lshl_b32 s40, s2, 6
s_add_u32 s40, s40, {WS_USED}
v_mov_b32 v200, s40
v_mov_b32 v202, s56
v_mov_b32 v203, s57
s_mov_b64 exec, 1
global_store_dwordx2 v200, v[202:203], s[{pWS}:{pWS+1}] offset:48
s_mov_b64 exec, -1""")
        a.label("L_p2_nw4")
    def norm_store(j):
        a(f"v_rcp_f32 v{T}, v{O(j)+10}")
        a("s_nop 0")
        for i in range(10): a(f"v_mul_f32 v{O(j)+i}, v{O(j)+i}, v{T}")
        P = T + 2 + 6*j
        for i in range(4): a(f"v_cvt_pk_bf16_f32 v{P+i}, v{O(j)+2*i}, v{O(j)+2*i+1}")
        a(f"v_cvt_pk_bf16_f32 v{P+4}, v{O(j)+8}, v{O(j)+9}")
        a(f"buffer_store_dwordx4 v[{P}:{P+3}], v{vL16}, s[8:11], s46 offen offset:{0} sc1" if j == 0 else
          f"buffer_store_dwordx4 v[{P}:{P+3}], v{vL16}, s[8:11], s45 offen sc1")
        a("s_mov_b32 exec_hi, 0")
        a(f"buffer_store_dword v{P+4}, v197, s[8:11], s47 offen sc1" if j == 0 else f"buffer_store_dword v{P+4}, v197, s[8:11], s51 offen sc1")
        a("s_mov_b32 exec_hi, -1")
    a("s_add_u32 s45, s46, 32768\ns_add_u32 s51, s47, 4096")
    a.label("L_p2_store")
    norm_store(0); norm_store(1)
    a("s_cmp_lg_u32 s15, 0\ns_cbranch_scc1 L_p2_checked")
    a("s_mov_b64 s[20:21], 0")
    a("s_mov_b32 s22, 0x53800000")
    a("s_mov_b32 s23, 0x2b800000")
    a(f"v_mul_f32 v{T}, 0, v{O(0)}\nv_mul_f32 v{T+1}, 0, v{O(1)}")
    for i in range(1, 10):
        for j in range(NQ): a(f"v_fma_f32 v{T+j}, v{O(j)+i}, 0, v{T+j}")
    for j in range(NQ): a(f"v_add_f32 v{T+j}, v{T+j}, v{O(j)+10}")
    for j in range(NQ):
        a(f"v_cmp_ngt_f32 vcc, s22, v{T+j}")
        a("s_or_b64 s[20:21], s[20:21], vcc")
        a(f"v_cmp_nlt_f32 vcc, s23, v{T+j}")
        a("s_or_b64 s[20:21], s[20:21], vcc")
    a(f"""s_cmp_eq_u64 s[20:21], 0
s_cbranch_scc0 L_p2_fallback""")
    a.label("L_p2_checked")
    signal(a, 48, "p2")
    a("s_branch L_p2_end")
    a.label("L_p2_fallback")
    a("s_mov_b32 s15, 1")
    MX = T
    a(f"""v_mov_b32 v{MX}, 0xff800000
v_mov_b32 v{MX+1}, 0xff800000
v_mov_b32 v{QR+1}, 0
v_mov_b32 v{MX+4}, v{vL16}
v_mov_b32 v{MX+5}, v{vKR}
s_mov_b32 s18, {NKT}""")
    a.label("L_p2_fb1")
    a(f"""ds_read_b128 v[{KMn(0)}:{KMn(0)+3}], v{MX+4}
ds_read_b32 v{KRs(0)}, v{MX+5}
v_add_u32 v{MX+4}, 1024, v{MX+4}
v_add_u32 v{MX+5}, 256, v{MX+5}
s_waitcnt lgkmcnt(0)""")
    qk_res(0, 0)
    a("s_nop 15\ns_nop 3")
    qk_main(0, 0, 0); qk_main(0, 1, 0)
    a("s_nop 15")
    for j in range(NQ):
        for i in range(8): a(f"v_max3_f32 v{MX+j}, v{MX+j}, v{S(0,j)+2*i}, v{S(0,j)+2*i+1}")
    a(f"""s_sub_u32 s18, s18, 1
s_cmp_lg_u32 s18, 0
s_cbranch_scc1 L_p2_fb1""")
    x, y, hi, mid = MX+6, MX+7, MX+8, MX+9
    for j in range(NQ):
        a(f"""v_mov_b32 v{x}, v{MX+j}
v_mov_b32 v{y}, v{MX+j}
s_nop 1
v_permlane32_swap_b32 v{x}, v{y}
s_nop 1
v_max_f32 v{MX+j}, v{x}, v{y}""")
    a(f"""v_cmp_gt_u32 vcc, 32, v0
s_nop 1
v_cndmask_b32 v{x}, v{MX+1}, v{MX}, vcc
v_and_b32 v{hi}, 0xffff0000, v{x}
v_sub_f32 v{x}, v{x}, v{hi}
v_and_b32 v{mid}, 0xffff0000, v{x}
v_xor_b32 v{hi}, 0x80000000, v{hi}
v_xor_b32 v{mid}, 0x80000000, v{mid}
v_lshrrev_b32 v{hi}, 16, v{hi}
v_or_b32 v{QR+1}, v{hi}, v{mid}""")
    for j in range(NQ):
        for i in range(16): a(f"v_mov_b32 v{O(j)+i}, 0")
    a(f"""v_mov_b32 v{MX+4}, v{vL16}
v_mov_b32 v{MX+5}, v{vKR}
v_mov_b32 v{MX+6}, v{vVa}
s_mov_b32 s18, {NKT}""")
    a.label("L_p2_fb2")
    a(f"""ds_read_b128 v[{KMn(0)}:{KMn(0)+3}], v{MX+4}
ds_read_b32 v{KRs(0)}, v{MX+5}
s_mov_b64 exec, s[16:17]
ds_read_b128 v[{V0(0)}:{V0(0)+3}], v{MX+6}
ds_read_b128 v[{V1(0)}:{V1(0)+3}], v{MX+6} offset:576
s_mov_b64 exec, -1
v_add_u32 v{MX+4}, 1024, v{MX+4}
v_add_u32 v{MX+5}, 256, v{MX+5}
v_add_u32 v{MX+6}, 1152, v{MX+6}
s_waitcnt lgkmcnt(0)""")
    qk_res(0, 0)
    a("s_nop 15\ns_nop 3")
    qk_main(0, 0, 0); qk_main(0, 1, 0)
    a("s_nop 15")
    for j in range(NQ):
        for i in range(16): ex(0, j, i)
    a("s_nop 1")
    for j in range(NQ):
        pv(0, j, 0, 0); pv(0, j, 1, 0)
    a(f"""s_sub_u32 s18, s18, 1
s_cmp_lg_u32 s18, 0
s_cbranch_scc1 L_p2_fb2
s_nop 7
s_nop 7
s_branch L_p2_store""")
    a.label("L_p2_end")

def phase3(a, o):
    NC3 = 5
    RS3 = 160
    OF = lambda ks: 64 + 4*ks
    WF = lambda p, c: 144 + 20*p + 4*c
    ACC = lambda c: 16 + 4*c
    vL, vWa, vWr, vWD = 1, 2, 4, 5
    D = o["p3depth"]
    a(f"""s_and_b32 s30, s2, 7
s_lshr_b32 s31, s2, 3
s_mov_b32 s32, s{sWAVE}
s_lshr_b32 s33, s30, 2
s_and_b32 s34, s30, 3
s_lshl_b32 s34, s34, 2
s_and_b32 s35, s31, 3
s_add_u32 s34, s34, s35
s_lshr_b32 s35, s31, 2
s_lshl_b32 s36, s34, 2
s_lshr_b32 s37, s32, 1
s_add_u32 s36, s36, s37""")
    a(f"""v_mul_u32_u24 v9, 26, v0
v_lshrrev_b32 v9, 8, v9
v_mul_u32_u24 v10, 10, v9
v_sub_u32 v10, v0, v10
v_mul_u32_u24 v9, 1152, v9
v_lshl_add_u32 v{vWD}, v10, 4, v9
s_cmp_eq_u32 s33, 0
s_cselect_b32 s8, s{pAWO}, s{pBWO}
s_cselect_b32 s9, s{pAWO+1}, s{pBWO+1}
s_mov_b32 s10, {WO_BYTES}
s_mov_b32 s11, 0x00020000
s_sub_u32 s38, s32, 1
s_mul_i32 s22, s38, {6*1152}
s_mul_i32 s23, s35, 144
s_add_u32 s22, s22, s23
s_mul_i32 s23, s38, {6*RS3}
s_cmp_eq_u32 s32, 0
s_cbranch_scc1 L_p3_nodma
s_mov_b32 exec_hi, 0x0fffffff""")
    for r in range(14):
        if r == 13: a("s_cmp_ge_u32 s38, 5\ns_cbranch_scc1 L_p3_dmadone")
        a("s_mov_b32 m0, s23")
        a(f"s_add_u32 s23, s23, {42*RS3}")
        a(f"buffer_load_dwordx4 v{vWD}, s[8:11], s22 offen lds")
        a(f"s_add_u32 s22, s22, {42*1152}")
    a.label("L_p3_dmadone")
    a("s_mov_b32 exec_hi, -1")
    a.label("L_p3_nodma")
    a("s_mov_b32 exec_hi, -1")
    a(f"""v_and_b32 v7, 15, v0
v_lshrrev_b32 v8, 4, v0
v_lshlrev_b32 v9, 9, v8
v_lshl_add_u32 v{vL}, v7, 4, v9
s_and_b32 s37, s32, 1
s_lshl_b32 s38, s37, 6
s_lshl_b32 s37, s37, 8
v_add_u32 v{vL}, s37, v{vL}
v_lshlrev_b32 v47, 2, v7
v_lshl_add_u32 v47, v8, 9, v47
v_add_u32 v47, s38, v47
v_lshrrev_b32 v9, 1, v8
v_mul_u32_u24 v9, 20, v9
v_and_b32 v10, 1, v8
v_lshl_add_u32 v9, v10, 2, v9
v_lshrrev_b32 v10, 2, v7
v_add_u32 v9, v9, v10
v_mul_u32_u24 v9, {RS3}, v9
v_and_b32 v11, 3, v7
v_lshl_add_u32 v{vWa}, v11, 3, v9
v_add_u32 v3, {8*36*RS3}, v{vWa}
v_lshlrev_b32 v9, 2, v8
v_lshrrev_b32 v12, 1, v10
v_add_u32 v9, v9, v12
v_mul_u32_u24 v9, 18, v9
v_and_b32 v13, 1, v10
v_add_u32 v9, v9, v13
v_xor_b32 v12, 1, v12
v_lshl_add_u32 v9, v12, 4, v9
v_mul_u32_u24 v9, {RS3}, v9
v_lshl_add_u32 v{vWr}, v11, 3, v9
s_lshr_b32 s37, s34, 2
s_lshl_b32 s38, s33, 2
s_add_u32 s37, s37, s38
s_lshl_b32 s37, s37, 5
s_add_u32 s37, s37, 256
v_add_u32 v6, s37, v0
v_lshlrev_b32 v6, 7, v6
v_add_u32 v6, {FLAG_OFF}, v6""")
    srd(a, 16, pWS, WS_USED)
    srd(a, 12, pOUT, OUT_BYTES)
    STG = 576*RS3
    R3 = 152
    a(f"""s_lshl_b32 s20, s33, 21
s_lshl_b32 s21, s36, 15
s_add_u32 s20, s20, s21
s_add_u32 s20, s20, {OM_OFF}
s_lshl_b32 s21, s33, 18
s_lshl_b32 s22, s36, 12
s_add_u32 s21, s21, s22
s_add_u32 s21, s21, {OR_OFF}
s_mul_i32 s23, s32, {16*168}
s_add_u32 s23, s23, {STG}
v_mul_u32_u24 v9, 168, v7
v_lshl_add_u32 v9, v8, 3, v9
v_add_u32 v14, s23, v9
s_lshl_b32 s24, s36, 5
s_and_b32 s25, s32, 1
s_lshl_b32 s25, s25, 4
s_add_u32 s24, s24, s25
s_mul_i32 s24, s24, 2304
s_mul_i32 s25, s33, 1152
s_add_u32 s24, s24, s25
s_mul_i32 s25, s35, 144
s_add_u32 s24, s24, s25""")
    for k in range(3):
        a(f"""v_add_u32 v10, {64*k}, v0
v_mul_u32_u24 v11, 57, v10
v_lshrrev_b32 v11, 9, v11
v_mul_u32_u24 v12, 9, v11
v_sub_u32 v12, v10, v12
v_mul_u32_u24 v13, 168, v11
v_lshl_add_u32 v13, v12, 4, v13
v_add_u32 v{40+k}, s23, v13
v_mul_u32_u24 v13, 2304, v11
v_lshl_add_u32 v{44+k}, v12, 4, v13""")
    poll(a, 6, -1, "p2", others_wait=True)
    stamp(a, o, 8)
    def oload(ks):
        if ks < 16:
            L = [f"buffer_load_dwordx4 v[{OF(ks)}:{OF(ks)+3}], v{vL}, s[16:19], s20 offen offset:{(ks%2)*2048} sc1"]
            if ks % 2 == 1: L.append("s_add_u32 s20, s20, 4096")
            return L
        return [f"buffer_load_dword v{OF(ks)+r}, v47, s[16:19], s21 offen offset:{(ks-16)*2048 + 128*r} sc1" for r in range(4)]
    nld = lambda ks: 1 if ks < 16 else 4
    def reads(ks, p):
        L = []
        for c in range(NC3):
            for t in range(2):
                if ks < 16:
                    base, k0 = (vWa, ks) if ks < 8 else (3, ks - 8)
                    off = (36*k0 + 8*t)*RS3 + 32*c
                else:
                    base = vWr
                    off = (288*(ks-16) + 36*t)*RS3 + 32*c
                L.append(f"ds_read_b64_tr_b16 v[{WF(p,c)+2*t}:{WF(p,c)+2*t+1}], v{base} offset:{off}")
        return L
    def mfmas(ks):
        p = ks & 1
        return [f"v_mfma_f32_16x16x32_bf16 v[{ACC(c)}:{ACC(c)+3}], v[{WF(p,c)}:{WF(p,c)+3}], v[{OF(ks)}:{OF(ks)+3}], " + (f"v[{ACC(c)}:{ACC(c)+3}]" if ks else "0")
                for c in range(NC3)]
    for ks in range(D):
        for x in oload(ks): a(x)
    for x in reads(0, 0): a(x)
    for ks in range(18):
        issued = min(17, ks + D - 1)
        a(f"s_waitcnt vmcnt({sum(nld(k) for k in range(ks + 1, issued + 1))}) lgkmcnt(0)")
        rd = reads(ks+1, (ks+1) & 1) if ks + 1 < 18 else []
        M = mfmas(ks)
        if ks + D < 18:
            for x in oload(ks + D): a(x)
        for idx, m in enumerate(M):
            a(m)
            for x in rd[2*idx:2*idx+2]: a(x)
    stamp(a, o, 9)
    a("s_nop 7")
    for c in range(NC3):
        r = ACC(c); P = 64 + 2*c
        a(f"v_cvt_pk_bf16_f32 v{P}, v{r}, v{r+1}")
        a(f"v_cvt_pk_bf16_f32 v{P+1}, v{r+2}, v{r+3}")
        a(f"ds_write_b64 v14, v[{P}:{P+1}] offset:{32*c}")
    a("s_waitcnt lgkmcnt(0)")
    for k in range(3): a(f"ds_read_b64 v[{120+4*k}:{121+4*k}], v{40+k}\nds_read_b64 v[{122+4*k}:{123+4*k}], v{40+k} offset:8")
    for k in range(3):
        a(f"s_waitcnt lgkmcnt({4-2*k})")
        if k == 2: a("s_mov_b32 exec_lo, 0xffff\ns_mov_b32 exec_hi, 0")
        a(f"buffer_store_dwordx4 v[{120+4*k}:{123+4*k}], v{44+k}, s[12:15], s24 offen{o['outflag']}")
    a("s_mov_b64 exec, -1")

def gen(opts=None):
    global POLLD, POLLS
    POLLD = (opts or {}).get("polld", 1); POLLS = (opts or {}).get("polls", 1)
    o = dict(stamp=False, bar1=5, bar2=26, rot=3, dual=True, pat=[2,2,2,2,2,2,0], wopf=True, wcomp=False, xcomp=False, pf=False, pfstep=0, p3depth=8, outflag='', midnop=True, p1f=' sc1', epi8=False, epipipe=True, roll=False, p2pad=-1, p1pad=-1, ldprio=0, direct0=False)
    if opts: o.update(opts)
    a = A()
    a(f".globl {NAME}\n.p2align 8\n.type {NAME},@function")
    a.label(NAME)
    a(f"""s_cmp_ge_u32 s2, 256
s_cbranch_scc1 L_exit
s_load_dwordx16 s[{sP}:{sP+15}], s[0:1], 0
s_load_dwordx2 s[{pWS}:{pWS+1}], s[0:1], 64
v_lshrrev_b32 v1, 6, v0
v_and_b32 v0, 63, v0
s_nop 0
v_readfirstlane_b32 s{sWAVE}, v1""")
    stamp(a, o, 0)
    a("s_nop 3")
    nonce_publish(a)
    phase1(a, o)
    stamp(a, o, 3)
    a("; ================================================= P2: attention")
    phase2(a, o)
    stamp(a, o, 7)
    phase3(a, o)
    a.label("L_end")
    if o["stamp"]:
        a(f"""s_cmp_lg_u32 s{sWAVE}, 0
s_cbranch_scc1 L_exit
s_memrealtime s[42:43]
s_waitcnt lgkmcnt(0)
s_lshl_b32 s40, s2, 6
s_add_u32 s40, s40, {WS_USED}
v_mov_b32 v2, s40
s_mov_b64 exec, 1""")
        for i in range(11):
            a(f"v_mov_b32 v3, s{82+2*i if i < 10 else 42}")
            a(f"global_store_dword v2, v3, s[{pWS}:{pWS+1}] offset:{4*i}")
        a("s_sub_u32 s54, s54, s52\nv_mov_b32 v3, s54")
        a(f"global_store_dword v2, v3, s[{pWS}:{pWS+1}] offset:44")
        if not o.get("p1trace"):
            a("v_mov_b32 v3, s59")
            a(f"global_store_dword v2, v3, s[{pWS}:{pWS+1}] offset:56")
        if o.get("p3trace"):
            for c in range(4):
                a(f"s_sub_u32 s40, s{44+2*c}, s98\nv_mov_b32 v3, s40")
                a(f"global_store_dword v2, v3, s[{pWS}:{pWS+1}] offset:{48+4*c}")
        if o.get("dbgstamp"):
            a(f"s_cmp_lg_u32 s2, {o['dbgstamp']}\ns_cbranch_scc1 L_exit\nv_mov_b32 v2, 0")
            for i in range(11):
                src = 82+2*i if i < 10 else 42
                a(f"s_sub_u32 s44, s{src}, s82" if i else "s_mov_b32 s44, s82")
                a("v_mov_b32 v3, s44")
                a(f"global_store_dword v2, v3, s[{pDBG}:{pDBG+1}] offset:{4*(i+1)}")
    a.label("L_exit")
    a("s_endpgm")
    return a.text(), kdesc(NAME, 256, 102)
```

```python
from asmlib import *
NAME = "concat_heads__mha_block__mha_block__prompt_kernel"
THREADS = 512
ST1 = 49664
WREG = 32768
RS = 232
LDS_KM, LDS_VT, LDS_KR = 0, 65536, 139264
WO_RS = 224
WO_IMG = 576 * WO_RS
K3_STG = 32 * 208
LDS_BYTES = 155648
SPIN_MAX = 400000
sWAVE = 3
sP = 64
pAX, pAW, pAWO, pBX, pBW, pBWO, pOUT, pDBG, pWS = [sP + 2*i for i in range(9)]
CNT1 = 0
CNT2 = 128

def srd(a, d, p, nbytes):
    a(f"s_mov_b32 s{d}, s{p}\ns_mov_b32 s{d+1}, s{p+1}\ns_mov_b32 s{d+2}, {nbytes}\ns_mov_b32 s{d+3}, 0x00020000")

def stamp(a, o, idx):
    if o["stamp"]:
        a(f"s_memrealtime s[{82+2*idx}:{83+2*idx}]")

sNONCE = 63
def trace(a, o, k, tag):
    if o.get("p1trace"):
        a(f"""s_cmp_lg_u32 s{sWAVE}, {o['p1trace']-1}
s_cbranch_scc1 L_tr_{tag}
s_memrealtime s[60:61]
s_waitcnt lgkmcnt(0)
s_lshl_b32 s62, s2, 6
s_add_u32 s62, s62, {WS_USED}
v_mov_b32 v250, s62
v_mov_b32 v251, s60
s_mov_b64 exec, 1
global_store_dword v250, v251, s[{pWS}:{pWS+1}] offset:{48+4*k}
s_mov_b64 exec, -1""")
        a.label(f"L_tr_{tag}")

def nonce_publish(a):
    a(f"""s_cmp_lg_u32 s2, 0
s_cbranch_scc1 L_nonce_done
s_cmp_lg_u32 s{sWAVE}, 0
s_cbranch_scc1 L_nonce_done
s_memrealtime s[40:41]
s_waitcnt lgkmcnt(0)
s_or_b32 s40, s40, 1
v_mov_b32 v2, 0
v_mov_b32 v3, s40
s_mov_b64 exec, 1
global_store_dword v2, v3, s[{pDBG}:{pDBG+1}] sc1
s_mov_b64 exec, -1""")
    a.label("L_nonce_done")

sSYNC = 0
def nonce_fetch(a):
    a(f"""s_cmp_lg_u32 s{sWAVE}, {sSYNC}
s_cbranch_scc1 L_nf_done
s_mov_b32 s58, 0""")
    a.label("L_nf_loop")
    a(f"""s_waitcnt vmcnt(0)
v_readfirstlane_b32 s{sNONCE}, v255
s_add_u32 s58, s58, 1
s_cmp_lg_u32 s{sNONCE}, 0
s_cbranch_scc1 L_nf_done
s_sleep 4
global_load_dword v255, v254, s[{pDBG}:{pDBG+1}] sc1
s_cmp_lt_u32 s58, {SPIN_MAX}
s_cbranch_scc1 L_nf_loop""")
    a.label("L_nf_done")

def signal(a, line_sgpr, tag):
    a("s_waitcnt vmcnt(0)")
    a("s_barrier")
    a(f"""s_cmp_lg_u32 s{sWAVE}, {sSYNC}
s_cbranch_scc1 L_sig_{tag}
s_lshl_b32 s{line_sgpr}, s{line_sgpr}, 7
s_add_u32 s{line_sgpr}, s{line_sgpr}, {FLAG_OFF}
v_mov_b32 v254, s{line_sgpr}
v_mov_b32 v255, s{sNONCE}
s_mov_b64 exec, 1
global_store_dword v254, v255, s[{pWS}:{pWS+1}] sc1
s_mov_b64 exec, -1""")
    a.label(f"L_sig_{tag}")

POLLD = 1
POLLS = 1
def poll(a, addr_vgpr, nlanes_mask_lo, tag, others_wait=False):
    a(f"""s_cmp_lg_u32 s{sWAVE}, {sSYNC}
s_cbranch_scc1 L_polled_{tag}
s_mov_b32 s40, 0
s_mov_b32 exec_hi, 0
s_mov_b32 exec_lo, {nlanes_mask_lo}""")
    D = POLLD
    for d in range(D - 1):
        a(f"global_load_dword v{254-d}, v{addr_vgpr}, s[{pWS}:{pWS+1}] sc1")
        a(f"s_sleep {POLLS*4}")
    a.label(f"L_poll_{tag}")
    regs = [254 - d for d in range(D - 1)] + [255]
    for d in range(D):
        new_r = regs[(d + D - 1) % D]; old_r = regs[d]
        a(f"""global_load_dword v{new_r}, v{addr_vgpr}, s[{pWS}:{pWS+1}] sc1
s_waitcnt vmcnt({D-1})
v_cmp_ne_u32 vcc, s{sNONCE}, v{old_r}
s_cmp_eq_u64 vcc, 0
s_cbranch_scc1 L_pollok_{tag}
s_sleep {POLLS if D == 1 else POLLS*4}""")
    a(f"""s_add_u32 s40, s40, 1
s_cmp_lt_u32 s40, {SPIN_MAX}
s_cbranch_scc1 L_poll_{tag}""")
    a.label(f"L_pollok_{tag}")
    a("s_mov_b64 exec, -1")
    a.label(f"L_polled_{tag}")
    if others_wait: a("s_waitcnt vmcnt(0)")
    a("s_barrier")

def p1_epilogue_consts(a):
    assert QM_OFF == 0 and KM_OFF == (1 << 22) and KR_OFF - QR_OFF == (1 << 19)
    srd(a, 16, pWS, WS_USED)
    a(f"""s_mul_i32 s39, s32, {64*RS}
s_mul_i32 s40, s35, 6
v_mul_u32_u24 v5, {RS}, v3
v_lshl_add_u32 v5, v4, 3, v5
v_add_u32 v2, s39, v5
v_and_b32 v6, 31, v0
v_lshrrev_b32 v7, 5, v0
v_mul_u32_u24 v8, {RS}, v6
v_lshl_add_u32 v8, v7, 4, v8
v_add_u32 v8, s39, v8
v_add_u32 v240, {32*RS}, v8
v_lshlrev_b32 v9, 4, v0
v_mul_u32_u24 v10, {RS}, v0
v_add_u32 v10, s39, v10
v_lshlrev_b32 v11, 3, v0
v_lshrrev_b32 v12, 1, v4
v_lshrrev_b32 v13, 2, v3
v_lshl_add_u32 v13, v12, 3, v13
v_mul_u32_u24 v13, {RS}, v13
v_add_u32 v13, s39, v13
v_and_b32 v14, 1, v4
v_and_b32 v15, 3, v3
v_lshlrev_b32 v15, 3, v15
v_mul_u32_u24 v12, 288, v12
s_lshr_b32 s42, s38, 5
s_lshl_b32 s42, s42, 10
s_lshl_b32 s43, s38, 3
s_lshr_b32 s27, s38, 4
s_mul_i32 s27, s27, 576
s_sub_u32 s41, 32, s40
s_cmp_lt_u32 s40, 32
s_cselect_b32 s41, s41, 0
s_lshr_b32 s41, s41, 1
s_mul_i32 s41, s41, 9
s_mov_b32 s28, {f32bits(QSCALE)}
v_cmp_eq_u32 vcc, 0, v14""")
    for hl in range(6):
        pl, par = hl // 2, hl % 2
        a(f"""v_add_u32 v{242+hl}, {72*pl + 40*par}, v15
v_mov_b32 v17, {72*pl + 32}
v_cndmask_b32 v{242+hl}, v17, v{242+hl}, vcc
v_add_u32 v{242+hl}, v{242+hl}, v13""")
    for par in range(2):
        a(f"""v_add_u32 v17, {16 - 2*par}, v3
v_cndmask_b32 v17, v17, v3, vcc
v_lshl_add_u32 v{250+par}, v17, 4, v12""")
    for hl in range(6):
        sK, sM, sR = 20 + hl, 52 + hl, 48 + hl//2
        a(f"""s_add_u32 s46, s40, {hl}
s_lshr_b32 s{sK}, s46, 5
s_and_b32 s46, s46, 31
s_lshl_b32 s47, s33, 5
s_add_u32 s47, s47, s46
s_lshl_b32 s{sM}, s47, 16
s_lshl_b32 s46, s{sK}, 22
s_add_u32 s{sM}, s{sM}, s46
s_add_u32 s{sM}, s{sM}, s42
s_mul_i32 s46, s47, {VT_STRIDE}
s_add_u32 s46, s46, s27
s_add_u32 s46, s46, {VT_OFF}
s_cmp_eq_u32 s{sK}, 2
s_cselect_b32 s{sM}, s46, s{sM}""")
        if hl % 2 == 0:
            a(f"""s_lshr_b32 s{sR}, s47, 1
s_lshl_b32 s{sR}, s{sR}, 14
s_add_u32 s{sR}, s{sR}, s43
s_lshl_b32 s46, s{sK}, 19
s_add_u32 s{sR}, s{sR}, s46
s_add_u32 s{sR}, s{sR}, {QR_OFF}""")

def p1_epilogue_pipe(a, o, ACC, P1F):
    cnt = [0]
    def stage(c):
        a(f"s_cmp_le_u32 s41, {4*c}\ns_cbranch_scc1 L_p1_ns{c}")
        a(f"s_cmp_lt_u32 s41, {4*c+4}\ns_cbranch_scc1 L_p1_mx{c}")
        for i in range(4):
            r = ACC(i, c)
            a(f"v_pk_mul_f32 v[{r}:{r+1}], v[{r}:{r+1}], s[28:29] op_sel_hi:[1,0]")
            a(f"v_pk_mul_f32 v[{r+2}:{r+3}], v[{r+2}:{r+3}], s[28:29] op_sel_hi:[1,0]")
        a(f"s_branch L_p1_ns{c}")
        a.label(f"L_p1_mx{c}")
        a(f"""v_add_u32 v6, {4*c}, v4
v_cmp_gt_u32 vcc, s41, v6
v_mov_b32 v7, 1.0
v_mov_b32 v241, s28
v_cndmask_b32 v6, v7, v241, vcc""")
        for i in range(4):
            r = ACC(i, c)
            a(f"v_pk_mul_f32 v[{r}:{r+1}], v[{r}:{r+1}], v[6:7] op_sel_hi:[1,0]")
            a(f"v_pk_mul_f32 v[{r+2}:{r+3}], v[{r+2}:{r+3}], v[6:7] op_sel_hi:[1,0]")
        a.label(f"L_p1_ns{c}")
        for i in range(4):
            r = ACC(i, c); P = 40 + 2*(cnt[0] % 16); cnt[0] += 1
            a(f"v_cvt_pk_bf16_f32 v{P}, v{r}, v{r+1}")
            a(f"v_cvt_pk_bf16_f32 v{P+1}, v{r+2}, v{r+3}")
            a(f"ds_write_b64 v2, v[{P}:{P+1}] offset:{i*16*RS + 32*c}")
    RR = lambda hl: 128 + 16*hl
    sK = lambda hl: 20 + hl
    sM = lambda hl: 52 + hl
    sR = lambda hl: 48 + hl//2
    def reads(hl):
        pl, par = hl // 2, hl % 2
        lab = f"L_p1_h{hl}"; R = RR(hl)
        a(f"s_cmp_eq_u32 s{sK(hl)}, 2\ns_cbranch_scc1 {lab}_v")
        off = 72*pl + 40*par
        a(f"ds_read2_b64 v[{R}:{R+3}], v8 offset0:{off//8} offset1:{off//8+1}")
        a(f"ds_read2_b64 v[{R+4}:{R+7}], v240 offset0:{off//8} offset1:{off//8+1}")
        if par == 0: a(f"ds_read_b64 v[{R+8}:{R+9}], v10 offset:{72*pl + 32}")
        a(f"s_branch {lab}_e")
        a.label(f"{lab}_v")
        for grp in range(4):
            for tr in range(2):
                a(f"ds_read_b64_tr_b16 v[{R+4*grp+2*tr}:{R+4*grp+2*tr+1}], v{242+hl} offset:{(16*grp + 4*tr)*RS}")
        a.label(f"{lab}_e")
    def stores(hl):
        pl, par = hl // 2, hl % 2
        lab = f"L_p1_s{hl}"; R = RR(hl)
        sk = o.get("p1skip", "")
        a(f"s_cmp_eq_u32 s{sK(hl)}, 2\ns_cbranch_scc1 {lab}_v")
        if "m" not in sk:
            a(f"buffer_store_dwordx4 v[{R}:{R+3}], v9, s[16:19], s{sM(hl)} offen{P1F}")
            a(f"buffer_store_dwordx4 v[{R+4}:{R+7}], v9, s[16:19], s{sM(hl)} offen offset:1024{P1F}")
        if par == 0 and "r" not in sk: a(f"buffer_store_dwordx2 v[{R+8}:{R+9}], v11, s[16:19], s{sR(hl)} offen{P1F}")
        a(f"s_branch {lab}_e")
        a.label(f"{lab}_v")
        m16 = 0xffff | ((0x3 << (2*par)) << 16)
        a(f"s_mov_b32 exec_lo, {m16}\ns_mov_b32 exec_hi, {m16}")
        for grp in range(4):
            if "v" not in sk:
                a(f"buffer_store_dwordx4 v[{R+4*grp}:{R+4*grp+3}], v{250+par}, s[16:19], s{sM(hl)} offen offset:{576*grp}{P1F}")
        a("s_mov_b64 exec, -1")
        a.label(f"{lab}_e")
    stage(0); stage(1); stage(2)
    reads(0); reads(1)
    stage(3); stage(4)
    a("s_waitcnt lgkmcnt(8)")
    stores(0); stores(1)
    reads(2); reads(3)
    stage(5); stage(6)
    a("s_waitcnt lgkmcnt(8)")
    stores(2); stores(3)
    reads(4); reads(5)
    a("s_waitcnt lgkmcnt(0)")
    stores(4); stores(5)

def phase1(a, o):
    P1F = o['p1f']
    ROT = o['rot']
    if o.get("rot9"):
        ma, mb = o["rot9"]
        ROTCODE = f"""s_mul_i32 s24, s35, {ma}
s_mul_i32 s25, s34, {mb}
s_add_u32 s24, s24, s25
s_mul_i32 s25, s24, 57
s_lshr_b32 s25, s25, 9
s_mul_i32 s25, s25, 9
s_sub_u32 s24, s24, s25"""
        for v in range(16*ma + 8*mb): assert (v*57) >> 9 == v // 9, v
    else:
        ROTCODE = f"""s_add_u32 s24, s35, s34
s_mul_i32 s25, s24, 43
s_lshr_b32 s25, s25, 7
s_mul_i32 s25, s25, 3
s_sub_u32 s24, s24, s25
s_mul_i32 s24, s24, {ROT}"""
    vXD = lambda i: 16 + i
    vWD = lambda i: 24 + i
    vX = lambda st, ks: 28 + 2*st + ks
    vW = lambda st: 34 + st
    XF = lambda p, i: 40 + 16*p + 4*i
    WF = lambda p, c: 72 + 28*p + 4*c
    ACC = lambda i, c: 128 + 4*(4*c + i)
    n = 7
    GL = o.get("gl")
    if GL:
        a(f"""s_and_b32 s30, s2, 7
s_lshr_b32 s31, s2, 3
s_and_b32 s32, s{sWAVE}, 3
s_lshr_b32 s33, s30, 2
s_and_b32 s34, s31, 7
s_and_b32 s35, s30, 3
s_lshl_b32 s35, s35, 2
s_lshr_b32 s36, s31, 3
s_add_u32 s35, s35, s36
s_lshl_b32 s20, s34, 8
s_lshl_b32 s21, s32, 6
s_add_u32 s38, s20, s21
s_lshl_b32 s37, s32, 13
v_lshrrev_b32 v4, 4, v0
v_and_b32 v3, 15, v0""")
    else: a(f"""s_and_b32 s30, s2, 7
s_lshr_b32 s31, s2, 3
s_and_b32 s32, s{sWAVE}, 3
s_lshr_b32 s33, s30, 2
s_and_b32 s34, s30, 1
s_lshl_b32 s34, s34, 2
s_and_b32 s35, s31, 3
s_add_u32 s34, s34, s35
s_lshr_b32 s35, s30, 1
s_and_b32 s35, s35, 1
s_lshl_b32 s35, s35, 3
s_lshr_b32 s36, s31, 2
s_add_u32 s35, s35, s36
s_lshl_b32 s20, s34, 8
s_lshl_b32 s21, s32, 6
s_add_u32 s38, s20, s21
s_lshl_b32 s37, s32, 13
v_lshrrev_b32 v4, 4, v0
v_and_b32 v3, 15, v0""")
    WC = o["wcomp"]
    a(f"""v_and_b32 v2, 1, v4
v_lshrrev_b32 v5, 1, v4
v_lshlrev_b32 v2, 2, v2
v_lshl_add_u32 v2, v5, 4, v2
v_mul_u32_u24 v2, 3456, v2""")
    if GL:
        a(f"""v_mul_u32_u24 v5, 13, v3
v_lshrrev_b32 v5, 6, v5
v_mul_u32_u24 v6, 5, v5
v_sub_u32 v6, v3, v6
v_mul_u32_u24 v5, 1152, v5
v_lshl_add_u32 v5, v6, 4, v5
v_add_u32 v2, v2, v5
v_mov_b32 v5, 0x40000000
v_cmp_gt_u32 vcc, 15, v3""")
    else:
        a(f"""v_lshl_add_u32 v2, v3, 4, v2
v_mov_b32 v5, 0x40000000
v_cmp_gt_u32 vcc, 14, v3""")
    a(f"""s_mul_i32 s20, s38, 1152
s_lshr_b32 s21, s32, 1
v_cndmask_b32 v2, v5, v2, vcc""")
    for i in range(4):
        a(f"v_add_u32 v{vWD(i)}, {3456*i}, v2")
    a(f"""s_lshl_b32 s21, s21, 5
s_and_b32 s22, s32, 1
s_lshl_b32 s23, s22, 3
s_add_u32 s21, s21, s23
s_mul_i32 s21, s21, 3456
s_mul_i32 s23, s35, {72 if GL else 216}
s_add_u32 s21, s21, s23
s_lshr_b32 s23, s32, 1
s_mul_i32 s23, s23, 8448
s_mul_i32 s22, s22, {4*1056}
s_add_u32 s23, s23, s22
s_add_u32 s23, s23, {WREG}
s_mov_b32 s22, s37
{ROTCODE}
s_lshl_b32 s25, s24, 7
s_add_u32 s20, s20, s25
s_mul_i32 s25, s24, {64*3456}
s_add_u32 s21, s21, s25""")
    a(f"""v_lshrrev_b32 v2, 3, v0
v_and_b32 v5, 7, v0
v_xor_b32 v5, v5, v4
v_mul_u32_u24 v6, 1152, v2
v_lshl_add_u32 v7, v5, 4, v6
v_xor_b32 v8, 64, v7""")
    for i in range(8):
        a(f"v_add_u32 v{vXD(i)}, {9216*i}, v{7 if i % 2 == 0 else 8}")
    a(f"""s_mov_b32 s10, {X_BYTES}
s_mov_b32 s11, 0x00020000
s_mov_b32 s14, {W_BYTES}
s_mov_b32 s15, 0x00020000
s_waitcnt lgkmcnt(0)
s_cmp_eq_u32 s33, 0
s_cselect_b32 s8, s{pAX}, s{pBX}
s_cselect_b32 s9, s{pAX+1}, s{pBX+1}
s_cselect_b32 s12, s{pAW}, s{pBW}
s_cselect_b32 s13, s{pAW+1}, s{pBW+1}
s_cmp_ge_u32 s{sWAVE}, 4
s_cbranch_scc0 L_p1_compute""")
    wrap = [f"s_add_u32 s21, s21, {64*3456}", "s_add_u32 s20, s20, 128", "s_add_u32 s24, s24, 1", "s_cmp_eq_u32 s24, 9",
            f"s_cselect_b32 s25, {9*128}, 0", f"s_cselect_b32 s26, {9*64*3456}, 0", "s_cselect_b32 s24, 0, s24",
            "s_sub_u32 s20, s20, s25", "s_sub_u32 s21, s21, s26"]
    def w_units(cc):
        st = cc % 3
        U = [[f"s_add_u32 m0, s23, {st*ST1}"]]
        for i in range(4):
            u = [f"buffer_load_dwordx4 v{vWD(i)}, s[12:15], s21 offen lds"]
            u += ["s_add_u32 m0, m0, 1056"] if i < 3 else wrap
            U.append(u)
        return U
    def flat(U):
        for u in U:
            for x in u:
                if x.startswith("buffer_load"): a("s_nop 0")
                a(x)
    XC = o["xcomp"]
    def xsetup():
        a(f"""v_lshrrev_b32 v2, 3, v0
v_and_b32 v5, 7, v0
v_xor_b32 v5, v5, v4
v_mul_u32_u24 v6, 1152, v2
v_lshl_add_u32 v7, v5, 4, v6
v_xor_b32 v8, 64, v7""")
        for i in range(8):
            a(f"v_add_u32 v{vXD(i)}, {9216*i}, v{7 if i % 2 == 0 else 8}")
    if XC:
        for _ in range(9): a("s_barrier")
        a("s_branch L_p1_rb" if o["epi8"] else "s_branch L_p1_done")
    if o.get("ldprio"): a(f"s_setprio {o['ldprio']}")
    NL = 8 if WC else 12
    def dma(cc):
        st = cc % 3
        a(f"s_add_u32 m0, s22, {st*ST1}")
        for i in range(8):
            a("s_nop 0")
            a(f"buffer_load_dwordx4 v{vXD(i)}, s[8:11], s20 offen lds")
            if i < 7: a("s_add_u32 m0, m0, 1024")
        if WC:
            for x in wrap: a(x)
        else:
            if o.get("wmask"): a("s_mov_b32 exec_lo, 0x3fff3fff\ns_mov_b32 exec_hi, 0x3fff3fff")
            flat(w_units(cc))
            if o.get("wmask"): a("s_mov_b64 exec, -1")
    dma(0); dma(1)
    a(f"s_waitcnt vmcnt({NL})")
    a("s_barrier")
    dma(2)
    for cc in range(8):
        rem = min(8, cc + 2) - (cc + 1)
        a(f"s_waitcnt vmcnt({NL*rem})")
        a("s_barrier")
        if cc + 3 <= 8: dma(cc + 3)
    if o.get("ldprio"): a("s_setprio 0")
    a("s_branch L_p1_rb" if o["epi8"] else "s_branch L_p1_done")
    a.label("L_p1_compute")
    def xw_units(cc):
        st = cc % 3
        U = [[f"s_add_u32 m0, s22, {st*ST1}"]]
        for i in range(8):
            U.append([f"buffer_load_dwordx4 v{vXD(i)}, s[8:11], s20 offen lds",
                      "s_add_u32 m0, m0, 1024" if i < 7 else f"s_add_u32 m0, s23, {st*ST1}"])
        return U + w_units(cc)[1:]
    if XC:
        xsetup()
        flat(xw_units(0)); flat(xw_units(1))
    elif WC:
        flat(w_units(0)); flat(w_units(1))
    a(f"""v_lshrrev_b32 v5, 1, v3
v_xor_b32 v5, v5, v4
v_lshlrev_b32 v5, 4, v5
v_lshl_add_u32 v5, v3, 7, v5
v_add_u32 v5, s37, v5
v_xor_b32 v6, 64, v5""")
    for st in range(3):
        a(f"v_add_u32 v{vX(st,0)}, {st*ST1}, v5")
        a(f"v_add_u32 v{vX(st,1)}, {st*ST1}, v6")
    a(f"""v_lshrrev_b32 v5, 2, v3
v_and_b32 v6, 1, v4
v_lshl_add_u32 v5, v6, 2, v5
v_mul_u32_u24 v5, 1056, v5
v_lshrrev_b32 v6, 1, v4
v_lshl_add_u32 v5, v6, 9, v5
v_and_b32 v6, 3, v3
v_lshl_add_u32 v5, v6, 3, v5""")
    for st in range(3):
        a(f"v_add_u32 v{vW(st)}, {st*ST1 + WREG}, v5")
    def reads(g):
        cc, ks = g // 2, g % 2
        st, p = cc % 3, g & 1
        L = []
        for c in range(n):
            if c < 4: L.append(f"ds_read_b128 v[{XF(p,c)}:{XF(p,c)+3}], v{vX(st,ks)} offset:{2048*c}")
            for tr in range(2):
                L.append(f"ds_read_b64_tr_b16 v[{WF(p,c)+2*tr}:{WF(p,c)+2*tr+1}], v{vW(st)} offset:{ks*8448 + tr*256 + 32*c}")
        return L
    def mfmas(g):
        p = g & 1
        L = []
        for c in range(n):
            for i in range(4):
                acc = f"v[{ACC(i,c)}:{ACC(i,c)+3}]"
                L.append(f"v_mfma_f32_16x16x32_bf16 {acc}, v[{WF(p,c)}:{WF(p,c)+3}], v[{XF(p,i)}:{XF(p,i)+3}], {acc if g else 0}")
        return L
    if o["pf"]:
        assert not WC and o["rot"] == 0
        a(f"""s_and_b32 s26, s35, 7
s_lshl_b32 s26, s26, 5
s_lshl_b32 s27, s34, 8
s_add_u32 s26, s26, s27
s_mul_i32 s26, s26, 1152
s_add_u32 s26, s26, 384
v_and_b32 v5, 31, v0
v_lshrrev_b32 v6, 5, v0
v_mul_u32_u24 v5, 1152, v5
v_lshl_add_u32 v240, v6, 6, v5
s_and_b32 s27, s34, 3
s_add_u32 s27, s27, 192
s_mul_i32 s27, s27, 3456
s_mul_i32 s28, s35, 216
s_add_u32 s27, s27, s28
v_lshrrev_b32 v5, 2, v0
v_and_b32 v6, 3, v0
v_mul_u32_u24 v5, {4*3456}, v5
v_lshl_add_u32 v241, v6, 6, v5
s_mul_i32 s28, s32, {3*128}
s_add_u32 s26, s26, s28
s_sub_u32 s28, s32, 2
s_mul_i32 s28, s28, {3*64*3456}
s_add_u32 s27, s27, s28
s_cmp_lt_u32 s32, 2
s_cselect_b32 s48, s8, s12
s_cselect_b32 s49, s9, s13
s_cselect_b32 s50, s10, s14
s_mov_b32 s51, 0x00020000
s_cselect_b32 s26, s26, s27
s_mov_b32 s27, {64*3456}
s_cselect_b32 s27, 128, s27
s_cselect_b64 vcc, -1, 0
s_nop 1
v_cndmask_b32 v240, v241, v240, vcc""")
    if o["pf"] and o["pfstep"] < 0:
        for q in range(3):
            a(f"buffer_load_dword v{242+q}, v240, s[48:51], s26 offen")
            a("s_add_u32 s26, s26, s27")
    if o["epipipe"]: p1_epilogue_consts(a)
    NC = 12 if XC else 4
    if WC: a(f"s_waitcnt vmcnt({NC})")
    if o["p1pad"] >= 0:
        a(".p2align 6")
        for _ in range(o["p1pad"]): a("s_nop 0")
    a("s_barrier")
    stamp(a, o, 1)
    if o["stamp"]: a("s_memtime s[44:45]")
    for x in reads(0): a(x)
    for g in range(18):
        cc, ks = g // 2, g % 2
        if ks == 1 and cc < 8:
            rem = min(8, cc + 2) - (cc + 1)
            a((f"s_waitcnt vmcnt({NC*rem}) lgkmcnt(0)") if WC else "s_waitcnt lgkmcnt(0)")
            a("s_barrier")
        else:
            a("s_waitcnt lgkmcnt(0)")
        if o.get("p1loop") and ks == 1 and cc < 8:
            a(f"s_memtime s[{84+2*cc}:{85+2*cc}]")
        units = []
        if XC:
            if g == 0: units = xw_units(2)
            elif ks == 1 and cc + 3 <= 8: units = xw_units(cc + 3)[:7]
            elif ks == 0 and cc >= 1 and cc + 2 <= 8: units = xw_units(cc + 2)[7:]
        elif WC:
            if g == 0: units = w_units(2)
            elif ks == 1 and cc + 3 <= 8: units = w_units(cc + 3)[:3]
            elif ks == 0 and cc >= 1 and cc + 2 <= 8: units = w_units(cc + 2)[3:]
        rd = reads(g + 1) if g + 1 < 18 else []
        M = mfmas(g)
        slots = [[] for _ in M]
        for idx, x in enumerate(rd): slots[min(idx, len(M)-1)].append(x)
        for idx, u in enumerate(units): slots[min(len(M)-1, 2 + (idx*len(M))//len(units))] += u
        if o["pf"] and g == o["pfstep"]:
            for q in range(3):
                slots[3 + 8*q] += [f"buffer_load_dword v{242+q}, v240, s[48:51], s26 offen", "s_add_u32 s26, s26, s27"]
        if g == (16 if WC else o.get("ng", 6)):
            a("v_mov_b32 v254, 0")
            a(f"global_load_dword v255, v254, s[{pDBG}:{pDBG+1}] sc1")
        for m, sl in zip(M, slots):
            a(m)
            for x in sl: a(x)
    if o.get("p1loop"):
        a(f"""s_waitcnt lgkmcnt(0)
s_cmp_lg_u32 s{sWAVE}, 0
s_cbranch_scc1 L_p1l_done
s_lshl_b32 s62, s2, 6
s_add_u32 s62, s62, {WS_USED + 65536}
v_mov_b32 v250, s62
s_mov_b64 exec, 1""")
        for cc in range(8):
            a(f"s_sub_u32 s60, s{84+2*cc}, s44\nv_mov_b32 v251, s60\nglobal_store_dword v250, v251, s[{pWS}:{pWS+1}] offset:{4*cc}")
        a("s_mov_b64 exec, -1")
        a.label("L_p1l_done")
    stamp(a, o, 2)
    if o["stamp"]: a("s_memtime s[46:47]\ns_waitcnt lgkmcnt(0)\ns_sub_u32 s59, s46, s44")
    nonce_fetch(a)
    if o["epipipe"]:
        p1_epilogue_pipe(a, o, ACC, P1F)
        a("s_branch L_p1_done")
    if not o["epipipe"]:
        a(f"""s_waitcnt lgkmcnt(0)
s_mul_i32 s39, s32, {64*RS}
v_mul_u32_u24 v5, {RS}, v3
v_lshl_add_u32 v5, v4, 3, v5
v_add_u32 v5, s39, v5
s_mul_i32 s40, s35, 6
s_sub_u32 s41, 32, s40
s_cmp_lt_u32 s40, 32
s_cselect_b32 s41, s41, 0
s_lshr_b32 s41, s41, 1
s_mul_i32 s41, s41, 9
s_mov_b32 s44, {f32bits(QSCALE)}
s_cmp_eq_u32 s41, 0
s_cbranch_scc1 L_p1_noscale""")
        for c in range(n):
            a(f"""v_add_u32 v6, {4*c}, v4
v_cmp_gt_u32 vcc, s41, v6
v_mov_b32 v7, 1.0
v_mov_b32 v8, s44
v_cndmask_b32 v6, v7, v8, vcc""")
            for i in range(4):
                r = ACC(i, c)
                a(f"v_pk_mul_f32 v[{r}:{r+1}], v[{r}:{r+1}], v[6:7] op_sel_hi:[1,0]")
                a(f"v_pk_mul_f32 v[{r+2}:{r+3}], v[{r+2}:{r+3}], v[6:7] op_sel_hi:[1,0]")
        a.label("L_p1_noscale")
        for c in range(n):
            for i in range(4):
                r = ACC(i, c); P = 40 + 2*((4*c + i) % 16)
                a(f"v_cvt_pk_bf16_f32 v{P}, v{r}, v{r+1}")
                a(f"v_cvt_pk_bf16_f32 v{P+1}, v{r+2}, v{r+3}")
                a(f"ds_write_b64 v5, v[{P}:{P+1}] offset:{i*16*RS + 32*c}")
        a("s_waitcnt lgkmcnt(0)")
        trace(a, o, 0, "a")
        a.label("L_p1_rb")
        srd(a, 16, pWS, WS_USED)
        a(f"""s_mul_i32 s39, s32, {64*RS}
s_mul_i32 s40, s35, 6
v_and_b32 v6, 31, v0
v_lshrrev_b32 v7, 5, v0
v_mul_u32_u24 v8, {RS}, v6
v_lshl_add_u32 v8, v7, 4, v8
v_add_u32 v8, s39, v8
v_lshlrev_b32 v9, 4, v0
v_mul_u32_u24 v10, {RS}, v0
v_add_u32 v10, s39, v10
v_lshlrev_b32 v11, 3, v0
v_lshrrev_b32 v12, 1, v4
v_lshrrev_b32 v13, 2, v3
v_lshl_add_u32 v13, v12, 3, v13
v_mul_u32_u24 v13, {RS}, v13
v_add_u32 v13, s39, v13
v_and_b32 v14, 1, v4
v_and_b32 v15, 3, v3
v_lshlrev_b32 v15, 3, v15
v_mul_u32_u24 v12, 288, v12
s_lshr_b32 s42, s38, 5
s_lshl_b32 s42, s42, 10
s_lshl_b32 s43, s38, 3
s_lshr_b32 s45, s38, 4
s_mul_i32 s45, s45, 576""")
        E8 = o["epi8"]
        if E8: a(f"s_barrier\ns_cmp_ge_u32 s{sWAVE}, 4\ns_cbranch_scc1 L_p1_rb1")
        assert QM_OFF == 0 and KM_OFF == (1 << 22) and KR_OFF - QR_OFF == (1 << 19)
        NH = 3 if E8 else 6
        sKf = (lambda k: 48 + k) if E8 else (lambda k: 20 + k)
        sMf = (lambda k: 52 + k) if E8 else (lambda k: 26 + k)
        sRf = (lambda k: 55 + k) if E8 else (lambda k: 48 + k)
        for hg in range(2 if E8 else 1):
            if hg: a.label("L_p1_rb1")
            for k in range(NH):
                hl = NH*hg + k
                pl, par = hl // 2, hl % 2
                lab = f"L_p1_h{hl}"
                R = 128 + 16*k
                sK, sM, sR = sKf(k), sMf(k), sRf(k)
                a(f"""s_add_u32 s46, s40, {hl}
s_lshr_b32 s{sK}, s46, 5
s_and_b32 s46, s46, 31
s_lshl_b32 s47, s33, 5
s_add_u32 s47, s47, s46
s_cmp_eq_u32 s{sK}, 2
s_cbranch_scc1 {lab}_v""")
                off = 72*pl + 40*par
                a(f"ds_read2_b64 v[{R}:{R+3}], v8 offset0:{off//8} offset1:{off//8+1}")
                a(f"v_add_u32 v{20+2*k}, {32*RS + off}, v8")
                a(f"ds_read2_b64 v[{R+4}:{R+7}], v{20+2*k} offset0:0 offset1:1")
                if par == 0: a(f"ds_read_b64 v[{R+8}:{R+9}], v10 offset:{72*pl + 32}")
                a(f"""s_lshl_b32 s{sM}, s47, 16
s_lshl_b32 s46, s{sK}, 22
s_add_u32 s{sM}, s{sM}, s46
s_add_u32 s{sM}, s{sM}, s42""")
                if par == 0:
                    a(f"""s_lshr_b32 s{sR}, s47, 1
s_lshl_b32 s{sR}, s{sR}, 14
s_add_u32 s{sR}, s{sR}, s43
s_lshl_b32 s46, s{sK}, 19
s_add_u32 s{sR}, s{sR}, s46
s_add_u32 s{sR}, s{sR}, {QR_OFF}""")
                a(f"s_branch {lab}_e")
                a.label(f"{lab}_v")
                a(f"""v_add_u32 v{20+2*k}, {72*pl + 40*par}, v15
v_mov_b32 v17, {72*pl + 32}
v_cmp_eq_u32 vcc, 0, v14
s_mul_i32 s{sM}, s47, {VT_STRIDE}
s_add_u32 s{sM}, s{sM}, s45
v_cndmask_b32 v{20+2*k}, v17, v{20+2*k}, vcc
v_add_u32 v{20+2*k}, v{20+2*k}, v13
s_add_u32 s{sM}, s{sM}, {VT_OFF}""")
                for grp in range(4):
                    for tr in range(2):
                        a(f"ds_read_b64_tr_b16 v[{R+4*grp+2*tr}:{R+4*grp+2*tr+1}], v{20+2*k} offset:{(16*grp + 4*tr)*RS}")
                a(f"""v_add_u32 v17, {16 - 2*par}, v3
v_cndmask_b32 v17, v17, v3, vcc
v_lshl_add_u32 v{21+2*k}, v17, 4, v12""")
                a.label(f"{lab}_e")
            a("s_waitcnt lgkmcnt(0)")
            trace(a, o, 1, f"b{hg}")
            for k in range(NH):
                hl = NH*hg + k
                pl, par = hl // 2, hl % 2
                lab = f"L_p1_s{hl}"
                R = 128 + 16*k
                sK, sM, sR = sKf(k), sMf(k), sRf(k)
                a(f"s_cmp_eq_u32 s{sK}, 2\ns_cbranch_scc1 {lab}_v")
                a(f"buffer_store_dwordx4 v[{R}:{R+3}], v9, s[16:19], s{sM} offen{P1F}")
                a(f"buffer_store_dwordx4 v[{R+4}:{R+7}], v9, s[16:19], s{sM} offen offset:1024{P1F}")
                if par == 0: a(f"buffer_store_dwordx2 v[{R+8}:{R+9}], v11, s[16:19], s{sR} offen{P1F}")
                a(f"s_branch {lab}_e")
                a.label(f"{lab}_v")
                m16 = 0xffff | ((0x3 << (2*par)) << 16)
                a(f"s_mov_b32 exec_lo, {m16}\ns_mov_b32 exec_hi, {m16}")
                for grp in range(4):
                    a(f"buffer_store_dwordx4 v[{R+4*grp}:{R+4*grp+3}], v{21+2*k}, s[16:19], s{sM} offen offset:{576*grp}{P1F}")
                a("s_mov_b64 exec, -1")
                a.label(f"{lab}_e")
            trace(a, o, 2, f"c{hg}")
            if hg == 0 and E8: a("s_branch L_p1_done")
    a.label("L_p1_done")
    a("s_lshl_b32 s39, s33, 4\ns_add_u32 s39, s39, s35\ns_lshl_b32 s39, s39, 3\ns_add_u32 s39, s39, s34")
    signal(a, 39, "p1")

def phase2(a, o):
    NKT, NQ = 64, 2
    QM = lambda j: 16 + 4*j
    QR = 24
    KMn = lambda s: 28 + 6*s
    KRs = lambda s: 32 + 6*s
    V0 = lambda s: 40 + 8*s
    V1 = lambda s: 44 + 8*s
    S = lambda kt, j: 56 + 32*(kt & 1) + 16*j
    O = lambda j: 120 + 16*j
    vL16, vKR, vVa, vVb, vIdx = 2, 3, 4, 5, 6
    T = 152
    name = "p2"
    a(f"""s_and_b32 s18, s2, 7
s_lshr_b32 s19, s2, 3
s_lshr_b32 s12, s19, 2
s_lshl_b32 s18, s18, 3
s_add_u32 s12, s12, s18
s_and_b32 s13, s19, 3
s_mov_b32 s14, s{sWAVE}""")
    a(f"""s_and_b32 s18, s12, 31
s_lshr_b32 s19, s12, 5
s_lshl_b32 s19, s19, 4
v_lshrrev_b32 v7, 3, v0
v_lshlrev_b32 v7, 5, v7
v_add_u32 v7, s18, v7
v_mul_u32_u24 v7, 171, v7
v_lshrrev_b32 v7, 10, v7
v_add_u32 v7, s19, v7
v_and_b32 v8, 7, v0
v_lshl_add_u32 v7, v7, 3, v8
v_lshlrev_b32 v7, 7, v7
v_add_u32 v7, {FLAG_OFF}, v7""")
    srd(a, 8, pWS, WS_USED)
    a(f"""v_lshlrev_b32 v{vL16}, 4, v0
v_and_b32 v8, 31, v0
v_lshlrev_b32 v9, 3, v8
s_mov_b32 s15, 0
s_mov_b32 s16, 0x0003ffff
s_mov_b32 s17, 0x0003ffff
s_lshl_b32 s30, s14, 10
s_lshl_b32 s25, s12, 16
s_add_u32 s35, s25, {KM_OFF}
s_add_u32 s25, s35, s30
s_mul_i32 s28, s12, {VT_STRIDE}
s_add_u32 s36, s28, {VT_OFF}
s_add_u32 s28, s36, s30
s_lshr_b32 s38, s12, 1
s_lshl_b32 s38, s38, 14
s_and_b32 s39, s12, 1
s_lshl_b32 s39, s39, 2
s_add_u32 s37, s38, {KR_OFF}
s_add_u32 s33, s37, s30
s_add_u32 s29, s30, {LDS_VT}
s_add_u32 s34, s30, {LDS_KR}
s_mov_b32 s26, s30
s_lshl_b32 s18, s13, 4
s_lshl_b32 s19, s14, 1
s_add_u32 s24, s18, s19""")
    def dmaK():
        a("s_mov_b32 m0, s26")
        a("s_add_u32 s26, s26, 8192")
        a(f"buffer_load_dwordx4 v{vL16}, s[8:11], s25 offen sc1 lds")
        a("s_add_u32 s25, s25, 8192")
    def dmaV():
        a("s_mov_b32 m0, s29")
        a("s_add_u32 s29, s29, 8192")
        a(f"buffer_load_dwordx4 v{vL16}, s[8:11], s28 offen sc1 lds")
        a("s_add_u32 s28, s28, 8192")
    def dmaKR1():
        a("s_add_u32 m0, s34, 8192")
        a("s_add_u32 s33, s33, 8192")
        a(f"buffer_load_dwordx4 v{vL16}, s[8:11], s33 offen sc1 lds")
    a(f"""s_lshr_b32 s18, s12, 5
s_and_b32 s19, s12, 31
s_lshl_b32 s46, s18, 21
s_lshl_b32 s21, s24, 15
s_add_u32 s46, s46, s21
s_lshl_b32 s21, s19, 10
s_add_u32 s46, s46, s21
s_add_u32 s46, s46, {OM_OFF}
s_lshl_b32 s47, s18, 18
s_lshl_b32 s21, s24, 12
s_add_u32 s47, s47, s21
s_lshl_b32 s21, s19, 7
s_add_u32 s47, s47, s21
s_add_u32 s47, s47, {OR_OFF}
s_lshl_b32 s48, s18, 2
s_add_u32 s48, s48, s13
s_lshl_b32 s48, s48, 5
s_add_u32 s48, s48, s19
s_add_u32 s48, s48, 256
v_lshlrev_b32 v197, 2, v8
s_lshl_b32 s49, s12, 16
s_lshl_b32 s19, s24, 10
s_add_u32 s49, s49, s19
s_lshl_b32 s20, s24, 8
s_add_u32 s50, s38, s20
s_add_u32 s50, s50, s39
s_add_u32 s50, s50, {QR_OFF}
v_lshlrev_b32 v196, 3, v0""")
    if o["wopf"]:
        a(f"""s_cmp_lt_u32 s12, 32
s_cselect_b32 s20, s{pAWO}, s{pBWO}
s_cselect_b32 s21, s{pAWO+1}, s{pBWO+1}
s_mov_b32 s22, {WO_BYTES}
s_mov_b32 s23, 0x00020000
s_lshr_b32 s18, s2, 3
s_lshl_b32 s18, s18, 3
s_add_u32 s18, s18, s14
s_lshl_b32 s27, s18, 12
v_lshlrev_b32 v198, 6, v0""")
    late = [dmaK, dmaV, dmaKR1, dmaK, dmaV, dmaK, dmaV] + [dmaK, dmaV]*4
    sched = {0: late[0:3], 1: late[3:5], 2: late[5:7], 3: late[7:9], 4: late[9:11], 5: late[11:13], 6: late[13:15]}
    a(f"""v_lshrrev_b32 v10, 5, v0
v_add_u32 v{vKR}, {LDS_KR}, v9
v_add_u32 v{vKR}, s39, v{vKR}
v_mul_u32_u24 v11, 288, v10
v_lshlrev_b32 v12, 4, v8
v_add_u32 v27, v11, v12
v_add_u32 v{vVa}, {LDS_VT}, v27
v_add_u32 v{vVb}, {LDS_VT + 32*1152}, v27
v_mov_b32 v{vIdx}, 0xdddd
v_and_b32 v13, 27, v8
v_cmp_eq_u32 vcc, 18, v13
v_mov_b32 v14, 0x3f803f80
v_mov_b32 v15, 0
v_cndmask_b32 v13, v15, v14, vcc""")
    for s in range(2):
        a(f"v_mov_b32 v{KRs(s)+1}, 0x3f803f80")
        for i in range(4):
            a(f"v_mov_b32 v{V0(s)+i}, v13")
            a(f"v_mov_b32 v{V1(s)+i}, v13")
    a(f"v_mov_b32 v{QR+1}, 0")
    for j in range(NQ):
        for i in range(16): a(f"v_mov_b32 v{O(j)+i}, 0")
    poll(a, 7, 0xffffff, "p1")
    stamp(a, o, 4)
    a("s_mov_b32 m0, s34")
    a("s_nop 0")
    a(f"buffer_load_dwordx4 v{vL16}, s[8:11], s33 offen sc1 lds")
    dmaK(); dmaV(); dmaV()
    for j in range(NQ):
        a(f"buffer_load_dwordx4 v[{QM(j)}:{QM(j)+3}], v{vL16}, s[8:11], s49 offen offset:{1024*j} sc1")
    a(f"buffer_load_dword v{QR}, v196, s[8:11], s50 offen sc1")
    if o["direct0"]:
        a(f"buffer_load_dwordx4 v[{KMn(0)}:{KMn(0)+3}], v{vL16}, s[8:11], s35 offen sc1")
        a(f"v_add_u32 v195, s39, v9")
        a(f"buffer_load_dword v{KRs(0)}, v195, s[8:11], s37 offen sc1")
        a("s_mov_b64 exec, s[16:17]")
        a(f"buffer_load_dwordx4 v[{V0(0)}:{V0(0)+3}], v27, s[8:11], s36 offen sc1")
        a(f"buffer_load_dwordx4 v[{V1(0)}:{V1(0)+3}], v27, s[8:11], s36 offen offset:576 sc1")
        a("s_mov_b64 exec, -1")
    a("s_waitcnt vmcnt(0)")
    if not o["direct0"]: a("s_barrier")
    stamp(a, o, 5)
    if o["stamp"]: a("s_memtime s[52:53]")
    def rdK(kt):
        s = kt & 1
        a(f"ds_read_b128 v[{KMn(s)}:{KMn(s)+3}], v{vL16} offset:{kt*1024}")
        a(f"ds_read_b32 v{KRs(s)}, v{vKR} offset:{kt*256}")
    def rdV(kt):
        s = kt & 1
        base, off = (vVa, kt*1152) if kt < 32 else (vVb, (kt-32)*1152)
        a("s_mov_b64 exec, s[16:17]")
        a(f"ds_read_b128 v[{V0(s)}:{V0(s)+3}], v{base} offset:{off}")
        a(f"ds_read_b128 v[{V1(s)}:{V1(s)+3}], v{base} offset:{off+576}")
        a("s_mov_b64 exec, -1")
    def qk_res(kt, ks=None):
        s = (kt & 1) if ks is None else ks; sb = S(kt, 0)
        a(f"v_mfma_f32_32x32x4_2b_bf16 v[{sb}:{sb+31}], v[{KRs(s)}:{KRs(s)+1}], v[{QR}:{QR+1}], 0")
    def qk_main(kt, j, ks=None):
        s = (kt & 1) if ks is None else ks; sb = S(kt, j)
        a(f"v_mfma_f32_32x32x16_bf16 v[{sb}:{sb+15}], v[{KMn(s)}:{KMn(s)+3}], v[{QM(j)}:{QM(j)+3}], v[{sb}:{sb+15}]")
    def pv(kt, j, half, vs=None):
        s = (kt & 1) if vs is None else vs
        v = V0(s) if half == 0 else V1(s)
        a(f"v_smfmac_f32_32x32x32_bf16 v[{O(j)}:{O(j)+15}], v[{v}:{v+3}], v[{S(kt,j)+8*half}:{S(kt,j)+8*half+7}], v{vIdx}")
    def ex(kt, j, i):
        r = S(kt, j) + i
        a(f"v_exp_f32 v{r}, v{r}")
    def loop(copy, prio):
        if o["p2pad"] >= 0:
            a(".p2align 6")
            for _ in range(o["p2pad"]): a("s_nop 0")
        if o["direct0"]:
            if o["stamp"]: a("s_waitcnt lgkmcnt(0)")
            qk_res(0)
            a("s_barrier")
        else:
            rdK(0); rdV(0)
            a("s_waitcnt lgkmcnt(0)")
            qk_res(0)
        rdK(1)
        a("s_nop 15")
        a("s_nop 1")
        qk_main(0, 0); qk_main(0, 1)
        a("s_nop 7")
        a("s_nop 3")
        def tile(kt, rel=None):
            if rel is None:
                if kt == o["bar1"] or (kt == o["bar2"] and not ROLL):
                    nC = sum(len(v) for k, v in sched.items() if 3 <= k < o['bar1'])
                    a(f"s_waitcnt vmcnt({nC if kt == o['bar1'] else 0})")
                    a("s_barrier")
                if kt in sched:
                    for f in sched[kt]: f()
                if kt == 9 and o["wopf"]:
                    a("buffer_load_dword v199, v198, s[20:23], s27 offen")
            p = prio(2*kt)
            a(f"s_setprio {p}" if p is not None else "s_nop 0")
            a("s_waitcnt lgkmcnt(0)")
            if kt > 0: pv(kt-1, 1, 1)
            if kt + 1 < NKT:
                if rel is None: rdV(kt+1)
                else:
                    s_ = (kt+1) & 1; off = (kt+1-rel)*1152
                    a("s_mov_b64 exec, s[16:17]")
                    a(f"ds_read_b128 v[{V0(s_)}:{V0(s_)+3}], v206 offset:{off}")
                    a(f"ds_read_b128 v[{V1(s_)}:{V1(s_)+3}], v206 offset:{off+576}")
                    a("s_mov_b64 exec, -1")
            for i in range(0, 4): ex(kt, 0, i)
            if kt + 1 < NKT: qk_res(kt+1)
            for i in range(4, 12): ex(kt, 0, i)
            pv(kt, 0, 0)
            for i in range(12, 16): ex(kt, 0, i)
            p = prio(2*kt + 1)
            if p is not None: a(f"s_setprio {p}")
            if kt + 2 < NKT:
                if rel is None: rdK(kt+2)
                else:
                    s_ = kt & 1
                    a(f"ds_read_b128 v[{KMn(s_)}:{KMn(s_)+3}], v204 offset:{(kt+2-rel)*1024}")
                    a(f"ds_read_b32 v{KRs(s_)}, v205 offset:{(kt+2-rel)*256}")
            else: a("s_nop 1")
            pv(kt, 0, 1)
            for i in range(4): ex(kt, 1, i)
            if kt + 1 < NKT: qk_main(kt+1, 0)
            for i in range(4, 8): ex(kt, 1, i)
            if kt + 1 < NKT: qk_main(kt+1, 1)
            for i in range(8, 12): ex(kt, 1, i)
            pv(kt, 1, 0)
            for i in range(12, 16): ex(kt, 1, i)
        ROLL = o["roll"]
        if not ROLL:
            for kt in range(NKT): tile(kt)
        else:
            G = len(o["hpat"]) // 2 if o.get("hpat") else len(o["pat"])
            L0 = 10; NIT = (NKT - 2 - L0) // G
            assert (2*L0) % (2*G) in range(2*G)
            assert G % 2 == 0
            for kt in range(L0): tile(kt)
            a(f"""v_add_u32 v204, {L0*1024}, v{vL16}
v_add_u32 v205, {L0*256}, v{vKR}
v_add_u32 v206, {L0*1152}, v{vVa}
s_mov_b32 s44, 0""")
            itb = -(-(30 - L0 - G + 1) // G)
            itb = (28 - L0) // G
            a.label(f"L_p2_roll{copy}")
            a(f"""s_cmp_lg_u32 s44, {itb}
s_cbranch_scc1 L_p2_rnb{copy}
s_waitcnt vmcnt(0)
s_barrier""")
            a.label(f"L_p2_rnb{copy}")
            for u in range(G): tile(L0 + u, rel=L0)
            a(f"""v_add_u32 v204, {G*1024}, v204
v_add_u32 v205, {G*256}, v205
v_add_u32 v206, {G*1152}, v206
s_add_u32 s44, s44, 1
s_cmp_lt_u32 s44, {NIT}
s_cbranch_scc1 L_p2_roll{copy}""")
            for kt in range(L0 + NIT*G, NKT): tile(kt)
        a("s_nop 1")
        pv(NKT-1, 1, 1)
        a("s_setprio 0")
    if o["dual"]:
        a(f"s_cmp_ge_u32 s14, 4\ns_cbranch_scc1 L_p2_loopB")
        loop(0, lambda h: 1 if h == 0 else None)
        a("s_branch L_p2_loopdone")
        a.label("L_p2_loopB")
        pat = o.get("hpat") or [x for p in o["pat"] for x in (p, p)]
        def pr(h):
            cur = pat[h % len(pat)]
            prev = pat[(h-1) % len(pat)] if h else None
            return cur if cur != prev else None
        loop(1, pr)
        a.label("L_p2_loopdone")
    else:
        loop(0, lambda h: None)
    stamp(a, o, 6)
    if o["stamp"]:
        a(f"""s_memtime s[54:55]
s_waitcnt lgkmcnt(0)
s_cmp_lg_u32 s14, {99 if o.get("p1trace") else 4}
s_cbranch_scc1 L_p2_nw4
s_sub_u32 s56, s54, s52
s_sub_u32 s57, s94, s92
s_lshl_b32 s40, s2, 6
s_add_u32 s40, s40, {WS_USED}
v_mov_b32 v200, s40
v_mov_b32 v202, s56
v_mov_b32 v203, s57
s_mov_b64 exec, 1
global_store_dwordx2 v200, v[202:203], s[{pWS}:{pWS+1}] offset:48
s_mov_b64 exec, -1""")
        a.label("L_p2_nw4")
    def norm_store(j):
        a(f"v_rcp_f32 v{T}, v{O(j)+10}")
        a("s_nop 0")
        for i in range(10): a(f"v_mul_f32 v{O(j)+i}, v{O(j)+i}, v{T}")
        P = T + 2 + 6*j
        for i in range(4): a(f"v_cvt_pk_bf16_f32 v{P+i}, v{O(j)+2*i}, v{O(j)+2*i+1}")
        a(f"v_cvt_pk_bf16_f32 v{P+4}, v{O(j)+8}, v{O(j)+9}")
        a(f"buffer_store_dwordx4 v[{P}:{P+3}], v{vL16}, s[8:11], s46 offen offset:{0} sc1" if j == 0 else
          f"buffer_store_dwordx4 v[{P}:{P+3}], v{vL16}, s[8:11], s45 offen sc1")
        a("s_mov_b32 exec_hi, 0")
        a(f"buffer_store_dword v{P+4}, v197, s[8:11], s47 offen sc1" if j == 0 else f"buffer_store_dword v{P+4}, v197, s[8:11], s51 offen sc1")
        a("s_mov_b32 exec_hi, -1")
    a("s_add_u32 s45, s46, 32768\ns_add_u32 s51, s47, 4096")
    a.label("L_p2_store")
    norm_store(0); norm_store(1)
    a("s_cmp_lg_u32 s15, 0\ns_cbranch_scc1 L_p2_checked")
    a("s_mov_b64 s[20:21], 0")
    a("s_mov_b32 s22, 0x53800000")
    a("s_mov_b32 s23, 0x2b800000")
    a(f"v_mul_f32 v{T}, 0, v{O(0)}\nv_mul_f32 v{T+1}, 0, v{O(1)}")
    for i in range(1, 10):
        for j in range(NQ): a(f"v_fma_f32 v{T+j}, v{O(j)+i}, 0, v{T+j}")
    for j in range(NQ): a(f"v_add_f32 v{T+j}, v{T+j}, v{O(j)+10}")
    for j in range(NQ):
        a(f"v_cmp_ngt_f32 vcc, s22, v{T+j}")
        a("s_or_b64 s[20:21], s[20:21], vcc")
        a(f"v_cmp_nlt_f32 vcc, s23, v{T+j}")
        a("s_or_b64 s[20:21], s[20:21], vcc")
    a(f"""s_cmp_eq_u64 s[20:21], 0
s_cbranch_scc0 L_p2_fallback""")
    a.label("L_p2_checked")
    signal(a, 48, "p2")
    a("s_branch L_p2_end")
    a.label("L_p2_fallback")
    a("s_mov_b32 s15, 1")
    MX = T
    a(f"""v_mov_b32 v{MX}, 0xff800000
v_mov_b32 v{MX+1}, 0xff800000
v_mov_b32 v{QR+1}, 0
v_mov_b32 v{MX+4}, v{vL16}
v_mov_b32 v{MX+5}, v{vKR}
s_mov_b32 s18, {NKT}""")
    a.label("L_p2_fb1")
    a(f"""ds_read_b128 v[{KMn(0)}:{KMn(0)+3}], v{MX+4}
ds_read_b32 v{KRs(0)}, v{MX+5}
v_add_u32 v{MX+4}, 1024, v{MX+4}
v_add_u32 v{MX+5}, 256, v{MX+5}
s_waitcnt lgkmcnt(0)""")
    qk_res(0, 0)
    a("s_nop 15\ns_nop 3")
    qk_main(0, 0, 0); qk_main(0, 1, 0)
    a("s_nop 15")
    for j in range(NQ):
        for i in range(8): a(f"v_max3_f32 v{MX+j}, v{MX+j}, v{S(0,j)+2*i}, v{S(0,j)+2*i+1}")
    a(f"""s_sub_u32 s18, s18, 1
s_cmp_lg_u32 s18, 0
s_cbranch_scc1 L_p2_fb1""")
    x, y, hi, mid = MX+6, MX+7, MX+8, MX+9
    for j in range(NQ):
        a(f"""v_mov_b32 v{x}, v{MX+j}
v_mov_b32 v{y}, v{MX+j}
s_nop 1
v_permlane32_swap_b32 v{x}, v{y}
s_nop 1
v_max_f32 v{MX+j}, v{x}, v{y}""")
    a(f"""v_cmp_gt_u32 vcc, 32, v0
s_nop 1
v_cndmask_b32 v{x}, v{MX+1}, v{MX}, vcc
v_and_b32 v{hi}, 0xffff0000, v{x}
v_sub_f32 v{x}, v{x}, v{hi}
v_and_b32 v{mid}, 0xffff0000, v{x}
v_xor_b32 v{hi}, 0x80000000, v{hi}
v_xor_b32 v{mid}, 0x80000000, v{mid}
v_lshrrev_b32 v{hi}, 16, v{hi}
v_or_b32 v{QR+1}, v{hi}, v{mid}""")
    for j in range(NQ):
        for i in range(16): a(f"v_mov_b32 v{O(j)+i}, 0")
    a(f"""v_mov_b32 v{MX+4}, v{vL16}
v_mov_b32 v{MX+5}, v{vKR}
v_mov_b32 v{MX+6}, v{vVa}
s_mov_b32 s18, {NKT}""")
    a.label("L_p2_fb2")
    a(f"""ds_read_b128 v[{KMn(0)}:{KMn(0)+3}], v{MX+4}
ds_read_b32 v{KRs(0)}, v{MX+5}
s_mov_b64 exec, s[16:17]
ds_read_b128 v[{V0(0)}:{V0(0)+3}], v{MX+6}
ds_read_b128 v[{V1(0)}:{V1(0)+3}], v{MX+6} offset:576
s_mov_b64 exec, -1
v_add_u32 v{MX+4}, 1024, v{MX+4}
v_add_u32 v{MX+5}, 256, v{MX+5}
v_add_u32 v{MX+6}, 1152, v{MX+6}
s_waitcnt lgkmcnt(0)""")
    qk_res(0, 0)
    a("s_nop 15\ns_nop 3")
    qk_main(0, 0, 0); qk_main(0, 1, 0)
    a("s_nop 15")
    for j in range(NQ):
        for i in range(16): ex(0, j, i)
    a("s_nop 1")
    for j in range(NQ):
        pv(0, j, 0, 0); pv(0, j, 1, 0)
    a(f"""s_sub_u32 s18, s18, 1
s_cmp_lg_u32 s18, 0
s_cbranch_scc1 L_p2_fb2
s_nop 7
s_nop 7
s_branch L_p2_store""")
    a.label("L_p2_end")

def phase3(a, o):
    NC3 = 5
    RS3 = 160
    OF = lambda ks: 64 + 4*ks
    WF = lambda p, c: 144 + 20*p + 4*c
    ACC = lambda c: 16 + 4*c
    vL, vWa, vWr, vWD = 1, 2, 4, 5
    D = o["p3depth"]
    a(f"""s_and_b32 s30, s2, 7
s_lshr_b32 s31, s2, 3
s_mov_b32 s32, s{sWAVE}
s_lshr_b32 s33, s30, 2
s_and_b32 s34, s30, 3
s_lshl_b32 s34, s34, 2
s_and_b32 s35, s31, 3
s_add_u32 s34, s34, s35
s_lshr_b32 s35, s31, 2
s_lshl_b32 s36, s34, 2
s_lshr_b32 s37, s32, 1
s_add_u32 s36, s36, s37""")
    a(f"""v_mul_u32_u24 v9, 26, v0
v_lshrrev_b32 v9, 8, v9
v_mul_u32_u24 v10, 10, v9
v_sub_u32 v10, v0, v10
v_mul_u32_u24 v9, 1152, v9
v_lshl_add_u32 v{vWD}, v10, 4, v9
s_cmp_eq_u32 s33, 0
s_cselect_b32 s8, s{pAWO}, s{pBWO}
s_cselect_b32 s9, s{pAWO+1}, s{pBWO+1}
s_mov_b32 s10, {WO_BYTES}
s_mov_b32 s11, 0x00020000
s_sub_u32 s38, s32, 1
s_mul_i32 s22, s38, {6*1152}
s_mul_i32 s23, s35, 144
s_add_u32 s22, s22, s23
s_mul_i32 s23, s38, {6*RS3}
s_cmp_eq_u32 s32, 0
s_cbranch_scc1 L_p3_nodma
s_mov_b32 exec_hi, 0x0fffffff""")
    for r in range(14):
        if r == 13: a("s_cmp_ge_u32 s38, 5\ns_cbranch_scc1 L_p3_dmadone")
        a("s_mov_b32 m0, s23")
        a(f"s_add_u32 s23, s23, {42*RS3}")
        a(f"buffer_load_dwordx4 v{vWD}, s[8:11], s22 offen lds")
        a(f"s_add_u32 s22, s22, {42*1152}")
    a.label("L_p3_dmadone")
    a("s_mov_b32 exec_hi, -1")
    a.label("L_p3_nodma")
    a("s_mov_b32 exec_hi, -1")
    a(f"""v_and_b32 v7, 15, v0
v_lshrrev_b32 v8, 4, v0
v_lshlrev_b32 v9, 9, v8
v_lshl_add_u32 v{vL}, v7, 4, v9
s_and_b32 s37, s32, 1
s_lshl_b32 s38, s37, 6
s_lshl_b32 s37, s37, 8
v_add_u32 v{vL}, s37, v{vL}
v_lshlrev_b32 v47, 2, v7
v_lshl_add_u32 v47, v8, 9, v47
v_add_u32 v47, s38, v47
v_lshrrev_b32 v9, 1, v8
v_mul_u32_u24 v9, 20, v9
v_and_b32 v10, 1, v8
v_lshl_add_u32 v9, v10, 2, v9
v_lshrrev_b32 v10, 2, v7
v_add_u32 v9, v9, v10
v_mul_u32_u24 v9, {RS3}, v9
v_and_b32 v11, 3, v7
v_lshl_add_u32 v{vWa}, v11, 3, v9
v_add_u32 v3, {8*36*RS3}, v{vWa}
v_lshlrev_b32 v9, 2, v8
v_lshrrev_b32 v12, 1, v10
v_add_u32 v9, v9, v12
v_mul_u32_u24 v9, 18, v9
v_and_b32 v13, 1, v10
v_add_u32 v9, v9, v13
v_xor_b32 v12, 1, v12
v_lshl_add_u32 v9, v12, 4, v9
v_mul_u32_u24 v9, {RS3}, v9
v_lshl_add_u32 v{vWr}, v11, 3, v9
s_lshr_b32 s37, s34, 2
s_lshl_b32 s38, s33, 2
s_add_u32 s37, s37, s38
s_lshl_b32 s37, s37, 5
s_add_u32 s37, s37, 256
v_add_u32 v6, s37, v0
v_lshlrev_b32 v6, 7, v6
v_add_u32 v6, {FLAG_OFF}, v6""")
    srd(a, 16, pWS, WS_USED)
    srd(a, 12, pOUT, OUT_BYTES)
    STG = 576*RS3
    R3 = 152
    a(f"""s_lshl_b32 s20, s33, 21
s_lshl_b32 s21, s36, 15
s_add_u32 s20, s20, s21
s_add_u32 s20, s20, {OM_OFF}
s_lshl_b32 s21, s33, 18
s_lshl_b32 s22, s36, 12
s_add_u32 s21, s21, s22
s_add_u32 s21, s21, {OR_OFF}
s_mul_i32 s23, s32, {16*168}
s_add_u32 s23, s23, {STG}
v_mul_u32_u24 v9, 168, v7
v_lshl_add_u32 v9, v8, 3, v9
v_add_u32 v14, s23, v9
s_lshl_b32 s24, s36, 5
s_and_b32 s25, s32, 1
s_lshl_b32 s25, s25, 4
s_add_u32 s24, s24, s25
s_mul_i32 s24, s24, 2304
s_mul_i32 s25, s33, 1152
s_add_u32 s24, s24, s25
s_mul_i32 s25, s35, 144
s_add_u32 s24, s24, s25""")
    for k in range(3):
        a(f"""v_add_u32 v10, {64*k}, v0
v_mul_u32_u24 v11, 57, v10
v_lshrrev_b32 v11, 9, v11
v_mul_u32_u24 v12, 9, v11
v_sub_u32 v12, v10, v12
v_mul_u32_u24 v13, 168, v11
v_lshl_add_u32 v13, v12, 4, v13
v_add_u32 v{40+k}, s23, v13
v_mul_u32_u24 v13, 2304, v11
v_lshl_add_u32 v{44+k}, v12, 4, v13""")
    poll(a, 6, -1, "p2", others_wait=True)
    stamp(a, o, 8)
    def oload(ks):
        if ks < 16:
            L = [f"buffer_load_dwordx4 v[{OF(ks)}:{OF(ks)+3}], v{vL}, s[16:19], s20 offen offset:{(ks%2)*2048} sc1"]
            if ks % 2 == 1: L.append("s_add_u32 s20, s20, 4096")
            return L
        return [f"buffer_load_dword v{OF(ks)+r}, v47, s[16:19], s21 offen offset:{(ks-16)*2048 + 128*r} sc1" for r in range(4)]
    nld = lambda ks: 1 if ks < 16 else 4
    def reads(ks, p):
        L = []
        for c in range(NC3):
            for t in range(2):
                if ks < 16:
                    base, k0 = (vWa, ks) if ks < 8 else (3, ks - 8)
                    off = (36*k0 + 8*t)*RS3 + 32*c
                else:
                    base = vWr
                    off = (288*(ks-16) + 36*t)*RS3 + 32*c
                L.append(f"ds_read_b64_tr_b16 v[{WF(p,c)+2*t}:{WF(p,c)+2*t+1}], v{base} offset:{off}")
        return L
    def mfmas(ks):
        p = ks & 1
        return [f"v_mfma_f32_16x16x32_bf16 v[{ACC(c)}:{ACC(c)+3}], v[{WF(p,c)}:{WF(p,c)+3}], v[{OF(ks)}:{OF(ks)+3}], " + (f"v[{ACC(c)}:{ACC(c)+3}]" if ks else "0")
                for c in range(NC3)]
    for ks in range(D):
        for x in oload(ks): a(x)
    for x in reads(0, 0): a(x)
    for ks in range(18):
        issued = min(17, ks + D - 1)
        a(f"s_waitcnt vmcnt({sum(nld(k) for k in range(ks + 1, issued + 1))}) lgkmcnt(0)")
        rd = reads(ks+1, (ks+1) & 1) if ks + 1 < 18 else []
        M = mfmas(ks)
        if ks + D < 18:
            for x in oload(ks + D): a(x)
        for idx, m in enumerate(M):
            a(m)
            for x in rd[2*idx:2*idx+2]: a(x)
    stamp(a, o, 9)
    a("s_nop 7")
    for c in range(NC3):
        r = ACC(c); P = 64 + 2*c
        a(f"v_cvt_pk_bf16_f32 v{P}, v{r}, v{r+1}")
        a(f"v_cvt_pk_bf16_f32 v{P+1}, v{r+2}, v{r+3}")
        a(f"ds_write_b64 v14, v[{P}:{P+1}] offset:{32*c}")
    a("s_waitcnt lgkmcnt(0)")
    for k in range(3): a(f"ds_read_b64 v[{120+4*k}:{121+4*k}], v{40+k}\nds_read_b64 v[{122+4*k}:{123+4*k}], v{40+k} offset:8")
    for k in range(3):
        a(f"s_waitcnt lgkmcnt({4-2*k})")
        if k == 2: a("s_mov_b32 exec_lo, 0xffff\ns_mov_b32 exec_hi, 0")
        a(f"buffer_store_dwordx4 v[{120+4*k}:{123+4*k}], v{44+k}, s[12:15], s24 offen{o['outflag']}")
    a("s_mov_b64 exec, -1")

def gen(opts=None):
    global POLLD, POLLS
    POLLD = (opts or {}).get("polld", 1); POLLS = (opts or {}).get("polls", 1)
    o = dict(stamp=False, bar1=5, bar2=26, rot=3, dual=True, pat=[2,2,2,2,2,2,0], wopf=True, wcomp=False, xcomp=False, pf=False, pfstep=0, p3depth=8, outflag='', midnop=True, p1f=' sc1', epi8=False, epipipe=True, roll=False, p2pad=-1, p1pad=-1, ldprio=0, direct0=False)
    if opts: o.update(opts)
    a = A()
    a(f".globl {NAME}\n.p2align 8\n.type {NAME},@function")
    a.label(NAME)
    a(f"""s_cmp_ge_u32 s2, 256
s_cbranch_scc1 L_exit
s_load_dwordx16 s[{sP}:{sP+15}], s[0:1], 0
s_load_dwordx2 s[{pWS}:{pWS+1}], s[0:1], 64
v_lshrrev_b32 v1, 6, v0
v_and_b32 v0, 63, v0
s_nop 0
v_readfirstlane_b32 s{sWAVE}, v1""")
    stamp(a, o, 0)
    a("s_nop 3")
    nonce_publish(a)
    phase1(a, o)
    stamp(a, o, 3)
    a("; ================================================= P2: attention")
    phase2(a, o)
    stamp(a, o, 7)
    phase3(a, o)
    a.label("L_end")
    if o["stamp"]:
        a(f"""s_cmp_lg_u32 s{sWAVE}, 0
s_cbranch_scc1 L_exit
s_memrealtime s[42:43]
s_waitcnt lgkmcnt(0)
s_lshl_b32 s40, s2, 6
s_add_u32 s40, s40, {WS_USED}
v_mov_b32 v2, s40
s_mov_b64 exec, 1""")
        for i in range(11):
            a(f"v_mov_b32 v3, s{82+2*i if i < 10 else 42}")
            a(f"global_store_dword v2, v3, s[{pWS}:{pWS+1}] offset:{4*i}")
        a("s_sub_u32 s54, s54, s52\nv_mov_b32 v3, s54")
        a(f"global_store_dword v2, v3, s[{pWS}:{pWS+1}] offset:44")
        if not o.get("p1trace"):
            a("v_mov_b32 v3, s59")
            a(f"global_store_dword v2, v3, s[{pWS}:{pWS+1}] offset:56")
        if o.get("p3trace"):
            for c in range(4):
                a(f"s_sub_u32 s40, s{44+2*c}, s98\nv_mov_b32 v3, s40")
                a(f"global_store_dword v2, v3, s[{pWS}:{pWS+1}] offset:{48+4*c}")
        if o.get("dbgstamp"):
            a(f"s_cmp_lg_u32 s2, {o['dbgstamp']}\ns_cbranch_scc1 L_exit\nv_mov_b32 v2, 0")
            for i in range(11):
                src = 82+2*i if i < 10 else 42
                a(f"s_sub_u32 s44, s{src}, s82" if i else "s_mov_b32 s44, s82")
                a("v_mov_b32 v3, s44")
                a(f"global_store_dword v2, v3, s[{pDBG}:{pDBG+1}] offset:{4*(i+1)}")
    a.label("L_exit")
    a("s_endpgm")
    return a.text(), kdesc(NAME, 256, 102)
```

```python
import sys, json, numpy as np, time
sys.path.insert(0, '../exp'); sys.path.insert(0,'.')
from hiprun import *
from asmlib import *
import build, fz
o = json.loads(sys.argv[2]) if len(sys.argv)>2 else {}
o.setdefault("stamp", True)
src = build.build(o)
marker = """
.globl k_mark
.p2align 8
.type k_mark,@function
k_mark:
    s_load_dwordx2 s[4:5], s[0:1], 0
    s_memrealtime s[8:9]
    s_waitcnt lgkmcnt(0)
    v_mov_b32 v2, s8
    v_mov_b32 v3, 0
    s_mov_b64 exec, 1
    global_store_dword v3, v2, s[4:5]
    s_endpgm
""" + kdesc("k_mark", 8, 16)
asm = src + marker + meta([(fz.NAME,256),("k_mark",8)], 9)
open("t_fz.s","w").write(asm); assemble("t_fz.s","t_fz.co")
if len(sys.argv)>1 and sys.argv[1]=="build": sys.exit(0)
scale = float(sys.argv[1]) if len(sys.argv)>1 else 1.0
def mk(seed):
    rng = np.random.default_rng(seed)
    xs=[f2bf(rng.standard_normal((2048,576))*0.2*scale) for _ in range(2)]
    ws_=[f2bf(rng.standard_normal((576,1728))*0.2) for _ in range(2)]
    wo=[f2bf(rng.standard_normal((576,576))*0.05) for _ in range(2)]
    return xs,ws_,wo
xs,ws_,wo = mk(0)
bx=[Buf.frm(x) for x in xs]; bw=[Buf.frm(w) for w in ws_]; bo=[Buf.frm(w) for w in wo]
bws=Buf(256<<20); bws.fill(0xff); bout=Buf(OUT_BYTES); bout.fill(0xff); bdbg=Buf(256)
m=Mod("t_fz.co"); F=m.fn(fz.NAME)
def run(extra=0):
    ptrs=[bx[0].ptr,bw[0].ptr,bo[0].ptr,bx[1].ptr,bw[1].ptr,bo[1].ptr,bout.ptr,bdbg.ptr,bws.ptr]
    launch(F,(256+extra,1,1),(fz.THREADS,1,1),ptrs,lds=fz.LDS_BYTES)
def ref(x,w,wout):
    x=bf2f(x).astype(np.float64); w=bf2f(w).astype(np.float64); wout=bf2f(wout).astype(np.float64)
    qkv=bf2f(f2bf((x@w).astype(np.float32))).astype(np.float64).reshape(2048,3,32,18)
    o=np.zeros((2048,32,18))
    for h in range(32):
        s=qkv[:,0,h]@qkv[:,1,h].T*18**-0.5
        s-=s.max(1,keepdims=True); p=np.exp(s); p/=p.sum(1,keepdims=True)
        o[:,h]=p@qkv[:,2,h]
    return o.reshape(2048,576)@wout
def check(tag):
    out=bf2f(bout.get(np.uint16,(2048,1152)))
    for b in range(2):
        r=ref(xs[b],ws_[b],wo[b]); e=np.abs(r-out[:,576*b:576*(b+1)])
        print(tag,"block",b,"max err",e.max(),"ref absmax",np.abs(r).max(),"nan",np.isnan(out).sum())
    return out
bdbg.fill(0); sync(); run(3); sync()
print("dbg",bdbg.get(np.uint32,(64,))[:40].tolist())
out0=check("first")
def check_ws():
    w2=bws.get(np.uint16,(WS_USED//2,))
    for b in range(2):
        qkv = bf2f(xs[b]).astype(np.float64)@bf2f(ws_[b]).astype(np.float64)
        for kind,(MO,RO,sc) in enumerate(((QM_OFF,QR_OFF,QSCALE),(KM_OFF,KR_OFF,1.0))):
            M = bf2f(w2[MO//2+b*32*32768: MO//2+(b+1)*32*32768]).reshape(32,64,2,32,8)
            R = bf2f(w2[RO//2+b*16*8192: RO//2+(b+1)*16*8192]).reshape(16,2048,2,2)
            ref_ = qkv[:,kind*576:(kind+1)*576].reshape(2048,32,18)*sc
            bad=[]
            for hd in range(32):
                got=np.zeros((2048,18),np.float32)
                if hd%2==0: dims=list(range(16)); rd=[16,17]
                else: dims=list(range(2,18)); rd=[0,1]
                got[:,dims]=M[hd].transpose(0,2,1,3).reshape(2048,16); got[:,rd]=R[hd//2,:,hd%2,:]
                e=np.abs(got-ref_[:,hd]).max()
                if not (e<0.03): bad.append((hd,float(e)))
            print("b",b,"kind",kind,"bad heads",bad[:8])
        V = bf2f(w2[VT_OFF//2+b*32*VT_STRIDE//2: VT_OFF//2+(b+1)*32*VT_STRIDE//2]).reshape(32,128,2,18,8)
        got = V.transpose(1,2,4,0,3).reshape(2048,32,18)
        ref_ = qkv[:,1152:].reshape(2048,32,18).copy()
        for hd in range(1,32,2): ref_[:,hd,:]=ref_[:,hd,[*range(2,18),0,1]]
        e=np.abs(got-ref_).max(axis=(0,))
        print("b",b,"V bad (head,m):",[(int(i),int(j)) for i,j in zip(*np.where(~(e<0.03)))][:20])
check_ws()
def check_attn():
    w2=bws.get(np.uint16,(WS_USED//2,))
    worst=0; worst_rel=0
    for bh in (0,1,17,32,45,63):
        b,hd=bh>>5,bh&31
        def main(off): return bf2f(w2[off//2+bh*32768: off//2+(bh+1)*32768]).reshape(64,2,32,8).transpose(0,2,1,3).reshape(2048,16).astype(np.float64)
        def res(off): return bf2f(w2[off//2+(bh>>1)*8192: off//2+((bh>>1)+1)*8192]).reshape(2048,2,2)[:,bh&1,:].astype(np.float64)
        q=np.concatenate([main(QM_OFF),res(QR_OFF)],1); k=np.concatenate([main(KM_OFF),res(KR_OFF)],1)
        v=bf2f(w2[VT_OFF//2+bh*VT_STRIDE//2: VT_OFF//2+(bh+1)*VT_STRIDE//2]).reshape(128,2,18,8).transpose(0,1,3,2).reshape(2048,18).astype(np.float64)
        sc=q@k.T; mx=sc.max(1,keepdims=True); p=np.exp2(sc-mx); ref_=(p@v)/p.sum(1,keepdims=True)
        OMv=bf2f(w2[OM_OFF//2+b*64*32*512: OM_OFF//2+(b+1)*64*32*512]).reshape(64,32,2,32,8)[:,hd]
        ORv=bf2f(w2[OR_OFF//2+b*64*2048: OR_OFF//2+(b+1)*64*2048]).reshape(64,32,32,2)[:,hd]
        slot=np.array([[4*h+j if j<4 else 8+4*h+(j-4) for j in range(8)] for h in range(2)])
        got=np.zeros((64,32,18))
        for h in range(2): got[:,:,slot[h]]=OMv[:,h]
        got[:,:,16:18]=ORv
        e=np.abs(got.reshape(2048,18)-ref_); worst=max(worst,e.max()); worst_rel=max(worst_rel,(e/(np.abs(ref_).max(1,keepdims=True)+1e-9)).max())
        if bh==0: print("   score range", sc.min(), sc.max(), "row max range", mx.min(), mx.max())
    print("attention vs ws-based reference: max abs err",worst,"max err / row absmax",worst_rel)
check_attn()
def stamps():
    st=np.zeros((256,16),np.uint32)
    w=np.empty((256,16),np.uint32)
    ck(hip.hipMemcpy(w.ctypes.data_as(ctypes.c_void_p), ctypes.c_void_p(bws.ptr+WS_USED), ctypes.c_size_t(w.nbytes), 2))
    global p2cyc
    p2cyc=w[:,11].astype(np.int64)
    global trc
    global tr0
    tr0=w[:,0].astype(np.int64).min()
    trc=w[:,12:16].astype(np.int64)-tr0
    w=w[:,:11].astype(np.int64); t0=w[:,0].min()
    return w-t0
names=["start","p1bar0","p1main","p1sig","poll1","p2bar0","p2loop","p2sig","poll2","p3main","end"]
def show(tag):
    w=stamps()
    if o.get("p1loop"):
        z=np.empty((256,16),np.uint32)
        ck(hip.hipMemcpy(z.ctypes.data_as(ctypes.c_void_p), ctypes.c_void_p(bws.ptr+WS_USED+65536), ctypes.c_size_t(z.nbytes), 2))
        print("   p1 chunk barrier cycles (median):", np.median(z[:,:8],axis=0).tolist())
    if o.get("bys"):
        ids=np.arange(256); xcd=ids&7; r=ids>>3; sg=((xcd>>1)&1)*8+(r>>2)
        print("   p1main->sig by s:"," ".join(f"{np.median(w[sg==k,3]-w[sg==k,2])/100:.2f}" for k in range(16)))
    if o.get("xcd"):
        ids=np.arange(len(w)); x=ids&7
        print("   per-XCD p2 dur:"," ".join(f"{np.median(w[x==k,7]-w[x==k,5])/100:.2f}" for k in range(8)), "| p2bar0:"," ".join(f"{np.median(w[x==k,5])/100:.2f}" for k in range(8)), "| p1main:"," ".join(f"{np.median(w[x==k,2])/100:.2f}" for k in range(8)), "| start by r:", " ".join(f"{np.median(w[(ids>>3)==k,0])/100:.2f}" for k in (0,8,16,24,31)))
        d=(w[:,7]-w[:,5])/100; print("   p2 dur within XCD0 by r:"," ".join(f"{d[8*k]:.1f}" for k in range(32)))
    ids=np.arange(256); xcd=ids&7; r=ids>>3; sg=((xcd>>1)&1)*8+(r>>2)
    print("   p1 by s (main,sig):"," ".join(f"{s_}:{np.median(w[sg==s_,2])/100:.1f},{np.median(w[sg==s_,3])/100:.1f}" for s_ in range(16)))
    print(tag," ".join(f"{n}:{np.median(w[:,i])/100:.1f}/{w[:,i].max()/100:.1f}" for i,n in enumerate(names)), "p2cyc(w0)",np.median(p2cyc),"w4 cyc",np.median(trc[:,0]+tr0),"w4 us",np.median(trc[:,1]+tr0)/100,"p1cyc",np.median(trc[:,2]+tr0), "p3trace(after poll2: loads issued, wo barrier, first data, step9)", (np.median(trc[:192]+tr0,axis=0)/100).tolist() if o.get("p3trace") else "", "p1trace(staged, reads done, stores issued)", (np.median(trc[:,:3],axis=0)/100).tolist() if o.get("p1trace") else "")
t=Timer()
res=[]
for it in range(6):
    bdbg.fill(0); sync(); t.start(); run(); res.append(round(t.stop(),1))
print("events warm:",res); show("warm med/max us:")
junk=Buf(512<<20); res=[]
MK=m.fn("k_mark"); bm=[Buf(64),Buf(64)]
def marked(cold):
    if cold:
        junk.fill(3); bws.fill(5); bout.fill(0x7f); sync()
        for b in range(2): bx[b].put(xs[b]); bw[b].put(ws_[b]); bo[b].put(wo[b])
    bdbg.fill(0); sync()
    t.start()
    launch(MK,(1,1,1),(64,1,1),[bm[0].ptr]+[0]*8); run(); launch(MK,(1,1,1),(64,1,1),[bm[1].ptr]+[0]*8)
    el=t.stop()
    w=np.empty((256,16),np.uint32)
    ck(hip.hipMemcpy(w.ctypes.data_as(ctypes.c_void_p), ctypes.c_void_p(bws.ptr+WS_USED), ctypes.c_size_t(w.nbytes), 2))
    a0=int(bm[0].get(np.uint32,(1,))[0]); a1=int(bm[1].get(np.uint32,(1,))[0])
    st=int(w[:,0].min()); en=int(w[:192,10].max())
    print("   marked cold" if cold else "   marked warm","events",round(el,1),"markA->first WG start",(st-a0)/100,"in-kernel",(en-st)/100,"last end->markB",(a1-en)/100)
res=[]
for it in range(4):
    m=Mod("t_fz.co"); F=m.fn(fz.NAME)
    junk.fill(it); bws.fill(it*37+1); bout.fill(0x7f); sync()
    for b in range(2): bx[b].put(xs[b]); bw[b].put(ws_[b]); bo[b].put(wo[b])
    bdbg.fill(0); sync(); t.start(); run(); res.append(round(t.stop(),1))
    show("fresh-module cold:")
print("events fresh module:",res)
res=[]
mism=0
for it in range(8):
    junk.fill(it); bws.fill(it*37+1); bout.fill(0x7f); sync()
    for b in range(2): bx[b].put(xs[b]); bw[b].put(ws_[b]); bo[b].put(wo[b])
    bdbg.fill(0); sync(); t.start(); run(); res.append(round(t.stop(),1))
    o2=bout.get(np.uint16,(2048,1152)); mism+=int((bf2f(o2)!=out0).sum())
print("events re-upload after flush:",res,"mismatches vs first:",mism); show("cold med/max us:")
xs2,ws2,wo2 = mk(1)
outs=[]
sets=[(xs,ws_,wo),(xs2,ws2,wo2)]
refs=[None,None]; bad=0
for it in range(int(o.get("stress",12))):
    X,W,WO=sets[it&1]
    for b in range(2): bx[b].put(X[b]); bw[b].put(W[b]); bo[b].put(WO[b])
    bdbg.fill(0); sync(); run(it%5); sync()
    o2=bout.get(np.uint16,(2048,1152))
    if refs[it&1] is None: refs[it&1]=o2
    else: bad+=int((refs[it&1]!=o2).sum())
print("alternating-input stress mismatches:",bad)
xs,ws_,wo=sets[(int(o.get("stress",12))-1)&1]; check("last")
```
